```python
import torch

def _softmax(x, axis=-1):
    return torch.softmax(x, dim=axis)
def _gelu(x):
    return torch.nn.functional.gelu(x, approximate="tanh")
def _silu(x):
    return torch.nn.functional.silu(x)
def _sigmoid(x):
    return torch.sigmoid(x)
def _layernorm(x, axis=-1, eps=1e-5):
    m = x.mean(dim=axis, keepdim=True)
    v = x.var(dim=axis, keepdim=True, unbiased=False)
    return (x - m) / torch.sqrt(v + eps)
def _scatter_add(tgt, idx, src, axis=0):
    return tgt.clone().index_add_(axis, idx, src)
def _segment_sum(src, seg, n):
    out = torch.zeros((n,) + src.shape[1:], dtype=src.dtype)
    return out.index_add_(0, seg, src)
def _pad(x, pw):
    flat = tuple(v for pair in reversed(pw) for v in pair)
    return torch.nn.functional.pad(x, flat)

kernel_name = 'gated_mix__mha_block__ssm_conv_s4d__prompt'

def setup_inputs():

    _w = (lambda a: (lambda t: t.to(torch.bfloat16) if t.is_floating_point() else t)(torch.as_tensor(a)))
    def _A_setup():
        B, S, D, H = 1, 2048, 448, 16
        return {
            "x": _w((lambda *s: torch.randn(*s, dtype=torch.bfloat16) * 0.05)(B, S, D)),
            "wqkv": _w((lambda *s: torch.randn(*s, dtype=torch.bfloat16) * 0.8)(D, 3 * D)),
            "wo": _w((lambda *s: torch.randn(*s, dtype=torch.bfloat16) * 0.05)(D, D)),
        }
    _A_in = _A_setup()

    def _B_setup():
        Bsz, L, D, N = 1, 2048, 448, 256
        return {
            "u": _w((lambda *s: torch.randn(*s, dtype=torch.bfloat16) * 0.05)(Bsz, L, D)),
            "log_A_real": _w((lambda *s: torch.randn(*s, dtype=torch.bfloat16) * 3.2)(D, N) * 0.5),
            "A_imag": _w((lambda *s: torch.randn(*s, dtype=torch.bfloat16) * 0.05)(D, N) * 3.14),
            "C_real": _w((lambda *s: torch.randn(*s, dtype=torch.bfloat16) * 0.8)(D, N) / N ** 0.5),
            "C_imag": _w((lambda *s: torch.randn(*s, dtype=torch.bfloat16) * 0.8)(D, N) / N ** 0.5),
            "log_dt": _w((lambda *s: torch.randn(*s, dtype=torch.bfloat16) * 0.05)(D) * 0.5 - 4.0),
            "D_skip": _w((lambda *s: torch.randn(*s, dtype=torch.bfloat16) * 0.1)(D)),
        }
    _B_in = _B_setup()

    return {
        "A_x": _A_in["x"],
        "A_wqkv": _A_in["wqkv"],
        "A_wo": _A_in["wo"],
        "B_u": _B_in["u"],
        "B_log_A_real": _B_in["log_A_real"],
        "B_A_imag": _B_in["A_imag"],
        "B_C_real": _B_in["C_real"],
        "B_C_imag": _B_in["C_imag"],
        "B_log_dt": _B_in["log_dt"],
        "B_D_skip": _B_in["D_skip"],
        "gate_w": _w((lambda *s: torch.randn(*s, dtype=torch.bfloat16) * 0.05)(448) * 16.0),
    }

def reference(A_x, A_wqkv, A_wo, B_u, B_log_A_real, B_A_imag, B_C_real, B_C_imag, B_log_dt, B_D_skip, gate_w):
    def _A_ref(x, wqkv, wo):
        B, S, D = x.shape
        H = 16
        Dh = D // H
        qkv = (lambda x, *d: x.permute(*d))((x @ wqkv).reshape(B, S, 3, H, Dh), 2, 0, 3, 1, 4)
        q, k, v = qkv[0], qkv[1], qkv[2]
        scores = torch.einsum("bhqd,bhkd->bhqk", q, k) * (Dh ** -0.5)
        p = _softmax(scores, axis=-1)
        o = torch.einsum("bhqk,bhkd->bhqd", p, v)
        return (lambda x, *d: x.permute(*d))(o, 0, 2, 1, 3).reshape(B, S, D) @ wo

    def _B_ref(u, log_A_real, A_imag, C_real, C_imag, log_dt, D_skip):
        L = u.shape[1]
        dt = torch.exp(log_dt)
        A = -torch.exp(log_A_real) + 1j * A_imag
        C = (C_real + 1j * C_imag) * dt[:, None]
        pos = (lambda x, dt: x.to(dt))(torch.arange(L), log_dt.dtype)
        P = torch.exp((A * dt[:, None])[:, :, None] * pos[None, None, :])
        K = 2.0 * torch.einsum("dn,dnl->dl", C, P).real
        L2 = 2 * L
        u_t = (lambda x, *d: x.permute(*d))(u, 0, 2, 1)
        Kf = (lambda x, *a, **k: torch.fft.rfft(x.float(), *a, **k))(K, L2)
        Uf = (lambda x, *a, **k: torch.fft.rfft(x.float(), *a, **k))(u_t, L2)
        y = (lambda x, *a, **k: torch.fft.irfft(x, *a, **k).to(torch.bfloat16))(Uf * Kf[None, :, :], L2)[:, :, :L]
        y = (lambda x, *d: x.permute(*d))(y, 0, 2, 1)
        return y + u * D_skip[None, None, :]

    x = A_x
    g = _sigmoid((x * gate_w).sum(-1, keepdims=True))
    a = _A_ref(x, A_wqkv, A_wo)
    b = _B_ref(x, B_log_A_real, B_A_imag, B_C_real, B_C_imag, B_log_dt, B_D_skip)
    return g * a + (1 - g) * b
```

```python
import sys
HEAD = """; @launch grid=({grid},1,1) block=({block},1,1) lds={lds}
.amdgcn_target "amdgcn-amd-amdhsa--gfx950"
.text
.globl mb_kernel
.p2align 8
.type mb_kernel,@function
mb_kernel:
    s_load_dwordx4 s[4:7], s[0:1], 0
    v_lshrrev_b32 v1, 6, v0
    s_nop 1
    v_readfirstlane_b32 s8, v1
    s_mul_i32 s9, s2, {wpb}
    s_add_u32 s9, s9, s8
    s_waitcnt lgkmcnt(0)
"""
TAIL = """
    s_sub_u32 s20, s22, s20
    v_mov_b32 v1, s20
    s_lshl_b32 s9, s9, 2
    v_mov_b32 v2, s9
    v_cmp_eq_u32 vcc, 0, v0
    v_and_b32 v3, 63, v0
    v_cmp_eq_u32 vcc, 0, v3
    s_and_saveexec_b64 s[12:13], vcc
    global_store_dword v2, v1, s[6:7]
    s_waitcnt vmcnt(0)
    s_endpgm
.section .rodata,"a"
.p2align 6
.amdhsa_kernel mb_kernel
  .amdhsa_next_free_vgpr {nv}
  .amdhsa_next_free_sgpr 64
  .amdhsa_accum_offset {nv}
  .amdhsa_group_segment_fixed_size 0
  .amdhsa_kernarg_size 16
  .amdhsa_user_sgpr_count 2
  .amdhsa_user_sgpr_kernarg_segment_ptr 1
  .amdhsa_system_sgpr_workgroup_id_x 1
.end_amdhsa_kernel
"""
def make(fname, body, iters, waves_per_simd, nv=128, init="", lds=None, grid=256):
    block = 256 * waves_per_simd
    if lds is None: lds = 100000
    s = HEAD.format(grid=grid, block=block, lds=lds, wpb=block // 64)
    for r in range(4, nv):
        s += f"    v_mov_b32 v{r}, 0.5\n"
    s += init
    s += f"""    s_barrier
    s_mov_b32 s10, {iters}
    s_memtime s[20:21]
    s_waitcnt lgkmcnt(0)
.p2align 6
L_loop:
{body}
    s_sub_u32 s10, s10, 1
    s_cmp_lg_u32 s10, 0
    s_cbranch_scc1 L_loop
    s_nop 15
    s_memtime s[22:23]
    s_waitcnt lgkmcnt(0)
"""
    s += TAIL.format(nv=nv)
    open(fname, "w").write(s)

if __name__ == "__main__":
    files = []
    for w in (1, 2, 4):
        body = "\n".join(f"    v_fma_f32 v{8+i}, v{8+i}, v4, v5" for i in range(64))
        make(f"fma_w{w}.s", body, 100, w); files.append(f"fma_w{w}.s")
        body = "\n".join(f"    v_mul_f32 v{8+i}, v{8+i}, v4" for i in range(64))
        make(f"mul_w{w}.s", body, 100, w); files.append(f"mul_w{w}.s")
        body = "\n".join(f"    v_exp_f32 v{8+i}, v{8+i}" for i in range(64))
        make(f"exp_w{w}.s", body, 100, w); files.append(f"exp_w{w}.s")
        body = "\n".join(f"    v_cvt_pk_bf16_f32 v{8+i}, v{8+i}, v5" for i in range(64))
        make(f"cvt_w{w}.s", body, 100, w); files.append(f"cvt_w{w}.s")
        body = "\n".join(f"    v_pk_fma_f32 v[{8+2*(i%32)}:{9+2*(i%32)}], v[{8+2*(i%32)}:{9+2*(i%32)}], v[4:5], v[6:7]" for i in range(64))
        make(f"pkfma_w{w}.s", body, 100, w); files.append(f"pkfma_w{w}.s")
        body = "\n".join(f"    v_pk_mul_f32 v[{8+2*(i%32)}:{9+2*(i%32)}], v[{8+2*(i%32)}:{9+2*(i%32)}], v[4:5]" for i in range(64))
        make(f"pkmul_w{w}.s", body, 100, w); files.append(f"pkmul_w{w}.s")
        body = "\n".join(f"    v_sin_f32 v{8+i}, v{8+i}" for i in range(64))
        make(f"sin_w{w}.s", body, 100, w); files.append(f"sin_w{w}.s")
        body = "\n".join(f"    v_exp_f16 v{8+i}, v{8+i}" for i in range(64))
        make(f"exph_w{w}.s", body, 100, w); files.append(f"exph_w{w}.s")
    print(" ".join(files))
```

```python
import gen1
from gen1 import HEAD, TAIL
files = []
def make(fname, pre, body, waves, nv=256, lds=131072):
    block = 64 * waves
    s = HEAD.format(grid=256, block=block, lds=lds, wpb=waves)
    s += pre
    s += "    s_barrier\n    s_memtime s[20:21]\n    s_waitcnt lgkmcnt(0)\n"
    s += body
    s += "    s_waitcnt vmcnt(0)\n    s_memtime s[22:23]\n    s_waitcnt lgkmcnt(0)\n"
    s += TAIL.format(nv=nv).replace("next_free_sgpr 64", "next_free_sgpr 96")
    open(fname, "w").write(s); files.append(fname)

pre = """    s_and_b32 s14, s2, 7
    s_mul_i32 s14, s14, 28
    s_lshr_b32 s15, s2, 3
    s_min_u32 s15, s15, 27
    s_add_u32 s14, s14, s15
    s_lshl_b32 s14, s14, 2
    s_mul_i32 s15, s8, 458752
    s_add_u32 s14, s14, s15
    s_add_u32 s4, s4, s14
    s_addc_u32 s5, s5, 0
    v_and_b32 v3, 63, v0
    v_mul_u32_u24 v4, 896, v3
"""
body = ""
for i in range(8):
    body += f"    global_load_dword v{8+i}, v4, s[4:5]\n    v_add_u32 v4, 57344, v4\n"
make("gather.s", pre, body, 4)
for fl in ("nt", "sc1", "sc0 sc1"):
    body = ""
    for i in range(8):
        body += f"    global_load_dword v{8+i}, v4, s[4:5] {fl}\n    v_add_u32 v4, 57344, v4\n"
    make("gather_" + fl.replace(" ", "") + ".s", pre, body, 4)

for name, stride in (("q64_s64", 64), ("q64_s128", 128), ("q64_s256", 256)):
    pre = f"""    s_and_b32 s14, s2, 7
    s_mul_i32 s14, s14, {112*16*stride*2}
    s_lshr_b32 s15, s2, 3
    s_and_b32 s15, s15, 1
    s_mul_i32 s15, s15, {112*16*stride}
    s_add_u32 s14, s14, s15
    s_mul_i32 s15, s8, {28*16*stride}
    s_add_u32 s14, s14, s15
    s_add_u32 s4, s4, s14
    s_addc_u32 s5, s5, 0
    v_and_b32 v3, 3, v0
    v_lshlrev_b32 v4, 4, v3
    v_bfe_u32 v3, v0, 2, 4
    v_mul_u32_u24 v3, {stride}, v3
    v_add_u32 v4, v4, v3
"""
    body = ""
    for i in range(28):
        body += f"    global_load_dwordx4 v[{8+4*i}:{11+4*i}], v4, s[4:5]\n    v_add_u32 v4, {16*stride}, v4\n"
    make(name + ".s", pre, body, 4)
for name, seg in (("seg32", 2), ("seg128", 8)):
    stride = 896
    pre = f"""    s_and_b32 s14, s2, 7
    s_mul_i32 s14, s14, {229376}
    s_mul_i32 s15, s8, {32*896}
    s_add_u32 s14, s14, s15
    s_add_u32 s4, s4, s14
    s_addc_u32 s5, s5, 0
    v_and_b32 v3, {seg-1}, v0
    v_lshlrev_b32 v4, 4, v3
    v_bfe_u32 v3, v0, {seg.bit_length()-1}, {6-(seg.bit_length()-1)}
    v_mul_u32_u24 v3, {stride}, v3
    v_add_u32 v4, v4, v3
"""
    body = ""
    for i in range(28):
        if seg == 2:
            body += f"    global_load_dwordx4 v[{8+4*i}:{11+4*i}], v4, s[4:5] offset:{i*32}\n"
        else:
            body += f"    global_load_dwordx4 v[{8+4*i}:{11+4*i}], v4, s[4:5] offset:{(i%7)*128}\n"
            if i % 7 == 6: body += f"    v_add_u32 v4, {8*896}, v4\n"
    make(name + ".s", pre, body, 4)
pre = """    s_lshr_b32 s14, s2, 3
    s_and_b32 s14, s14, 15
    s_mul_i32 s14, s14, 168
    s_and_b32 s14, s14, 0xfffffff0
    s_mul_i32 s15, s8, 301056
    s_add_u32 s14, s14, s15
    s_add_u32 s4, s4, s14
    s_addc_u32 s5, s5, 0
    v_and_b32 v3, 63, v0
"""
for i in range(20):
    pre += f"""    v_add_u32 v5, {i*64}, v3
    v_mul_u32_u24 v6, 5958, v5
    v_lshrrev_b32 v6, 16, v6
    v_mul_u32_u24 v7, 11, v6
    v_sub_u32 v7, v5, v7
    v_mul_u32_u24 v6, 2688, v6
    v_lshl_add_u32 v{100+i}, v7, 4, v6
"""
body = "".join(f"    global_load_dwordx4 v[{8+4*i}:{11+4*i}], v{100+i}, s[4:5]\n" for i in range(20))
make("wpat.s", pre, body, 4)
print(" ".join(files))
```

```python
import math, struct

NAME = "gated_mix__mha_block__ssm_conv_s4d__prompt"

TILE_B = 28672
WS_Q  = 0x000000
WS_K  = 0x200000
WS_V  = 0x400000
WS_UT = 0x600000
WS_KC = 0x800000
WS_GT = 0xA00000
WS_O  = 0xC00000
WS_BP = 0xE00000

X_BYTES = 2048 * 896
W_BYTES = 448 * 2688
WO_BYTES = 448 * 896

def f32(x):
    return "0x%08x" % struct.unpack("<I", struct.pack("<f", x))[0]

LOG2E = math.log2(math.e)
QSCALE = (28 ** -0.5) * LOG2E

class Asm:
    def __init__(self):
        self.lines = []
    def __call__(self, s):
        for l in s.split("\n"):
            l = l.strip()
            if l:
                self.lines.append(l if l.endswith(":") else "    " + l)
    def label(self, n):
        self.lines.append(n + ":")
    def extend(self, other):
        self.lines.extend(other.lines if isinstance(other, Asm) else other)
    def text(self):
        return "\n".join(self.lines) + "\n"

def vr(b, n=1):
    return f"v{b}" if n == 1 else f"v[{b}:{b+n-1}]"
def sr(b, n=1):
    return f"s{b}" if n == 1 else f"s[{b}:{b+n-1}]"

def mfma(d, a, b, c=None):
    cs = "0" if c is None else vr(c, 16)
    return f"v_mfma_f32_32x32x16_bf16 {vr(d,16)}, {vr(a,4)}, {vr(b,4)}, {cs}"

def kernel_head(label):
    return f""".globl {label}
.p2align 8
.type {label},@function
{label}:
"""

def kernel_desc(label, nv, ns=96):
    nv4 = (nv + 3) // 4 * 4
    return f""".p2align 6
.amdhsa_kernel {label}
  .amdhsa_next_free_vgpr {nv}
  .amdhsa_next_free_sgpr {ns}
  .amdhsa_accum_offset {nv4}
  .amdhsa_group_segment_fixed_size 0
  .amdhsa_kernarg_size 112
  .amdhsa_user_sgpr_count 2
  .amdhsa_user_sgpr_kernarg_segment_ptr 1
  .amdhsa_system_sgpr_workgroup_id_x 1
.end_amdhsa_kernel
"""

import os
PROF = os.environ.get('PROF') == '1'
WS_PROF = 0x1000000
def stamp(a, i):
    if PROF:
        a(f"s_memtime s[{64+2*i}:{65+2*i}]\ns_waitcnt lgkmcnt(0)")
def prof_begin(a):
    if PROF:
        a("s_memrealtime s[88:89]\ns_memtime s[64:65]")
        for i in range(1, 12):
            a(f"s_mov_b32 s{64+2*i}, 0")
def prof_end(a, kern, s_ws, s_wave):
    if PROF:
        a(f"""
        s_memtime s[86:87]
        s_memrealtime s[90:91]
        s_waitcnt lgkmcnt(0)
        s_mov_b64 exec, 1
        s_lshl_b32 s92, s2, 3
        s_add_u32 s92, s92, s{s_wave}
        s_lshl_b32 s92, s92, 6
        s_add_u32 s92, s92, {WS_PROF + kern * 256 * 8 * 64}
        v_mov_b32 v60, s92
        """)
        for i in range(12):
            a(f"v_mov_b32 v61, s{64+2*i}\nglobal_store_dword v60, v61, s[{s_ws}:{s_ws+1}] offset:{4*i}")
        a(f"v_mov_b32 v61, s88\nglobal_store_dword v60, v61, s[{s_ws}:{s_ws+1}] offset:48")
        a(f"v_mov_b32 v61, s90\nglobal_store_dword v60, v61, s[{s_ws}:{s_ws+1}] offset:52")
        a(f"s_getreg_b32 s92, hwreg(HW_REG_HW_ID)\nv_mov_b32 v61, s92\nglobal_store_dword v60, v61, s[{s_ws}:{s_ws+1}] offset:56")
        a(f"s_getreg_b32 s92, hwreg(HW_REG_XCC_ID)\nv_mov_b32 v61, s92\nglobal_store_dword v60, v61, s[{s_ws}:{s_ws+1}] offset:60")

def endp(lbl):
    return f"s_branch {lbl}" if PROF else "s_endpgm"
```

```python
from common import *

SLOT = 28672
TAB_B = 32 * 272
L_TAB = 0
SLOT_AT = [4 * TAB_B + i * SLOT for i in range(4)] + [0]
L_XCH = 4 * TAB_B + 4 * SLOT
L_GATE = L_XCH + 6144
K1_LDS = L_GATE + 1024
IT_SLOT = [0, 1, 2, 3, 4, 0, 1]
BASES = [0, SLOT_AT[1], SLOT_AT[3]]
def slot_base(slot):
    at = SLOT_AT[slot]
    b = max(i for i in range(3) if BASES[i] <= at)
    assert at - BASES[b] + SLOT <= 65536
    return b, at - BASES[b]
ST = os.environ.get("ST1", "")

S_X, S_W = 4, 6
S_LA, S_AI, S_CR, S_CI = 8, 10, 12, 14
S_LDT, S_DSK, S_GW, S_WS = 16, 18, 20, 22
S_WAVE, S_RB, S_CB, S_P = 24, 25, 26, 27
SRD_X, SRD_W, SRD_G = 28, 32, 36
T0, T1, T2, T3 = 40, 41, 42, 43

def cmul(a, dst, x, y, t):
    return [f"v_pk_mul_f32 {vr(t,2)}, {vr(x,2)}, {vr(y,2)} op_sel:[0,0] op_sel_hi:[1,0]",
            f"v_pk_fma_f32 {vr(dst,2)}, {vr(x,2)}, {vr(y,2)}, {vr(t,2)} op_sel:[1,1,0] op_sel_hi:[0,1,1] neg_lo:[1,0,0]"]

def kgen_round(rnd):
    I = []
    W1, W8, W256, W16, C = 26, 28, 30, 32, 34
    def unpack(d, s):
        return f"v_lshlrev_b32 v{d}, 16, v{s}" if rnd == 0 else f"v_and_b32 v{d}, 0xffff0000, v{s}"
    I += [unpack(36, 8), unpack(37, 9),
          f"v_mul_f32 v36, {f32(LOG2E)}, v36",
          unpack(C, 10),
          "v_exp_f32 v36, v36",
          unpack(C + 1, 11),
          "v_mul_f32 v37, v37, v12",
          "v_cvt_pk_bf16_f32 v36, v36, v36",
          f"v_mul_f32 v37, {f32(1/(2*math.pi))}, v37",
          "v_and_b32 v36, 0xffff0000, v36",
          f"v_mul_f32 v{C}, v{C}, v13",
          "v_mul_f32 v36, v36, v12",
          f"v_mul_f32 v{C+1}, v{C+1}, v13",
          f"v_mul_f32 v36, {f32(-LOG2E)}, v36",
          "v_mul_f32 v38, 0x41000000, v37",
          "v_mul_f32 v39, 0x43800000, v37",
          "v_mul_f32 v40, 0x41000000, v36",
          "v_mul_f32 v41, 0x43800000, v36",
          "v_fract_f32 v38, v38",
          "v_fract_f32 v39, v39",
          "v_fract_f32 v37, v37",
          "v_exp_f32 v40, v40",
          f"v_cos_f32 v{W8}, v38",
          f"v_sin_f32 v{W8+1}, v38",
          "v_exp_f32 v36, v36",
          f"v_pk_mul_f32 {vr(W8,2)}, {vr(W8,2)}, v[40:41] op_sel_hi:[1,0]",
          f"v_cos_f32 v{W1}, v37",
          f"v_sin_f32 v{W1+1}, v37"]
    I += cmul(None, W16, W8, W8, 42)
    I += [f"v_pk_mul_f32 {vr(W1,2)}, {vr(W1,2)}, v[36:37] op_sel_hi:[1,0]",
          "v_exp_f32 v40, v41",
          f"v_cos_f32 v{W256}, v39",
          f"v_sin_f32 v{W256+1}, v39",
          "v_mov_b32 v48, 0x3f80",
          f"v_pk_mul_f32 {vr(W256,2)}, {vr(W256,2)}, v[40:41] op_sel_hi:[1,0]"]
    E, O = 44, 46
    for j in range(16):
        pe, po = (48, 49) if j % 2 == 0 else (50, 51)
        se = W16 if j == 1 else E
        so = W8 if j == 0 else O
        if j > 0:
            I.append(f"v_cvt_pk_bf16_f32 v{pe}, v{se}, v{se+1}")
        I.append(f"v_cvt_pk_bf16_f32 v{po}, v{so}, v{so+1}")
        nxt = []
        if j < 15:
            a = cmul(None, O, so, W16, 42)
            if j >= 1:
                b = cmul(None, E, se, W16, 52)
                nxt = [a[0], b[0], a[1], b[1]]
            else:
                nxt = a
        w0 = f"ds_write_addtid_b32 v{pe} offset:{2*j*272}"
        w1 = f"ds_write_addtid_b32 v{po} offset:{(2*j+1)*272}"
        I += nxt[:1] + [w0] + nxt[1:2] + [w1] + nxt[2:]
    for ks in range(8):
        I.append(f"ds_read_b128 {vr(80 + 4*ks, 4)}, v24 offset:{32*ks}")
    U = {0: C}
    for i in range(1, 8):
        U[i] = 60 + 2 * (i - 1)
    def pk(d, u):
        return f"v_cvt_pk_bf16_f32 v{d}, v{u}, -v{u+1}"
    def wr2(r0, r1, p0, p1):
        return f"ds_write_addtid_b32 v{p0} offset:{r0*272}\nds_write_addtid_b32 v{p1} offset:{r1*272}"
    B, D = 74, 76
    P8, P10, P12, P14, P16, P17 = 54, 55, 56, 57, 58, 59
    def inter(x, y):
        return [x[0], y[0], x[1], y[1]]
    I += inter(cmul(None, U[1], U[0], W1, 42), cmul(None, B, U[0], W256, 52))
    I += [pk(48, U[0]), pk(49, U[1]), pk(P8, B)]
    I += inter(cmul(None, U[2], U[1], W1, 42), cmul(None, B, B, W256, 52))
    I += [wr2(0, 1, 48, 49), pk(P12, B)]
    I += inter(cmul(None, U[3], U[2], W1, 42), cmul(None, B, B, W256, 52))
    I += [pk(50, U[2]), pk(51, U[3]), pk(P14, B)]
    I += inter(cmul(None, U[4], U[3], W1, 42), cmul(None, B, B, W256, 52))
    I += [wr2(2, 3, 50, 51), pk(P16, B)]
    I += inter(cmul(None, U[5], U[4], W1, 42), cmul(None, B, B, W256, 52))
    I += [pk(48, U[4]), pk(49, U[5]), pk(P17, B)]
    I += inter(cmul(None, U[6], U[5], W1, 42), cmul(None, B, B, W256, 52))
    I += [wr2(4, 5, 48, 49), pk(38, B)]
    I += inter(cmul(None, U[7], U[6], W1, 42), cmul(None, B, B, W256, 52))
    I += [wr2(18, 19, P16, 38), pk(50, U[6]), pk(51, U[7]), pk(39, B)]
    I += inter(cmul(None, D, U[4], W256, 42), cmul(None, B, B, W256, 52))
    I += [wr2(6, 7, 50, 51), wr2(22, 23, P17, 39), pk(P10, D), pk(48, B)]
    I += inter(cmul(None, D, D, W256, 42), cmul(None, B, U[2], W256, 52))
    I += [wr2(10, 11, P10, 48), pk(49, D), pk(50, B)]
    I += inter(cmul(None, D, D, W256, 42), cmul(None, B, U[6], W256, 52))
    I += [wr2(16, 17, P12, 49), wr2(8, 9, P8, 50), pk(51, D), pk(38, B)]
    I += [f"ds_write_addtid_b32 v{P8} offset:{14*272}",
          wr2(20, 21, P14, 51), wr2(12, 13, P10, 38)]
    for ks in range(8):
        I.append(f"ds_read_b128 {vr(112 + 4*ks, 4)}, v24 offset:{32*ks}")
    for ks in range(8):
        I.append(f"s_waitcnt lgkmcnt({7-ks})")
        I.append(mfma(144, 112 + 4*ks, 80 + 4*ks, None if (rnd == 0 and ks == 0) else 144))
    return I

def kgen_expand(a, store):
    A = 144
    a(f"""
    v_mov_b32 v36, 0
    v_and_b32 v37, 1, v0
    v_writelane_b32 v36, s44, 0
    v_cmp_eq_u32 vcc, 1, v37
    v_mov_b32_dpp v40, v{A+8} wave_rol:1 row_mask:0xf bank_mask:0xf
    v_mov_b32_dpp v41, v{A+10} wave_rol:1 row_mask:0xf bank_mask:0xf
    v_mov_b32_dpp v42, v{A+11} wave_rol:1 row_mask:0xf bank_mask:0xf
    v_mov_b32_dpp v43, v{A+7} wave_rol:1 row_mask:0xf bank_mask:0xf
    v_add_f32 v{A}, v{A}, v36
    v_mov_b32_dpp v40, v{A+6} wave_shl:1 row_mask:0xc bank_mask:0xf
    v_mov_b32_dpp v41, v{A+8} wave_shl:1 row_mask:0xf bank_mask:0xf
    v_mov_b32_dpp v42, v{A+10} wave_shl:1 row_mask:0xf bank_mask:0xf
    v_mov_b32_dpp v43, v{A+11} wave_shl:1 row_mask:0xf bank_mask:0xf
    v_mov_b32_dpp v40, v{A+6} quad_perm:[0,1,2,3] row_mask:0x3 bank_mask:0xf
    v_cvt_pk_bf16_f32 v44, v{A}, v{A+1}
    v_cvt_pk_bf16_f32 v45, v{A+2}, v{A+3}
    v_cvt_pk_bf16_f32 v46, v{A+4}, v{A+4}
    v_cvt_pk_bf16_f32 v47, v{A+5}, v40
    v_cvt_pk_bf16_f32 v48, v{A+8}, v{A+8}
    v_cvt_pk_bf16_f32 v49, v{A+8}, v{A+9}
    v_cvt_pk_bf16_f32 v50, v{A+9}, v{A+9}
    v_cvt_pk_bf16_f32 v51, v41, v41
    v_cndmask_b32 v38, v{A+10}, v42, vcc
    v_cndmask_b32 v39, v{A+11}, v43, vcc
    v_cvt_pk_bf16_f32 v52, v{A+10}, v{A+10}
    v_cvt_pk_bf16_f32 v54, v38, v42
    v_cvt_pk_bf16_f32 v55, v42, v42
    v_mov_b32 v53, v52
    v_cvt_pk_bf16_f32 v56, v{A+11}, v{A+11}
    v_cvt_pk_bf16_f32 v58, v39, v43
    v_cvt_pk_bf16_f32 v59, v43, v43
    v_mov_b32 v57, v56
    """)
    store(2, 44, 0)
    store(2, 46, 512)
    store(4, 48, 1024)
    store(4, 52, 2048)
    store(4, 56, 3072)

def dma_setup(a, sw):
    a(f"""
    s_lshl_b32 s45, s{sw}, 10
    v_lshrrev_b32 v4, 3, v0
    s_lshl_b32 s{T1}, s{sw}, 3
    v_add_u32 v4, s{T1}, v4                ; row0
    v_lshrrev_b32 v5, 1, v4
    v_xor_b32 v5, v5, v0
    v_and_b32 v5, 7, v5
    v_mul_u32_u24 v2, 896, v4
    v_lshl_add_u32 v2, v5, 4, v2
    v_lshrrev_b32 v4, 4, v0
    v_lshlrev_b32 v5, 2, v4
    v_xor_b32 v5, v5, v0
    v_and_b32 v5, 15, v5
    s_lshl_b32 s{T1}, s{sw}, 2
    v_add_u32 v4, s{T1}, v4
    v_mul_u32_u24 v3, 2688, v4
    v_lshl_add_u32 v3, v5, 4, v3
    """)

def srd_setup(a):
    a(f"""
    s_mul_i32 s{T0}, s{S_RB}, {96*896}
    s_add_u32 s{SRD_X}, s{S_X}, s{T0}
    s_addc_u32 s{SRD_X+1}, s{S_X+1}, 0
    s_sub_u32 s{SRD_X+2}, {X_BYTES}, s{T0}
    s_mov_b32 s{SRD_X+3}, 0x20000
    s_lshl_b32 s{T0}, s{S_CB}, 8
    s_add_u32 s{SRD_W}, s{S_W}, s{T0}
    s_addc_u32 s{SRD_W+1}, s{S_W+1}, 0
    s_sub_u32 s{SRD_W+2}, {W_BYTES}, s{T0}
    s_mov_b32 s{SRD_W+3}, 0x20000
    s_cmp_ge_u32 s{S_RB}, 22
    s_cselect_b32 s{SRD_X+2}, 0, s{SRD_X+2}
    s_cselect_b32 s{SRD_W+2}, 0, s{SRD_W+2}
    """)

def dma_chunk(a, it):
    slot = SLOT_AT[IT_SLOT[it]]
    a(f"""
    s_mul_i32 s58, s57, {64*2688}
    s_lshl_b32 s59, s57, 7
    """)
    for j in range(4):
        a(f"s_add_u32 m0, s45, {slot + 12288 + j*4096}")
        a(f"s_add_u32 s{T0}, s58, {16*j*2688}")
        a(f"buffer_load_dwordx4 v3, {sr(SRD_W,4)}, s{T0} offen lds")
        if j < 3:
            a(f"s_add_u32 m0, s45, {slot + j*4096}")
            a(f"s_add_u32 s{T1}, s59, {j*32*896}")
            a(f"buffer_load_dwordx4 v2, {sr(SRD_X,4)}, s{T1} offen lds")
    a(f"""
    s_add_u32 s57, s57, 1
    s_cmp_eq_u32 s57, 7
    s_cselect_b32 s57, 0, s57
    """)

XA, WA = 128, 140
WF, XF, ACC = 16, 32, 80

def gemm_body(a, kind, tag):
    def reads(g):
        it, ks = divmod(g, 4)
        b, off = slot_base(IT_SLOT[it])
        r = []
        if kind == "gate":
            r.append(f"ds_read_b128 {vr(WF+4*ks,4)}, v8 offset:{32*ks}")
        else:
            r.append(f"ds_read_b64_tr_b16 {vr(WF+4*ks,2)}, v{WA+b} offset:{off + ks*4096}")
            r.append(f"ds_read_b64_tr_b16 {vr(WF+4*ks+2,2)}, v{WA+b} offset:{off + ks*4096+1024}")
        for i in range(3):
            r.append(f"ds_read_b128 {vr(XF+12*ks+4*i,4)}, v{XA+4*b+ks} offset:{off + i*4096}")
        return r
    n = 4 if kind == "gate" else 5
    def mm(g, i):
        ks = g % 4
        w, x, d = WF + 4*ks, XF + 12*ks + 4*i, ACC + 16*i
        c = None if g == 0 else d
        return mfma(d, x, w, c) if kind == "v" else mfma(d, w, x, c)
    def barrier(it):
        if it < 4:
            a(f"s_waitcnt vmcnt({21 - 7*it})")
        a("s_barrier")
        stamp(a, 2 + it)
        if kind == "gate" and it > 0:
            a(f"""
            s_add_u32 s46, s46, 1
            s_cmp_eq_u32 s46, 7
            s_cselect_b32 s46, 0, s46
            s_lshl_b32 s47, s46, 7
            v_add_u32 v8, s47, v9
            """)
    barrier(0)
    if kind != "gate":
        b, off = slot_base(IT_SLOT[0])
        assert b == 0
        a(f"""
        s_cmp_ge_u32 s{S_CB}, 7
        s_cbranch_scc1 L1_noT_{tag}
        """)
        for i in range(3):
            a(f"ds_read_b64_tr_b16 {vr(144+4*i,2)}, v9 offset:{off + i*4096}")
            a(f"ds_read_b64_tr_b16 {vr(146+4*i,2)}, v9 offset:{off + i*4096+2048}")
        a(f"""
        s_waitcnt lgkmcnt(0)
        buffer_store_dwordx4 v[144:147], v10, s[60:63], 0 offen {ST}
        buffer_store_dwordx4 v[148:151], v11, s[60:63], 0 offen {ST}
        buffer_store_dwordx4 v[152:155], v12, s[60:63], 0 offen {ST}
        """)
        a.label(f"L1_noT_{tag}")
    for r in reads(0) + reads(1): a(r)
    for g in range(28):
        nxt = []
        if g + 2 < 28:
            if (g + 2) % 4 == 0:
                barrier((g + 2) // 4)
            nxt = reads(g + 2)
        a(f"s_waitcnt lgkmcnt({n if g < 27 else 0})")
        a(mm(g, 0))
        for r in nxt[:2]: a(r)
        a(mm(g, 1))
        for r in nxt[2:4]: a(r)
        a(mm(g, 2))
        for r in nxt[4:]: a(r)

def k1():
    a = Asm()
    a(f"""
    s_cmp_ge_u32 s2, 256
    s_cbranch_scc1 L1_quit
    """)
    prof_begin(a)
    a(f"""
    s_load_dwordx4 s[4:7], s[0:1], 0
    s_load_dwordx8 s[8:15], s[0:1], 32
    s_load_dwordx4 s[16:19], s[0:1], 64
    s_load_dwordx2 s[20:21], s[0:1], 80
    s_load_dwordx2 s[22:23], s[0:1], 104
    v_lshrrev_b32 v1, 6, v0
    v_and_b32 v0, 63, v0
    s_and_b32 s{T0}, s2, 7
    v_readfirstlane_b32 s{S_WAVE}, v1
    s_lshr_b32 s{T1}, s2, 3
    s_mul_i32 s{T0}, s{T0}, 31
    s_add_u32 s{T0}, s{T0}, s{T1}          ; t
    s_cmp_ge_u32 s{T1}, 31
    s_cselect_b32 s{T0}, 242, s{T0}
    s_min_u32 s{T0}, s{T0}, 242
    s_mov_b32 s{T2}, 205
    s_cmp_lt_u32 s{T0}, 110
    s_cselect_b32 s{T1}, 0, 110
    s_cselect_b32 s{T2}, s{T2}, 171
    s_cselect_b32 s{T3}, 5, 6
    s_cselect_b32 s{S_CB}, 0, 5
    s_sub_u32 s{T0}, s{T0}, s{T1}
    s_mul_i32 s{S_RB}, s{T0}, s{T2}
    s_lshr_b32 s{S_RB}, s{S_RB}, 10
    s_mul_i32 s{T1}, s{S_RB}, s{T3}
    s_sub_u32 s{T0}, s{T0}, s{T1}
    s_add_u32 s{S_CB}, s{S_CB}, s{T0}
    s_add_u32 s57, s{S_RB}, s{S_CB}
    s_mul_i32 s{T0}, s57, 37
    s_lshr_b32 s{T0}, s{T0}, 8
    s_mul_i32 s{T0}, s{T0}, 7
    s_sub_u32 s57, s57, s{T0}
    {"s_mov_b32 s57, 0" if os.environ.get("NOROT") else ""}
    s_min_u32 s{S_P}, s2, 223
    s_and_b32 s50, s{S_WAVE}, 3
    """)
    dma_setup(a, 50)
    a(f"""
    s_cmp_ge_u32 s{S_WAVE}, 4
    s_cbranch_scc0 L1_gemm
    """)
    a(f"""
    s_lshl_b32 s{T0}, s{S_P}, 10
    s_lshl_b32 s{T1}, s50, 8
    s_add_u32 s{T0}, s{T0}, s{T1}
    v_lshl_add_u32 v1, v0, 2, s{T0}
    s_lshl_b32 s{T2}, s{S_P}, 2
    s_waitcnt lgkmcnt(0)
    global_load_dword v8, v1, s[8:9]
    global_load_dword v9, v1, s[10:11]
    global_load_dword v10, v1, s[12:13]
    global_load_dword v11, v1, s[14:15]
    s_barrier
    s_load_dword s51, s[16:17], s{T2}
    s_load_dword s52, s[18:19], s{T2}
    """)
    srd_setup(a)
    a(f"""
    s_add_u32 s57, s57, 4
    s_sub_u32 s{T0}, s57, 7
    s_cmp_ge_u32 s57, 7
    s_cselect_b32 s57, s{T0}, s57
    s_mul_i32 s{T0}, s50, {TAB_B}
    s_mov_b32 m0, s{T0}
    v_and_b32 v4, 31, v0
    v_lshrrev_b32 v5, 5, v0
    v_mul_u32_u24 v24, 272, v4
    v_lshl_add_u32 v24, v5, 4, v24
    v_add_u32 v24, s{T0}, v24
    s_lshr_b32 s{T0}, s50, 1
    s_mul_i32 s{T0}, s{T0}, 3072
    s_add_u32 s{T0}, s{T0}, {L_XCH}
    v_lshl_add_u32 v25, v0, 4, s{T0}
    s_waitcnt lgkmcnt(0)
    s_lshl_b32 s{T1}, s51, 16
    s_and_b32 s51, s51, 0xffff0000
    s_lshl_b32 s{T2}, s52, 16
    s_and_b32 s52, s52, 0xffff0000
    s_cmp_ge_u32 s50, 2
    s_cselect_b32 s51, s51, s{T1}
    s_cselect_b32 s44, s52, s{T2}
    v_mov_b32 v12, s51
    v_mul_f32 v12, {f32(LOG2E)}, v12
    v_exp_f32 v12, v12
    s_nop 0
    v_cvt_pk_bf16_f32 v12, v12, v12
    v_and_b32 v12, 0xffff0000, v12         ; dt
    v_add_f32 v13, v12, v12                ; 2 dt
    s_waitcnt vmcnt(0)
    """)
    stamp(a, 1)
    for ins in kgen_round(0): a(ins)
    stamp(a, 9)
    for ins in kgen_round(1): a(ins)
    stamp(a, 10)
    a(f"""
    s_bitcmp1_b32 s50, 0
    s_cbranch_scc0 L1_even
    s_nop 9
    ds_write_b128 v25, v[144:147]
    ds_write_b128 v25, v[148:151] offset:1024
    ds_write_b128 v25, v[152:155] offset:2048
    s_waitcnt lgkmcnt(0)
L1_even:
    s_barrier
    """)
    stamp(a, 2)
    dma_chunk(a, 4)
    a(f"""
    s_barrier
    s_bitcmp1_b32 s50, 0
    s_cbranch_scc1 L1_nofin
    s_cmp_ge_u32 s2, 224
    s_cbranch_scc1 L1_nofin
    ds_read_b128 v[60:63], v25
    ds_read_b128 v[64:67], v25 offset:1024
    ds_read_b128 v[68:71], v25 offset:2048
    s_lshl_b32 s{T0}, s{S_P}, 13
    s_lshl_b32 s{T1}, s50, 11
    s_add_u32 s{T0}, s{T0}, s{T1}
    s_add_u32 s{T0}, s{T0}, {WS_KC}
    s_add_u32 s48, s{S_WS}, s{T0}
    s_addc_u32 s49, s{S_WS+1}, 0
    v_lshlrev_b32 v6, 4, v0                ; lane*16
    v_lshlrev_b32 v7, 4, v4
    v_lshl_add_u32 v7, v5, 3, v7           ; 16 j + 8 hi
    s_waitcnt lgkmcnt(0)
    """)
    for i in range(12):
        a(f"v_add_f32 v{144+i}, v{144+i}, v{60+i}")
    def store(nd, reg, off):
        if nd == 2:
            a(f"global_store_dwordx2 v7, {vr(reg,2)}, s[48:49] offset:{off} {ST}")
        else:
            a(f"global_store_dwordx4 v6, {vr(reg,4)}, s[48:49] offset:{off} {ST}")
    kgen_expand(a, store)
    a.label("L1_nofin")
    a("s_barrier")
    dma_chunk(a, 5)
    a("s_barrier")
    dma_chunk(a, 6)
    for w in (14, 7, 0):
        a(f"s_waitcnt vmcnt({w})\ns_barrier")
    a(endp("L1_end"))

    a.label("L1_gemm")
    a(f"""
    s_mov_b32 s46, s57
    v_lshlrev_b32 v10, 4, v0
    s_mov_b32 m0, {L_GATE}
    s_waitcnt lgkmcnt(0)
    s_mov_b32 s{SRD_G}, s{S_GW}
    s_mov_b32 s{SRD_G+1}, s{S_GW+1}
    s_mov_b32 s{SRD_G+2}, 896
    s_mov_b32 s{SRD_G+3}, 0x20000
    """)
    srd_setup(a)
    a(f"s_barrier\nbuffer_load_dwordx4 v10, {sr(SRD_G,4)}, 0 offen lds")
    for it in range(4):
        dma_chunk(a, it)
    stamp(a, 1)
    a(f"""
    s_lshl_b32 s53, s{S_CB}, 2
    s_add_u32 s53, s53, s{S_WAVE}          ; CT
    v_and_b32 v1, 31, v0
    v_lshrrev_b32 v2, 5, v0                ; hi
    v_lshrrev_b32 v3, 1, v0
    v_and_b32 v3, 7, v3
    v_xor_b32 v3, v3, v2
    v_lshlrev_b32 v{XA}, 7, v1
    v_lshl_add_u32 v{XA}, v3, 4, v{XA}
    v_xor_b32 v{XA+1}, 32, v{XA}
    v_xor_b32 v{XA+2}, 64, v{XA}
    v_xor_b32 v{XA+3}, 96, v{XA}
    """)
    for b in (1, 2):
        for ks in range(4):
            a(f"v_add_u32 v{XA+4*b+ks}, {BASES[b]}, v{XA+ks}")
    a(f"""
    v_and_b32 v4, 15, v0                   ; row
    v_lshrrev_b32 v5, 4, v0                ; gamma
    s_lshl_b32 s{T0}, s{S_WAVE}, 1
    v_lshrrev_b32 v6, 1, v5
    v_add_u32 v6, s{T0}, v6                ; unit
    v_lshrrev_b32 v7, 1, v4
    v_xor_b32 v6, v6, v7
    v_lshlrev_b32 v9, 7, v4
    v_lshl_add_u32 v9, v6, 4, v9
    v_and_b32 v6, 1, v5                    ; ih
    v_lshl_add_u32 v9, v6, 3, v9
    s_mul_i32 s{T0}, s{S_RB}, {3*TILE_B}
    s_lshl_b32 s{T1}, s46, 12
    s_add_u32 s{T1}, s{T1}, s45
    s_add_u32 s{T1}, s{T1}, s{T0}
    v_add_u32 v10, s{T1}, v10
    v_add_u32 v11, {TILE_B}, v10
    v_add_u32 v12, {2*TILE_B}, v10
    s_add_u32 s60, s{S_WS}, {WS_UT}
    s_addc_u32 s61, s{S_WS+1}, 0
    s_mov_b32 s62, {64*TILE_B}
    s_mov_b32 s63, 0x20000
    v_bfe_u32 v4, v0, 2, 2                 ; r
    v_lshl_add_u32 v13, v2, 3, v4          ; 8 hi + r
    v_lshlrev_b32 v8, 8, v13
    v_xor_b32 v13, s{S_WAVE}, v4
    v_lshl_add_u32 v8, v13, 6, v8
    v_lshl_add_u32 v8, v6, 5, v8
    v_add_u32 v8, 12288, v8
    v_and_b32 v13, 3, v0                   ; c
    s_cmp_ge_u32 s53, 42
    s_cbranch_scc1 L1_gate
    s_cmp_ge_u32 s53, 28
    s_cbranch_scc1 L1_v
    v_and_b32 v14, 1, v13
    v_lshrrev_b32 v13, 1, v13
    v_lshl_add_u32 v13, v14, 1, v13
    """)
    wa = f"""
    v_lshl_add_u32 v{WA}, v13, 3, v8
    v_add_u32 v{WA+1}, {BASES[1]}, v{WA}
    v_add_u32 v{WA+2}, {BASES[2]}, v{WA}
    """
    a(wa)
    gemm_body(a, "qk", "qk")
    a(f"""
    s_cmp_ge_u32 s53, 14
    s_cselect_b32 s54, 1.0, {f32(QSCALE)}
    s_cselect_b32 s{T0}, {WS_K - 14*2048}, {WS_Q}
    s_lshl_b32 s{T1}, s53, 11
    s_add_u32 s{T0}, s{T0}, s{T1}
    v_lshlrev_b32 v10, 4, v0
    s_mov_b32 s55, 1024
    s_nop 4
    """)
    for i in range(48):
        a(f"v_mul_f32 v{80+i}, s54, v{80+i}")
    a("s_branch L1_store")
    a.label("L1_v")
    a(wa)
    gemm_body(a, "v", "v")
    a(f"""
    s_lshl_b32 s{T1}, s53, 9
    s_add_u32 s{T0}, s{T1}, {WS_V - 28*512}
    v_mul_u32_u24 v10, 7168, v2
    v_lshl_add_u32 v10, v1, 4, v10
    s_mov_b32 s55, 14336
L1_store:
    """)
    stamp(a, 9)
    a(f"""
    s_mul_i32 s{T1}, s{S_RB}, {3*TILE_B}
    s_add_u32 s{T0}, s{T0}, s{T1}
    s_add_u32 s48, s{S_WS}, s{T0}
    s_addc_u32 s49, s{S_WS+1}, 0
    v_add_u32 v11, s55, v10
    s_cmp_ge_u32 s{S_RB}, 22
    s_cbranch_scc1 L1_end
    """)
    for i in range(3):
        for j in range(8):
            a(f"v_cvt_pk_bf16_f32 v{16+8*i+j}, v{80+16*i+2*j}, v{80+16*i+2*j+1}")
        a(f"global_store_dwordx4 v10, {vr(16+8*i,4)}, s[48:49] {ST}")
        a(f"global_store_dwordx4 v11, {vr(20+8*i,4)}, s[48:49] {ST}")
        if i == 0:
            a(f"s_cmp_ge_u32 s{S_RB}, 21\ns_cbranch_scc1 L1_end")
        if i < 2:
            a(f"s_add_u32 s48, s48, {TILE_B}\ns_addc_u32 s49, s49, 0")
    a(endp("L1_end"))
    a.label("L1_gate")
    a(f"""
    v_lshlrev_b32 v9, 4, v2
    v_add_u32 v9, {L_GATE}, v9
    s_lshl_b32 s47, s46, 7
    v_add_u32 v8, s47, v9
    """)
    gemm_body(a, "gate", "g")
    a(f"""
    s_cmp_lg_u32 s53, 42
    s_cbranch_scc1 L1_end
    s_cmp_ge_u32 s{S_RB}, 22
    s_cbranch_scc1 L1_end
    s_mul_i32 s{T0}, s{S_RB}, {96*4}
    s_add_u32 s{T0}, s{T0}, {WS_GT}
    s_add_u32 s48, s{S_WS}, s{T0}
    s_addc_u32 s49, s{S_WS+1}, 0
    v_lshlrev_b32 v10, 2, v1
    s_nop 4
    """)
    for i in range(3):
        r = 80 + 16*i
        a(f"""
        v_cvt_pk_bf16_f32 v{r}, v{r}, v{r}
        v_and_b32 v{r}, 0xffff0000, v{r}
        v_mul_f32 v{r}, {f32(-LOG2E)}, v{r}
        v_exp_f32 v{r}, v{r}
        s_nop 0
        v_add_f32 v{r}, 1.0, v{r}
        v_rcp_f32 v{r}, v{r}
        s_nop 0
        v_cvt_pk_bf16_f32 v{r}, v{r}, v{r}
        v_and_b32 v{r}, 0xffff0000, v{r}
        global_store_dword v10, v{r}, s[48:49] offset:{128*i} {ST}
        """)
        if i == 0:
            a(f"s_cmp_ge_u32 s{S_RB}, 21\ns_cbranch_scc1 L1_end")
    a.label("L1_end")
    prof_end(a, 0, S_WS, S_WAVE)
    a.label("L1_quit")
    a("s_endpgm")
    return a
```

```python
from common import *

PL_B = 8224
L_Y = 0
L_RED = 8 * PL_B
L_KC = L_RED + 65536
KC_B = 4160
L_U = L_KC + 2 * KC_B
U_B = 4608
L_CNT = L_U + 2 * U_B
L_MAX = L_CNT + 64
K2_LDS = L_MAX + 4096

S_WS, S_WAVE, S_H, S_QB = 4, 6, 7, 8
T0, T1, T2, T3 = 10, 11, 12, 13
S_KB, S_VB, S_QBASE = 14, 16, 18
S_EXV = 20

Q = 16
O = 48
S = 112
P = 144
KV = 160
NV2 = 224

def kv_loads(b):
    r = KV + 16 * b
    return [[f"global_load_dwordx4 {vr(r,4)}, v2, {sr(S_KB,2)}"],
            [f"global_load_dwordx4 {vr(r+4,4)}, v2, {sr(S_KB,2)} offset:1024",
             f"s_add_u32 s{S_KB}, s{S_KB}, {TILE_B}",
             f"s_addc_u32 s{S_KB+1}, s{S_KB+1}, 0"],
            [f"s_mov_b64 exec, {sr(S_EXV,2)}",
             f"global_load_dwordx4 {vr(r+8,4)}, v3, {sr(S_VB,2)}",
             f"global_load_dwordx4 {vr(r+12,4)}, v4, {sr(S_VB,2)}",
             f"s_mov_b64 exec, -1"],
            [f"s_add_u32 s{S_VB}, s{S_VB}, {TILE_B}",
             f"s_addc_u32 s{S_VB+1}, s{S_VB+1}, 0"]]

def slot(a, n, qk, pv, extra=None):
    sc, sn = S + 16 * (n & 1), S + 16 * ((n + 1) & 1)
    pc, pp = P + 8 * (n & 1), P + 8 * ((n + 1) & 1)
    ms = [None] * 4
    if qk is not None:
        k, q = KV + 16 * qk[0], Q + 8 * qk[1]
        ms[0] = mfma(sn, k, q, None)
        ms[1] = mfma(sn, k + 4, q + 4, sn)
    if pv is not None:
        v, o = KV + 16 * pv[0] + 8, O + 16 * pv[1]
        ms[2] = mfma(o, v, pp, o)
        ms[3] = mfma(o, v + 4, pp + 4, o)
    for g in range(4):
        if ms[g]: a(ms[g])
        for j in range(4):
            a(f"v_exp_f32 v{sc+4*g+j}, v{sc+4*g+j}")
            if g > 0 and j == 0:
                a(f"v_cvt_pk_bf16_f32 v{pc+2*g-2}, v{sc+4*g-4}, v{sc+4*g-3}")
                a(f"v_cvt_pk_bf16_f32 v{pc+2*g-1}, v{sc+4*g-2}, v{sc+4*g-1}")
        if g == 1 and extra:
            for e in extra: a(e)
    a(f"v_cvt_pk_bf16_f32 v{pc+6}, v{sc+12}, v{sc+13}")
    a(f"v_cvt_pk_bf16_f32 v{pc+7}, v{sc+14}, v{sc+15}")

def red_writes(j):
    return [f"ds_write_b128 v{5+j}, {vr(O+16*j+4*i,4)} offset:{1024*i}" for i in range(4)]

def attention(a):
    a(f"""
    ; ---- addresses ----
    s_mul_i32 s{T0}, s{S_H}, 7
    s_lshr_b32 s{T0}, s{T0}, 1             ; u0
    s_mul_i32 s{T1}, s{S_WAVE}, {16*TILE_B}
    s_lshl_b32 s{T2}, s{T0}, 9
    s_add_u32 s{T3}, s{T1}, s{T2}
    s_add_u32 s{T3}, s{T3}, {WS_K}
    v_lshlrev_b32 v2, 4, v0
    v_bfe_u32 v8, v0, 2, 1                 ; b0
    v_bfe_u32 v9, v0, 3, 1                 ; b1
    v_and_b32 v10, 19, v0
    v_lshl_add_u32 v10, v8, 3, v10
    v_lshl_add_u32 v10, v9, 2, v10
    v_lshrrev_b32 v1, 5, v0                ; hi
    v_mul_u32_u24 v3, 7168, v1
    v_lshl_add_u32 v3, v10, 4, v3
    v_add_u32 v4, 14336, v3
    s_waitcnt lgkmcnt(0)
    s_add_u32 s{S_KB}, s{S_WS}, s{T3}
    s_addc_u32 s{S_KB+1}, s{S_WS+1}, 0
    s_lshl_b32 s{T3}, s{T0}, 7
    s_add_u32 s{T3}, s{T3}, s{T1}
    s_add_u32 s{T3}, s{T3}, {WS_V}
    s_add_u32 s{S_VB}, s{S_WS}, s{T3}
    s_addc_u32 s{S_VB+1}, s{S_WS+1}, 0
    s_mov_b64 s[24:25], {sr(S_KB,2)}
    s_mov_b64 s[26:27], {sr(S_VB,2)}
    s_bitcmp1_b32 s{S_H}, 0
    s_mov_b32 s{S_EXV}, 0x0fffffff
    s_cselect_b32 s{S_EXV}, 0xfffffff0, s{S_EXV}
    s_mov_b32 s{S_EXV+1}, s{S_EXV}
    global_load_dwordx4 {vr(KV,4)}, v2, {sr(S_KB,2)}
    global_load_dwordx4 {vr(KV+4,4)}, v2, {sr(S_KB,2)} offset:1024
    s_add_u32 s{S_KB}, s{S_KB}, {TILE_B}
    s_addc_u32 s{S_KB+1}, s{S_KB+1}, 0
    s_mul_i32 s{T1}, s{S_QB}, {4*TILE_B}
    s_add_u32 s{T1}, s{T1}, s{T2}          ; + u0*512 (WS_Q = 0)
    """)
    for j in range(4):
        a(f"""
        s_add_u32 s{T3}, s{S_WAVE}, {j+1}
        s_and_b32 s{T3}, s{T3}, 3
        s_mul_i32 s{T0}, s{T3}, {TILE_B}
        s_add_u32 s{T0}, s{T0}, s{T1}
        s_add_u32 s{S_QBASE}, s{S_WS}, s{T0}
        s_addc_u32 s{S_QBASE+1}, s{S_WS+1}, 0
        global_load_dwordx4 {vr(Q+8*j,4)}, v2, {sr(S_QBASE,2)}
        global_load_dwordx4 {vr(Q+8*j+4,4)}, v2, {sr(S_QBASE,2)} offset:1024
        """)
        if j < 3:
            a(f"""
            s_lshl_b32 s{T3}, s{T3}, 14
            s_lshl_b32 s{T0}, s{S_WAVE}, 12
            s_add_u32 s{T3}, s{T3}, s{T0}
            s_add_u32 s{T3}, s{T3}, {L_RED}
            v_add_u32 v{5+j}, s{T3}, v2
            """)
    for b in range(4):
        for i in range(8):
            a(f"v_mov_b32 v{KV+16*b+8+i}, 0x3f803f80")
    l0 = kv_loads(0)
    for x in l0[2] + l0[3]: a(x)
    for b in (1, 2):
        for grp in kv_loads(b):
            for x in grp: a(x)
    for i in range(64):
        a(f"v_mov_b32 v{O+i}, 0")
    a(f"""
    s_and_b32 s{T0}, s{S_H}, 1
    v_add_u32 v8, s{T0}, v1
    v_cmp_lt_u32 vcc, v1, s{T0}
    v_cmp_gt_u32 s[22:23], v1, s{T0}
    s_nop 1
    v_cndmask_b32 v8, -1, 0, vcc
    v_cndmask_b32 v9, -1, 0, s[22:23]
    s_waitcnt vmcnt(10)
    """)
    for j in range(4):
        a(f"""
        v_and_b32 v{Q+8*j}, v8, v{Q+8*j}
        v_and_b32 v{Q+8*j+1}, v8, v{Q+8*j+1}
        v_and_b32 v{Q+8*j+6}, v9, v{Q+8*j+6}
        v_and_b32 v{Q+8*j+7}, v9, v{Q+8*j+7}
        """)
    stamp(a, 1)
    a(mfma(S, KV, Q, None))
    a(mfma(S, KV + 4, Q + 4, S))
    for i in range(8):
        a(f"v_mov_b32 v{P+8+i}, 0")
    a(f"""
    s_mov_b32 s9, 0
    s_nop 3
    """)
    def step(b, loads, last=False):
        ld = kv_loads((b + 3) & 3) if loads else [[], [], [], []]
        for q in range(4):
            n = q
            qk = (b, q + 1) if q < 3 else ((b + 1) & 3, 0)
            pv = (b, q - 1) if q > 0 else ((b - 1) & 3, 3)
            pre = []
            extra = list(ld[q])
            if q == 1:
                pre.append(("V", None))
            if q == 3:
                pre.append(("K", None))
            if last and q == 3:
                qk = None
            yield n, qk, pv, extra, pre
    a.label("L2_loop")
    for b in range(4):
        for n, qk, pv, extra, pre in step(b, True):
            for kind, _ in pre:
                if kind == "V": a("s_waitcnt vmcnt(9)")
                if kind == "K": a("s_waitcnt vmcnt(10)")
            slot(a, n, qk, pv, extra)
        if b == 0:
            a(f"""
            s_cmp_eq_u32 s9, 3
            s_cbranch_scc1 L2_tail
            """)
    a(f"""
    s_add_u32 s9, s9, 1
    s_branch L2_loop
    """)
    a.label("L2_tail")
    stamp(a, 2)
    vw = {1: 8, 2: 4, 3: 0}
    kw = {1: 6, 2: 2}
    for b in (1, 2, 3):
        for n, qk, pv, extra, pre in step(b, False, last=(b == 3)):
            for kind, _ in pre:
                if kind == "V": a(f"s_waitcnt vmcnt({vw[b]})")
                if kind == "K" and b < 3: a(f"s_waitcnt vmcnt({kw[b]})")
            if b == 3 and n >= 2:
                extra = red_writes(n - 2)
            slot(a, n, qk, pv, extra)
    a("s_nop 0")
    a(mfma(O + 48, KV + 48 + 8, P + 8, O + 48))
    a(mfma(O + 48, KV + 48 + 12, P + 12, O + 48))
    a("s_nop 3")
    for x in red_writes(2): a(x)

def reduce_and_check(a, tag):
    o = O + 48
    a(f"""
    s_lshl_b32 s{T0}, s{S_WAVE}, 14
    s_add_u32 s{T0}, s{T0}, {L_RED}
    v_add_u32 v8, s{T0}, v2
    s_waitcnt lgkmcnt(0)
    s_barrier
    """)
    for j in range(3):
        a(f"""
        s_add_u32 s{T1}, s{S_WAVE}, {j+1}
        s_and_b32 s{T1}, s{T1}, 3
        s_lshl_b32 s{T1}, s{T1}, 12
        v_add_u32 v9, s{T1}, v8
        """)
        for i in range(4):
            a(f"ds_read_b128 {vr(O+16*j+4*i,4)}, v9 offset:{1024*i}")
    for j in range(3):
        for i in range(4):
            a(f"s_waitcnt lgkmcnt({11 - 4*j - i})")
            for e in range(4):
                a(f"v_add_f32 v{o+4*i+e}, v{o+4*i+e}, v{O+16*j+4*i+e}")
    a(f"""
    v_mov_b32 v10, v{o}
    v_mov_b32 v11, v{o}
    v_mov_b32 v12, v{o+12}
    v_mov_b32 v13, v{o+12}
    s_nop 1
    v_permlane32_swap_b32 v10, v11
    v_permlane32_swap_b32 v12, v13
    s_bitcmp1_b32 s{S_H}, 0
    s_cselect_b64 vcc, -1, 0
    s_nop 1
    v_cndmask_b32 v10, v13, v10, vcc
    """)

def store_o(a):
    o = O + 48
    a(f"""
    v_rcp_f32 v10, v10
    s_mul_i32 s{T0}, s{S_H}, 7
    s_lshr_b32 s{T0}, s{T0}, 1
    s_lshl_b32 s{T0}, s{T0}, 9
    s_lshl_b32 s{T1}, s{S_QB}, 2
    s_add_u32 s{T1}, s{T1}, s{S_WAVE}
    s_mul_i32 s{T1}, s{T1}, {TILE_B}
    s_add_u32 s{T0}, s{T0}, s{T1}
    s_add_u32 s{T0}, s{T0}, {WS_O}
    s_add_u32 s{S_QBASE}, s{S_WS}, s{T0}
    s_addc_u32 s{S_QBASE+1}, s{S_WS+1}, 0
    """)
    for i in range(16):
        a(f"v_mul_f32 v{o+i}, v{o+i}, v10")
    for i in range(8):
        a(f"v_cvt_pk_bf16_f32 v{16+i}, v{o+2*i}, v{o+2*i+1}")
    b = sr(S_QBASE, 2)
    a(f"""
    s_bitcmp1_b32 s{S_H}, 0
    s_cbranch_scc1 L2_st_odd
    global_store_dwordx4 v2, v[16:19], {b}
    s_mov_b32 exec_hi, 0
    global_store_dwordx4 v2, v[20:23], {b} offset:1024
    s_not_b64 exec, exec
    global_store_dwordx2 v2, v[20:21], {b} offset:1024
    {endp("L2_end")}
L2_st_odd:
    global_store_dwordx4 v2, v[20:23], {b} offset:1024
    s_mov_b32 exec_hi, 0
    global_store_dwordx2 v2, v[18:19], {b} offset:8
    s_not_b64 exec, exec
    global_store_dwordx4 v2, v[16:19], {b}
    {endp("L2_end")}
    """)

def fallback(a):
    M = 208
    a.label("L2_slow")
    for j in range(4):
        a(f"v_mov_b32 v{M+j}, 0xff800000")
    a(f"""
    s_mov_b64 {sr(S_KB,2)}, s[24:25]
    s_mov_b32 s9, 0
L2_s1:
    global_load_dwordx4 {vr(KV,4)}, v2, {sr(S_KB,2)}
    global_load_dwordx4 {vr(KV+4,4)}, v2, {sr(S_KB,2)} offset:1024
    s_add_u32 s{S_KB}, s{S_KB}, {TILE_B}
    s_addc_u32 s{S_KB+1}, s{S_KB+1}, 0
    s_waitcnt vmcnt(0)
    """)
    for j in range(4):
        a(mfma(S, KV, Q + 8*j, None))
        a(mfma(S, KV + 4, Q + 8*j + 4, S))
        a("s_nop 15")
        for i in range(8):
            a(f"v_max3_f32 v{M+j}, v{M+j}, v{S+2*i}, v{S+2*i+1}")
    a(f"""
    s_add_u32 s9, s9, 1
    s_cmp_lt_u32 s9, 16
    s_cbranch_scc1 L2_s1
    """)
    a(f"v_lshlrev_b32 v8, 2, v0")
    for j in range(4):
        a(f"""
        s_add_u32 s{T0}, s{S_WAVE}, {j+1}
        s_and_b32 s{T0}, s{T0}, 3
        s_lshl_b32 s{T0}, s{T0}, 10
        s_lshl_b32 s{T1}, s{S_WAVE}, 8
        s_add_u32 s{T1}, s{T1}, s{T0}
        s_add_u32 s{T1}, s{T1}, {L_MAX}
        v_add_u32 v9, s{T1}, v8
        ds_write_b32 v9, v{M+j}
        """)
    a(f"""
    s_waitcnt lgkmcnt(0)
    s_barrier
    v_and_b32 v8, 31, v0
    v_lshlrev_b32 v8, 2, v8
    """)
    for j in range(4):
        a(f"""
        s_add_u32 s{T0}, s{S_WAVE}, {j+1}
        s_and_b32 s{T0}, s{T0}, 3
        s_lshl_b32 s{T0}, s{T0}, 10
        s_add_u32 s{T0}, s{T0}, {L_MAX}
        v_add_u32 v9, s{T0}, v8
        """)
        for i in range(8):
            a(f"ds_read_b32 v{S+i}, v9 offset:{128*i}")
        a("s_waitcnt lgkmcnt(0)")
        for i in range(4):
            a(f"v_max3_f32 v{M+j}, v{M+j}, v{S+2*i}, v{S+2*i+1}")
    for i in range(64):
        a(f"v_mov_b32 v{O+i}, 0")
    a(f"""
    s_mov_b64 {sr(S_KB,2)}, s[24:25]
    s_mov_b64 {sr(S_VB,2)}, s[26:27]
    s_mov_b32 s9, 0
L2_s2:
    """)
    for grp in kv_loads(0):
        for x in grp: a(x)
    a("s_waitcnt vmcnt(0)")
    for j in range(4):
        a(mfma(S, KV, Q + 8*j, None))
        a(mfma(S, KV + 4, Q + 8*j + 4, S))
        a("s_nop 15")
        for i in range(16):
            a(f"v_sub_f32 v{S+i}, v{S+i}, v{M+j}")
        for i in range(16):
            a(f"v_exp_f32 v{S+i}, v{S+i}")
        a("s_nop 0")
        for i in range(8):
            a(f"v_cvt_pk_bf16_f32 v{P+i}, v{S+2*i}, v{S+2*i+1}")
        a("s_nop 1")
        a(mfma(O + 16*j, KV + 8, P, O + 16*j))
        a(mfma(O + 16*j, KV + 12, P + 4, O + 16*j))
    a(f"""
    s_add_u32 s9, s9, 1
    s_cmp_lt_u32 s9, 16
    s_cbranch_scc1 L2_s2
    s_nop 15
    """)
    for j in range(3):
        for x in red_writes(j): a(x)

def lds_sync(a, idx, tag):
    a(f"""
    s_waitcnt vmcnt(0) lgkmcnt(0)
    s_mov_b64 exec, 1
    ds_add_u32 v14, v15 offset:{4*idx}
    s_mov_b64 exec, -1
L2_spin_{tag}:
    ds_read_b32 v13, v14 offset:{4*idx}
    s_waitcnt lgkmcnt(0)
    v_readfirstlane_b32 s{T0}, v13
    s_cmp_ge_u32 s{T0}, 4
    s_cbranch_scc1 L2_go_{tag}
    s_sleep 1
    s_branch L2_spin_{tag}
L2_go_{tag}:
    """)

def conv(a):
    ACC = 32
    TF = 96
    UF = 128
    a(f"""
    s_cmp_ge_u32 s2, 224
    s_cbranch_scc1 L2_end
    s_sub_u32 s9, s{S_WAVE}, 4
    v_lshlrev_b32 v2, 4, v0
    s_lshl_b32 s{T0}, s2, 13
    s_lshl_b32 s{T1}, s9, 11
    s_add_u32 s{T0}, s{T0}, s{T1}
    s_add_u32 s{T0}, s{T0}, {WS_KC}
    s_lshr_b32 s{T2}, s9, 1                ; ch
    s_and_b32 s{T3}, s9, 1
    v_lshrrev_b32 v3, 2, v0
    v_mul_u32_u24 v3, {TILE_B}, v3
    v_and_b32 v4, 3, v0
    v_lshl_add_u32 v3, v4, 6, v3
    v_add_u32 v4, {16*TILE_B}, v3
    s_waitcnt lgkmcnt(0)
    s_add_u32 s14, s{S_WS}, s{T0}
    s_addc_u32 s15, s{S_WS+1}, 0
    s_mul_i32 s{T0}, s{T2}, {KC_B}
    s_lshl_b32 s{T1}, s{T3}, 11
    s_add_u32 s{T0}, s{T0}, s{T1}
    s_add_u32 m0, s{T0}, {L_KC + 64}
    s_lshr_b32 s16, s2, 1
    global_load_lds_dwordx4 v2, s[14:15]
    global_load_lds_dwordx4 v2, s[14:15] offset:1024
    s_lshl_b32 s16, s16, 8
    s_and_b32 s17, s2, 1
    s_lshl_b32 s17, s17, 1
    s_add_u32 s17, s17, s{T2}
    s_lshl_b32 s17, s17, 4
    s_add_u32 s16, s16, s17
    s_mul_i32 s17, s{T3}, {32*TILE_B}
    s_add_u32 s16, s16, s17
    s_add_u32 s16, s16, {WS_UT}
    s_add_u32 s14, s{S_WS}, s16
    s_addc_u32 s15, s{S_WS+1}, 0
    s_mul_i32 s{T0}, s{T2}, {U_B}
    s_add_u32 s{T0}, s{T0}, s{T1}
    s_add_u32 m0, s{T0}, {L_U + 512}
    s_nop 0
    global_load_lds_dwordx4 v3, s[14:15]
    s_add_u32 m0, m0, 1024
    s_nop 0
    global_load_lds_dwordx4 v4, s[14:15]
    v_mov_b32 v8, 0
    v_mov_b32 v9, 0
    v_mov_b32 v10, 0
    v_mov_b32 v11, 0
    v_and_b32 v5, 7, v0
    v_mul_u32_u24 v5, {PL_B}, v5
    ds_write_b128 v5, v[8:11]
    s_mul_i32 s{T0}, s{T2}, {U_B}
    s_add_u32 s{T0}, s{T0}, {L_U}
    v_lshl_add_u32 v6, v0, 3, s{T0}
    ds_write_b64 v6, v[8:9]
    s_mul_i32 s{T0}, s{T2}, {KC_B}
    s_add_u32 s{T0}, s{T0}, {L_KC}
    v_add_u32 v6, s{T0}, v0
    ds_write_b8 v6, v8
    v_mov_b32 v14, {L_CNT}
    v_mov_b32 v15, 1
    """)
    for i in range(64):
        a(f"v_mov_b32 v{ACC+i}, 0")
    a(f"""
    v_bfe_u32 v8, v0, 4, 2
    v_lshlrev_b32 v5, 5, v8
    v_and_b32 v9, 3, v0
    v_lshl_add_u32 v5, v9, 3, v5
    v_bfe_u32 v9, v0, 2, 2
    v_lshlrev_b32 v9, 3, v9
    v_sub_u32 v5, v5, v9
    v_add_u32 v5, {L_KC + 64 - 32}, v5
    v_and_b32 v8, 31, v0
    v_lshlrev_b32 v6, 4, v8
    v_lshrrev_b32 v9, 5, v0
    v_lshlrev_b32 v9, 6, v9
    v_sub_u32 v6, v6, v9
    v_add_u32 v6, {L_U + 512 - 384}, v6
    s_lshl_b32 s{T0}, s9, 9
    v_add_u32 v7, s{T0}, v6
    s_sub_u32 s{T0}, {7*512}, s{T0}
    v_add_u32 v6, s{T0}, v6
    """)
    stamp(a, 1)
    lds_sync(a, 0, "a")
    stamp(a, 2)
    def body(both):
        nts = 2 if both else 1
        per = 4 + 2 * nts
        def reads(ph):
            r = []
            for ch in range(2):
                t = TF + 8*ph + 4*ch
                r.append(f"ds_read_b64_tr_b16 {vr(t,2)}, v5 offset:{ch*KC_B + 128*ph + 32}")
                r.append(f"ds_read_b64_tr_b16 {vr(t+2,2)}, v5 offset:{ch*KC_B + 128*ph}")
                for ts in range(nts):
                    r.append(f"ds_read_b128 {vr(UF + 16*ph + 8*ts + 4*ch, 4)}, v{6+ts} offset:{ch*U_B + 128*(3-ph)}")
            return r
        def mms(ph):
            return [mfma(ACC + 32*ts + 16*ch, UF + 16*ph + 8*ts + 4*ch, TF + 8*ph + 4*ch, ACC + 32*ts + 16*ch)
                    for ch in range(2) for ts in range(nts)]
        for r in reads(0): a(r)
        for ph in range(4):
            if ph < 3:
                for r in reads(ph + 1): a(r)
                a(f"s_waitcnt lgkmcnt({per})")
            else:
                a("v_add_u32 v5, 512, v5\nv_subrev_u32 v6, 512, v6")
                if both: a("v_subrev_u32 v7, 512, v7")
                a("s_waitcnt lgkmcnt(0)")
            for m in mms(ph): a(m)
    a(f"s_add_u32 s14, s9, 1")
    a.label("L2_cA")
    body(True)
    a(f"""
    s_sub_u32 s14, s14, 1
    s_cmp_lg_u32 s14, 0
    s_cbranch_scc1 L2_cA
    s_lshl_b32 s14, s9, 1
    s_sub_u32 s14, 7, s14
L2_cB:
    """)
    body(False)
    a(f"""
    s_sub_u32 s14, s14, 1
    s_cmp_lg_u32 s14, 0
    s_cbranch_scc1 L2_cB
    s_lshl_b32 m0, s9, 10
    s_nop 0
    """)
    stamp(a, 3)
    for ts in (1, 0):
        if ts == 0:
            a(f"s_sub_u32 m0, {7*1024}, m0\ns_nop 0")
        for ch in range(2):
            for r in range(16):
                a(f"ds_write_addtid_b32 v{ACC+32*ts+16*ch+r} offset:{((r&3)*2+ch)*PL_B + 256*(r>>2) + 4*(r&3)}")
    stamp(a, 4)
    lds_sync(a, 1, "b")
    stamp(a, 5)
    a(f"""
    s_lshl_b32 s{T0}, s9, 11
    v_add_u32 v5, s{T0}, v2
    """)
    for hf in range(2):
        for pl in range(8):
            a(f"ds_read_b128 {vr(ACC+32*hf+4*pl,4)}, v5 offset:{pl*PL_B + 1024*hf}")
    a(f"""
    s_lshl_b32 s{T1}, s2, 13
    s_add_u32 s{T0}, s{T0}, s{T1}
    s_add_u32 s{T0}, s{T0}, {WS_BP}
    s_add_u32 s14, s{S_WS}, s{T0}
    s_addc_u32 s15, s{S_WS+1}, 0
    """)
    for hf in range(2):
        b = ACC + 32*hf
        a(f"s_waitcnt lgkmcnt({8 - 8*hf})")
        for i in range(8):
            a(f"v_add_f32 v{b+i}, v{b+i}, v{b+8+i}")
            a(f"v_add_f32 v{b+16+i}, v{b+16+i}, v{b+24+i}")
        for i in range(8):
            a(f"v_add_f32 v{b+i}, v{b+i}, v{b+16+i}")
        for i in range(4):
            a(f"v_cvt_pk_bf16_f32 v{b+i}, v{b+i}, v{b+4+i}")
        a(f"global_store_dwordx4 v2, {vr(b,4)}, s[14:15] offset:{1024*hf}")

def k2(force_slow=False):
    a = Asm()
    a(f"""
    s_cmp_ge_u32 s2, 256
    s_cbranch_scc1 L2_quit
    """)
    prof_begin(a)
    a(f"""
    s_load_dwordx2 {sr(S_WS,2)}, s[0:1], 104
    v_lshrrev_b32 v1, 6, v0
    v_and_b32 v0, 63, v0
    v_mov_b32 v2, {L_CNT}
    v_readfirstlane_b32 s{S_WAVE}, v1
    v_mov_b32 v8, 0
    v_mov_b32 v9, 0
    v_mov_b32 v10, 0
    v_mov_b32 v11, 0
    ds_write_b128 v2, v[8:11]
    s_and_b32 s{S_H}, s2, 7
    s_lshl_b32 s{S_H}, s{S_H}, 1
    s_bfe_u32 s{T0}, s2, 0x10003
    s_add_u32 s{S_H}, s{S_H}, s{T0}
    s_lshr_b32 s{S_QB}, s2, 4
    s_waitcnt lgkmcnt(0)
    s_barrier
    s_cmp_ge_u32 s{S_WAVE}, 4
    s_cbranch_scc1 L2_conv
    """)
    attention(a)
    stamp(a, 3)
    reduce_and_check(a, "f")
    stamp(a, 4)
    o = O + 48
    a(f"""
    v_max3_f32 v11, |v{o}|, |v{o+1}|, |v{o+2}|
    """)
    for i in range(3, 15, 2):
        a(f"v_max3_f32 v11, v11, |v{o+i}|, |v{o+i+1}|")
    a(f"""
    v_max_f32 v11, v11, |v{o+15}|
    s_mov_b32 s{T0}, {f32(2.0**-64)}
    s_mov_b32 s{T1}, {f32(2.0**64)}
    s_mov_b32 s{T2}, {f32(2.0**126)}
    v_cmp_le_f32 vcc, s{T0}, v10
    v_cmp_ge_f32 s[22:23], s{T1}, v10
    s_and_b64 s[22:23], s[22:23], vcc
    v_cmp_ge_f32 vcc, s{T2}, v11
    s_and_b64 s[22:23], s[22:23], vcc
    s_cmp_eq_u64 s[22:23], -1
    s_cselect_b32 s{T0}, {1 if force_slow else 0}, 1
    v_mov_b32 v12, {L_CNT}
    v_mov_b32 v13, s{T0}
    ds_or_b32 v12, v13 offset:8
    s_waitcnt lgkmcnt(0)
    s_barrier
    ds_read_b32 v13, v12 offset:8
    s_waitcnt lgkmcnt(0)
    v_readfirstlane_b32 s{T0}, v13
    s_cmp_lg_u32 s{T0}, 0
    s_cbranch_scc1 L2_slow
L2_fin:
    """)
    stamp(a, 5)
    store_o(a)
    fallback(a)
    reduce_and_check(a, "s")
    a("s_branch L2_fin")
    a.label("L2_conv")
    conv(a)
    a.label("L2_end")
    prof_end(a, 1, S_WS, S_WAVE)
    a.label("L2_quit")
    a("s_endpgm")
    return a
```

```python
from common import *

L3_O = 0
L3_W = 2 * TILE_B
K3_LDS = L3_W + 448 * 128
NV3 = 104

def k3():
    a = Asm()
    T0, T1, T2, T3 = 12, 13, 14, 15
    a(f"""
    s_cmp_ge_u32 s2, 224
    s_cbranch_scc1 L3_quit
    """)
    prof_begin(a)
    a(f"""
    s_load_dwordx2 s[4:5], s[0:1], 16       ; wo
    s_load_dwordx2 s[6:7], s[0:1], 88       ; out
    s_load_dwordx2 s[8:9], s[0:1], 104      ; ws
    v_lshrrev_b32 v1, 6, v0
    v_and_b32 v0, 63, v0
    s_lshr_b32 s{T0}, s2, 3                 ; j
    v_readfirstlane_b32 s10, v1             ; wave
    s_mul_i32 s{T1}, s{T0}, 37
    s_lshr_b32 s{T1}, s{T1}, 8              ; j/7
    s_mul_i32 s{T2}, s{T1}, 7
    s_sub_u32 s17, s{T0}, s{T2}             ; cb
    s_and_b32 s16, s2, 7
    s_lshl_b32 s16, s16, 2
    s_add_u32 s16, s16, s{T1}               ; rb
    s_and_b32 s18, s10, 1                   ; tt
    s_lshr_b32 s19, s10, 1                  ; ct
    v_lshlrev_b32 v2, 4, v0                 ; lane*16
    v_lshrrev_b32 v4, 3, v0
    v_bfe_u32 v5, v0, 4, 1
    v_lshlrev_b32 v5, 2, v5
    v_xor_b32 v5, v5, v0
    v_and_b32 v5, 7, v5
    v_mul_u32_u24 v3, 896, v4
    v_lshl_add_u32 v3, v5, 4, v3
    s_waitcnt lgkmcnt(0)
    s_cmp_ge_u32 s10, 2
    s_cbranch_scc1 L3_ldw
    s_lshl_b32 s{T0}, s16, 1
    s_add_u32 s{T0}, s{T0}, s18
    s_mul_i32 s{T0}, s{T0}, {TILE_B}
    s_add_u32 s{T0}, s{T0}, {WS_O}
    s_add_u32 s20, s8, s{T0}
    s_addc_u32 s21, s9, 0
    s_mul_i32 s22, s18, {TILE_B}
    s_mov_b32 s23, 1024
    s_mov_b32 s24, 1024
    v_mov_b32 v3, v2
    s_branch L3_ld
L3_ldw:
    s_lshl_b32 s{T0}, s17, 7
    s_mul_i32 s{T1}, s18, {8*896}
    s_add_u32 s{T0}, s{T0}, s{T1}
    s_add_u32 s20, s4, s{T0}
    s_addc_u32 s21, s5, 0
    s_lshl_b32 s22, s18, 10
    s_add_u32 s22, s22, {L3_W}
    s_mov_b32 s23, {16*896}
    s_mov_b32 s24, 2048
L3_ld:
    s_mov_b32 m0, s22
    """)
    for ks in range(28):
        a("s_nop 0" if ks == 0 else "s_addc_u32 s21, s21, 0")
        a("global_load_lds_dwordx4 v3, s[20:21]")
        if ks < 27:
            a("s_add_u32 m0, m0, s24\ns_add_u32 s20, s20, s23")
    a(f"""
    v_and_b32 v4, 31, v0
    v_lshrrev_b32 v5, 5, v0                 ; hi
    s_lshl_b32 s{T0}, s16, 6
    s_lshl_b32 s{T1}, s18, 5
    s_add_u32 s25, s{T0}, s{T1}
    s_lshl_b32 s{T0}, s17, 1
    s_add_u32 s26, s{T0}, s19
    s_lshl_b32 s{T0}, s26, 17               ; 16 pairs x 8192
    s_lshl_b32 s{T1}, s25, 2
    s_add_u32 s{T0}, s{T0}, s{T1}
    s_add_u32 s{T0}, s{T0}, {WS_BP}
    s_add_u32 s20, s8, s{T0}
    s_addc_u32 s21, s9, 0
    v_lshlrev_b32 v6, 2, v4
    v_lshl_add_u32 v7, v5, 15, v6
    """)
    for i in range(8):
        off = (8 * (i >> 2) + (i & 3)) * 8192
        a(f"v_add_u32 v8, {off}, v7" if i else "s_nop 0")
        a(f"global_load_dword v{88+i}, v{8 if i else 7}, s[20:21]")
    a(f"""
    s_add_u32 s{T1}, s{T1}, {WS_GT}
    s_add_u32 s20, s8, s{T1}
    s_addc_u32 s21, s9, 0
    global_load_dword v96, v6, s[20:21]
    s_mul_i32 s{T0}, s18, {TILE_B}
    v_add_u32 v9, s{T0}, v2                 ; o fragment
    v_bfe_u32 v10, v0, 2, 2                 ; r
    v_lshl_add_u32 v11, v5, 3, v10
    v_lshlrev_b32 v11, 7, v11               ; (8 hi + r)*128
    v_lshrrev_b32 v10, 1, v10
    v_xor_b32 v10, s19, v10
    v_lshl_add_u32 v11, v10, 6, v11
    v_bfe_u32 v10, v0, 4, 1                 ; ih
    v_lshl_add_u32 v11, v10, 5, v11
    v_and_b32 v10, 1, v0
    v_lshl_add_u32 v11, v10, 4, v11
    v_bfe_u32 v10, v0, 1, 1
    v_lshl_add_u32 v11, v10, 3, v11
    v_add_u32 v10, {L3_W}, v11
    v_mul_u32_u24 v12, 896, v4
    v_lshl_add_u32 v12, v5, 4, v12
    s_mul_i32 s{T0}, s25, 896
    s_lshl_b32 s{T1}, s26, 6
    s_add_u32 s{T0}, s{T0}, s{T1}
    s_add_u32 s6, s6, s{T0}
    s_addc_u32 s7, s7, 0
    """)
    ACC, F = 16, 32
    for st in range(4):
        if st == 0: stamp(a, 1)
        a(f"s_waitcnt vmcnt({9 + 21 - 7*st})\ns_barrier")
        stamp(a, 2 + st)
        def reads(i):
            ks = 7*st + i
            return [f"ds_read_b64_tr_b16 {vr(F+8*i,2)}, v10 offset:{ks*2048}",
                    f"ds_read_b64_tr_b16 {vr(F+8*i+2,2)}, v10 offset:{ks*2048+512}",
                    f"ds_read_b128 {vr(F+8*i+4,4)}, v9 offset:{ks*1024}"]
        for i in range(4):
            for r in reads(i): a(r)
        for i in range(7):
            left = min(3, 6 - i)
            a(f"s_waitcnt lgkmcnt({3*left})")
            a(mfma(ACC, F+8*i, F+8*i+4, None if st == 0 and i == 0 else ACC))
            if i + 4 < 7:
                for r in reads(i + 4): a(r)
    stamp(a, 6)
    a(f"""
    s_waitcnt vmcnt(0)
    v_sub_f32 v97, 1.0, v96
    v_cvt_pk_bf16_f32 v97, v97, v97
    v_and_b32 v97, 0xffff0000, v97
    """)
    for i in range(8):
        a(f"v_lshlrev_b32 v{F+2*i}, 16, v{88+i}")
        a(f"v_and_b32 v{F+2*i+1}, 0xffff0000, v{88+i}")
    for i in range(16):
        a(f"v_mul_f32 v{F+i}, v{F+i}, v97")
    for i in range(16):
        a(f"v_fmac_f32 v{F+i}, v96, v{ACC+i}")
    for i in range(8):
        a(f"v_cvt_pk_bf16_f32 v{56+i}, v{F+2*i}, v{F+2*i+1}")
    a(f"""
    global_store_dwordx4 v12, v[56:59], s[6:7]
    global_store_dwordx4 v12, v[60:63], s[6:7] offset:32
    """)
    prof_end(a, 2, 8, 10)
    a("L3_quit:\ns_endpgm")
    return a
```

```python
import sys
from common import *
import k1, k2, k3

def build(force_slow=False):
    ref = open("cdna_kernels/%s.s.ref" % NAME).read().split("\n")
    head = [l for l in ref[:15]]
    out = "\n".join(head) + "\n"
    out += f"; @launch kernel=qkv_kernel grid=(256,1,1) block=(512,1,1) lds={k1.K1_LDS}\n"
    out += f"; @launch kernel=attn_kernel grid=(256,1,1) block=(512,1,1) lds={k2.K2_LDS}\n"
    out += f"; @launch kernel=outp_kernel grid=(224,1,1) block=(256,1,1) lds={k3.K3_LDS}\n"
    out += '.amdgcn_target "amdgcn-amd-amdhsa--gfx950"\n.text\n'
    out += kernel_head("qkv_kernel") + k1.k1().text()
    out += kernel_head("attn_kernel") + k2.k2(force_slow).text()
    out += kernel_head("outp_kernel") + k3.k3().text()
    out += '.section .rodata,"a"\n'
    out += kernel_desc("qkv_kernel", 160)
    out += kernel_desc("attn_kernel", k2.NV2)
    out += kernel_desc("outp_kernel", k3.NV3)
    return out

if __name__ == "__main__":
    dst = sys.argv[1] if len(sys.argv) > 1 else "cdna_kernels/%s.s" % NAME
    open(dst, "w").write(build("--slow" in sys.argv))
```

```python
import gen1
from gen1 import HEAD
files = []
def make(fname, fstride=128, nst=6, sleep=1, delay=0, pretouch=False, pol="sc1", fst="sc0 sc1", nfl=32, skew=0):
    s = HEAD.format(grid=256, block=256, lds=100000, wpb=4)
    s += f"""
    s_load_dword s30, s[6:7], 0x80000
    v_and_b32 v3, 63, v0
    v_lshlrev_b32 v2, 4, v3
    s_mul_i32 s14, s9, {nst*1024}
    s_add_u32 s16, s4, s14
    s_addc_u32 s17, s5, 0
    s_add_u32 s18, s4, 0x800000
    s_addc_u32 s19, s5, 0
    s_waitcnt lgkmcnt(0)
    s_add_u32 s30, s30, 1
    v_mov_b32 v8, s30
    v_mov_b32 v9, s30
    v_mov_b32 v10, s30
    v_mov_b32 v11, s30
    v_and_b32 v4, {nfl-1}, v3
    v_mul_u32_u24 v4, 29, v4
    s_and_b32 s15, s2, 15
    s_lshl_b32 s15, s15, 2
    s_add_u32 s14, s15, s8
    s_mul_i32 s38, s14, 16
    v_add_u32 v4, s38, v4
    v_and_b32 v4, 1023, v4
    v_mul_u32_u24 v4, {fstride}, v4
    s_mul_i32 s14, s9, {fstride}
    v_mov_b32 v5, s14
"""
    if pretouch:
        s += f"    global_load_dword v12, v4, s[18:19] {pol}\n    s_waitcnt vmcnt(0)\n"
    s += f"""
    s_memrealtime s[32:33]
    s_waitcnt lgkmcnt(0)
    s_add_u32 s34, s32, 300
    s_or_b32 s34, s34, 1023
L_al:
    s_memrealtime s[32:33]
    s_waitcnt lgkmcnt(0)
    s_sub_u32 s35, s32, s34
    s_cmp_lt_i32 s35, 0
    s_cbranch_scc1 L_al
    s_memtime s[20:21]
    s_waitcnt lgkmcnt(0)
"""
    if skew:
        s += f"""    s_mul_i32 s35, s2, 37
    s_and_b32 s35, s35, {skew-1}
L_sk:
    s_cmp_eq_u32 s35, 0
    s_cbranch_scc1 L_sk2
    s_sleep 1
    s_sub_u32 s35, s35, 1
    s_branch L_sk
L_sk2:
"""
    for i in range(nst):
        if i % 4 == 0 and i: s += "    v_add_u32 v2, 4096, v2\n"
        s += f"    global_store_dwordx4 v2, v[8:11], s[16:17] offset:{(i%4)*1024} sc1\n"
    s += f"""    s_waitcnt vmcnt(0)
    s_mov_b64 exec, 1
    global_store_dword v5, v8, s[18:19] {fst}
    s_mov_b64 exec, -1
    s_memtime s[22:23]
    s_mov_b32 s36, 0
    {"s_sleep %d" % delay if delay else ""}
L_poll:
    global_load_dword v12, v4, s[18:19] {pol}
    s_add_u32 s36, s36, 1
    s_waitcnt vmcnt(0)
    v_cmp_ne_u32 vcc, v8, v12
    s_cbranch_vccz L_done
    s_cmp_gt_u32 s36, 20000
    s_cbranch_scc1 L_done
    {"s_sleep %d" % sleep if sleep else ""}
    s_branch L_poll
L_done:
    s_memtime s[24:25]
    s_mul_i32 s14, s38, {nst*1024}
    s_add_u32 s16, s4, s14
    s_addc_u32 s17, s5, 0
    v_lshlrev_b32 v2, 4, v3
    global_load_dwordx4 v[16:19], v2, s[16:17] sc1
    global_load_dwordx4 v[20:23], v2, s[16:17] offset:1024 sc1
    s_waitcnt vmcnt(0)
    s_memtime s[26:27]
    v_xor_b32 v16, v16, v8
    v_xor_b32 v23, v23, v8
    v_or_b32 v16, v16, v23
    v_cmp_ne_u32 vcc, 0, v16
    s_cmp_lg_u64 vcc, 0
    s_cselect_b32 s37, 1, 0
    s_waitcnt lgkmcnt(0)
    s_sub_u32 s22, s22, s20
    s_sub_u32 s24, s24, s20
    s_sub_u32 s26, s26, s20
    s_lshl_b32 s9, s9, 2
    v_mov_b32 v2, s9
    s_mov_b64 exec, 1
    v_mov_b32 v1, s26
    global_store_dword v2, v1, s[6:7]
    v_add_u32 v2, 4096, v2
    v_mov_b32 v1, s22
    global_store_dword v2, v1, s[6:7]
    v_add_u32 v2, 4096, v2
    v_mov_b32 v1, s24
    global_store_dword v2, v1, s[6:7]
    v_add_u32 v2, 4096, v2
    v_mov_b32 v1, s36
    global_store_dword v2, v1, s[6:7]
    v_add_u32 v2, 4096, v2
    v_mov_b32 v1, s37
    global_store_dword v2, v1, s[6:7]
    s_cmp_lg_u32 s9, 0
    s_cbranch_scc1 L_end
    s_sleep 127
    s_sleep 127
    s_sleep 127
    s_sleep 127
    v_mov_b32 v2, 0x80000
    global_store_dword v2, v8, s[6:7]
L_end:
    s_waitcnt vmcnt(0)
    s_endpgm
""" + gen1.TAIL[gen1.TAIL.index(".section .rodata"):].format(nv=64)
    open(fname, "w").write(s); files.append(fname)

make("ho_pre_sk.s", pretouch=True, skew=16)
make("ho_pre_sk_d16.s", pretouch=True, skew=16, delay=16)
make("ho_pre_sk_d16_s8.s", pretouch=True, skew=16, delay=16, sleep=8)
make("ho_pre_d12.s", pretouch=True, delay=12)
print(" ".join(files))
```

```python
import math, struct

NAME = "gated_mix__mha_block__ssm_conv_s4d__prompt"

TILE_B = 28672
WS_Q  = 0x000000
WS_K  = 0x200000
WS_V  = 0x400000
WS_UT = 0x600000
WS_KC = 0x800000
WS_GT = 0xA00000
WS_O  = 0xC00000
WS_BP = 0xE00000

X_BYTES = 2048 * 896
W_BYTES = 448 * 2688
WO_BYTES = 448 * 896

def f32(x):
    return "0x%08x" % struct.unpack("<I", struct.pack("<f", x))[0]

LOG2E = math.log2(math.e)
QSCALE = (28 ** -0.5) * LOG2E

class Asm:
    def __init__(self):
        self.lines = []
    def __call__(self, s):
        for l in s.split("\n"):
            l = l.strip()
            if l:
                self.lines.append(l if l.endswith(":") else "    " + l)
    def label(self, n):
        self.lines.append(n + ":")
    def extend(self, other):
        self.lines.extend(other.lines if isinstance(other, Asm) else other)
    def text(self):
        return "\n".join(self.lines) + "\n"

def vr(b, n=1):
    return f"v{b}" if n == 1 else f"v[{b}:{b+n-1}]"
def sr(b, n=1):
    return f"s{b}" if n == 1 else f"s[{b}:{b+n-1}]"

def mfma(d, a, b, c=None):
    cs = "0" if c is None else vr(c, 16)
    return f"v_mfma_f32_32x32x16_bf16 {vr(d,16)}, {vr(a,4)}, {vr(b,4)}, {cs}"

def kernel_head(label):
    return f""".globl {label}
.p2align 8
.type {label},@function
{label}:
"""

def kernel_desc(label, nv, ns=96):
    nv4 = (nv + 3) // 4 * 4
    return f""".p2align 6
.amdhsa_kernel {label}
  .amdhsa_next_free_vgpr {nv}
  .amdhsa_next_free_sgpr {ns}
  .amdhsa_accum_offset {nv4}
  .amdhsa_group_segment_fixed_size 0
  .amdhsa_kernarg_size 112
  .amdhsa_user_sgpr_count 2
  .amdhsa_user_sgpr_kernarg_segment_ptr 1
  .amdhsa_system_sgpr_workgroup_id_x 1
.end_amdhsa_kernel
"""

import os
PROF = os.environ.get('PROF') == '1'
WS_PROF = 0x1000000
def stamp(a, i):
    if PROF:
        a(f"s_memrealtime s[{64+2*i}:{65+2*i}]\ns_waitcnt lgkmcnt(0)")
def prof_begin(a):
    if PROF:
        a("s_memrealtime s[88:89]\ns_memtime s[64:65]")
        for i in range(1, 12):
            a(f"s_mov_b32 s{64+2*i}, 0")
def prof_end(a, kern, s_ws, s_wave):
    if PROF:
        a(f"""
        s_memtime s[86:87]
        s_memrealtime s[90:91]
        s_waitcnt lgkmcnt(0)
        s_mov_b64 exec, 1
        """)
        if os.environ.get("DBGPROF"):
            a(f"s_cmp_ge_u32 s{s_wave}, 4\ns_cselect_b32 s92, 64, 0\nv_mov_b32 v60, s92\ns_not_b32 s92, s88\nv_mov_b32 v61, s92\nglobal_atomic_umax v60, v61, s[98:99] offset:8")
            a("v_mov_b32 v61, s88\nglobal_atomic_umax v60, v61, s[98:99] offset:12")
            for k, i in enumerate([1, 3, 5, 6, 7, 8, 9]):
                a(f"v_mov_b32 v61, s{64+2*i}\nglobal_atomic_umax v60, v61, s[98:99] offset:{16+4*k}")
            a("v_mov_b32 v60, 0\nv_mov_b32 v61, s90\nglobal_atomic_umax v60, v61, s[98:99] offset:44")
        a(f"""
        s_lshl_b32 s92, s2, 3
        s_add_u32 s92, s92, s{s_wave}
        s_lshl_b32 s92, s92, 6
        s_add_u32 s92, s92, {WS_PROF + kern * 256 * 8 * 64}
        v_mov_b32 v60, s92
        """)
        for i in range(12):
            a(f"v_mov_b32 v61, s{64+2*i}\nglobal_store_dword v60, v61, s[{s_ws}:{s_ws+1}] offset:{4*i}")
        a(f"v_mov_b32 v61, s88\nglobal_store_dword v60, v61, s[{s_ws}:{s_ws+1}] offset:48")
        a(f"v_mov_b32 v61, s90\nglobal_store_dword v60, v61, s[{s_ws}:{s_ws+1}] offset:52")
        a(f"s_getreg_b32 s92, hwreg(HW_REG_HW_ID)\nv_mov_b32 v61, s92\nglobal_store_dword v60, v61, s[{s_ws}:{s_ws+1}] offset:56")
        a(f"s_getreg_b32 s92, hwreg(HW_REG_XCC_ID)\nv_mov_b32 v61, s92\nglobal_store_dword v60, v61, s[{s_ws}:{s_ws+1}] offset:60")

def endp(lbl):
    return f"s_branch {lbl}" if PROF else "s_endpgm"
```

```python
from common import *
from k1 import kgen_round, kgen_expand

WS_CNT = 0x1100000
WS_SIZE = 0x1200000
C_KV, C_Q, C_U, C_BP, C_GT, C_O = 0, 64, 320, 352, 368, 384
SPIN_MAX = 4096
CODE_PF = 4

SLOT = 28672
SLOT_AT = [86016, 114688, 0, 28672, 57344]
IT_SLOT = [0, 1, 2, 3, 4, 0, 1]
BASES = [0, 57344, 114688]
def slot_base(slot):
    at = SLOT_AT[slot]
    b = max(i for i in range(3) if BASES[i] <= at)
    assert at - BASES[b] + SLOT <= 65536
    return b, at - BASES[b]
TAB_B = 32 * 272
L_XCH = 4 * TAB_B
PL_B = 8224
L_KC = 8 * PL_B
KC_B = 4160
L_U = L_KC + 2 * KC_B
U_B = 4608
assert L_U + 2 * U_B <= 86016
L_RED = 86016
L_GATE = 143360
L_CNT = L_GATE + 1024
L_MAX = L_CNT + 64
LDS_TOTAL = L_MAX + 4096

S_X, S_W = 4, 6
S_WS = 22
S_WAVE, S_RB, S_CB, S_P = 24, 25, 26, 27
SRD_X, SRD_W, SRD_WS = 28, 32, 36
T0, T1, T2, T3 = 40, 41, 42, 43
S_DSK = 44
S_LW1K = 45
S_C0 = 46
S_LW = 50
S_CT = 53
S_CH = 57
S_CNT = 60
S_H, S_QB = 62, 63
S_OUT, S_DBG, S_WO = 96, 98, 100
ST = "sc1"
LD = "sc1"

def poll(a, tag, vaddr, vexp, lanes):
    a(f"""
    s_mov_b64 exec, {lanes}
    v_mov_b32 v15, 0
    s_mov_b32 s{T0}, 0
L_poll_{tag}:
    global_atomic_add v14, v{vaddr}, v15, {sr(S_CNT,2)} sc0 sc1
    s_add_u32 s{T0}, s{T0}, 1
    s_waitcnt vmcnt(0)
    v_cmp_ne_u32 vcc, v14, v{vexp}
    s_cbranch_vccz L_ok_{tag}
    s_cmp_lt_u32 s{T0}, {SPIN_MAX}
    s_cbranch_scc1 L_poll_{tag}
L_ok_{tag}:
    s_mov_b64 exec, -1
    """)

def lds_sync(a, idx, tag, n=4):
    a(f"""
    v_mov_b32 v14, {L_CNT}
    v_mov_b32 v15, 1
    s_waitcnt vmcnt(0) lgkmcnt(0)
    s_mov_b64 exec, 1
    ds_add_u32 v14, v15 offset:{4*idx}
    s_mov_b64 exec, -1
L_spin_{tag}:
    ds_read_b32 v15, v14 offset:{4*idx}
    s_waitcnt lgkmcnt(0)
    v_readfirstlane_b32 s{T0}, v15
    s_cmp_lt_u32 s{T0}, {n}
    s_cbranch_scc1 L_spin_{tag}
    """)

def dma_chunk(a, it):
    slot = SLOT_AT[IT_SLOT[it]]
    a(f"""
    s_mul_i32 s58, s{S_CH}, {64*2688}
    s_lshl_b32 s59, s{S_CH}, 7
    """)
    for j in range(4):
        a(f"s_add_u32 m0, s{S_LW1K}, {slot + 12288 + j*4096}")
        a(f"s_add_u32 s{T0}, s58, {16*j*2688}")
        a(f"buffer_load_dwordx4 v3, {sr(SRD_W,4)}, s{T0} offen lds")
        if j < 3:
            a(f"s_add_u32 m0, s{S_LW1K}, {slot + j*4096}")
            a(f"s_add_u32 s{T1}, s59, {j*32*896}")
            a(f"buffer_load_dwordx4 v2, {sr(SRD_X,4)}, s{T1} offen lds")
    if it < 6:
        a(f"""
        s_add_u32 s{S_CH}, s{S_CH}, 1
        s_cmp_eq_u32 s{S_CH}, 7
        s_cselect_b32 s{S_CH}, 0, s{S_CH}
        """)

XA, WA = 128, 140
WF, XF, ACC = 16, 32, 80

def gemm_body(a, kind, tag):
    def reads(g):
        it, ks = divmod(g, 4)
        b, off = slot_base(IT_SLOT[it])
        r = []
        if kind == "gate":
            r.append(f"ds_read_b128 {vr(WF+4*ks,4)}, v8 offset:{32*ks}")
        else:
            r.append(f"ds_read_b64_tr_b16 {vr(WF+4*ks,2)}, v{WA+b} offset:{off + ks*4096}")
            r.append(f"ds_read_b64_tr_b16 {vr(WF+4*ks+2,2)}, v{WA+b} offset:{off + ks*4096+1024}")
        for i in range(3):
            r.append(f"ds_read_b128 {vr(XF+12*ks+4*i,4)}, v{XA+4*b+ks} offset:{off + i*4096}")
        return r
    n = 4 if kind == "gate" else 5
    def mm(g, i):
        ks = g % 4
        w, x, d = WF + 4*ks, XF + 12*ks + 4*i, ACC + 16*i
        c = None if g == 0 else d
        return mfma(d, x, w, c) if kind == "v" else mfma(d, w, x, c)
    def barrier(it):
        a("s_barrier")
        if it in (0, 3, 6): stamp(a, 1 + it // 3)
        if kind == "gate" and it > 0:
            a(f"""
            s_add_u32 s{S_C0}, s{S_C0}, 1
            s_cmp_eq_u32 s{S_C0}, 7
            s_cselect_b32 s{S_C0}, 0, s{S_C0}
            s_lshl_b32 s47, s{S_C0}, 7
            v_add_u32 v8, s47, v9
            """)
        if kind != "gate" and it == 5:
            a(f"""
            s_waitcnt vmcnt(0)
            s_cmp_eq_u32 s48, 0
            s_cbranch_scc1 L_noU_{tag}
            s_mov_b64 exec, 1
            global_atomic_add v144, v145, {sr(S_CNT,2)} sc1
            s_mov_b64 exec, -1
L_noU_{tag}:
            """)
    barrier(0)
    if kind != "gate":
        a(f"""
        s_cmp_eq_u32 s48, 0
        s_cbranch_scc1 L_noT_{tag}
        """)
        for i in range(3):
            a(f"ds_read_b64_tr_b16 {vr(148+4*i,2)}, v9 offset:{i*4096}")
            a(f"ds_read_b64_tr_b16 {vr(150+4*i,2)}, v9 offset:{i*4096+2048}")
        a(f"""
        s_waitcnt lgkmcnt(0)
        buffer_store_dwordx4 v[148:151], v10, {sr(SRD_X,4)}, 0 offen {ST}
        buffer_store_dwordx4 v[152:155], v11, {sr(SRD_X,4)}, 0 offen {ST}
        buffer_store_dwordx4 v[156:159], v12, {sr(SRD_X,4)}, 0 offen {ST}
        """)
        a.label(f"L_noT_{tag}")
    for r in reads(0) + reads(1): a(r)
    for g in range(28):
        nxt = []
        if g + 2 < 28:
            if (g + 2) % 4 == 0:
                barrier((g + 2) // 4)
            nxt = reads(g + 2)
        a(f"s_waitcnt lgkmcnt({n if g < 27 else 0})")
        if g == 27:
            a("s_barrier")
        a(mm(g, 0))
        for r in nxt[:2]: a(r)
        a(mm(g, 1))
        for r in nxt[2:4]: a(r)
        a(mm(g, 2))
        for r in nxt[4:]: a(r)

def gemm_waves(a):
    a.label("L_gemm")
    a(f"""
    v_lshlrev_b32 v10, 4, v0
    s_waitcnt lgkmcnt(0)
    s_add_u32 s{S_CNT}, s{S_WS}, {WS_CNT}
    s_addc_u32 s{S_CNT+1}, s{S_WS+1}, 0
    s_or_b32 s{T0}, s2, s{S_WAVE}
    s_cmp_lg_u32 s{T0}, 0
    s_cbranch_scc1 L_nozero
    v_lshlrev_b32 v4, 7, v0
    v_mov_b32 v5, 0
    """)
    for i in range(7):
        a(f"global_store_dword v4, v5, {sr(S_CNT,2)} sc0 sc1")
        if i < 6: a("v_add_u32 v4, 8192, v4")
    a(f"""
    v_mov_b32 v4, 1
    s_waitcnt vmcnt(0)
    s_mov_b64 exec, 1
    global_store_dword v5, v4, {sr(S_DBG,2)} sc0 sc1
    s_mov_b64 exec, -1
L_nozero:
    s_lshl_b32 s{S_CT}, s{S_CB}, 2
    s_add_u32 s{S_CT}, s{S_CT}, s{S_WAVE}
    v_and_b32 v1, 31, v0
    v_lshrrev_b32 v2, 5, v0                ; hi
    v_lshrrev_b32 v3, 1, v0
    v_and_b32 v3, 7, v3
    v_xor_b32 v3, v3, v2
    v_lshlrev_b32 v{XA}, 7, v1
    v_lshl_add_u32 v{XA}, v3, 4, v{XA}
    v_xor_b32 v{XA+1}, 32, v{XA}
    v_xor_b32 v{XA+2}, 64, v{XA}
    v_xor_b32 v{XA+3}, 96, v{XA}
    """)
    for b in (1, 2):
        for ks in range(4):
            a(f"v_add_u32 v{XA+4*b+ks}, {BASES[b]}, v{XA+ks}")
    a(f"""
    v_and_b32 v4, 15, v0
    v_lshrrev_b32 v5, 4, v0
    s_lshl_b32 s{T0}, s{S_WAVE}, 1
    v_lshrrev_b32 v6, 1, v5
    v_add_u32 v6, s{T0}, v6
    v_lshrrev_b32 v7, 1, v4
    v_xor_b32 v6, v6, v7
    v_lshlrev_b32 v9, 7, v4
    v_lshl_add_u32 v9, v6, 4, v9
    v_and_b32 v6, 1, v5                    ; ih
    v_lshl_add_u32 v9, v6, 3, v9
    v_add_u32 v9, {SLOT_AT[IT_SLOT[0]]}, v9
    s_mul_i32 s{T0}, s{S_RB}, {3*TILE_B}
    s_lshl_b32 s{T1}, s{S_C0}, 12
    s_add_u32 s{T1}, s{T1}, s{S_LW1K}
    s_add_u32 s{T1}, s{T1}, s{T0}
    v_add_u32 v10, s{T1}, v10
    v_add_u32 v11, {TILE_B}, v10
    v_add_u32 v12, {2*TILE_B}, v10
    s_add_u32 s{SRD_X}, s{S_WS}, {WS_UT}
    s_addc_u32 s{SRD_X+1}, s{S_WS+1}, 0
    s_mov_b32 s{SRD_X+2}, {64*TILE_B}
    s_mov_b32 s{SRD_X+3}, 0x20000
    s_cmp_lt_u32 s{S_CB}, 7
    s_cselect_b32 s48, 1, 0
    s_cmp_lt_u32 s{S_RB}, 22
    s_cselect_b32 s48, s48, 0
    s_lshl_b32 s{T0}, s{S_C0}, 2
    s_add_u32 s{T0}, s{T0}, s{S_WAVE}
    s_add_u32 s{T0}, s{T0}, {C_U}
    s_lshl_b32 s{T0}, s{T0}, 7
    v_mov_b32 v144, s{T0}
    v_mov_b32 v145, 1
    s_mul_i32 s{T0}, s{S_RB}, 3
    s_add_u32 s{T1}, s{T0}, 2
    s_min_u32 s{T1}, s{T1}, 63
    s_cmp_lt_u32 s{S_CT}, 14
    s_cselect_b32 s{T2}, 2, 4
    s_cselect_b32 s{T3}, 4, 2
    s_cselect_b32 s51, {C_Q}, {C_KV}
    s_lshr_b32 s{T0}, s{T0}, s{T2}
    s_lshr_b32 s{T1}, s{T1}, s{T2}
    s_cmp_eq_u32 s{T0}, s{T1}
    s_cselect_b32 s54, 3, 15
    s_mov_b32 s55, 0
    s_mul_i32 s{T1}, s{S_CT}, 37
    s_lshr_b32 s{T1}, s{T1}, 9             ; CT / 14
    s_mul_i32 s{T1}, s{T1}, 14
    s_sub_u32 s52, s{S_CT}, s{T1}          ; ct'
    s_mul_i32 s{T1}, s52, {8*147}
    s_lshr_b32 s{T1}, s{T1}, 10            ; (8 ct') / 7
    v_and_b32 v4, 1, v0
    v_add_u32 v4, s{T1}, v4
    v_lshlrev_b32 v4, s{T3}, v4
    v_bfe_u32 v5, v0, 1, 1
    s_add_u32 s56, s{T0}, {C_GT}           ; gate wave: first counter
    s_add_u32 s{T0}, s{T0}, s51
    v_add3_u32 v4, v4, v5, s{T0}
    v_lshlrev_b32 v146, 7, v4
    v_bfe_u32 v4, v0, 2, 2                 ; r
    v_lshl_add_u32 v13, v2, 3, v4          ; 8 hi + r
    v_lshlrev_b32 v8, 8, v13
    v_xor_b32 v13, s{S_WAVE}, v4
    v_lshl_add_u32 v8, v13, 6, v8
    v_lshl_add_u32 v8, v6, 5, v8
    v_add_u32 v8, 12288, v8
    v_and_b32 v13, 3, v0                   ; c
    s_cmp_ge_u32 s{S_CT}, 42
    s_cbranch_scc1 L_gate
    s_cmp_ge_u32 s{S_CT}, 28
    s_cbranch_scc1 L_v
    v_and_b32 v14, 1, v13
    v_lshrrev_b32 v13, 1, v13
    v_lshl_add_u32 v13, v14, 1, v13
    """)
    wa = f"""
    v_lshl_add_u32 v{WA}, v13, 3, v8
    v_add_u32 v{WA+1}, {BASES[1]}, v{WA}
    v_add_u32 v{WA+2}, {BASES[2]}, v{WA}
    """
    a(wa)
    a(f"""
    s_cmp_ge_u32 s{S_CT}, 14
    s_cselect_b32 s47, 1.0, {f32(QSCALE)}
    s_cselect_b32 s{T0}, {WS_K}, {WS_Q}
    s_lshl_b32 s{T1}, s52, 11
    s_add_u32 s{T0}, s{T0}, s{T1}
    s_mul_i32 s{T1}, s{S_RB}, {3*TILE_B}
    s_add_u32 s{T0}, s{T0}, s{T1}
    s_add_u32 s{SRD_W}, s{S_WS}, s{T0}
    s_addc_u32 s{SRD_W+1}, s{S_WS+1}, 0
    v_lshlrev_b32 v6, 4, v0
    v_add_u32 v7, 1024, v6
    """)
    def stores(scale, tag):
        a(f"""
        s_cmp_ge_u32 s{S_RB}, 22
        s_cbranch_scc1 L_attn
        s_nop 7
        """)
        for i in range(3):
            if scale:
                for j in range(16):
                    a(f"v_mul_f32 v{80+16*i+j}, s47, v{80+16*i+j}")
            for j in range(8):
                a(f"v_cvt_pk_bf16_f32 v{16+8*i+j}, v{80+16*i+2*j}, v{80+16*i+2*j+1}")
                if j == 3: a(f"global_store_dwordx4 v6, {vr(16+8*i,4)}, {sr(SRD_W,2)} {ST}")
            a(f"global_store_dwordx4 v7, {vr(20+8*i,4)}, {sr(SRD_W,2)} {ST}")
            if i == 0:
                a(f"s_cmp_ge_u32 s{S_RB}, 21\ns_cbranch_scc1 L_signal")
            if i < 2:
                a(f"s_add_u32 s{SRD_W}, s{SRD_W}, {TILE_B}\ns_addc_u32 s{SRD_W+1}, s{SRD_W+1}, 0")
    gemm_body(a, "qk", "qk")
    stores(True, "qk")
    a("s_branch L_signal")
    a.label("L_gate")
    a(f"""
    v_lshlrev_b32 v9, 4, v2
    v_add_u32 v9, {L_GATE}, v9
    s_lshl_b32 s47, s{S_C0}, 7
    v_add_u32 v8, s47, v9
    v_lshrrev_b32 v4, 1, v0
    v_add_u32 v4, s56, v4
    v_lshlrev_b32 v146, 7, v4
    s_and_b32 s54, s54, 5
    """)
    gemm_body(a, "gate", "g")
    a(f"""
    s_cmp_lg_u32 s{S_CT}, 42
    s_cbranch_scc1 L_attn
    s_cmp_ge_u32 s{S_RB}, 22
    s_cbranch_scc1 L_attn
    s_mul_i32 s{T0}, s{S_RB}, {96*4}
    s_add_u32 s{T0}, s{T0}, {WS_GT}
    s_add_u32 s{SRD_W}, s{S_WS}, s{T0}
    s_addc_u32 s{SRD_W+1}, s{S_WS+1}, 0
    v_lshlrev_b32 v10, 2, v1
    s_nop 4
    """)
    for i in range(3):
        r = 80 + 16*i
        a(f"""
        v_cvt_pk_bf16_f32 v{r}, v{r}, v{r}
        v_and_b32 v{r}, 0xffff0000, v{r}
        v_mul_f32 v{r}, {f32(-LOG2E)}, v{r}
        v_exp_f32 v{r}, v{r}
        s_nop 0
        v_add_f32 v{r}, 1.0, v{r}
        v_rcp_f32 v{r}, v{r}
        s_nop 0
        v_cvt_pk_bf16_f32 v{r}, v{r}, v{r}
        v_and_b32 v{r}, 0xffff0000, v{r}
        global_store_dword v10, v{r}, {sr(SRD_W,2)} offset:{128*i} {ST}
        """)
        if i == 0:
            a(f"s_cmp_ge_u32 s{S_RB}, 21\ns_cbranch_scc1 L_signal")
    a("s_branch L_signal")
    a.label("L_v")
    a(wa)
    a(f"""
    s_lshl_b32 s{T0}, s52, 9
    s_mul_i32 s{T1}, s{S_RB}, {3*TILE_B}
    s_add_u32 s{T0}, s{T0}, s{T1}
    s_add_u32 s{T0}, s{T0}, {WS_V}
    s_add_u32 s{SRD_W}, s{S_WS}, s{T0}
    s_addc_u32 s{SRD_W+1}, s{S_WS+1}, 0
    v_mul_u32_u24 v6, 7168, v2
    v_lshl_add_u32 v6, v1, 4, v6
    v_add_u32 v7, 14336, v6
    """)
    gemm_body(a, "v", "v")
    stores(False, "v")
    a.label("L_signal")
    attn_setup(a)
    stamp(a, 4)
    a(f"""
    s_waitcnt vmcnt(0)
    s_mov_b64 exec, s[54:55]
    global_atomic_add v146, v145, {sr(S_CNT,2)} sc1
    s_mov_b64 exec, -1
    s_branch L_attn2
L_attn:
    """)
    attn_setup(a)
    a.label("L_attn2")

Q, O, S, P, KV = 16, 48, 112, 144, 160
NV = 224
S_OFF = 9
S_EXV = 20

def kv_loads(b):
    r = KV + 16 * b
    w = sr(SRD_WS, 4)
    return [[f"buffer_load_dwordx4 {vr(r,4)}, v2, {w}, s{S_OFF} offen {LD}"],
            [f"buffer_load_dwordx4 {vr(r+4,4)}, v2, {w}, s{S_OFF} offen offset:1024 {LD}"],
            [f"s_mov_b64 exec, {sr(S_EXV,2)}",
             f"buffer_load_dwordx4 {vr(r+8,4)}, v3, {w}, s{S_OFF} offen {LD}",
             f"buffer_load_dwordx4 {vr(r+12,4)}, v4, {w}, s{S_OFF} offen {LD}",
             f"s_mov_b64 exec, -1"],
            [f"s_add_u32 s{S_OFF}, s{S_OFF}, {TILE_B}"]]

def slot(a, n, qk, pv, extra=None):
    sc, sn = S + 16 * (n & 1), S + 16 * ((n + 1) & 1)
    pc, pp = P + 8 * (n & 1), P + 8 * ((n + 1) & 1)
    ms = [None] * 4
    if qk is not None:
        k, q = KV + 16 * qk[0], Q + 8 * qk[1]
        ms[0] = mfma(sn, k, q, None)
        ms[1] = mfma(sn, k + 4, q + 4, sn)
    if pv is not None:
        v, o = KV + 16 * pv[0] + 8, O + 16 * pv[1]
        ms[2] = mfma(o, v, pp, o)
        ms[3] = mfma(o, v + 4, pp + 4, o)
    for g in range(4):
        if ms[g]: a(ms[g])
        for j in range(4):
            a(f"v_exp_f32 v{sc+4*g+j}, v{sc+4*g+j}")
            if g > 0 and j == 0:
                a(f"v_cvt_pk_bf16_f32 v{pc+2*g-2}, v{sc+4*g-4}, v{sc+4*g-3}")
                a(f"v_cvt_pk_bf16_f32 v{pc+2*g-1}, v{sc+4*g-2}, v{sc+4*g-1}")
        if g == 1 and extra:
            for e in extra: a(e)
    a(f"v_cvt_pk_bf16_f32 v{pc+6}, v{sc+12}, v{sc+13}")
    a(f"v_cvt_pk_bf16_f32 v{pc+7}, v{sc+14}, v{sc+15}")

def red_writes(j):
    return [f"ds_write_b128 v{5+j}, {vr(O+16*j+4*i,4)} offset:{1024*i}" for i in range(4)]

def attn_setup(a):
    a(f"""
    s_mov_b32 s{SRD_WS}, s{S_WS}
    s_mov_b32 s{SRD_WS+1}, s{S_WS+1}
    s_mov_b32 s{SRD_WS+2}, {WS_SIZE}
    s_mov_b32 s{SRD_WS+3}, 0x20000
    s_mul_i32 s{T0}, s{S_H}, 7
    s_lshr_b32 s8, s{T0}, 1                ; u0
    s_mul_i32 s{S_OFF}, s{S_WAVE}, {16*TILE_B}
    s_lshl_b32 s{T2}, s8, 9
    v_lshlrev_b32 v11, 4, v0               ; lane*16
    v_add_u32 v12, s{T2}, v11              ; Q / O voffset
    v_add_u32 v2, {WS_K}, v12
    v_bfe_u32 v8, v0, 2, 1
    v_bfe_u32 v9, v0, 3, 1
    v_and_b32 v10, 19, v0
    v_lshl_add_u32 v10, v8, 3, v10
    v_lshl_add_u32 v10, v9, 2, v10
    v_lshrrev_b32 v1, 5, v0                ; hi
    v_mul_u32_u24 v3, 7168, v1
    v_lshl_add_u32 v3, v10, 4, v3
    s_lshl_b32 s{T3}, s8, 7
    s_add_u32 s{T3}, s{T3}, {WS_V}
    v_add_u32 v3, s{T3}, v3
    v_add_u32 v4, 14336, v3
    s_bitcmp1_b32 s{S_H}, 0
    s_mov_b32 s{S_EXV}, 0x0fffffff
    s_cselect_b32 s{S_EXV}, 0xfffffff0, s{S_EXV}
    s_mov_b32 s{S_EXV+1}, s{S_EXV}
    """)
    for j in range(4):
        a(f"""
        s_add_u32 s{T3}, s{S_WAVE}, {j+1}
        s_and_b32 s{T3}, s{T3}, 3
        s_lshl_b32 s{T0}, s{S_QB}, 2
        s_add_u32 s{T0}, s{T0}, s{T3}
        s_mul_i32 s{10+j}, s{T0}, {TILE_B}
        """)
        if j < 3:
            a(f"""
            s_mul_i32 s{T3}, s{T3}, 12288
            s_add_u32 s{T3}, s{T3}, {L_RED + 4096*j}
            v_add_u32 v{5+j}, s{T3}, v11
            """)
    for b in range(4):
        for i in range(8):
            a(f"v_mov_b32 v{KV+16*b+8+i}, 0x3f803f80")
    for i in range(64):
        a(f"v_mov_b32 v{O+i}, 0")
    for i in range(8):
        a(f"v_mov_b32 v{P+8+i}, 0")
    a(f"""
    s_and_b32 s{T0}, s{S_H}, 1
    v_cmp_lt_u32 vcc, v1, s{T0}
    v_cmp_gt_u32 s[14:15], v1, s{T0}
    s_add_u32 s{T0}, s{S_H}, 1
    s_and_b32 s{T0}, s{T0}, 6
    v_cndmask_b32 v8, -1, 0, vcc
    v_cndmask_b32 v9, -1, 0, s[14:15]
    s_cmp_eq_u32 s{T0}, 0
    s_cselect_b32 s{T0}, 12, 24
    s_cselect_b32 s{T1}, 2, 4
    v_mov_b32 v13, s{T0}
    v_writelane_b32 v13, s{T1}, 1
    s_lshl_b32 s{T0}, s{S_H}, 2
    s_add_u32 s{T0}, s{T0}, s{S_WAVE}
    s_lshl_b32 s{T0}, s{T0}, 7
    s_lshl_b32 s{T1}, s{S_H}, 4
    s_add_u32 s{T1}, s{T1}, s{S_QB}
    s_add_u32 s{T1}, s{T1}, {C_Q}
    s_lshl_b32 s{T1}, s{T1}, 7
    v_mov_b32 v10, s{T0}
    v_writelane_b32 v10, s{T1}, 1
    """)

def attention(a):
    w = sr(SRD_WS, 4)
    stamp(a, 5)
    poll(a, "a", 10, 13, 3)
    stamp(a, 6)
    l0 = kv_loads(0)
    for x in l0[0] + l0[1]: a(x)
    for j in range(4):
        a(f"buffer_load_dwordx4 {vr(Q+8*j,4)}, v12, {w}, s{10+j} offen {LD}")
        a(f"buffer_load_dwordx4 {vr(Q+8*j+4,4)}, v12, {w}, s{10+j} offen offset:1024 {LD}")
    for x in l0[2] + l0[3]: a(x)
    for b in (1, 2):
        for grp in kv_loads(b):
            for x in grp: a(x)
    for j in range(4):
        a(f"""
        s_waitcnt vmcnt({16 - 2*j})
        v_and_b32 v{Q+8*j}, v8, v{Q+8*j}
        v_and_b32 v{Q+8*j+1}, v8, v{Q+8*j+1}
        v_and_b32 v{Q+8*j+6}, v9, v{Q+8*j+6}
        v_and_b32 v{Q+8*j+7}, v9, v{Q+8*j+7}
        """)
        if j == 0:
            a("s_mov_b32 s19, 0\ns_nop 0")
            a(mfma(S, KV, Q, None))
            a(mfma(S, KV + 4, Q + 4, S))
    a("s_waitcnt vmcnt(8)")
    stamp(a, 7)
    def step(b, loads, wait, last=False):
        ld = kv_loads((b + 3) & 3) if loads else [[], [], [], []]
        for q in range(4):
            qk = (b, q + 1) if q < 3 else ((b + 1) & 3, 0)
            pv = (b, q - 1) if q > 0 else ((b - 1) & 3, 3)
            extra = list(ld[q])
            if last:
                if q == 3: qk = None
                if q >= 2: extra = red_writes(q - 2)
            if q == 3 and wait is not None:
                a(f"s_waitcnt vmcnt({wait})")
            slot(a, q, qk, pv, extra)
    a.label("L_aloop")
    for b in range(4):
        step(b, True, 8)
        if b == 0:
            a("s_cmp_eq_u32 s19, 3\ns_cbranch_scc1 L_atail")
    a("s_add_u32 s19, s19, 1\ns_branch L_aloop")
    a.label("L_atail")
    step(1, False, 4)
    step(2, False, 0)
    step(3, False, None, last=True)
    a("s_nop 0")
    a(mfma(O + 48, KV + 48 + 8, P + 8, O + 48))
    a(mfma(O + 48, KV + 48 + 12, P + 12, O + 48))
    a(f"""
    v_min_f32 v8, v{O}, v{O+16}
    v_max_f32 v9, v{O}, v{O+16}
    v_min_f32 v10, v{O+12}, v{O+28}
    v_max_f32 v13, v{O+12}, v{O+28}
    """)
    for x in red_writes(2): a(x)
    a(f"""
    s_mov_b32 s{T0}, {f32(2.0**-40)}
    s_mov_b32 s{T1}, {f32(2.0**40)}
    s_bitcmp1_b32 s{S_H}, 0
    s_cselect_b64 s[14:15], -1, 0
    v_min3_f32 v8, v8, v{O+32}, v{O+48}
    v_max3_f32 v9, v9, v{O+32}, v{O+48}
    v_min3_f32 v10, v10, v{O+44}, v{O+60}
    v_max3_f32 v13, v13, v{O+44}, v{O+60}
    v_cndmask_b32 v8, v10, v8, s[14:15]
    v_cndmask_b32 v9, v13, v9, s[14:15]
    v_cmp_le_f32 vcc, s{T0}, v8
    v_cmp_ge_f32 s[16:17], s{T1}, v9
    s_and_b64 s[16:17], s[16:17], vcc
    s_bitcmp1_b32 s{S_H}, 0
    s_cselect_b32 s16, s16, s17
    s_cmp_eq_u32 s16, {0x12345 if os.environ.get("SLOW") else -1}
    s_cbranch_scc1 L_fine
    v_mov_b32 v8, {L_CNT}
    v_mov_b32 v9, 1
    ds_write_b32 v8, v9 offset:16
L_fine:
    """)

def reduce(a, check):
    o = O + 48
    a(f"""
    s_mul_i32 s{T0}, s{S_WAVE}, 12288
    s_add_u32 s{T0}, s{T0}, {L_RED}
    v_add_u32 v8, s{T0}, v11
    v_mov_b32 v9, {L_CNT}
    s_waitcnt lgkmcnt(0)
    s_barrier
    """)
    if check:
        a("ds_read_b32 v10, v9 offset:16")
    for j in range(3):
        for i in range(4):
            a(f"ds_read_b128 {vr(O+16*j+4*i,4)}, v8 offset:{4096*j + 1024*i}")
    if check:
        a(f"""
        s_waitcnt lgkmcnt(12)
        v_readfirstlane_b32 s{T0}, v10
        s_cmp_lg_u32 s{T0}, 0
        s_cbranch_scc1 L_slow
        """)
    for j in range(3):
        for i in range(4):
            a(f"s_waitcnt lgkmcnt({11 - 4*j - i})")
            for e in range(4):
                a(f"v_add_f32 v{o+4*i+e}, v{o+4*i+e}, v{O+16*j+4*i+e}")

def store_o(a):
    o = O + 48
    w = sr(SRD_WS, 4)
    a(f"""
    s_bitcmp1_b32 s{S_H}, 0
    s_cselect_b64 vcc, -1, 0
    v_add_u32 v12, {WS_O}, v12
    v_cndmask_b32 v10, v{o+12}, v{o}, vcc
    s_lshl_b32 s{T0}, s{S_QB}, 2
    v_mov_b32 v13, v10
    s_add_u32 s{T0}, s{T0}, s{S_WAVE}
    s_add_u32 s{T0}, s{T0}, {C_O}
    v_permlane32_swap_b32 v10, v13
    s_lshl_b32 s{T0}, s{T0}, 7
    v_mov_b32 v8, s{T0}
    v_cndmask_b32 v10, v13, v10, vcc
    v_rcp_f32 v10, v10
    v_mov_b32 v9, 1
    """)
    for i in range(16):
        a(f"v_mul_f32 v{o+i}, v{o+i}, v10")
    for i in range(8):
        a(f"v_cvt_pk_bf16_f32 v{16+i}, v{o+2*i}, v{o+2*i+1}")
    a(f"""
    s_cbranch_vccnz L_st_odd
    buffer_store_dwordx4 v[16:19], v12, {w}, s13 offen {ST}
    s_mov_b32 exec_hi, 0
    buffer_store_dwordx4 v[20:23], v12, {w}, s13 offen offset:1024 {ST}
    s_not_b64 exec, exec
    buffer_store_dwordx2 v[20:21], v12, {w}, s13 offen offset:1024 {ST}
    s_branch L_st_done
L_st_odd:
    buffer_store_dwordx4 v[20:23], v12, {w}, s13 offen offset:1024 {ST}
    s_mov_b32 exec_hi, 0
    buffer_store_dwordx2 v[18:19], v12, {w}, s13 offen offset:8 {ST}
    s_not_b64 exec, exec
    buffer_store_dwordx4 v[16:19], v12, {w}, s13 offen {ST}
L_st_done:
    s_mov_b64 exec, 1
    """)
    stamp(a, 9)
    a(f"""
    s_waitcnt vmcnt(0)
    global_atomic_add v8, v9, {sr(S_CNT,2)} sc1
    """)
    a(endp("L_end"))

def fallback(a):
    M = 208
    a.label("L_slow")
    for j in range(4):
        a(f"v_mov_b32 v{M+j}, 0xff800000")
    l0 = kv_loads(0)
    a(f"""
    s_waitcnt lgkmcnt(0)
    s_mul_i32 s{S_OFF}, s{S_WAVE}, {16*TILE_B}
    s_mov_b32 s19, 0
L_s1:
    """)
    for x in l0[0] + l0[1] + l0[3]: a(x)
    a("s_waitcnt vmcnt(0)")
    for j in range(4):
        a(mfma(S, KV, Q + 8*j, None))
        a(mfma(S, KV + 4, Q + 8*j + 4, S))
        a("s_nop 15")
        for i in range(8):
            a(f"v_max3_f32 v{M+j}, v{M+j}, v{S+2*i}, v{S+2*i+1}")
    a(f"""
    s_add_u32 s19, s19, 1
    s_cmp_lt_u32 s19, 16
    s_cbranch_scc1 L_s1
    v_lshlrev_b32 v8, 2, v0
    """)
    for j in range(4):
        a(f"""
        s_add_u32 s{T0}, s{S_WAVE}, {j+1}
        s_and_b32 s{T0}, s{T0}, 3
        s_lshl_b32 s{T0}, s{T0}, 10
        s_lshl_b32 s{T1}, s{S_WAVE}, 8
        s_add_u32 s{T1}, s{T1}, s{T0}
        s_add_u32 s{T1}, s{T1}, {L_MAX}
        v_add_u32 v9, s{T1}, v8
        ds_write_b32 v9, v{M+j}
        """)
    a(f"""
    s_waitcnt lgkmcnt(0)
    s_barrier
    v_and_b32 v8, 31, v0
    v_lshlrev_b32 v8, 2, v8
    """)
    for j in range(4):
        a(f"""
        s_add_u32 s{T0}, s{S_WAVE}, {j+1}
        s_and_b32 s{T0}, s{T0}, 3
        s_lshl_b32 s{T0}, s{T0}, 10
        s_add_u32 s{T0}, s{T0}, {L_MAX}
        v_add_u32 v9, s{T0}, v8
        """)
        for i in range(8):
            a(f"ds_read_b32 v{S+i}, v9 offset:{128*i}")
        a("s_waitcnt lgkmcnt(0)")
        for i in range(4):
            a(f"v_max3_f32 v{M+j}, v{M+j}, v{S+2*i}, v{S+2*i+1}")
    for i in range(64):
        a(f"v_mov_b32 v{O+i}, 0")
    a(f"""
    s_mul_i32 s{S_OFF}, s{S_WAVE}, {16*TILE_B}
    s_mov_b32 s19, 0
L_s2:
    """)
    for grp in l0:
        for x in grp: a(x)
    a("s_waitcnt vmcnt(0)")
    for j in range(4):
        a(mfma(S, KV, Q + 8*j, None))
        a(mfma(S, KV + 4, Q + 8*j + 4, S))
        a("s_nop 15")
        for i in range(16):
            a(f"v_sub_f32 v{S+i}, v{S+i}, v{M+j}")
        for i in range(16):
            a(f"v_exp_f32 v{S+i}, v{S+i}")
        a("s_nop 0")
        for i in range(8):
            a(f"v_cvt_pk_bf16_f32 v{P+i}, v{S+2*i}, v{S+2*i+1}")
        a("s_nop 1")
        a(mfma(O + 16*j, KV + 8, P, O + 16*j))
        a(mfma(O + 16*j, KV + 12, P + 4, O + 16*j))
    a(f"""
    s_add_u32 s19, s19, 1
    s_cmp_lt_u32 s19, 16
    s_cbranch_scc1 L_s2
    s_nop 15
    """)
    for j in range(3):
        for x in red_writes(j): a(x)
    reduce(a, False)
    a("s_branch L_fin")

def conv(a):
    CA, TF, UF = 32, 96, 128
    w = sr(SRD_WS, 4)
    for i in range(64):
        a(f"v_mov_b32 v{CA+i}, 0")
    a(f"""
    v_bfe_u32 v8, v0, 4, 2
    v_lshlrev_b32 v5, 5, v8
    v_and_b32 v9, 3, v0
    v_lshl_add_u32 v5, v9, 3, v5
    v_bfe_u32 v9, v0, 2, 2
    v_lshlrev_b32 v9, 3, v9
    v_sub_u32 v5, v5, v9
    v_add_u32 v5, {L_KC + 64 - 32}, v5
    v_and_b32 v8, 31, v0
    v_lshlrev_b32 v6, 4, v8
    v_lshrrev_b32 v9, 5, v0
    v_lshlrev_b32 v9, 6, v9
    v_sub_u32 v6, v6, v9
    v_add_u32 v6, {L_U + 512 - 384}, v6
    s_lshl_b32 s{T0}, s{S_LW}, 9
    v_add_u32 v7, s{T0}, v6
    s_sub_u32 s{T0}, {7*512}, s{T0}
    v_add_u32 v6, s{T0}, v6
    """)
    lds_sync(a, 1, "b")
    stamp(a, 5)
    a(f"""
    v_and_b32 v8, 7, v0
    v_mul_u32_u24 v8, {PL_B}, v8
    s_cmp_lg_u32 s{S_LW}, 0
    s_cbranch_scc1 L_nopl
    ds_write_b128 v8, {vr(CA,4)}
L_nopl:
    """)
    def body(both):
        nts = 2 if both else 1
        per = 4 + 2 * nts
        def reads(ph):
            r = []
            for ch in range(2):
                t = TF + 8*ph + 4*ch
                r.append(f"ds_read_b64_tr_b16 {vr(t,2)}, v5 offset:{ch*KC_B + 128*ph + 32}")
                r.append(f"ds_read_b64_tr_b16 {vr(t+2,2)}, v5 offset:{ch*KC_B + 128*ph}")
                for ts in range(nts):
                    r.append(f"ds_read_b128 {vr(UF + 16*ph + 8*ts + 4*ch, 4)}, v{6+ts} offset:{ch*U_B + 128*(3-ph)}")
            return r
        def mms(ph):
            return [mfma(CA + 32*ts + 16*ch, UF + 16*ph + 8*ts + 4*ch, TF + 8*ph + 4*ch, CA + 32*ts + 16*ch)
                    for ch in range(2) for ts in range(nts)]
        for r in reads(0): a(r)
        for ph in range(4):
            if ph < 3:
                for r in reads(ph + 1): a(r)
                a(f"s_waitcnt lgkmcnt({per})")
            else:
                a("v_add_u32 v5, 512, v5\nv_subrev_u32 v6, 512, v6")
                if both: a("v_subrev_u32 v7, 512, v7")
                a("s_waitcnt lgkmcnt(0)")
            for m in mms(ph): a(m)
    a(f"s_add_u32 s14, s{S_LW}, 1")
    a.label("L_cA")
    body(True)
    a(f"""
    s_sub_u32 s14, s14, 1
    s_cmp_lg_u32 s14, 0
    s_cbranch_scc1 L_cA
    s_lshl_b32 s14, s{S_LW}, 1
    s_sub_u32 s14, 7, s14
L_cB:
    """)
    body(False)
    a(f"""
    s_sub_u32 s14, s14, 1
    s_cmp_lg_u32 s14, 0
    s_cbranch_scc1 L_cB
    s_mov_b32 m0, s{S_LW1K}
    s_nop 0
    """)
    stamp(a, 6)
    for ts in (1, 0):
        if ts == 0:
            a(f"s_sub_u32 m0, {7*1024}, m0\ns_nop 0")
        for ch in range(2):
            for r in range(16):
                a(f"ds_write_addtid_b32 v{CA+32*ts+16*ch+r} offset:{((r&3)*2+ch)*PL_B + 256*(r>>2) + 4*(r&3)}")
    lds_sync(a, 2, "c")
    a(f"""
    s_lshl_b32 s{T0}, s{S_LW}, 11
    v_lshl_add_u32 v5, v0, 4, s{T0}
    """)
    for hf in range(2):
        for pl in range(8):
            a(f"ds_read_b128 {vr(CA+32*hf+4*pl,4)}, v5 offset:{pl*PL_B + 1024*hf}")
    a(f"""
    s_lshl_b32 s14, s2, 13
    s_add_u32 s14, s14, {WS_BP}
    s_lshr_b32 s{T1}, s2, 6
    s_lshl_b32 s{T0}, s{S_LW}, 2
    s_add_u32 s{T0}, s{T0}, s{T1}
    s_add_u32 s{T0}, s{T0}, {C_BP}
    s_lshl_b32 s{T0}, s{T0}, 7
    v_mov_b32 v8, s{T0}
    v_mov_b32 v9, 1
    """)
    for hf in range(2):
        b = CA + 32*hf
        a(f"s_waitcnt lgkmcnt({8 - 8*hf})")
        for i in range(8):
            a(f"v_add_f32 v{b+i}, v{b+i}, v{b+8+i}")
            a(f"v_add_f32 v{b+16+i}, v{b+16+i}, v{b+24+i}")
        for i in range(8):
            a(f"v_add_f32 v{b+i}, v{b+i}, v{b+16+i}")
        for i in range(4):
            a(f"v_cvt_pk_bf16_f32 v{b+i}, v{b+i}, v{b+4+i}")
        a(f"buffer_store_dwordx4 {vr(b,4)}, v5, {w}, s14 offen offset:{1024*hf} {ST}")
    lds_sync(a, 3, "d")
    a(f"""
    s_mov_b64 exec, 1
    global_atomic_add v8, v9, {sr(S_CNT,2)} sc1
    s_mov_b64 exec, -1
    """)

def outproj(a):
    WOF, ACC3, BR, OF = 32, 16, 144, 160
    w = sr(SRD_WS, 4)
    a(f"""
    s_and_b32 s8, s2, 7
    s_lshl_b32 s8, s8, 3
    s_lshr_b32 s{T0}, s2, 5
    s_add_u32 s8, s8, s{T0}
    s_bfe_u32 s9, s2, 0x20003
    s_lshl_b32 s10, s9, 2
    s_add_u32 s10, s10, s{S_LW}
    s_cmp_ge_u32 s10, 14
    s_cbranch_scc1 L_nowo
    v_lshrrev_b32 v4, 2, v0
    v_mul_u32_u24 v3, 896, v4
    v_and_b32 v5, 3, v0
    v_lshl_add_u32 v3, v5, 4, v3
    s_lshl_b32 s{T0}, s10, 6
    s_add_u32 s12, s{S_WO}, s{T0}
    s_addc_u32 s13, s{S_WO+1}, 0
    s_lshl_b32 s11, s{S_LW}, 14
    v_lshrrev_b32 v5, 5, v0
    v_bfe_u32 v6, v0, 2, 2
    v_lshl_add_u32 v6, v5, 3, v6
    v_lshlrev_b32 v6, 6, v6
    v_bfe_u32 v7, v0, 4, 1
    v_lshl_add_u32 v6, v7, 5, v6
    v_and_b32 v7, 1, v0
    v_lshl_add_u32 v6, v7, 4, v6
    v_bfe_u32 v7, v0, 1, 1
    v_lshl_add_u32 v6, v7, 3, v6
    v_add_u32 v6, s11, v6
    """)
    for rnd in range(2):
        a(f"s_mov_b32 m0, s11")
        for i in range(14):
            a("s_nop 0" if (rnd == 0 and i == 0) else "s_addc_u32 s13, s13, 0")
            a("global_load_lds_dwordx4 v3, s[12:13]")
            if i < 13: a("s_add_u32 m0, m0, 1024")
            if not (rnd == 1 and i == 13):
                if i == 13:
                    a("s_waitcnt vmcnt(0)")
                    for k in range(14):
                        a(f"ds_read_b64_tr_b16 {vr(WOF+4*k,2)}, v6 offset:{1024*k}")
                        a(f"ds_read_b64_tr_b16 {vr(WOF+4*k+2,2)}, v6 offset:{1024*k+256}")
                    a("s_waitcnt lgkmcnt(0)")
                a(f"s_add_u32 s12, s12, {16*896}")
    a("s_waitcnt vmcnt(0)")
    for k in range(14):
        a(f"ds_read_b64_tr_b16 {vr(WOF+56+4*k,2)}, v6 offset:{1024*k}")
        a(f"ds_read_b64_tr_b16 {vr(WOF+56+4*k+2,2)}, v6 offset:{1024*k+256}")
    stamp(a, 8)
    a(f"""
    s_lshr_b32 s{T0}, s8, 4                ; quarter
    s_lshl_b32 s{T1}, s{T0}, 2
    s_add_u32 s{T1}, s{T1}, s9
    s_add_u32 s{T1}, s{T1}, {C_BP}
    s_lshl_b32 s{T1}, s{T1}, 7
    s_add_u32 s{T0}, s{T0}, {C_GT}
    s_lshl_b32 s{T0}, s{T0}, 7
    v_mov_b32 v8, s{T1}
    v_writelane_b32 v8, s{T0}, 1
    s_cmp_eq_u32 s9, 3
    s_cselect_b32 s{T0}, 32, 64
    v_mov_b32 v9, s{T0}
    v_writelane_b32 v9, 6, 1
    """)
    a(f"""
    s_mov_b64 exec, 3
    v_mov_b32 v15, 0
    s_mov_b32 s{T0}, 0
L_poll_b:
    global_atomic_add v14, v8, v15, {sr(S_CNT,2)} sc0 sc1
    s_add_u32 s{T0}, s{T0}, 1
    s_waitcnt vmcnt(0)
    v_cmp_ne_u32 vcc, v14, v9
    s_cbranch_vccz L_ok_b
    s_sleep 32
    s_cmp_lt_u32 s{T0}, {SPIN_MAX}
    s_cbranch_scc1 L_poll_b
L_ok_b:
    s_mov_b64 exec, -1
    v_and_b32 v4, 31, v0
    v_lshlrev_b32 v6, 2, v4
    v_lshl_add_u32 v7, v5, 15, v6
    s_lshl_b32 s{T0}, s10, 17
    s_lshl_b32 s{T1}, s8, 7
    s_add_u32 s{T0}, s{T0}, s{T1}
    s_add_u32 s{T0}, s{T0}, {WS_BP}
    s_add_u32 s{T1}, s{T1}, {WS_GT}
    buffer_load_dword v{BR+8}, v6, {w}, s{T1} offen {LD}
    """)
    for i in range(8):
        off = (8 * (i >> 2) + (i & 3)) * 8192
        a(f"s_add_u32 s{T2}, s{T0}, {off}")
        a(f"buffer_load_dword v{BR+i}, v7, {w}, s{T2} offen {LD}")
    a(f"""
    v_mul_u32_u24 v12, 896, v4
    v_lshl_add_u32 v12, v5, 4, v12
    s_mul_i32 s{T0}, s8, {32*896}
    s_lshl_b32 s{T1}, s10, 6
    s_add_u32 s{T0}, s{T0}, s{T1}
    s_add_u32 s{S_OUT}, s{S_OUT}, s{T0}
    s_addc_u32 s{S_OUT+1}, s{S_OUT+1}, 0
    s_waitcnt vmcnt(0)
    v_sub_f32 v{BR+9}, 1.0, v{BR+8}
    v_cvt_pk_bf16_f32 v{BR+9}, v{BR+9}, v{BR+9}
    v_and_b32 v{BR+9}, 0xffff0000, v{BR+9}
    """)
    BB = 192
    for i in range(8):
        a(f"v_lshlrev_b32 v{BB+2*i}, 16, v{BR+i}")
        a(f"v_and_b32 v{BB+2*i+1}, 0xffff0000, v{BR+i}")
    for i in range(16):
        a(f"v_mul_f32 v{BB+i}, v{BB+i}, v{BR+9}")
    a(f"""
L_nowo:
    v_lshlrev_b32 v2, 4, v0
    s_add_u32 s{T0}, s8, {C_O}
    s_lshl_b32 s{T0}, s{T0}, 7
    v_mov_b32 v8, s{T0}
    v_mov_b32 v9, 16
    s_mul_i32 s12, s8, {TILE_B}
    s_add_u32 s12, s12, {WS_O}
    s_add_u32 s12, s12, s{S_LW1K}
    v_mov_b32 v10, {L_CNT}
    s_waitcnt lgkmcnt(0)
    """)
    stamp(a, 9)
    a(f"""
    s_barrier
    ds_read_b32 v11, v10 offset:16
    s_waitcnt lgkmcnt(0)
    v_readfirstlane_b32 s{T0}, v11
    s_cmp_eq_u32 s{T0}, 0
    s_cbranch_scc1 L_nofb
    s_barrier
    s_barrier
L_nofb:
    s_sleep {os.environ.get("SLEEPB", "16")}
    """)
    poll(a, "o", 8, 9, 1)
    stamp(a, 10)
    a(f"s_mov_b32 m0, s{S_LW1K}")
    for i in range(7):
        a(f"s_add_u32 s{T1}, s12, {4096*i}")
        a(f"buffer_load_dwordx4 v2, {w}, s{T1} offen {LD} lds")
        if i < 6: a("s_add_u32 m0, m0, 4096")
    stages = [(0, 8, 5), (8, 16, 3), (16, 28, 0)]
    for (k0, k1, vm) in stages:
        a(f"s_waitcnt vmcnt({vm})\ns_barrier")
        if k0 == 0:
            a("s_cmp_ge_u32 s10, 14\ns_cbranch_scc1 L_idle3")
        n = k1 - k0
        for i in range(min(n, 8)):
            a(f"ds_read_b128 {vr(OF+4*(i%8),4)}, v2 offset:{1024*(k0+i)}")
        for i in range(n):
            left = min(7, n - 1 - i)
            a(f"s_waitcnt lgkmcnt({left})")
            a(mfma(ACC3, WOF + 4*(k0+i), OF + 4*(i%8), None if k0 + i == 0 else ACC3))
            if i + 8 < n:
                a(f"ds_read_b128 {vr(OF+4*(i%8),4)}, v2 offset:{1024*(k0+i+8)}")
    a("s_nop 11")
    for i in range(16):
        a(f"v_fmac_f32 v{BB+i}, v{BR+8}, v{ACC3+i}")
    for i in range(8):
        a(f"v_cvt_pk_bf16_f32 v{OF+i}, v{BB+2*i}, v{BB+2*i+1}")
        if i == 3: a(f"global_store_dwordx4 v12, {vr(OF,4)}, {sr(S_OUT,2)}")
    a(f"global_store_dwordx4 v12, {vr(OF+4,4)}, {sr(S_OUT,2)} offset:32")
    a(endp("L_end"))
    a(f"""
L_idle3:
    s_waitcnt vmcnt(0)
    """)
    a(endp("L_end"))

def helper_waves(a):
    w = sr(SRD_WS, 4)
    a(f"""
    v_lshrrev_b32 v4, 3, v0
    s_lshl_b32 s{T1}, s{S_LW}, 3
    v_add_u32 v4, s{T1}, v4
    v_lshrrev_b32 v5, 1, v4
    v_xor_b32 v5, v5, v0
    v_and_b32 v5, 7, v5
    v_mul_u32_u24 v2, 896, v4
    v_lshl_add_u32 v2, v5, 4, v2
    v_lshrrev_b32 v4, 4, v0
    v_lshlrev_b32 v5, 2, v4
    v_xor_b32 v5, v5, v0
    v_and_b32 v5, 15, v5
    s_lshl_b32 s{T1}, s{S_LW}, 2
    v_add_u32 v4, s{T1}, v4
    v_mul_u32_u24 v3, 2688, v4
    v_lshl_add_u32 v3, v5, 4, v3
    s_mov_b32 s{S_CH}, s{S_C0}
    s_mul_i32 s{T0}, s{S_RB}, {96*896}
    s_sub_u32 s{SRD_X+2}, {X_BYTES}, s{T0}
    s_mov_b32 s{SRD_X+3}, 0x20000
    s_lshl_b32 s{T1}, s{S_CB}, 8
    s_sub_u32 s{SRD_W+2}, {W_BYTES}, s{T1}
    s_mov_b32 s{SRD_W+3}, 0x20000
    s_cmp_ge_u32 s{S_RB}, 22
    s_cselect_b32 s{SRD_X+2}, 0, s{SRD_X+2}
    s_cselect_b32 s{SRD_W+2}, 0, s{SRD_W+2}
    s_waitcnt lgkmcnt(0)
    s_add_u32 s{SRD_X}, s{S_X}, s{T0}
    s_addc_u32 s{SRD_X+1}, s{S_X+1}, 0
    s_add_u32 s{SRD_W}, s{S_W}, s{T1}
    s_addc_u32 s{SRD_W+1}, s{S_W+1}, 0
    """)
    dma_chunk(a, 0)
    a(f"""
    s_mov_b32 s{SRD_WS}, s20
    s_mov_b32 s{SRD_WS+1}, s21
    s_mov_b32 s{SRD_WS+2}, 896
    s_mov_b32 s{SRD_WS+3}, 0x20000
    s_mov_b32 m0, {L_GATE}
    v_lshlrev_b32 v4, 4, v0
    s_lshl_b32 s{T2}, s{S_P}, 2
    buffer_load_dwordx4 v4, {w}, 0 offen lds
    s_load_dword s51, s[16:17], s{T2}
    s_load_dword s52, s[18:19], s{T2}
    """)
    dma_chunk(a, 1)
    a("s_waitcnt vmcnt(7)\ns_barrier")
    stamp(a, 1)
    dma_chunk(a, 2)
    a("s_waitcnt vmcnt(7)\ns_barrier")
    dma_chunk(a, 3)
    dma_chunk(a, 4)
    a("s_waitcnt vmcnt(14)\ns_barrier")
    a(f"v_mov_b32 v7, 0\nglobal_load_dword v6, v7, {sr(S_DBG,2)} sc1")
    dma_chunk(a, 5)
    a("s_waitcnt vmcnt(15)\ns_barrier")
    dma_chunk(a, 6)
    a(f"""
    s_lshl_b32 s{T0}, s{S_P}, 10
    s_lshl_b32 s{T1}, s{S_LW}, 8
    s_add_u32 s{T0}, s{T0}, s{T1}
    v_lshl_add_u32 v1, v0, 2, s{T0}
    global_load_dword v8, v1, s[8:9]
    global_load_dword v9, v1, s[10:11]
    global_load_dword v10, v1, s[12:13]
    global_load_dword v11, v1, s[14:15]
    s_waitcnt vmcnt(19)
    s_barrier                              ; B4
    s_mov_b32 s{SRD_WS}, s{S_WS}
    s_mov_b32 s{SRD_WS+1}, s{S_WS+1}
    s_mov_b32 s{SRD_WS+2}, {WS_SIZE}
    s_add_u32 s{S_CNT}, s{S_WS}, {WS_CNT}
    s_addc_u32 s{S_CNT+1}, s{S_WS+1}, 0
    s_mul_i32 s{T0}, s{S_LW}, {TAB_B}
    s_mov_b32 m0, s{T0}
    v_and_b32 v4, 31, v0
    v_lshrrev_b32 v5, 5, v0
    v_mul_u32_u24 v24, 272, v4
    v_lshl_add_u32 v24, v5, 4, v24
    v_add_u32 v24, s{T0}, v24
    s_lshr_b32 s47, s{S_LW}, 1
    s_mul_i32 s{T0}, s47, 3072
    s_add_u32 s{T0}, s{T0}, {L_XCH}
    v_lshl_add_u32 v25, v0, 4, s{T0}
    s_waitcnt lgkmcnt(0)
    s_lshl_b32 s{T1}, s51, 16
    s_and_b32 s51, s51, 0xffff0000
    s_lshl_b32 s{T2}, s52, 16
    s_and_b32 s52, s52, 0xffff0000
    s_cmp_ge_u32 s{S_LW}, 2
    s_cselect_b32 s51, s51, s{T1}
    s_cselect_b32 s{S_DSK}, s52, s{T2}
    v_mov_b32 v12, s51
    v_mul_f32 v12, {f32(LOG2E)}, v12
    v_exp_f32 v12, v12
    s_mov_b32 s{T0}, 0
    v_cvt_pk_bf16_f32 v12, v12, v12
    v_and_b32 v12, 0xffff0000, v12         ; dt
    v_add_f32 v13, v12, v12                ; 2 dt
    s_waitcnt vmcnt(11)
L_hs:
    v_readfirstlane_b32 s{T1}, v6
    s_cmp_lg_u32 s{T1}, 0
    s_cbranch_scc1 L_hs_ok
    s_sleep 8
    global_load_dword v6, v7, {sr(S_DBG,2)} sc1
    s_add_u32 s{T0}, s{T0}, 1
    s_waitcnt vmcnt(0)
    s_cmp_lt_u32 s{T0}, {SPIN_MAX}
    s_cbranch_scc1 L_hs
L_hs_ok:
    s_barrier                              ; B5
    s_waitcnt vmcnt(4)
    s_barrier                              ; B6
    """)
    stamp(a, 2)
    a(f"""
    s_cmp_ge_u32 s2, 224
    s_cbranch_scc0 L_kgen
    s_barrier                              ; B7
    s_branch L_p3
L_kgen:
    s_setprio 3
    s_waitcnt vmcnt(0)
    """)
    r0 = kgen_round(0)
    cut = int(os.environ.get("B7CUT", "25"))
    for ins in r0[:cut]: a(ins)
    a("s_barrier")
    for ins in r0[cut:]: a(ins)
    stamp(a, 3)
    a(f"""
    s_lshr_b32 s{T0}, s2, 3
    s_add_u32 s{T0}, s{T0}, {C_U}
    s_lshl_b32 s{T0}, s{T0}, 7
    v_mov_b32 v6, s{T0}
    v_mov_b32 v7, 22
    v_lshrrev_b32 v2, 2, v0
    v_mul_u32_u24 v2, {TILE_B}, v2
    v_and_b32 v3, 3, v0
    v_lshl_add_u32 v2, v3, 6, v2
    s_lshr_b32 s14, s2, 1
    s_lshl_b32 s14, s14, 8
    s_and_b32 s15, s2, 1
    s_lshl_b32 s15, s15, 1
    s_add_u32 s15, s15, s47
    s_lshl_b32 s15, s15, 4
    s_add_u32 s14, s14, s15
    s_and_b32 s16, s{S_LW}, 1
    s_mul_i32 s15, s16, {32*TILE_B}
    s_add_u32 s14, s14, s15
    s_add_u32 s14, s14, {WS_UT}
    s_add_u32 s15, s14, {16*TILE_B}
    s_mul_i32 s17, s47, {U_B}
    s_lshl_b32 s16, s16, 11
    s_add_u32 s17, s17, s16
    """)
    poll(a, "u", 6, 7, 1)
    a(f"""
    s_mov_b32 s18, m0
    s_add_u32 m0, s17, {L_U + 512}
    s_nop 0
    buffer_load_dwordx4 v2, {w}, s14 offen {LD} lds
    s_add_u32 m0, m0, 1024
    s_nop 0
    buffer_load_dwordx4 v2, {w}, s15 offen {LD} lds
    s_mov_b32 m0, s18
    v_mov_b32 v14, 0
    v_mov_b32 v15, 0
    s_mul_i32 s{T0}, s47, {U_B}
    s_add_u32 s{T0}, s{T0}, {L_U}
    v_lshl_add_u32 v6, v0, 3, s{T0}
    ds_write_b64 v6, v[14:15]
    s_mul_i32 s19, s47, {KC_B}
    s_add_u32 s19, s19, {L_KC}
    v_add_u32 v6, s19, v0
    ds_write_b8 v6, v14
    """)
    for ins in kgen_round(1): a(ins)
    stamp(a, 4)
    a(f"""
    s_bitcmp1_b32 s{S_LW}, 0
    s_cbranch_scc0 L_even
    s_nop 9
    ds_write_b128 v25, v[144:147]
    ds_write_b128 v25, v[148:151] offset:1024
    ds_write_b128 v25, v[152:155] offset:2048
L_even:
    """)
    lds_sync(a, 0, "a")
    a(f"""
    s_bitcmp1_b32 s{S_LW}, 0
    s_cbranch_scc1 L_nofin
    ds_read_b128 v[60:63], v25
    ds_read_b128 v[64:67], v25 offset:1024
    ds_read_b128 v[68:71], v25 offset:2048
    s_add_u32 s19, s19, 64
    v_lshl_add_u32 v6, v0, 4, s19
    v_lshl_add_u32 v7, v4, 4, s19
    v_lshl_add_u32 v7, v5, 3, v7
    s_waitcnt lgkmcnt(0)
    """)
    for i in range(12):
        a(f"v_add_f32 v{144+i}, v{144+i}, v{60+i}")
    def store(nd, reg, off):
        if nd == 2:
            a(f"ds_write_b64 v7, {vr(reg,2)} offset:{off}")
        else:
            a(f"ds_write_b128 v6, {vr(reg,4)} offset:{off}")
    kgen_expand(a, store)
    a("s_waitcnt lgkmcnt(0)")
    a.label("L_nofin")
    conv(a)
    a.label("L_p3")
    stamp(a, 7)
    outproj(a)

def fused():
    a = Asm()
    a(f"""
    s_cmp_ge_u32 s2, 256
    s_cbranch_scc1 L_quit
    """)
    prof_begin(a)
    a(f"""
    s_load_dwordx4 s[4:7], s[0:1], 0
    s_load_dwordx2 s[22:23], s[0:1], 104
    s_load_dwordx8 s[8:15], s[0:1], 32
    s_load_dwordx4 s[16:19], s[0:1], 64
    s_load_dwordx2 s[20:21], s[0:1], 80
    s_load_dwordx4 s[96:99], s[0:1], 88
    s_load_dwordx2 s[100:101], s[0:1], 16
    v_lshrrev_b32 v1, 6, v0
    v_and_b32 v0, 63, v0
    s_and_b32 s{T0}, s2, 7
    v_readfirstlane_b32 s{S_WAVE}, v1
    s_lshr_b32 s{T1}, s2, 3
    s_cmp_lg_u32 s{S_WAVE}, 1
    s_cbranch_scc1 L_nopf
    s_cmp_ge_u32 s{T1}, {CODE_PF}
    s_cbranch_scc1 L_nopf
    s_getpc_b64 s[48:49]
L_pc:
    s_lshl_b32 s{T2}, s{T1}, 13
    v_lshl_add_u32 v2, v0, 7, s{T2}
    v_min_u32 v2, L_slow-L_pc, v2
    global_load_dword v3, v2, s[48:49]
L_nopf:
    s_mul_i32 s{T0}, s{T0}, 31
    s_add_u32 s{T0}, s{T0}, s{T1}          ; t
    s_cmp_ge_u32 s{T1}, 31
    s_cselect_b32 s{T0}, 242, s{T0}
    s_min_u32 s{T0}, s{T0}, 242
    s_mov_b32 s{T2}, 205
    s_cmp_lt_u32 s{T0}, 110
    s_cselect_b32 s{T1}, 0, 110
    s_cselect_b32 s{T2}, s{T2}, 171
    s_cselect_b32 s{T3}, 5, 6
    s_cselect_b32 s{S_CB}, 0, 5
    s_sub_u32 s{T0}, s{T0}, s{T1}
    s_mul_i32 s{S_RB}, s{T0}, s{T2}
    s_lshr_b32 s{S_RB}, s{S_RB}, 10
    s_mul_i32 s{T1}, s{S_RB}, s{T3}
    s_sub_u32 s{T0}, s{T0}, s{T1}
    s_add_u32 s{S_CB}, s{S_CB}, s{T0}
    s_add_u32 s{S_C0}, s{S_RB}, s{S_CB}
    s_mul_i32 s{T0}, s{S_C0}, 37
    s_lshr_b32 s{T0}, s{T0}, 8
    s_mul_i32 s{T0}, s{T0}, 7
    s_sub_u32 s{S_C0}, s{S_C0}, s{T0}
    s_min_u32 s{S_P}, s2, 223
    s_and_b32 s{S_LW}, s{S_WAVE}, 3
    s_lshl_b32 s{S_LW1K}, s{S_LW}, 10
    s_cmp_ge_u32 s{S_WAVE}, 4
    s_cbranch_scc0 L_gemm0
    """)
    helper_waves(a)
    a(f"""
L_gemm0:
    s_waitcnt vmcnt(0)
    v_mov_b32 v4, 0
    v_mov_b32 v5, 0
    v_lshlrev_b32 v6, 3, v0
    v_and_b32 v6, 63, v6
    v_add_u32 v6, {L_CNT}, v6
    ds_write_b64 v6, v[4:5]
    s_and_b32 s{S_H}, s2, 7
    s_lshl_b32 s{S_H}, s{S_H}, 1
    s_bfe_u32 s{T0}, s2, 0x10003
    s_add_u32 s{S_H}, s{S_H}, s{T0}
    s_lshr_b32 s{S_QB}, s2, 4
    """)
    gemm_waves(a)
    attention(a)
    stamp(a, 8)
    reduce(a, True)
    a.label("L_fin")
    store_o(a)
    a.label("L_end")
    prof_end(a, 0, S_WS, S_WAVE)
    a.label("L_quit")
    a("s_endpgm")
    fallback(a)
    return a

def build():
    ref = open("cdna_kernels/%s.s.ref" % NAME).read().split("\n")
    out = "\n".join(ref[:15]) + "\n"
    out += f"; @launch grid=(256,1,1) block=(512,1,1) lds={LDS_TOTAL}\n"
    out += '.amdgcn_target "amdgcn-amd-amdhsa--gfx950"\n.text\n'
    out += kernel_head(NAME + "_kernel") + fused().text()
    out += '.section .rodata,"a"\n'
    out += kernel_desc(NAME + "_kernel", NV, 102)
    return out

if __name__ == "__main__":
    import sys
    dst = sys.argv[1] if len(sys.argv) > 1 else "cdna_kernels/%s.s" % NAME
    open(dst, "w").write(build())
```

```python
import math, struct

NAME = "gated_mix__mha_block__ssm_conv_s4d__prompt"

TILE_B = 28672
WS_Q  = 0x000000
WS_K  = 0x200000
WS_V  = 0x400000
WS_UT = 0x600000
WS_KC = 0x800000
WS_GT = 0xA00000
WS_O  = 0xC00000
WS_BP = 0xE00000

X_BYTES = 2048 * 896
W_BYTES = 448 * 2688
WO_BYTES = 448 * 896

def f32(x):
    return "0x%08x" % struct.unpack("<I", struct.pack("<f", x))[0]

LOG2E = math.log2(math.e)
QSCALE = (28 ** -0.5) * LOG2E

class Asm:
    def __init__(self):
        self.lines = []
    def __call__(self, s):
        for l in s.split("\n"):
            l = l.strip()
            if l:
                self.lines.append(l if l.endswith(":") else "    " + l)
    def label(self, n):
        self.lines.append(n + ":")
    def extend(self, other):
        self.lines.extend(other.lines if isinstance(other, Asm) else other)
    def text(self):
        return "\n".join(self.lines) + "\n"

def vr(b, n=1):
    return f"v{b}" if n == 1 else f"v[{b}:{b+n-1}]"
def sr(b, n=1):
    return f"s{b}" if n == 1 else f"s[{b}:{b+n-1}]"

def mfma(d, a, b, c=None):
    cs = "0" if c is None else vr(c, 16)
    return f"v_mfma_f32_32x32x16_bf16 {vr(d,16)}, {vr(a,4)}, {vr(b,4)}, {cs}"

def kernel_head(label):
    return f""".globl {label}
.p2align 8
.type {label},@function
{label}:
"""

def kernel_desc(label, nv, ns=96):
    nv4 = (nv + 3) // 4 * 4
    return f""".p2align 6
.amdhsa_kernel {label}
  .amdhsa_next_free_vgpr {nv}
  .amdhsa_next_free_sgpr {ns}
  .amdhsa_accum_offset {nv4}
  .amdhsa_group_segment_fixed_size 0
  .amdhsa_kernarg_size 112
  .amdhsa_user_sgpr_count 2
  .amdhsa_user_sgpr_kernarg_segment_ptr 1
  .amdhsa_system_sgpr_workgroup_id_x 1
.end_amdhsa_kernel
"""

import os
PROF = os.environ.get('PROF') == '1'
WS_PROF = 0x1000000
def stamp(a, i):
    if PROF:
        a(f"{'s_memtime' if os.environ.get('CYC') else 's_memrealtime'} s[{64+2*i}:{65+2*i}]\ns_waitcnt lgkmcnt(0)")
def prof_begin(a):
    if PROF:
        a("s_memrealtime s[88:89]\ns_memtime s[64:65]")
        for i in range(1, 12):
            a(f"s_mov_b32 s{64+2*i}, 0")
def prof_end(a, kern, s_ws, s_wave):
    if PROF and os.environ.get("AMP"):
        wv, st = os.environ["AMP"].split(",")
        reg = 90 if st == "e" else 64 + 2 * int(st)
        a(f"""
        s_memrealtime s[90:91]
        s_waitcnt lgkmcnt(0)
        s_cmp_lg_u32 s2, 100
        s_cbranch_scc1 L_quit
        s_cmp_lg_u32 s{s_wave}, {wv}
        s_cbranch_scc1 L_quit
        s_sub_u32 s92, s{reg}, s88
        s_mul_i32 s92, s92, 10
        s_add_u32 s92, s92, s90
L_amp:
        s_sleep 8
        s_memrealtime s[90:91]
        s_waitcnt lgkmcnt(0)
        s_sub_u32 s93, s90, s92
        s_cmp_lt_i32 s93, 0
        s_cbranch_scc1 L_amp
        """)
        return
    if PROF:
        a(f"""
        s_memtime s[86:87]
        s_memrealtime s[90:91]
        s_waitcnt lgkmcnt(0)
        s_mov_b64 exec, 1
        """)
        if os.environ.get("DBGPROF"):
            a(f"s_cmp_ge_u32 s{s_wave}, 4\ns_cselect_b32 s92, 64, 0\nv_mov_b32 v60, s92\ns_not_b32 s92, s88\nv_mov_b32 v61, s92\nglobal_atomic_umax v60, v61, s[98:99] offset:8")
            a("v_mov_b32 v61, s88\nglobal_atomic_umax v60, v61, s[98:99] offset:12")
            for k, i in enumerate([1, 3, 5, 6, 7, 8, 9]):
                a(f"v_mov_b32 v61, s{64+2*i}\nglobal_atomic_umax v60, v61, s[98:99] offset:{16+4*k}")
            a("v_mov_b32 v60, 0\nv_mov_b32 v61, s90\nglobal_atomic_umax v60, v61, s[98:99] offset:44")
        a(f"""
        s_lshl_b32 s92, s2, 3
        s_add_u32 s92, s92, s{s_wave}
        s_lshl_b32 s92, s92, 6
        s_add_u32 s92, s92, {WS_PROF + kern * 256 * 8 * 64}
        v_mov_b32 v60, s92
        """)
        for i in range(12):
            a(f"v_mov_b32 v61, s{64+2*i}\nglobal_store_dword v60, v61, s[{s_ws}:{s_ws+1}] offset:{4*i}")
        a(f"v_mov_b32 v61, s88\nglobal_store_dword v60, v61, s[{s_ws}:{s_ws+1}] offset:48")
        a(f"v_mov_b32 v61, s90\nglobal_store_dword v60, v61, s[{s_ws}:{s_ws+1}] offset:52")
        a(f"s_getreg_b32 s92, hwreg(HW_REG_HW_ID)\nv_mov_b32 v61, s92\nglobal_store_dword v60, v61, s[{s_ws}:{s_ws+1}] offset:56")
        a(f"s_getreg_b32 s92, hwreg(HW_REG_XCC_ID)\nv_mov_b32 v61, s92\nglobal_store_dword v60, v61, s[{s_ws}:{s_ws+1}] offset:60")

def endp(lbl):
    return f"s_branch {lbl}" if PROF else "s_endpgm"
```

```python
from gen1 import make
files = []
base = """    v_and_b32 v0, 63, v0
    s_mov_b32 s24, s4
    s_mov_b32 s25, s5
    s_mov_b32 s26, 0x1000000
    s_mov_b32 s27, 0x20000
    s_lshl_b32 s28, s8, 10
    s_and_b32 s29, s2, 7
"""
pats = {
 "lin": ("    v_lshlrev_b32 v2, 4, v0\n    s_lshl_b32 s29, s29, 17\n    s_add_u32 s29, s29, s28\n", lambda i: i*4096),
 "xsw": ("""    v_lshrrev_b32 v4, 3, v0
    s_lshl_b32 s31, s8, 3
    v_add_u32 v4, s31, v4
    v_lshrrev_b32 v5, 1, v4
    v_xor_b32 v5, v5, v0
    v_and_b32 v5, 7, v5
    v_mul_u32_u24 v2, 896, v4
    v_lshl_add_u32 v2, v5, 4, v2
    s_mul_i32 s29, s29, 114688
""", lambda i: (i % 7) * 128 + (i // 7) * 32 * 896),
 "xno": ("""    v_lshrrev_b32 v4, 3, v0
    s_lshl_b32 s31, s8, 3
    v_add_u32 v4, s31, v4
    v_and_b32 v5, 7, v0
    v_mul_u32_u24 v2, 896, v4
    v_lshl_add_u32 v2, v5, 4, v2
    s_mul_i32 s29, s29, 114688
""", lambda i: (i % 7) * 128 + (i // 7) * 32 * 896),
 "wsw": ("""    v_lshrrev_b32 v4, 4, v0
    v_lshlrev_b32 v5, 2, v4
    v_xor_b32 v5, v5, v0
    v_and_b32 v5, 15, v5
    s_lshl_b32 s31, s8, 2
    v_add_u32 v4, s31, v4
    v_mul_u32_u24 v2, 2688, v4
    v_lshl_add_u32 v2, v5, 4, v2
    s_lshl_b32 s29, s29, 8
""", lambda i: i * 16 * 2688),
}
for nm, (init, off) in pats.items():
    for n in (0, 12):
        b = []
        for i in range(24):
            b += [f"s_add_u32 m0, s28, {i*4096}", f"s_add_u32 s30, s29, {off(i)}", "buffer_load_dwordx4 v2, s[24:27], s30 offen lds"]
            b += [f"v_fma_f32 v{16+j%8}, v{16+j%8}, v6, v7" for j in range(n)]
        for w in ("", "w"):
            name = f"pt_{nm}_{n}{w}.s"
            make(name, "\n".join("    " + x for x in b + (["s_waitcnt vmcnt(0)"] if w else [])), 1, 1, init=base + init); files.append(name)
print(" ".join(files))
```

```python
from common import *

SLOT = 28672
TAB_B = 32 * 272
L_TAB = 0
SLOT_AT = [4 * TAB_B + i * SLOT for i in range(4)] + [0]
L_XCH = 4 * TAB_B + 4 * SLOT
L_GATE = L_XCH + 6144
K1_LDS = L_GATE + 1024
IT_SLOT = [0, 1, 2, 3, 4, 0, 1]
BASES = [0, SLOT_AT[1], SLOT_AT[3]]
def slot_base(slot):
    at = SLOT_AT[slot]
    b = max(i for i in range(3) if BASES[i] <= at)
    assert at - BASES[b] + SLOT <= 65536
    return b, at - BASES[b]
ST = os.environ.get("ST1", "")

S_X, S_W = 4, 6
S_LA, S_AI, S_CR, S_CI = 8, 10, 12, 14
S_LDT, S_DSK, S_GW, S_WS = 16, 18, 20, 22
S_WAVE, S_RB, S_CB, S_P = 24, 25, 26, 27
SRD_X, SRD_W, SRD_G = 28, 32, 36
T0, T1, T2, T3 = 40, 41, 42, 43

def cmul(a, dst, x, y, t):
    return [f"v_pk_mul_f32 {vr(t,2)}, {vr(x,2)}, {vr(y,2)} op_sel:[0,0] op_sel_hi:[1,0]",
            f"v_pk_fma_f32 {vr(dst,2)}, {vr(x,2)}, {vr(y,2)}, {vr(t,2)} op_sel:[1,1,0] op_sel_hi:[0,1,1] neg_lo:[1,0,0]"]

def kgen_parts(rnd, wbase=26, fresh=None, par=8):
    I = []
    W1, W8, W256, W16, C = wbase, wbase + 2, wbase + 4, wbase + 6, wbase + 8
    def unpack(d, s):
        return f"v_lshlrev_b32 v{d}, 16, v{s}" if rnd == 0 else f"v_and_b32 v{d}, 0xffff0000, v{s}"
    I += [unpack(36, par), unpack(37, par + 1),
          f"v_mul_f32 v36, {f32(LOG2E)}, v36",
          unpack(C, par + 2),
          "v_exp_f32 v36, v36",
          unpack(C + 1, par + 3),
          "v_mul_f32 v37, v37, v12",
          "v_cvt_pk_bf16_f32 v36, v36, v36",
          f"v_mul_f32 v37, {f32(1/(2*math.pi))}, v37",
          "v_and_b32 v36, 0xffff0000, v36",
          f"v_mul_f32 v{C}, v{C}, v13",
          "v_mul_f32 v36, v36, v12",
          f"v_mul_f32 v{C+1}, v{C+1}, v13",
          f"v_mul_f32 v36, {f32(-LOG2E)}, v36",
          "v_mul_f32 v38, 0x41000000, v37",
          "v_mul_f32 v39, 0x43800000, v37",
          "v_mul_f32 v40, 0x41000000, v36",
          "v_mul_f32 v41, 0x43800000, v36",
          "v_fract_f32 v38, v38",
          "v_fract_f32 v39, v39",
          "v_fract_f32 v37, v37",
          "v_exp_f32 v40, v40",
          f"v_cos_f32 v{W8}, v38",
          f"v_sin_f32 v{W8+1}, v38",
          "v_exp_f32 v36, v36",
          f"v_mul_f32 v{W8}, v{W8}, v40",
          f"v_mul_f32 v{W8+1}, v{W8+1}, v40",
          f"v_cos_f32 v{W1}, v37",
          f"v_sin_f32 v{W1+1}, v37",
          "v_exp_f32 v41, v41",
          f"v_mul_f32 v{W1}, v{W1}, v36",
          f"v_mul_f32 v{W1+1}, v{W1+1}, v36",
          f"v_cos_f32 v{W256}, v39",
          f"v_sin_f32 v{W256+1}, v39",
          f"v_mul_f32 v{W16}, v{W8+1}, v{W8+1}",
          f"v_mul_f32 v{W16+1}, v{W8}, v{W8+1}",
          f"v_mul_f32 v{W256}, v{W256}, v41",
          f"v_mul_f32 v{W256+1}, v{W256+1}, v41",
          f"v_fma_f32 v{W16}, v{W8}, v{W8}, -v{W16}",
          f"v_add_f32 v{W16+1}, v{W16+1}, v{W16+1}"]
    setup = I
    I = ["v_mov_b32 v48, 0x3f80"]
    E, O = 44, 46
    for j in range(16):
        pe, po = (48, 49) if j % 2 == 0 else (50, 51)
        se = W16 if j == 1 else E
        so = W8 if j == 0 else O
        if j > 0:
            I.append(f"v_cvt_pk_bf16_f32 v{pe}, v{se}, v{se+1}")
        I.append(f"v_cvt_pk_bf16_f32 v{po}, v{so}, v{so+1}")
        nxt = []
        if j < 15:
            a = cmul(None, O, so, W16, 42)
            if j >= 1:
                b = cmul(None, E, se, W16, 52)
                nxt = [a[0], b[0], a[1], b[1]]
            else:
                nxt = a
        w0 = f"ds_write_addtid_b32 v{pe} offset:{2*j*272}"
        w1 = f"ds_write_addtid_b32 v{po} offset:{(2*j+1)*272}"
        I += nxt[:1] + [w0] + nxt[1:2] + [w1] + nxt[2:]
    for ks in range(8):
        I.append(f"ds_read_b128 {vr(80 + 4*ks, 4)}, v24 offset:{32*ks}")
    vpart = I
    I = []
    U = {0: C}
    for i in range(1, 8):
        U[i] = 60 + 2 * (i - 1)
    def pk(d, u):
        return f"v_cvt_pk_bf16_f32 v{d}, v{u}, -v{u+1}"
    def wr2(r0, r1, p0, p1):
        return f"ds_write_addtid_b32 v{p0} offset:{r0*272}\nds_write_addtid_b32 v{p1} offset:{r1*272}"
    B, D = 74, 76
    P8, P10, P12, P14, P16, P17 = 54, 55, 56, 57, 58, 59
    def inter(x, y):
        return [x[0], y[0], x[1], y[1]]
    I += inter(cmul(None, U[1], U[0], W1, 42), cmul(None, B, U[0], W256, 52))
    I += [pk(48, U[0]), pk(49, U[1]), pk(P8, B)]
    I += inter(cmul(None, U[2], U[1], W1, 42), cmul(None, B, B, W256, 52))
    I += [wr2(0, 1, 48, 49), pk(P12, B)]
    I += inter(cmul(None, U[3], U[2], W1, 42), cmul(None, B, B, W256, 52))
    I += [pk(50, U[2]), pk(51, U[3]), pk(P14, B)]
    I += inter(cmul(None, U[4], U[3], W1, 42), cmul(None, B, B, W256, 52))
    I += [wr2(2, 3, 50, 51), pk(P16, B)]
    I += inter(cmul(None, U[5], U[4], W1, 42), cmul(None, B, B, W256, 52))
    I += [pk(48, U[4]), pk(49, U[5]), pk(P17, B)]
    I += inter(cmul(None, U[6], U[5], W1, 42), cmul(None, B, B, W256, 52))
    I += [wr2(4, 5, 48, 49), pk(38, B)]
    I += inter(cmul(None, U[7], U[6], W1, 42), cmul(None, B, B, W256, 52))
    I += [wr2(18, 19, P16, 38), pk(50, U[6]), pk(51, U[7]), pk(39, B)]
    I += inter(cmul(None, D, U[4], W256, 42), cmul(None, B, B, W256, 52))
    I += [wr2(6, 7, 50, 51), wr2(22, 23, P17, 39), pk(P10, D), pk(48, B)]
    I += inter(cmul(None, D, D, W256, 42), cmul(None, B, U[2], W256, 52))
    I += [wr2(10, 11, P10, 48), pk(49, D), pk(50, B)]
    I += inter(cmul(None, D, D, W256, 42), cmul(None, B, U[6], W256, 52))
    I += [wr2(16, 17, P12, 49), wr2(8, 9, P8, 50), pk(51, D), pk(38, B)]
    I += [f"ds_write_addtid_b32 v{P8} offset:{14*272}",
          wr2(20, 21, P14, 51), wr2(12, 13, P10, 38)]
    for ks in range(8):
        I.append(f"ds_read_b128 {vr(112 + 4*ks, 4)}, v24 offset:{32*ks}")
    upart = I
    I = []
    for ks in range(8):
        I.append(f"s_waitcnt lgkmcnt({7-ks})")
        I.append(mfma(144, 112 + 4*ks, 80 + 4*ks, None if ((rnd == 0 if fresh is None else fresh) and ks == 0) else 144))
    return setup, vpart, upart, I

def kgen_round(rnd):
    p = kgen_parts(rnd)
    return p[0] + p[1] + p[2] + p[3]

def kgen_expand(a, store, A=144):
    a(f"""
    v_mov_b32 v36, 0
    v_and_b32 v37, 1, v0
    v_writelane_b32 v36, s44, 0
    v_cmp_eq_u32 vcc, 1, v37
    v_mov_b32_dpp v40, v{A+8} wave_rol:1 row_mask:0xf bank_mask:0xf
    v_mov_b32_dpp v41, v{A+10} wave_rol:1 row_mask:0xf bank_mask:0xf
    v_mov_b32_dpp v42, v{A+11} wave_rol:1 row_mask:0xf bank_mask:0xf
    v_mov_b32_dpp v43, v{A+7} wave_rol:1 row_mask:0xf bank_mask:0xf
    v_add_f32 v{A}, v{A}, v36
    v_mov_b32_dpp v40, v{A+6} wave_shl:1 row_mask:0xc bank_mask:0xf
    v_mov_b32_dpp v41, v{A+8} wave_shl:1 row_mask:0xf bank_mask:0xf
    v_mov_b32_dpp v42, v{A+10} wave_shl:1 row_mask:0xf bank_mask:0xf
    v_mov_b32_dpp v43, v{A+11} wave_shl:1 row_mask:0xf bank_mask:0xf
    v_mov_b32_dpp v40, v{A+6} quad_perm:[0,1,2,3] row_mask:0x3 bank_mask:0xf
    v_cvt_pk_bf16_f32 v44, v{A}, v{A+1}
    v_cvt_pk_bf16_f32 v45, v{A+2}, v{A+3}
    v_cvt_pk_bf16_f32 v46, v{A+4}, v{A+4}
    v_cvt_pk_bf16_f32 v47, v{A+5}, v40
    v_cvt_pk_bf16_f32 v48, v{A+8}, v{A+8}
    v_cvt_pk_bf16_f32 v49, v{A+8}, v{A+9}
    v_cvt_pk_bf16_f32 v50, v{A+9}, v{A+9}
    v_cvt_pk_bf16_f32 v51, v41, v41
    v_cndmask_b32 v38, v{A+10}, v42, vcc
    v_cndmask_b32 v39, v{A+11}, v43, vcc
    v_cvt_pk_bf16_f32 v52, v{A+10}, v{A+10}
    v_cvt_pk_bf16_f32 v54, v38, v42
    v_cvt_pk_bf16_f32 v55, v42, v42
    v_mov_b32 v53, v52
    v_cvt_pk_bf16_f32 v56, v{A+11}, v{A+11}
    v_cvt_pk_bf16_f32 v58, v39, v43
    v_cvt_pk_bf16_f32 v59, v43, v43
    v_mov_b32 v57, v56
    """)
    store(2, 44, 0)
    store(2, 46, 512)
    store(4, 48, 1024)
    store(4, 52, 2048)
    store(4, 56, 3072)

def dma_setup(a, sw):
    a(f"""
    s_lshl_b32 s45, s{sw}, 10
    v_lshrrev_b32 v4, 3, v0
    s_lshl_b32 s{T1}, s{sw}, 3
    v_add_u32 v4, s{T1}, v4                ; row0
    v_lshrrev_b32 v5, 1, v4
    v_xor_b32 v5, v5, v0
    v_and_b32 v5, 7, v5
    v_mul_u32_u24 v2, 896, v4
    v_lshl_add_u32 v2, v5, 4, v2
    v_lshrrev_b32 v4, 4, v0
    v_lshlrev_b32 v5, 2, v4
    v_xor_b32 v5, v5, v0
    v_and_b32 v5, 15, v5
    s_lshl_b32 s{T1}, s{sw}, 2
    v_add_u32 v4, s{T1}, v4
    v_mul_u32_u24 v3, 2688, v4
    v_lshl_add_u32 v3, v5, 4, v3
    """)

def srd_setup(a):
    a(f"""
    s_mul_i32 s{T0}, s{S_RB}, {96*896}
    s_add_u32 s{SRD_X}, s{S_X}, s{T0}
    s_addc_u32 s{SRD_X+1}, s{S_X+1}, 0
    s_sub_u32 s{SRD_X+2}, {X_BYTES}, s{T0}
    s_mov_b32 s{SRD_X+3}, 0x20000
    s_lshl_b32 s{T0}, s{S_CB}, 8
    s_add_u32 s{SRD_W}, s{S_W}, s{T0}
    s_addc_u32 s{SRD_W+1}, s{S_W+1}, 0
    s_sub_u32 s{SRD_W+2}, {W_BYTES}, s{T0}
    s_mov_b32 s{SRD_W+3}, 0x20000
    s_cmp_ge_u32 s{S_RB}, 22
    s_cselect_b32 s{SRD_X+2}, 0, s{SRD_X+2}
    s_cselect_b32 s{SRD_W+2}, 0, s{SRD_W+2}
    """)

def dma_chunk(a, it):
    slot = SLOT_AT[IT_SLOT[it]]
    a(f"""
    s_mul_i32 s58, s57, {64*2688}
    s_lshl_b32 s59, s57, 7
    """)
    for j in range(4):
        a(f"s_add_u32 m0, s45, {slot + 12288 + j*4096}")
        a(f"s_add_u32 s{T0}, s58, {16*j*2688}")
        a(f"buffer_load_dwordx4 v3, {sr(SRD_W,4)}, s{T0} offen lds")
        if j < 3:
            a(f"s_add_u32 m0, s45, {slot + j*4096}")
            a(f"s_add_u32 s{T1}, s59, {j*32*896}")
            a(f"buffer_load_dwordx4 v2, {sr(SRD_X,4)}, s{T1} offen lds")
    a(f"""
    s_add_u32 s57, s57, 1
    s_cmp_eq_u32 s57, 7
    s_cselect_b32 s57, 0, s57
    """)

XA, WA = 128, 140
WF, XF, ACC = 16, 32, 80

def gemm_body(a, kind, tag):
    def reads(g):
        it, ks = divmod(g, 4)
        b, off = slot_base(IT_SLOT[it])
        r = []
        if kind == "gate":
            r.append(f"ds_read_b128 {vr(WF+4*ks,4)}, v8 offset:{32*ks}")
        else:
            r.append(f"ds_read_b64_tr_b16 {vr(WF+4*ks,2)}, v{WA+b} offset:{off + ks*4096}")
            r.append(f"ds_read_b64_tr_b16 {vr(WF+4*ks+2,2)}, v{WA+b} offset:{off + ks*4096+1024}")
        for i in range(3):
            r.append(f"ds_read_b128 {vr(XF+12*ks+4*i,4)}, v{XA+4*b+ks} offset:{off + i*4096}")
        return r
    n = 4 if kind == "gate" else 5
    def mm(g, i):
        ks = g % 4
        w, x, d = WF + 4*ks, XF + 12*ks + 4*i, ACC + 16*i
        c = None if g == 0 else d
        return mfma(d, x, w, c) if kind == "v" else mfma(d, w, x, c)
    def barrier(it):
        if it < 4:
            a(f"s_waitcnt vmcnt({21 - 7*it})")
        a("s_barrier")
        stamp(a, 2 + it)
        if kind == "gate" and it > 0:
            a(f"""
            s_add_u32 s46, s46, 1
            s_cmp_eq_u32 s46, 7
            s_cselect_b32 s46, 0, s46
            s_lshl_b32 s47, s46, 7
            v_add_u32 v8, s47, v9
            """)
    barrier(0)
    if kind != "gate":
        b, off = slot_base(IT_SLOT[0])
        assert b == 0
        a(f"""
        s_cmp_ge_u32 s{S_CB}, 7
        s_cbranch_scc1 L1_noT_{tag}
        """)
        for i in range(3):
            a(f"ds_read_b64_tr_b16 {vr(144+4*i,2)}, v9 offset:{off + i*4096}")
            a(f"ds_read_b64_tr_b16 {vr(146+4*i,2)}, v9 offset:{off + i*4096+2048}")
        a(f"""
        s_waitcnt lgkmcnt(0)
        buffer_store_dwordx4 v[144:147], v10, s[60:63], 0 offen {ST}
        buffer_store_dwordx4 v[148:151], v11, s[60:63], 0 offen {ST}
        buffer_store_dwordx4 v[152:155], v12, s[60:63], 0 offen {ST}
        """)
        a.label(f"L1_noT_{tag}")
    for r in reads(0) + reads(1): a(r)
    for g in range(28):
        nxt = []
        if g + 2 < 28:
            if (g + 2) % 4 == 0:
                barrier((g + 2) // 4)
            nxt = reads(g + 2)
        a(f"s_waitcnt lgkmcnt({n if g < 27 else 0})")
        a(mm(g, 0))
        for r in nxt[:2]: a(r)
        a(mm(g, 1))
        for r in nxt[2:4]: a(r)
        a(mm(g, 2))
        for r in nxt[4:]: a(r)

def k1():
    a = Asm()
    a(f"""
    s_cmp_ge_u32 s2, 256
    s_cbranch_scc1 L1_quit
    """)
    prof_begin(a)
    a(f"""
    s_load_dwordx4 s[4:7], s[0:1], 0
    s_load_dwordx8 s[8:15], s[0:1], 32
    s_load_dwordx4 s[16:19], s[0:1], 64
    s_load_dwordx2 s[20:21], s[0:1], 80
    s_load_dwordx2 s[22:23], s[0:1], 104
    v_lshrrev_b32 v1, 6, v0
    v_and_b32 v0, 63, v0
    s_and_b32 s{T0}, s2, 7
    v_readfirstlane_b32 s{S_WAVE}, v1
    s_lshr_b32 s{T1}, s2, 3
    s_mul_i32 s{T0}, s{T0}, 31
    s_add_u32 s{T0}, s{T0}, s{T1}          ; t
    s_cmp_ge_u32 s{T1}, 31
    s_cselect_b32 s{T0}, 242, s{T0}
    s_min_u32 s{T0}, s{T0}, 242
    s_mov_b32 s{T2}, 205
    s_cmp_lt_u32 s{T0}, 110
    s_cselect_b32 s{T1}, 0, 110
    s_cselect_b32 s{T2}, s{T2}, 171
    s_cselect_b32 s{T3}, 5, 6
    s_cselect_b32 s{S_CB}, 0, 5
    s_sub_u32 s{T0}, s{T0}, s{T1}
    s_mul_i32 s{S_RB}, s{T0}, s{T2}
    s_lshr_b32 s{S_RB}, s{S_RB}, 10
    s_mul_i32 s{T1}, s{S_RB}, s{T3}
    s_sub_u32 s{T0}, s{T0}, s{T1}
    s_add_u32 s{S_CB}, s{S_CB}, s{T0}
    s_add_u32 s57, s{S_RB}, s{S_CB}
    s_mul_i32 s{T0}, s57, 37
    s_lshr_b32 s{T0}, s{T0}, 8
    s_mul_i32 s{T0}, s{T0}, 7
    s_sub_u32 s57, s57, s{T0}
    {"s_mov_b32 s57, 0" if os.environ.get("NOROT") else ""}
    s_min_u32 s{S_P}, s2, 223
    s_and_b32 s50, s{S_WAVE}, 3
    """)
    dma_setup(a, 50)
    a(f"""
    s_cmp_ge_u32 s{S_WAVE}, 4
    s_cbranch_scc0 L1_gemm
    """)
    a(f"""
    s_lshl_b32 s{T0}, s{S_P}, 10
    s_lshl_b32 s{T1}, s50, 8
    s_add_u32 s{T0}, s{T0}, s{T1}
    v_lshl_add_u32 v1, v0, 2, s{T0}
    s_lshl_b32 s{T2}, s{S_P}, 2
    s_waitcnt lgkmcnt(0)
    global_load_dword v8, v1, s[8:9]
    global_load_dword v9, v1, s[10:11]
    global_load_dword v10, v1, s[12:13]
    global_load_dword v11, v1, s[14:15]
    s_barrier
    s_load_dword s51, s[16:17], s{T2}
    s_load_dword s52, s[18:19], s{T2}
    """)
    srd_setup(a)
    a(f"""
    s_add_u32 s57, s57, 4
    s_sub_u32 s{T0}, s57, 7
    s_cmp_ge_u32 s57, 7
    s_cselect_b32 s57, s{T0}, s57
    s_mul_i32 s{T0}, s50, {TAB_B}
    s_mov_b32 m0, s{T0}
    v_and_b32 v4, 31, v0
    v_lshrrev_b32 v5, 5, v0
    v_mul_u32_u24 v24, 272, v4
    v_lshl_add_u32 v24, v5, 4, v24
    v_add_u32 v24, s{T0}, v24
    s_lshr_b32 s{T0}, s50, 1
    s_mul_i32 s{T0}, s{T0}, 3072
    s_add_u32 s{T0}, s{T0}, {L_XCH}
    v_lshl_add_u32 v25, v0, 4, s{T0}
    s_waitcnt lgkmcnt(0)
    s_lshl_b32 s{T1}, s51, 16
    s_and_b32 s51, s51, 0xffff0000
    s_lshl_b32 s{T2}, s52, 16
    s_and_b32 s52, s52, 0xffff0000
    s_cmp_ge_u32 s50, 2
    s_cselect_b32 s51, s51, s{T1}
    s_cselect_b32 s44, s52, s{T2}
    v_mov_b32 v12, s51
    v_mul_f32 v12, {f32(LOG2E)}, v12
    v_exp_f32 v12, v12
    s_nop 0
    v_cvt_pk_bf16_f32 v12, v12, v12
    v_and_b32 v12, 0xffff0000, v12         ; dt
    v_add_f32 v13, v12, v12                ; 2 dt
    s_waitcnt vmcnt(0)
    """)
    stamp(a, 1)
    for ins in kgen_round(0): a(ins)
    stamp(a, 9)
    for ins in kgen_round(1): a(ins)
    stamp(a, 10)
    a(f"""
    s_bitcmp1_b32 s50, 0
    s_cbranch_scc0 L1_even
    s_nop 9
    ds_write_b128 v25, v[144:147]
    ds_write_b128 v25, v[148:151] offset:1024
    ds_write_b128 v25, v[152:155] offset:2048
    s_waitcnt lgkmcnt(0)
L1_even:
    s_barrier
    """)
    stamp(a, 2)
    dma_chunk(a, 4)
    a(f"""
    s_barrier
    s_bitcmp1_b32 s50, 0
    s_cbranch_scc1 L1_nofin
    s_cmp_ge_u32 s2, 224
    s_cbranch_scc1 L1_nofin
    ds_read_b128 v[60:63], v25
    ds_read_b128 v[64:67], v25 offset:1024
    ds_read_b128 v[68:71], v25 offset:2048
    s_lshl_b32 s{T0}, s{S_P}, 13
    s_lshl_b32 s{T1}, s50, 11
    s_add_u32 s{T0}, s{T0}, s{T1}
    s_add_u32 s{T0}, s{T0}, {WS_KC}
    s_add_u32 s48, s{S_WS}, s{T0}
    s_addc_u32 s49, s{S_WS+1}, 0
    v_lshlrev_b32 v6, 4, v0                ; lane*16
    v_lshlrev_b32 v7, 4, v4
    v_lshl_add_u32 v7, v5, 3, v7           ; 16 j + 8 hi
    s_waitcnt lgkmcnt(0)
    """)
    for i in range(12):
        a(f"v_add_f32 v{144+i}, v{144+i}, v{60+i}")
    def store(nd, reg, off):
        if nd == 2:
            a(f"global_store_dwordx2 v7, {vr(reg,2)}, s[48:49] offset:{off} {ST}")
        else:
            a(f"global_store_dwordx4 v6, {vr(reg,4)}, s[48:49] offset:{off} {ST}")
    kgen_expand(a, store)
    a.label("L1_nofin")
    a("s_barrier")
    dma_chunk(a, 5)
    a("s_barrier")
    dma_chunk(a, 6)
    for w in (14, 7, 0):
        a(f"s_waitcnt vmcnt({w})\ns_barrier")
    a(endp("L1_end"))

    a.label("L1_gemm")
    a(f"""
    s_mov_b32 s46, s57
    v_lshlrev_b32 v10, 4, v0
    s_mov_b32 m0, {L_GATE}
    s_waitcnt lgkmcnt(0)
    s_mov_b32 s{SRD_G}, s{S_GW}
    s_mov_b32 s{SRD_G+1}, s{S_GW+1}
    s_mov_b32 s{SRD_G+2}, 896
    s_mov_b32 s{SRD_G+3}, 0x20000
    """)
    srd_setup(a)
    a(f"s_barrier\nbuffer_load_dwordx4 v10, {sr(SRD_G,4)}, 0 offen lds")
    for it in range(4):
        dma_chunk(a, it)
    stamp(a, 1)
    a(f"""
    s_lshl_b32 s53, s{S_CB}, 2
    s_add_u32 s53, s53, s{S_WAVE}          ; CT
    v_and_b32 v1, 31, v0
    v_lshrrev_b32 v2, 5, v0                ; hi
    v_lshrrev_b32 v3, 1, v0
    v_and_b32 v3, 7, v3
    v_xor_b32 v3, v3, v2
    v_lshlrev_b32 v{XA}, 7, v1
    v_lshl_add_u32 v{XA}, v3, 4, v{XA}
    v_xor_b32 v{XA+1}, 32, v{XA}
    v_xor_b32 v{XA+2}, 64, v{XA}
    v_xor_b32 v{XA+3}, 96, v{XA}
    """)
    for b in (1, 2):
        for ks in range(4):
            a(f"v_add_u32 v{XA+4*b+ks}, {BASES[b]}, v{XA+ks}")
    a(f"""
    v_and_b32 v4, 15, v0                   ; row
    v_lshrrev_b32 v5, 4, v0                ; gamma
    s_lshl_b32 s{T0}, s{S_WAVE}, 1
    v_lshrrev_b32 v6, 1, v5
    v_add_u32 v6, s{T0}, v6                ; unit
    v_lshrrev_b32 v7, 1, v4
    v_xor_b32 v6, v6, v7
    v_lshlrev_b32 v9, 7, v4
    v_lshl_add_u32 v9, v6, 4, v9
    v_and_b32 v6, 1, v5                    ; ih
    v_lshl_add_u32 v9, v6, 3, v9
    s_mul_i32 s{T0}, s{S_RB}, {3*TILE_B}
    s_lshl_b32 s{T1}, s46, 12
    s_add_u32 s{T1}, s{T1}, s45
    s_add_u32 s{T1}, s{T1}, s{T0}
    v_add_u32 v10, s{T1}, v10
    v_add_u32 v11, {TILE_B}, v10
    v_add_u32 v12, {2*TILE_B}, v10
    s_add_u32 s60, s{S_WS}, {WS_UT}
    s_addc_u32 s61, s{S_WS+1}, 0
    s_mov_b32 s62, {64*TILE_B}
    s_mov_b32 s63, 0x20000
    v_bfe_u32 v4, v0, 2, 2                 ; r
    v_lshl_add_u32 v13, v2, 3, v4          ; 8 hi + r
    v_lshlrev_b32 v8, 8, v13
    v_xor_b32 v13, s{S_WAVE}, v4
    v_lshl_add_u32 v8, v13, 6, v8
    v_lshl_add_u32 v8, v6, 5, v8
    v_add_u32 v8, 12288, v8
    v_and_b32 v13, 3, v0                   ; c
    s_cmp_ge_u32 s53, 42
    s_cbranch_scc1 L1_gate
    s_cmp_ge_u32 s53, 28
    s_cbranch_scc1 L1_v
    v_and_b32 v14, 1, v13
    v_lshrrev_b32 v13, 1, v13
    v_lshl_add_u32 v13, v14, 1, v13
    """)
    wa = f"""
    v_lshl_add_u32 v{WA}, v13, 3, v8
    v_add_u32 v{WA+1}, {BASES[1]}, v{WA}
    v_add_u32 v{WA+2}, {BASES[2]}, v{WA}
    """
    a(wa)
    gemm_body(a, "qk", "qk")
    a(f"""
    s_cmp_ge_u32 s53, 14
    s_cselect_b32 s54, 1.0, {f32(QSCALE)}
    s_cselect_b32 s{T0}, {WS_K - 14*2048}, {WS_Q}
    s_lshl_b32 s{T1}, s53, 11
    s_add_u32 s{T0}, s{T0}, s{T1}
    v_lshlrev_b32 v10, 4, v0
    s_mov_b32 s55, 1024
    s_nop 4
    """)
    for i in range(48):
        a(f"v_mul_f32 v{80+i}, s54, v{80+i}")
    a("s_branch L1_store")
    a.label("L1_v")
    a(wa)
    gemm_body(a, "v", "v")
    a(f"""
    s_lshl_b32 s{T1}, s53, 9
    s_add_u32 s{T0}, s{T1}, {WS_V - 28*512}
    v_mul_u32_u24 v10, 7168, v2
    v_lshl_add_u32 v10, v1, 4, v10
    s_mov_b32 s55, 14336
L1_store:
    """)
    stamp(a, 9)
    a(f"""
    s_mul_i32 s{T1}, s{S_RB}, {3*TILE_B}
    s_add_u32 s{T0}, s{T0}, s{T1}
    s_add_u32 s48, s{S_WS}, s{T0}
    s_addc_u32 s49, s{S_WS+1}, 0
    v_add_u32 v11, s55, v10
    s_cmp_ge_u32 s{S_RB}, 22
    s_cbranch_scc1 L1_end
    """)
    for i in range(3):
        for j in range(8):
            a(f"v_cvt_pk_bf16_f32 v{16+8*i+j}, v{80+16*i+2*j}, v{80+16*i+2*j+1}")
        a(f"global_store_dwordx4 v10, {vr(16+8*i,4)}, s[48:49] {ST}")
        a(f"global_store_dwordx4 v11, {vr(20+8*i,4)}, s[48:49] {ST}")
        if i == 0:
            a(f"s_cmp_ge_u32 s{S_RB}, 21\ns_cbranch_scc1 L1_end")
        if i < 2:
            a(f"s_add_u32 s48, s48, {TILE_B}\ns_addc_u32 s49, s49, 0")
    a(endp("L1_end"))
    a.label("L1_gate")
    a(f"""
    v_lshlrev_b32 v9, 4, v2
    v_add_u32 v9, {L_GATE}, v9
    s_lshl_b32 s47, s46, 7
    v_add_u32 v8, s47, v9
    """)
    gemm_body(a, "gate", "g")
    a(f"""
    s_cmp_lg_u32 s53, 42
    s_cbranch_scc1 L1_end
    s_cmp_ge_u32 s{S_RB}, 22
    s_cbranch_scc1 L1_end
    s_mul_i32 s{T0}, s{S_RB}, {96*4}
    s_add_u32 s{T0}, s{T0}, {WS_GT}
    s_add_u32 s48, s{S_WS}, s{T0}
    s_addc_u32 s49, s{S_WS+1}, 0
    v_lshlrev_b32 v10, 2, v1
    s_nop 4
    """)
    for i in range(3):
        r = 80 + 16*i
        a(f"""
        v_cvt_pk_bf16_f32 v{r}, v{r}, v{r}
        v_and_b32 v{r}, 0xffff0000, v{r}
        v_mul_f32 v{r}, {f32(-LOG2E)}, v{r}
        v_exp_f32 v{r}, v{r}
        s_nop 0
        v_add_f32 v{r}, 1.0, v{r}
        v_rcp_f32 v{r}, v{r}
        s_nop 0
        v_cvt_pk_bf16_f32 v{r}, v{r}, v{r}
        v_and_b32 v{r}, 0xffff0000, v{r}
        global_store_dword v10, v{r}, s[48:49] offset:{128*i} {ST}
        """)
        if i == 0:
            a(f"s_cmp_ge_u32 s{S_RB}, 21\ns_cbranch_scc1 L1_end")
    a.label("L1_end")
    prof_end(a, 0, S_WS, S_WAVE)
    a.label("L1_quit")
    a("s_endpgm")
    return a


def cmul_plain(a, dst, x, y, t):
    return [f"v_mul_f32 v{t}, v{x+1}, v{y+1}\nv_mul_f32 v{t+1}, v{x+1}, v{y}",
            f"v_fma_f32 v{dst+1}, v{x}, v{y+1}, v{t+1}\nv_fma_f32 v{dst}, v{x}, v{y}, -v{t}"]

def kgen_split(rnd, out, plain=False):
    W1, W8, W256, W16, C = 26, 28, 30, 32, 34
    cm = cmul_plain if plain else cmul
    I = list(kgen_parts(rnd, 26)[0])
    E_, O_ = 44, 46
    I.append(f"v_mov_b32 v{out}, 0x3f80")
    for j in range(16):
        se = W16 if j == 1 else E_
        so = W8 if j == 0 else O_
        if j > 0:
            I.append(f"v_cvt_pk_bf16_f32 v{out+2*j}, v{se}, v{se+1}")
        I.append(f"v_cvt_pk_bf16_f32 v{out+2*j+1}, v{so}, v{so+1}")
        if j < 15:
            x = cm(None, O_, so, W16, 42)
            if j >= 1:
                y = cm(None, E_, se, W16, 52)
                I += [x[0], y[0], x[1], y[1]]
            else:
                I += x
    U = {0: C}
    for i in range(1, 8):
        U[i] = 60 + 2 * (i - 1)
    B, D = 74, 76
    def pk(i, u):
        return f"v_cvt_pk_bf16_f32 v{out+32+i}, v{u}, -v{u+1}"
    def inter(x, y):
        return [x[0], y[0], x[1], y[1]]
    I.append(pk(0, U[0]))
    chainB = [8, 12, 14, 16, 17, 18, 19]
    for i in range(1, 8):
        I += inter(cm(None, U[i], U[i-1], W1, 42), cm(None, B, U[0] if i == 1 else B, W256, 52))
        I += [pk(i, U[i]), pk(chainB[i-1], B)]
    I += inter(cm(None, D, U[4], W256, 42), cm(None, B, B, W256, 52)) + [pk(10, D), pk(20, B)]
    I += inter(cm(None, D, D, W256, 42), cm(None, B, U[2], W256, 52)) + [pk(13, D), pk(9, B)]
    I += inter(cm(None, D, D, W256, 42), cm(None, B, U[6], W256, 52)) + [pk(15, D), pk(11, B)]
    rows = [0, 1, 2, 3, 4, 5, 6, 7, 8, 9, 10, 20, 10, 11, 8, None, 12, 13, 16, 18, 14, 15, 17, 19]
    wv = [f"ds_write_addtid_b32 v{out+j} offset:{j*272}" for j in range(32)]
    wu = [f"ds_write_addtid_b32 v{out+32+u} offset:{r*272}" for r, u in enumerate(rows) if u is not None]
    I = [y for x in I for y in x.split("\n")]
    return I, wv, wu
```

```python
from common import *
from k1 import kgen_split, kgen_expand
E = os.environ.get

WS_CNT = 0x1100000
WS_ONE = WS_KC
WS_SIZE = 0x1200000
C_KV, C_Q, C_U, C_BP, C_O = 0, 64, 320, 352, 416
SPIN_MAX = 4096
ZWG = 248

TAB_B = 32 * 272
L_XCH = 4 * TAB_B
PL_B = 8224
L_KC = 8 * PL_B
KC_B = 4160
L_U = L_KC + 2 * KC_B
U_B = 4608
L_RED = L_U + 2 * U_B
L_X2 = L_RED + 49152
L_X1 = L_X2 - 24576
L_GATE = L_X2 + 24576
L_CNT = L_GATE + 1024
L_MAX = L_CNT + 64
LDS_TOTAL = L_MAX + 4096
assert LDS_TOTAL <= 163840
SLOT_AT = [L_GATE - 28672 - 20480 * i for i in range(7)]
assert SLOT_AT[6] >= 0 and L_X1 >= SLOT_AT[1]

S_X, S_W = 4, 6
S_WS = 22
S_WAVE, S_RB, S_CB, S_P = 24, 25, 26, 27
SRD_X, SRD_W, SRD_WS = 28, 32, 36
T0, T1, T2, T3 = 40, 41, 42, 43
S_DSK = 44
S_LW1K = 45
S_C0 = 46
S_LW = 50
S_CT = 53
S_CH = 57
S_CNT = 60
S_H, S_QB = 62, 63
S_OUT, S_DBG, S_WO = 96, 98, 100
ST = E("ST", "sc1")
LD = "sc1"
NV = 256

def poll(a, tag, vaddr, vexp, lanes, sleep=0, limit=SPIN_MAX):
    a(f"""
    s_mov_b64 exec, {lanes}
    v_mov_b32 v15, 0
    s_mov_b32 s{T0}, 0
L_poll_{tag}:
    global_atomic_add v14, v{vaddr}, v15, {sr(S_CNT,2)} sc0 sc1
    s_add_u32 s{T0}, s{T0}, 1
    s_waitcnt vmcnt(0)
    v_cmp_ne_u32 vcc, {vexp}, v14
    s_cbranch_vccz L_ok_{tag}
    {"s_sleep %d" % sleep if sleep else ""}
    s_cmp_lt_u32 s{T0}, {limit}
    s_cbranch_scc1 L_poll_{tag}
L_ok_{tag}:
    s_mov_b64 exec, -1
    """)

def poll2(a, tag, vaddr, vexp, lanes, gap):
    at = lambda d: f"global_atomic_add v{d}, v{vaddr}, v15, {sr(S_CNT,2)} sc0 sc1"
    a(f"""
    s_mov_b64 exec, {lanes}
    v_mov_b32 v15, 0
    s_mov_b32 s{T0}, 0
    {at(14)}
L_poll_{tag}:
    s_sleep {gap}
    {at(13)}
    s_waitcnt vmcnt(1)
    v_cmp_ne_u32 vcc, {vexp}, v14
    s_cbranch_vccz L_ok_{tag}
    s_sleep {gap}
    {at(14)}
    s_add_u32 s{T0}, s{T0}, 1
    s_waitcnt vmcnt(1)
    v_cmp_ne_u32 vcc, {vexp}, v13
    s_cbranch_vccz L_ok_{tag}
    s_cmp_lt_u32 s{T0}, {SPIN_MAX}
    s_cbranch_scc1 L_poll_{tag}
L_ok_{tag}:
    s_mov_b64 exec, -1
    """)

def lds_sync(a, idx, tag, vm=True):
    a(f"""
    v_mov_b32 v15, 1
    s_waitcnt {"vmcnt(0) " if vm else ""}lgkmcnt(0)
    s_mov_b64 exec, 1
    ds_add_u32 v23, v15 offset:{4*idx}
    s_mov_b64 exec, -1
L_spin_{tag}:
    ds_read_b32 v15, v23 offset:{4*idx}
    s_waitcnt lgkmcnt(0)
    v_readfirstlane_b32 s{T0}, v15
    s_cmp_lt_u32 s{T0}, 4
    s_cbranch_scc1 L_spin_{tag}
    """)

XA, XB, WA = 3, 10, 8
XAR = [3, 4, 5, 15]
WF, ACC, XF, PK = 16, 128, 176, 240
RING = 12
ONES = [160 + 16*b + 8 + i for b in (3, 2, 1, 0) for i in range(8)]

def gemm_body(a, kind, tag):
    nw = 1 if kind == "gate" else 2
    def rd_w(g):
        ks = g % 4
        if kind == "gate":
            return [f"ds_read_b128 {vr(WF+4*g,4)}, v8 offset:{32*ks}"]
        return [f"ds_read_b64_tr_b16 {vr(WF+4*g,2)}, v8 offset:{ks*4096}",
                f"ds_read_b64_tr_b16 {vr(WF+4*g+2,2)}, v8 offset:{ks*4096+1024}"]
    def mm(g, i, x):
        w, d = WF + 4*g, ACC + 16*i
        c = None if g == 0 else d
        return mfma(d, x, w, c) if kind == "v" else mfma(d, w, x, c)
    def epi(i):
        r = []
        base = ACC + 16*i
        if kind == "gate":
            return [f"v_cvt_pk_bf16_f32 v{base}, v{base}, v{base}",
                    f"v_and_b32 v{base}, 0xffff0000, v{base}",
                    f"v_mul_f32 v{base}, {f32(-LOG2E)}, v{base}",
                    f"v_exp_f32 v{base}, v{base}", "s_nop 0",
                    f"v_add_f32 v{base}, 1.0, v{base}",
                    f"v_rcp_f32 v{base}, v{base}", "s_nop 0",
                    f"v_cvt_pk_bf16_f32 v{base}, v{base}, v{base}",
                    f"v_and_b32 v{base}, 0xffff0000, v{base}",
                    f"buffer_store_dword v{base}, v6, {sr(SRD_W,4)}, 0 offen offset:{128*i} {ST}"]
        so = ["0", "s58", "s59"][i]
        for h in range(2):
            if kind == "qk":
                r += [f"v_mul_f32 v{base+8*h+j}, s47, v{base+8*h+j}" for j in range(8)]
            r += [f"v_cvt_pk_bf16_f32 v{PK+4*h+j}, v{base+8*h+2*j}, v{base+8*h+2*j+1}" for j in range(4)]
            r.append(f"buffer_store_dwordx4 {vr(PK+4*h,4)}, v{6+h}, {sr(SRD_W,4)}, {so} offen {ST}")
        return r
    for it in range(7):
        a("s_barrier")
        if it in (0, 6): stamp(a, 1 + it // 6)
        nt = 3 if it == 0 else 1
        per = nw + nt
        for ks in range(4):
            for r in rd_w(4*it + ks): a(r)
            for i in range(nt):
                a(f"ds_read_b128 {vr(XF+4*(nt*ks+i),4)}, v{XAR[ks]} offset:{i*4096}")
            if it == 0 and ks == 2:
                a(f"s_waitcnt lgkmcnt({2*per})")
                for i in range(nt): a(mm(0, i, XF + 4*i))
        extra = 0
        if it == 0 and kind != "gate":
            a(f"s_waitcnt lgkmcnt({2*per})")
            for i in range(nt): a(mm(1, i, XF + 4*(nt+i)))
            for i in range(3):
                a(f"ds_read_b64_tr_b16 {vr(PK+4*i,2)}, v9 offset:{i*4096}")
                a(f"ds_read_b64_tr_b16 {vr(PK+4*i+2,2)}, v9 offset:{i*4096+2048}")
            extra = 6
        if it < 6:
            d = SLOT_AT[it] - SLOT_AT[it + 1]
            for r in XAR: a(f"v_subrev_u32 v{r}, {d}, v{r}")
            if kind == "gate":
                a(f"""
                s_add_u32 s{S_C0}, s{S_C0}, 1
                s_cmp_eq_u32 s{S_C0}, 7
                s_cselect_b32 s{S_C0}, 0, s{S_C0}
                s_lshl_b32 s47, s{S_C0}, 7
                v_add_u32 v8, s47, v9
                """)
            else:
                a(f"v_subrev_u32 v8, {d}, v8")
        k0 = 0 if it else (2 if kind != "gate" else 1)
        for ks in range(k0, 4):
            if 0 < it < 6 and not E("NOBURST"):
                if ks == 0: a("s_waitcnt lgkmcnt(0)")
            else:
                a(f"s_waitcnt lgkmcnt({min(15, (3-ks)*per + extra)})")
            if it == 6 and ks == 3:
                break
            for i in range(nt): a(mm(4*it + ks, i, XF + 4*(nt*ks+i)))
        if extra: a("s_waitcnt lgkmcnt(0)")
        if kind != "gate" and it < 3:
            a(f"buffer_store_dwordx4 {vr(PK+4*it,4)}, v14, {sr(SRD_X,4)}, {['0','s58','s59'][it]} offen {ST}")
    def rd_x(n):
        i, g = 1 + n // 24, 4 + n % 24
        return f"ds_read_b128 {vr(XF+4*((n+4)%RING),4)}, v{XB + g%4} offset:{(i-1)*24576 + (g//4-1)*4096}"
    a("s_barrier")
    stamp(a, 3)
    AHEAD = 8
    for n in range(AHEAD): a(rd_x(n))
    a(mm(27, 0, XF + 12))
    issued = AHEAD
    fill = []
    BX2 = int(E("BX2", "18"))
    for n in range(48):
        if n == BX2:
            a("s_waitcnt lgkmcnt(0)\ns_barrier")
            stamp(a, 10)
            while issued < n + AHEAD + 3:
                a(rd_x(issued)); issued += 1
        a(f"s_waitcnt lgkmcnt({issued - n - 1})")
        a(mm(4 + n % 24, 1 + n // 24, XF + 4*((n+4) % RING)))
        lim = 24 if n < BX2 else 48
        if issued < min(lim, n + 1 + (AHEAD if n < BX2 else AHEAD + 3)):
            a(rd_x(issued)); issued += 1
        if n == 0 and kind != "gate":
            a(f"""
            s_waitcnt vmcnt(0)
            s_mov_b64 exec, s[48:49]
            s_cbranch_execz L_noU_{tag}
            global_atomic_add v238, v239, {sr(S_CNT,2)} sc1
L_noU_{tag}:
            s_mov_b64 exec, -1
            """)
        if n == 3: fill = epi(0)
        if n == 27: fill = epi(1)
        for x in fill[:4]: a(x)
        fill = fill[4:]
    assert issued == 48
    a("s_nop 11")
    for x in epi(2): a(x)

def gemm_waves(a):
    a(f"""
    s_lshl_b32 s{S_CT}, s{S_CB}, 2
    s_add_u32 s{S_CT}, s{S_CT}, s{S_WAVE}
    v_and_b32 v1, 31, v0
    v_lshrrev_b32 v2, 5, v0                ; hi
    v_lshrrev_b32 v3, 1, v0
    v_and_b32 v3, 7, v3
    v_xor_b32 v3, v3, v2
    v_lshlrev_b32 v10, 7, v1
    v_lshl_add_u32 v10, v3, 4, v10
    v_xor_b32 v11, 32, v10
    v_xor_b32 v12, 64, v10
    v_xor_b32 v13, 96, v10
    v_and_b32 v4, 15, v0
    v_lshrrev_b32 v5, 4, v0
    s_lshl_b32 s{T0}, s{S_WAVE}, 1
    v_lshrrev_b32 v6, 1, v5
    v_add_u32 v6, s{T0}, v6
    v_lshrrev_b32 v7, 1, v4
    v_xor_b32 v6, v6, v7
    v_lshlrev_b32 v9, 7, v4
    v_lshl_add_u32 v9, v6, 4, v9
    v_and_b32 v16, 1, v5                   ; ih
    v_lshl_add_u32 v9, v16, 3, v9
    v_add_u32 v9, {SLOT_AT[0] + 16384}, v9
    s_mul_i32 s56, s{S_RB}, {3*TILE_B}
    s_lshl_b32 s{T1}, s{S_C0}, 12
    s_add_u32 s{T1}, s{T1}, s{S_LW1K}
    s_add_u32 s{T1}, s{T1}, s56
    v_add_u32 v14, s{T1}, v{A_L16}
    s_add_u32 s{SRD_X}, s{S_WS}, {WS_UT}
    s_addc_u32 s{SRD_X+1}, s{S_WS+1}, 0
    s_mov_b32 s{SRD_X+3}, 0x20000
    s_cmp_lt_u32 s{S_CB}, 7
    s_cselect_b32 s{SRD_X+2}, {0 if E("X_NOUT") else 64*TILE_B}, 0
    s_cselect_b32 s48, 1, 0
    s_mov_b32 s49, 0
    s_lshl_b32 s{T0}, s{S_C0}, 2
    s_add_u32 s{T0}, s{T0}, s{S_WAVE}
    s_add_u32 s{T0}, s{T0}, {C_U}
    s_lshl_b32 s{T0}, s{T0}, 7
    v_mov_b32 v238, s{T0}
    v_mov_b32 v239, 1
    s_mul_i32 s{T0}, s{S_RB}, 3
    s_add_u32 s{T1}, s{T0}, 2
    s_min_u32 s{T1}, s{T1}, 63
    s_cmp_lt_u32 s{S_CT}, 14
    s_cselect_b32 s{T2}, 2, 4
    s_cselect_b32 s{T3}, 4, 2
    s_cselect_b32 s51, {C_Q}, {C_KV}
    s_lshr_b32 s{T0}, s{T0}, s{T2}
    s_lshr_b32 s{T1}, s{T1}, s{T2}
    s_cmp_eq_u32 s{T0}, s{T1}
    s_cselect_b32 s54, 3, 15
    s_mov_b32 s55, 0
    s_cmp_ge_u32 s{S_RB}, 22
    s_cselect_b32 s54, 0, s54
    s_cselect_b32 s48, 0, s48
    s_mul_i32 s{T2}, s{S_CT}, 37
    s_lshr_b32 s{T2}, s{T2}, 9
    s_mul_i32 s{T1}, s{T2}, 14
    s_sub_u32 s52, s{S_CT}, s{T1}          ; ct'
    s_mul_i32 s{T1}, s52, {8*147}
    s_lshr_b32 s{T1}, s{T1}, 10            ; (8 ct') / 7
    v_and_b32 v4, 1, v0
    v_add_u32 v4, s{T1}, v4
    v_lshlrev_b32 v4, s{T3}, v4
    v_bfe_u32 v5, v0, 1, 1
    s_mul_i32 s{T3}, s{T0}, 14             ; gate wave: first counter
    s_add_u32 s{T0}, s{T0}, s51
    v_add3_u32 v4, v4, v5, s{T0}
    v_lshlrev_b32 v254, 7, v4
    s_lshl_b32 s{T2}, s{T2}, 21
    s_add_u32 s{SRD_W}, s{S_WS}, s{T2}
    s_addc_u32 s{SRD_W+1}, s{S_WS+1}, 0
    s_mov_b32 s{SRD_W+2}, {64*TILE_B}
    s_mov_b32 s{SRD_W+3}, 0x20000
    s_mov_b32 s58, {TILE_B}
    s_mov_b32 s59, {2*TILE_B}
    v_bfe_u32 v4, v0, 2, 2                 ; r
    v_lshl_add_u32 v17, v2, 3, v4          ; 8 hi + r
    v_lshlrev_b32 v8, 8, v17
    v_xor_b32 v17, s{S_WAVE}, v4
    v_lshl_add_u32 v8, v17, 6, v8
    v_lshl_add_u32 v8, v16, 5, v8
    v_add_u32 v8, {SLOT_AT[0]}, v8
    v_and_b32 v17, 3, v0                   ; c
    v_add_u32 v3, {SLOT_AT[0] + 16384}, v10
    v_add_u32 v4, {SLOT_AT[0] + 16384}, v11
    v_add_u32 v5, {SLOT_AT[0] + 16384}, v12
    v_add_u32 v15, {SLOT_AT[0] + 16384}, v13
    v_add_u32 v10, {L_X1}, v10
    v_add_u32 v11, {L_X1}, v11
    v_add_u32 v12, {L_X1}, v12
    v_add_u32 v13, {L_X1}, v13
    s_cmp_ge_u32 s{S_CT}, 42
    s_cbranch_scc1 L_gate
    s_cmp_ge_u32 s{S_CT}, 28
    s_cbranch_scc1 L_v
    v_and_b32 v16, 1, v17
    v_lshrrev_b32 v17, 1, v17
    v_lshl_add_u32 v17, v16, 1, v17
    """)
    assert WS_Q == 0 and WS_K == 1 << 21 and WS_V == 2 << 21
    wa = "v_lshl_add_u32 v8, v17, 3, v8"
    a(wa)
    a(f"""
    s_cmp_ge_u32 s{S_CT}, 14
    s_cselect_b32 s47, 1.0, {f32(QSCALE)}
    s_lshl_b32 s{T1}, s52, 11
    s_add_u32 s{T0}, s56, s{T1}
    v_add_u32 v6, s{T0}, v{A_L16}
    v_add_u32 v7, 1024, v6
    """)
    gemm_body(a, "qk", "qk")
    a("s_branch L_signal")
    a.label("L_gate")
    a(f"""
    v_lshlrev_b32 v9, 4, v2
    v_add_u32 v9, {L_GATE}, v9
    s_lshl_b32 s47, s{S_C0}, 7
    v_add_u32 v8, s47, v9
    s_add_u32 s{T3}, s{T3}, {C_BP}
    v_add_u32 v16, s{T3}, v0
    v_lshlrev_b32 v254, 7, v16
    s_mov_b32 s{T0}, 0x3fff
    s_cmp_eq_u32 s54, 3
    s_cselect_b32 s54, s{T0}, 0xfffffff
    s_add_u32 s{SRD_W}, s{S_WS}, {WS_GT}
    s_addc_u32 s{SRD_W+1}, s{S_WS+1}, 0
    s_cmp_eq_u32 s{S_CT}, 42
    s_cselect_b32 s{SRD_W+2}, 8192, 0
    s_cselect_b32 s54, s54, 0
    s_mul_i32 s{T0}, s{S_RB}, {96*4}
    v_lshl_add_u32 v6, v1, 2, s{T0}
    """)
    gemm_body(a, "gate", "g")
    a("s_branch L_signal")
    a.label("L_v")
    a(wa)
    a(f"""
    s_lshl_b32 s{T0}, s52, 9
    s_add_u32 s{T0}, s{T0}, s56
    v_mul_u32_u24 v6, 7168, v2
    v_lshl_add_u32 v6, v1, 4, v6
    v_add_u32 v6, s{T0}, v6
    v_add_u32 v7, 14336, v6
    """)
    gemm_body(a, "v", "v")
    a.label("L_signal")
    stamp(a, 4)
    a(f"""
    s_setprio 0
    """)
    a(f"""
    s_waitcnt vmcnt(0)
    s_mov_b64 exec, s[54:55]
    s_cbranch_execz L_nosig
    global_atomic_add v254, v239, {sr(S_CNT,2)} sc1
L_nosig:
    """)

Q, O, S, P, KV = 16, 48, 112, 144, 160
A_K, A_V0, A_V1, A_RED, A_Q, A_L16, A_M0, A_M1, A_PA, A_PE, A_RR, A_OC, A_LC = 224, 225, 226, 227, 230, 231, 232, 233, 234, 235, 236, 237, 255
S_OFF = 9
S_EXV = 20

def kv_loads(b):
    r = KV + 16 * b
    w = sr(SRD_WS, 4)
    return [f"buffer_load_dwordx4 {vr(r,4)}, v{A_K}, {w}, s{S_OFF} offen {LD}",
            f"buffer_load_dwordx4 {vr(r+4,4)}, v{A_K}, {w}, s{S_OFF} offen offset:1024 {LD}",
            f"buffer_load_dwordx4 {vr(r+8,4)}, v{A_V0}, {w}, s{S_OFF} offen {LD}",
            f"buffer_load_dwordx4 {vr(r+12,4)}, v{A_V1}, {w}, s{S_OFF} offen {LD}",
            f"s_add_u32 s{S_OFF}, s{S_OFF}, {TILE_B}"]

def slot(a, n, qk, pv, post=None, first=False, mid=None, tight=False):
    sc, sn = S + 16 * (n & 1), S + 16 * ((n + 1) & 1)
    pc, pp = P + 8 * (n & 1), P + 8 * ((n + 1) & 1)
    ms = [None] * 4
    if qk is not None:
        k, q = KV + 16 * qk[0], Q + 8 * qk[1]
        ms[0] = mfma(sn, k, q, None)
        ms[1] = mfma(sn, k + 4, q + 4, sn)
    if pv is not None:
        v, o = KV + 16 * pv[0] + 8, O + 16 * pv[1]
        ms[2] = mfma(o, v, pp, None if first else o)
        ms[3] = mfma(o, v + 4, pp + 4, o)
    valu = []
    for g in range(4):
        for j in range(4):
            valu.append(f"v_exp_f32 v{sc+4*g+j}, v{sc+4*g+j}")
            if g > 0 and j == 0:
                valu.append(f"v_cvt_pk_bf16_f32 v{pc+2*g-2}, v{sc+4*g-4}, v{sc+4*g-3}")
                valu.append(f"v_cvt_pk_bf16_f32 v{pc+2*g-1}, v{sc+4*g-2}, v{sc+4*g-1}")
    valu.append(f"v_cvt_pk_bf16_f32 v{pc+6}, v{sc+12}, v{sc+13}")
    valu.append(f"v_cvt_pk_bf16_f32 v{pc+7}, v{sc+14}, v{sc+15}")
    cuts = [0, 3, 7, 10, 24] if tight else [0, 4, 10, 16, 24]
    for g in range(4):
        if g == 2 and mid:
            for e in mid: a(e)
        if ms[g]: a(ms[g])
        if post and post[g]: a(post[g])
        for x in valu[cuts[g]:cuts[g+1]]: a(x)

def red_writes(j):
    return [f"ds_write_b128 v{A_RED+j}, {vr(O+16*j+4*i,4)} offset:{1024*i}" for i in range(4)]

def attn_setup(a):
    a(f"""
    s_and_b32 s{S_H}, s2, 7
    s_lshl_b32 s{S_H}, s{S_H}, 1
    s_bfe_u32 s{T0}, s2, 0x10003
    s_add_u32 s{S_H}, s{S_H}, s{T0}
    s_lshr_b32 s{S_QB}, s2, 4
    s_mov_b32 s{SRD_WS}, s{S_WS}
    s_mov_b32 s{SRD_WS+1}, s{S_WS+1}
    s_mov_b32 s{SRD_WS+2}, {WS_SIZE}
    s_mov_b32 s{SRD_WS+3}, 0x20000
    s_mul_i32 s{T0}, s{S_H}, 7
    s_lshr_b32 s8, s{T0}, 1                ; u0
    s_mul_i32 s{S_OFF}, s{S_WAVE}, {16*TILE_B}
    s_lshl_b32 s{T2}, s8, 9
    v_lshlrev_b32 v{A_L16}, 4, v0
    v_add_u32 v{A_Q}, s{T2}, v{A_L16}
    v_add_u32 v{A_K}, {WS_K}, v{A_Q}
    v_bfe_u32 v8, v0, 2, 1
    v_bfe_u32 v9, v0, 3, 1
    v_and_b32 v10, 19, v0
    v_lshl_add_u32 v10, v8, 3, v10
    v_lshl_add_u32 v10, v9, 2, v10
    v_lshrrev_b32 v1, 5, v0                ; hi
    v_mul_u32_u24 v3, 7168, v1
    v_lshl_add_u32 v3, v10, 4, v3
    s_lshl_b32 s{T3}, s8, 7
    s_add_u32 s{T3}, s{T3}, {WS_V}
    v_add_u32 v{A_V0}, s{T3}, v3
    v_add_u32 v{A_V1}, 14336, v{A_V0}
    s_bitcmp1_b32 s{S_H}, 0
    s_mov_b32 s{S_EXV}, 0x0fffffff
    s_cselect_b32 s{S_EXV}, 0xfffffff0, s{S_EXV}
    s_cselect_b64 s[18:19], -1, 0
    s_mov_b32 s{S_EXV+1}, s{S_EXV}
    v_mov_b32 v8, {WS_ONE}
    v_cndmask_b32 v{A_V0}, v8, v{A_V0}, {sr(S_EXV,2)}
    v_cndmask_b32 v{A_V1}, v8, v{A_V1}, {sr(S_EXV,2)}
    """)
    for j in range(4):
        a(f"""
        s_add_u32 s{T3}, s{S_WAVE}, {j+1}
        s_and_b32 s{T3}, s{T3}, 3
        s_lshl_b32 s{T0}, s{S_QB}, 2
        s_add_u32 s{T0}, s{T0}, s{T3}
        s_mul_i32 s{10+j}, s{T0}, {TILE_B}
        s_mul_i32 s{T3}, s{T3}, 12288
        s_add_u32 s{T3}, s{T3}, {L_RED + (4096*j if j < 3 else 0)}
        v_add_u32 v{A_RED+j if j < 3 else A_RR}, s{T3}, v{A_L16}
        """)
    a(f"""
    s_add_u32 s{T0}, s{T0}, {C_O}
    s_lshl_b32 s{T0}, s{T0}, 7
    v_mov_b32 v{A_OC}, s{T0}
    v_mov_b32 v{A_LC}, {L_CNT}
    """)
    a(f"""
    s_and_b32 s{T0}, s{S_H}, 1
    v_cmp_lt_u32 vcc, v1, s{T0}
    v_cmp_gt_u32 s[14:15], v1, s{T0}
    s_add_u32 s{T0}, s{S_H}, 1
    s_and_b32 s{T0}, s{T0}, 6
    v_cndmask_b32 v{A_M0}, -1, 0, vcc
    v_cndmask_b32 v{A_M1}, -1, 0, s[14:15]
    s_cmp_eq_u32 s{T0}, 0
    s_cselect_b32 s{T0}, 12, 24
    s_cselect_b32 s{T1}, 2, 4
    v_mov_b32 v{A_PE}, s{T0}
    v_writelane_b32 v{A_PE}, s{T1}, 1
    s_lshl_b32 s{T0}, s{S_H}, 2
    s_add_u32 s{T0}, s{T0}, s{S_WAVE}
    s_lshl_b32 s{T0}, s{T0}, 7
    s_lshl_b32 s{T1}, s{S_H}, 4
    s_add_u32 s{T1}, s{T1}, s{S_QB}
    s_add_u32 s{T1}, s{T1}, {C_Q}
    s_lshl_b32 s{T1}, s{T1}, 7
    v_mov_b32 v{A_PA}, s{T0}
    v_writelane_b32 v{A_PA}, s{T1}, 1
    """)

def qmask(j):
    return [f"v_and_b32 v{Q+8*j}, v{A_M0}, v{Q+8*j}", f"v_and_b32 v{Q+8*j+1}, v{A_M0}, v{Q+8*j+1}",
            f"v_and_b32 v{Q+8*j+6}, v{A_M1}, v{Q+8*j+6}", f"v_and_b32 v{Q+8*j+7}, v{A_M1}, v{Q+8*j+7}"]

def attention(a):
    w = sr(SRD_WS, 4)
    stamp(a, 5)
    if E("X_DELAY"): a("s_sleep 64")
    if E("GAPA"): poll2(a, "a", A_PA, f"v{A_PE}", 3, int(E("GAPA")))
    else: poll(a, "a", A_PA, f"v{A_PE}", 3)
    stamp(a, 6)
    def ldq(j):
        a(f"buffer_load_dwordx4 {vr(Q+8*j,4)}, v{A_Q}, {w}, s{10+j} offen {LD}")
        a(f"buffer_load_dwordx4 {vr(Q+8*j+4,4)}, v{A_Q}, {w}, s{10+j} offen offset:1024 {LD}")
    l0 = kv_loads(0)
    a(l0[0]); a(l0[1])
    ldq(0); ldq(1); ldq(2)
    for x in l0[2:]: a(x)
    ldq(3)
    a("s_waitcnt vmcnt(8)")
    for x in qmask(0): a(x)
    a("s_nop 1")
    a(mfma(S, KV, Q, None))
    l1 = kv_loads(1)
    a(l1[0])
    a(mfma(S, KV + 4, Q + 4, S))
    a(l1[1])
    a("s_waitcnt vmcnt(8)")
    for x in qmask(1): a(x)
    a("s_nop 4")
    stamp(a, 7)
    for t in range(16):
        b = t & 3
        ld = kv_loads((b + 3) & 3) if t <= 12 else [None] * 5
        for q in range(4):
            qk = (b, q + 1) if q < 3 else ((b + 1) & 3, 0)
            pv = (b, q - 1) if q > 0 else ((b - 1) & 3, 3)
            post, mid = [None] * 4, None
            if q == 0: post[0] = ld[0]
            if q == 1: post[0], post[2] = ld[1], ld[2]
            if q == 2:
                post[0], post[1] = ld[3], ld[4]
                if t < 15: post[3] = f"s_waitcnt vmcnt({8 if t <= 12 else 4 * (14 - t)})"
            first = (t == 0 and q > 0) or (t == 1 and q == 0)
            if t == 0:
                l2 = kv_loads(2)
                if q == 0:
                    pv = None
                    post = [l1[2], l1[3] + "\n" + l1[4], None, None]
                    mid = ["s_waitcnt vmcnt(8)"] + qmask(2)
                if q == 1:
                    post = [l2[0], l2[1], l2[2], l2[3] + "\n" + l2[4]]
                    mid = ["s_waitcnt vmcnt(6)"] + qmask(3)
                if q == 2:
                    post = [ld[0], ld[1], ld[2], ld[3] + "\n" + ld[4] + "\ns_waitcnt vmcnt(10)"]
                if q == 3:
                    post[3] = "s_waitcnt vmcnt(8)"
            if t == 1 and q == 3:
                post[0] = f"ds_write_b32 v{A_LC}, v239 offset:20"
            if t == 15:
                if q == 2: post = [None] + red_writes(0)[:3]
                if q == 3:
                    qk = None
                    r1 = red_writes(1)
                    post = [red_writes(0)[3], r1[0] + "\n" + r1[1], r1[2], r1[3]]
            slot(a, q, qk, pv, post, first, mid, tight=t < int(E('TIGHT', '6')))
    a("s_nop 0")
    a(mfma(O + 48, KV + 48 + 8, P + 8, O + 48))
    a(mfma(O + 48, KV + 48 + 12, P + 12, O + 48))
    a(f"""
    v_min_f32 v8, v{O}, v{O+16}
    v_max_f32 v9, v{O}, v{O+16}
    v_min_f32 v10, v{O+12}, v{O+28}
    v_max_f32 v13, v{O+12}, v{O+28}
    """)
    for x in red_writes(2): a(x)
    a(f"""
    s_mov_b32 s{T0}, {f32(2.0**-40)}
    s_mov_b32 s{T1}, {f32(2.0**40)}
    v_mov_b32 v11, {L_CNT}
    v_mov_b32 v12, 1
    v_min3_f32 v8, v8, v{O+32}, v{O+48}
    v_max3_f32 v9, v9, v{O+32}, v{O+48}
    v_min3_f32 v10, v10, v{O+44}, v{O+60}
    v_max3_f32 v13, v13, v{O+44}, v{O+60}
    v_cndmask_b32 v8, v10, v8, s[18:19]
    v_cndmask_b32 v9, v13, v9, s[18:19]
    v_cmp_le_f32 vcc, s{T0}, v8
    v_cmp_ge_f32 s[16:17], s{T1}, v9
    s_and_b64 s[16:17], s[16:17], vcc
    s_bitcmp1_b32 s{S_H}, 0
    s_cselect_b32 s16, s16, s17
    s_cmp_lg_u32 s16, {0x12345 if E("SLOW") else -1}
    s_cbranch_scc1 L_bad
L_fine:
    """)

def reduce(a, check):
    o = O + 48
    a("s_waitcnt lgkmcnt(0)\ns_barrier")
    if check:
        a("ds_read_b32 v9, v11 offset:16")
    seq = [(j, i) for i in (0, 3, 1, 2) for j in range(3)]
    for j, i in seq:
        a(f"ds_read_b128 {vr(O+16*j+4*i,4)}, v{A_RR} offset:{4096*j + 1024*i}")
    if check:
        a(f"""
        s_waitcnt lgkmcnt(12)
        v_readfirstlane_b32 s{T0}, v9
        s_cmp_lg_u32 s{T0}, 0
        s_cbranch_scc1 L_slow
        """)
    chain = [f"v_cndmask_b32 v10, v{o+12}, v{o}, s[18:19]",
             f"v_cndmask_b32 v13, v{o+12}, v{o}, s[18:19]",
             "v_permlane32_swap_b32 v10, v13",
             "v_cndmask_b32 v10, v13, v10, s[18:19]",
             "v_rcp_f32 v10, v10"]
    for k, (j, i) in enumerate(seq):
        a(f"s_waitcnt lgkmcnt({11 - k})")
        for e in (0, 2):
            a(f"v_pk_add_f32 {vr(o+4*i+e,2)}, {vr(o+4*i+e,2)}, {vr(O+16*j+4*i+e,2)}")
        if k == 5: a(chain[0]); a(chain[1])
        if k in (6, 7, 8): a(chain[k - 4])

def store_o(a):
    o = O + 48
    w = sr(SRD_WS, 4)
    a(f"""
    s_add_u32 s13, s13, {WS_O}
    s_not_b32 s14, s18
    s_mov_b32 s15, -1
    s_mov_b32 s16, -1
    s_mov_b32 s17, s18
    """)
    for h in range(2):
        for i in range(4*h, 4*h + 4):
            a(f"v_pk_mul_f32 {vr(o+2*i,2)}, {vr(o+2*i,2)}, v[10:11] op_sel_hi:[1,0]")
        for i in range(4*h, 4*h + 4):
            a(f"v_cvt_pk_bf16_f32 v{16+i}, v{o+2*i}, v{o+2*i+1}")
        if h == 0:
            a(f"""
            s_mov_b64 exec, s[14:15]
            buffer_store_dwordx4 v[16:19], v{A_Q}, {w}, s13 offen {ST}
            s_not_b64 exec, exec
            buffer_store_dwordx2 v[18:19], v{A_Q}, {w}, s13 offen offset:8 {ST}
            s_mov_b64 exec, -1
            """)
    a(f"""
    s_mov_b64 exec, s[16:17]
    buffer_store_dwordx4 v[20:23], v{A_Q}, {w}, s13 offen offset:1024 {ST}
    s_not_b64 exec, exec
    buffer_store_dwordx2 v[20:21], v{A_Q}, {w}, s13 offen offset:1024 {ST}
    s_mov_b64 exec, 1
    """)
    stamp(a, 9)
    a(f"""
    s_waitcnt vmcnt(0)
    global_atomic_add v{A_OC}, v12, {sr(S_CNT,2)} sc1
    """)

def fallback(a):
    M = 208
    a(f"""
L_bad:
    ds_write_b32 v11, v12 offset:16
    s_branch L_fine
L_slow:
    """)
    for j in range(4):
        a(f"v_mov_b32 v{M+j}, 0xff800000")
    l0 = kv_loads(0)
    a(f"""
    s_waitcnt lgkmcnt(0)
    s_mul_i32 s{S_OFF}, s{S_WAVE}, {16*TILE_B}
    s_mov_b32 s14, 0
L_s1:
    """)
    for x in (l0[0], l0[1], l0[4]): a(x)
    a("s_waitcnt vmcnt(0)")
    for j in range(4):
        a(mfma(S, KV, Q + 8*j, None))
        a(mfma(S, KV + 4, Q + 8*j + 4, S))
        a("s_nop 15")
        for i in range(8):
            a(f"v_max3_f32 v{M+j}, v{M+j}, v{S+2*i}, v{S+2*i+1}")
    a(f"""
    s_add_u32 s14, s14, 1
    s_cmp_lt_u32 s14, 16
    s_cbranch_scc1 L_s1
    v_lshlrev_b32 v8, 2, v0
    """)
    for j in range(4):
        a(f"""
        s_add_u32 s{T0}, s{S_WAVE}, {j+1}
        s_and_b32 s{T0}, s{T0}, 3
        s_lshl_b32 s{T0}, s{T0}, 10
        s_lshl_b32 s{T1}, s{S_WAVE}, 8
        s_add_u32 s{T1}, s{T1}, s{T0}
        s_add_u32 s{T1}, s{T1}, {L_MAX}
        v_add_u32 v9, s{T1}, v8
        ds_write_b32 v9, v{M+j}
        """)
    a(f"""
    s_waitcnt lgkmcnt(0)
    s_barrier
    v_and_b32 v8, 31, v0
    v_lshlrev_b32 v8, 2, v8
    """)
    for j in range(4):
        a(f"""
        s_add_u32 s{T0}, s{S_WAVE}, {j+1}
        s_and_b32 s{T0}, s{T0}, 3
        s_lshl_b32 s{T0}, s{T0}, 10
        s_add_u32 s{T0}, s{T0}, {L_MAX}
        v_add_u32 v9, s{T0}, v8
        """)
        for i in range(8):
            a(f"ds_read_b32 v{S+i}, v9 offset:{128*i}")
        a("s_waitcnt lgkmcnt(0)")
        for i in range(4):
            a(f"v_max3_f32 v{M+j}, v{M+j}, v{S+2*i}, v{S+2*i+1}")
    for i in range(64):
        a(f"v_mov_b32 v{O+i}, 0")
    a(f"""
    s_mul_i32 s{S_OFF}, s{S_WAVE}, {16*TILE_B}
    s_mov_b32 s14, 0
L_s2:
    """)
    for x in l0: a(x)
    a("s_waitcnt vmcnt(0)")
    for j in range(4):
        a(mfma(S, KV, Q + 8*j, None))
        a(mfma(S, KV + 4, Q + 8*j + 4, S))
        a("s_nop 15")
        for i in range(16):
            a(f"v_sub_f32 v{S+i}, v{S+i}, v{M+j}")
        for i in range(16):
            a(f"v_exp_f32 v{S+i}, v{S+i}")
        a("s_nop 0")
        for i in range(8):
            a(f"v_cvt_pk_bf16_f32 v{P+i}, v{S+2*i}, v{S+2*i+1}")
        a("s_nop 1")
        a(mfma(O + 16*j, KV + 8, P, O + 16*j))
        a(mfma(O + 16*j, KV + 12, P + 4, O + 16*j))
    a(f"""
    s_add_u32 s14, s14, 1
    s_cmp_lt_u32 s14, 16
    s_cbranch_scc1 L_s2
    s_nop 15
    """)
    for j in range(3):
        for x in red_writes(j): a(x)
    reduce(a, False)
    a("s_branch L_fin")

CA, ZR = 192, 28
H_T, H_UB, H_US, H_UTV, H_UTC, H_PL, H_BPC, H_CNT, H_K4, H_K2 = 16, 17, 18, 19, 20, 21, 22, 23, 132, 133

def next_chunk():
    return [f"s_add_u32 s{S_CH}, s{S_CH}, 1", f"s_cmp_eq_u32 s{S_CH}, 7", f"s_cselect_b32 s{S_CH}, 0, s{S_CH}"]

def dma_chunk(it):
    slot = SLOT_AT[it]
    g = []
    for j in range(4):
        x = [f"s_mul_i32 s58, s{S_CH}, {64*2688}", f"s_lshl_b32 s59, s{S_CH}, 7"] if j == 0 else []
        g.append(x + [f"s_add_u32 m0, s{S_LW1K}, {slot + j*4096}",
                      f"s_add_u32 s{T0}, s58, {16*j*2688}",
                      f"buffer_load_dwordx4 v3, {sr(SRD_W,4)}, s{T0} offen lds"])
        if j < (3 if it == 0 else 1):
            g.append([f"s_add_u32 m0, s{S_LW1K}, {slot + 16384 + j*4096}",
                      f"s_add_u32 s{T1}, s59, {j*32*896}",
                      f"buffer_load_dwordx4 v2, {sr(SRD_X,4)}, s{T1} offen lds"])
    g[-1] += next_chunk()
    return g

def dma_x(i):
    g = []
    for it in range(1, 7):
        g.append(next_chunk() + [f"s_lshl_b32 s59, s{S_CH}, 7",
                                 f"s_add_u32 m0, s{S_LW1K}, {L_X1 + (i-1)*24576 + (it-1)*4096}",
                                 f"s_add_u32 s{T1}, s59, {i*32*896}",
                                 f"buffer_load_dwordx4 v2, {sr(SRD_X,4)}, s{T1} offen lds"])
    g[-1] += next_chunk()
    return g

def helper_setup():
    t = f"""
    s_mov_b32 s{SRD_WS}, s{S_WS}
    s_mov_b32 s{SRD_WS+1}, s{S_WS+1}
    s_mov_b32 s{SRD_WS+2}, {WS_SIZE}
    s_mul_i32 s18, s{S_LW}, {TAB_B}
    v_and_b32 v4, 31, v0
    v_lshrrev_b32 v5, 5, v0
    v_mul_u32_u24 v24, 272, v4
    v_lshl_add_u32 v24, v5, 4, v24
    v_add_u32 v24, s18, v24
    s_lshr_b32 s47, s{S_LW}, 1
    s_mul_i32 s{T0}, s47, 3072
    s_add_u32 s{T0}, s{T0}, {L_XCH}
    v_lshl_add_u32 v25, v0, 4, s{T0}
    v_mov_b32 v{H_CNT}, {L_CNT}
    s_lshr_b32 s{T0}, s2, 3
    s_add_u32 s{T0}, s{T0}, {C_U}
    s_lshl_b32 s{T0}, s{T0}, 7
    v_mov_b32 v{H_UTC}, s{T0}
    v_lshrrev_b32 v14, 2, v0
    v_mul_u32_u24 v14, {TILE_B}, v14
    v_and_b32 v15, 3, v0
    v_lshl_add_u32 v{H_UTV}, v15, 6, v14
    s_lshr_b32 s14, s2, 1
    s_lshl_b32 s14, s14, 8
    s_and_b32 s15, s2, 1
    s_lshl_b32 s15, s15, 1
    s_add_u32 s15, s15, s47
    s_lshl_b32 s15, s15, 4
    s_add_u32 s14, s14, s15
    s_and_b32 s16, s{S_LW}, 1
    s_mul_i32 s15, s16, {32*TILE_B}
    s_add_u32 s14, s14, s15
    s_add_u32 s14, s14, {WS_UT}
    s_add_u32 s15, s14, {16*TILE_B}
    s_mul_i32 s17, s47, {U_B}
    s_add_u32 s13, s17, {L_U}
    s_lshl_b32 s16, s16, 11
    s_add_u32 s17, s17, s16
    s_mul_i32 s19, s47, {KC_B}
    s_add_u32 s19, s19, {L_KC}
    s_add_u32 s{T0}, s19, 64
    v_lshl_add_u32 v{H_K4}, v0, 4, s{T0}
    v_lshl_add_u32 v{H_K2}, v4, 4, s{T0}
    v_lshl_add_u32 v{H_K2}, v5, 3, v{H_K2}
    v_bfe_u32 v14, v0, 4, 2
    v_lshlrev_b32 v{H_T}, 5, v14
    v_lshl_add_u32 v{H_T}, v15, 3, v{H_T}
    v_bfe_u32 v14, v0, 2, 2
    v_lshlrev_b32 v14, 3, v14
    v_sub_u32 v{H_T}, v{H_T}, v14
    s_add_u32 s{T0}, s19, {64 - 32}
    v_add_u32 v{H_T}, s{T0}, v{H_T}
    v_lshlrev_b32 v14, 4, v4
    v_lshlrev_b32 v15, 6, v5
    v_sub_u32 v14, v14, v15
    s_add_u32 s{T0}, s13, {512 - 384}
    v_add_u32 v{H_UB}, s{T0}, v14
    s_lshl_b32 s{T0}, s{S_LW}, 11
    v_lshl_add_u32 v{H_PL}, v0, 4, s{T0}
    s_lshl_b32 s12, s2, 13
    s_add_u32 s12, s12, {WS_BP}
    s_lshr_b32 s{T1}, s2, 4
    s_mul_i32 s{T0}, s{S_LW}, 14
    s_add_u32 s{T0}, s{T0}, s{T1}
    s_add_u32 s{T0}, s{T0}, {C_BP}
    s_lshl_b32 s{T0}, s{T0}, 7
    v_mov_b32 v{H_BPC}, s{T0}
    """
    return [l.strip() for l in t.split("\n") if l.strip() and not l.strip().startswith(";")]

def conv(a):
    w = sr(SRD_WS, 4)
    lds_sync(a, 1, "b")
    stamp(a, 5)
    UFR, TR, NT = 64, 32, 8
    def variant(tiles, tag):
        top = 4 * max(tiles) + 3
        def rd_t(ph):
            t = TR + 4 * (ph % NT)
            return [f"ds_read_b64_tr_b16 {vr(t,2)}, v{H_T} offset:{128*ph + 32}",
                    f"ds_read_b64_tr_b16 {vr(t+2,2)}, v{H_T} offset:{128*ph}"]
        have = set()
        need = []
        for ph in range(top + 1):
            r = rd_t(ph)
            for tau in tiles:
                b = 4 * tau - ph
                if b >= -3 and b not in have:
                    have.add(b)
                    r.append(f"ds_read_b128 {vr(UFR + 4*(b+3), 4)}, v{H_UB} offset:{128*(b+3)}")
            need.append(r)
        queue = [(ph, x) for ph in range(top + 1) for x in need[ph]]
        issued = 0
        def issue(k, maxph):
            nonlocal issued
            while k > 0 and issued < len(queue) and queue[issued][0] <= maxph:
                a(queue[issued][1]); issued += 1; k -= 1
        issue(12, 1)
        a(f"s_setprio {E('PRC', '0')}")
        done = 0
        for ph in range(top + 1):
            done += len(need[ph])
            issue(max(0, done - issued), ph)
            a(f"s_waitcnt lgkmcnt({min(15, issued - done)})")
            act = [k for k, tau in enumerate(tiles) if 4 * tau - ph >= -3]
            for k in act:
                b = 4 * tiles[k] - ph
                a(mfma(CA + 16*k, UFR + 4*(b+3), TR + 4*(ph % NT), None if ph == 0 else CA + 16*k))
                issue(min(2, 12 - (issued - done)), ph + NT - 1)
        assert issued == len(queue)
        a("s_setprio 1")
        stamp(a, 6)
        order = sorted(range(4), key=lambda k: tiles[k])
        for k in order:
            for r in range(16):
                a(f"ds_write_addtid_b32 v{CA+16*k+r} offset:{(r&3)*2*PL_B + 1024*tiles[k] + 256*(r>>2) + 4*(r&3)}")
    a(f"""
    s_mul_i32 m0, s47, {PL_B}
    s_bitcmp1_b32 s{S_LW}, 0
    s_cbranch_scc1 L_cB
    v_and_b32 v14, 3, v0
    v_mul_u32_u24 v14, {2*PL_B}, v14
    v_add_u32 v14, m0, v14
    ds_write_b128 v14, {vr(ZR,4)}
    """)
    variant([7, 4, 3, 0], "A")
    a("s_branch L_cC\nL_cB:")
    variant([6, 5, 2, 1], "B")
    a("L_cC:")
    if not E("NOWARM"):
        a(f"""
        s_lshr_b32 s{T0}, s2, 3
        s_lshl_b32 s{T0}, s{T0}, 2
        s_add_u32 s{T0}, s{T0}, s{S_LW}
        s_mul_i32 s{T0}, s{T0}, {28*128}
        v_min_u32 v14, 27, v0
        v_lshl_add_u32 v14, v14, 7, s{T0}
        global_load_dword v26, v14, {sr(S_WO,2)}
        """)
    lds_sync(a, 2, "c", vm=False)
    for hf in range(2):
        for pl in range(8):
            a(f"ds_read_b128 {vr(CA+32*hf+4*pl,4)}, v{H_PL} offset:{pl*PL_B + 1024*hf}")
    for hf in range(2):
        b = CA + 32*hf
        a(f"s_waitcnt lgkmcnt({8 - 8*hf})")
        for i in range(8):
            a(f"v_add_f32 v{b+i}, v{b+i}, v{b+8+i}")
            a(f"v_add_f32 v{b+16+i}, v{b+16+i}, v{b+24+i}")
        for i in range(8):
            a(f"v_add_f32 v{b+i}, v{b+i}, v{b+16+i}")
        for i in range(4):
            a(f"v_cvt_pk_bf16_f32 v{b+i}, v{b+i}, v{b+4+i}")
        a(f"buffer_store_dwordx4 {vr(b,4)}, v{H_PL}, {w}, s12 offen offset:{1024*hf} {ST}")
    lds_sync(a, 3, "d")
    a(f"""
    v_mov_b32 v15, 1
    s_mov_b64 exec, 1
    global_atomic_add v{H_BPC}, v15, {sr(S_CNT,2)} sc1
    s_mov_b64 exec, -1
    """)

def outproj(a):
    WOF, ACC3, BR, OF, BB = 32, 16, 144, 160, 192
    w = sr(SRD_WS, 4)
    a(f"""
    s_and_b32 s8, s2, 7
    s_lshl_b32 s8, s8, 3
    s_lshr_b32 s{T0}, s2, 5
    s_add_u32 s8, s8, s{T0}
    s_bfe_u32 s9, s2, 0x20003
    s_lshl_b32 s10, s9, 2
    s_add_u32 s10, s10, s{S_LW}
    s_cmp_ge_u32 s10, 14
    s_cbranch_scc1 L_nowo
    s_lshr_b32 s{T0}, s8, 4                ; quarter
    s_mul_i32 s{T1}, s{T0}, 14
    s_add_u32 s{T1}, s{T1}, s10
    s_add_u32 s{T1}, s{T1}, {C_BP}
    s_lshl_b32 s{T1}, s{T1}, 7
    v_mov_b32 v8, s{T1}
L_wait_at:
    ds_read_b32 v15, v{H_CNT} offset:20
    s_waitcnt lgkmcnt(0)
    v_readfirstlane_b32 s{T0}, v15
    s_cmp_lg_u32 s{T0}, 0
    s_cbranch_scc1 L_go_at
    s_sleep 8
    s_branch L_wait_at
L_go_at:
    v_lshrrev_b32 v6, 2, v0
    v_mul_u32_u24 v3, 896, v6
    v_and_b32 v7, 3, v0
    v_lshl_add_u32 v3, v7, 4, v3
    s_lshl_b32 s{T0}, s10, 6
    s_add_u32 s12, s{S_WO}, s{T0}
    s_addc_u32 s13, s{S_WO+1}, 0
    s_lshl_b32 s11, s{S_LW}, 14
    v_bfe_u32 v6, v0, 2, 2
    v_lshl_add_u32 v6, v5, 3, v6
    v_lshlrev_b32 v6, 6, v6
    v_bfe_u32 v7, v0, 4, 1
    v_lshl_add_u32 v6, v7, 5, v6
    v_and_b32 v7, 1, v0
    v_lshl_add_u32 v6, v7, 4, v6
    v_bfe_u32 v7, v0, 1, 1
    v_lshl_add_u32 v6, v7, 3, v6
    v_add_u32 v6, s11, v6
    """)
    for rnd in range(2):
        a(f"s_mov_b32 m0, s11")
        for i in range(14):
            a("s_nop 0" if (rnd == 0 and i == 0) else "s_addc_u32 s13, s13, 0")
            a("global_load_lds_dwordx4 v3, s[12:13]")
            a(f"s_waitcnt vmcnt({E('PACE', '4') if i < 13 else 0})")
            if i < 13:
                a("s_add_u32 m0, m0, 1024")
            else:
                for k in range(14):
                    a(f"ds_read_b64_tr_b16 {vr(WOF+56*rnd+4*k,2)}, v6 offset:{1024*k}")
                    a(f"ds_read_b64_tr_b16 {vr(WOF+56*rnd+4*k+2,2)}, v6 offset:{1024*k+256}")
                if rnd == 0: a("s_waitcnt lgkmcnt(0)")
            if not (rnd == 1 and i == 13):
                a(f"s_add_u32 s12, s12, {16*896}")
    stamp(a, 8)
    poll(a, "b", 8, "22", 1, sleep=16, limit=2 if E("X_NOCONV") else SPIN_MAX)
    a(f"""
    v_lshlrev_b32 v6, 2, v4
    v_lshl_add_u32 v7, v5, 15, v6
    s_lshl_b32 s{T0}, s10, 17
    s_lshl_b32 s{T1}, s8, 7
    s_add_u32 s{T0}, s{T0}, s{T1}
    s_add_u32 s{T0}, s{T0}, {WS_BP}
    s_add_u32 s{T1}, s{T1}, {WS_GT}
    buffer_load_dword v{BR+8}, v6, {w}, s{T1} offen {LD}
    """)
    for i in range(8):
        off = (8 * (i >> 2) + (i & 3)) * 8192
        a(f"s_add_u32 s{T2}, s{T0}, {off}")
        a(f"buffer_load_dword v{BR+i}, v7, {w}, s{T2} offen {LD}")
    a(f"""
    v_mul_u32_u24 v12, 896, v4
    v_lshl_add_u32 v12, v5, 4, v12
    s_mul_i32 s{T0}, s8, {32*896}
    s_lshl_b32 s{T1}, s10, 6
    s_add_u32 s{T0}, s{T0}, s{T1}
    s_add_u32 s{S_OUT}, s{S_OUT}, s{T0}
    s_addc_u32 s{S_OUT+1}, s{S_OUT+1}, 0
L_nowo:
    v_lshlrev_b32 v2, 4, v0
    s_add_u32 s{T0}, s8, {C_O}
    s_lshl_b32 s{T0}, s{T0}, 7
    v_mov_b32 v8, s{T0}
    s_mul_i32 s12, s8, {TILE_B}
    s_add_u32 s12, s12, {WS_O}
    s_add_u32 s12, s12, s{S_LW1K}
    s_mov_b32 m0, s{S_LW1K}
    s_waitcnt vmcnt(0) lgkmcnt(0)
    """)
    stamp(a, 9)
    a(f"""
    s_barrier
    s_setprio 0
    ds_read_b32 v11, v{H_CNT} offset:16
    v_sub_f32 v{BR+9}, 1.0, v{BR+8}
    v_cvt_pk_bf16_f32 v{BR+9}, v{BR+9}, v{BR+9}
    v_and_b32 v{BR+9}, 0xffff0000, v{BR+9}
    """)
    for i in range(8):
        a(f"v_lshlrev_b32 v{BB+2*i}, 16, v{BR+i}")
        a(f"v_and_b32 v{BB+2*i+1}, 0xffff0000, v{BR+i}")
    for i in range(16):
        a(f"v_mul_f32 v{BB+i}, v{BB+i}, v{BR+9}")
    a(f"""
    s_waitcnt lgkmcnt(0)
    v_readfirstlane_b32 s{T0}, v11
    s_cmp_eq_u32 s{T0}, 0
    s_cbranch_scc1 L_nofb
    s_barrier
    s_barrier
L_nofb:
    s_barrier
    """)
    if E("GAPO"): poll2(a, "o", 8, "16", 1, int(E("GAPO")))
    else: poll(a, "o", 8, "16", 1)
    stamp(a, 10)
    for i in range(7):
        a(f"buffer_load_dwordx4 v2, {w}, s12 offen {LD} lds")
        if i < 6: a("s_add_u32 m0, m0, 4096\ns_add_u32 s12, s12, 4096")
    bars = {0: 6, 4: 4, 12: 0}
    def rd(k):
        if k in bars:
            a(f"s_waitcnt vmcnt({bars[k]})\ns_barrier")
            if k == 0: a("s_cmp_ge_u32 s10, 14\ns_cbranch_scc1 L_idle3")
        a(f"ds_read_b128 {vr(OF+4*(k%8),4)}, v2 offset:{1024*k}")
    issued = 0
    for k in range(28):
        want = 4 if k == 0 else min(28, k + 6)
        while issued < want:
            rd(issued); issued += 1
        a(f"s_waitcnt lgkmcnt({issued - k - 1})")
        a(mfma(ACC3, WOF + 4*k, OF + 4*(k%8), None if k == 0 else ACC3))
    a("s_nop 11")
    for h in range(2):
        for i in range(8*h, 8*h + 8):
            a(f"v_fmac_f32 v{BB+i}, v{BR+8}, v{ACC3+i}")
        for i in range(4*h, 4*h + 4):
            a(f"v_cvt_pk_bf16_f32 v{OF+i}, v{BB+2*i}, v{BB+2*i+1}")
        a(f"global_store_dwordx4 v12, {vr(OF+4*h,4)}, {sr(S_OUT,2)} offset:{32*h} {E('STO', '')}")
    a(endp("L_end"))
    a("L_idle3:\ns_waitcnt vmcnt(0)")
    a(endp("L_end"))

def helper_waves(a):
    w = sr(SRD_WS, 4)
    a(f"""
    s_add_u32 s{SRD_X}, s{S_X}, s58
    s_addc_u32 s{SRD_X+1}, s{S_X+1}, 0
    s_add_u32 s{SRD_W}, s{S_W}, s59
    s_addc_u32 s{SRD_W+1}, s{S_W+1}, 0
    """)
    def emit(groups, fill=None, n=0):
        if fill is not None:
            h = n * int(E("HEAD", "50")) // 100
            for x in fill[:h]: a(x)
            del fill[:h]
            n -= h
        for k, g in enumerate(groups):
            for x in g: a(x)
            if fill is not None:
                m = n * (k + 1) // len(groups) - n * k // len(groups)
                for x in fill[:m]: a(x)
                del fill[:m]
    a(f"s_setprio {E('PRH', '0')}")
    emit(dma_chunk(0))
    a(f"""
    s_lshl_b32 s{T2}, s{S_P}, 2
    s_load_dword s51, s[16:17], s{T2}
    s_load_dword s52, s[18:19], s{T2}
    s_mov_b32 s{SRD_WS}, s20
    s_mov_b32 s{SRD_WS+1}, s21
    s_mov_b32 s{SRD_WS+2}, 896
    s_mov_b32 s{SRD_WS+3}, 0x20000
    s_mov_b32 m0, {L_GATE}
    v_lshlrev_b32 v4, 4, v0
    s_lshl_b32 s{T0}, s{S_P}, 10
    s_lshl_b32 s{T1}, s{S_LW}, 8
    s_add_u32 s{T0}, s{T0}, s{T1}
    v_lshl_add_u32 v1, v0, 2, s{T0}
    buffer_load_dwordx4 v4, {w}, 0 offen lds
    global_load_dword v8, v1, s[8:9]
    global_load_dword v9, v1, s[10:11]
    global_load_dword v10, v1, s[12:13]
    global_load_dword v11, v1, s[14:15]
    """)
    for it in (1, 2): emit(dma_chunk(it))
    O0, O1, FV, FU, KA = 148, 201, 36, 68, 100
    k0, k1 = kgen_split(0, O0, True), kgen_split(1, O1, True)
    a(f"""
    s_waitcnt lgkmcnt(0)
    s_lshl_b32 s{T1}, s51, 16
    s_and_b32 s51, s51, 0xffff0000
    s_lshl_b32 s{T2}, s52, 16
    s_and_b32 s52, s52, 0xffff0000
    s_cmp_ge_u32 s{S_LW}, 2
    s_cselect_b32 s51, s51, s{T1}
    s_cselect_b32 s{S_DSK}, s52, s{T2}
    v_mov_b32 v12, s51
    v_mul_f32 v12, {f32(LOG2E)}, v12
    v_exp_f32 v12, v12
    v_and_b32 v7, 7, v0
    v_cvt_pk_bf16_f32 v12, v12, v12
    v_and_b32 v12, 0xffff0000, v12         ; dt
    v_add_f32 v13, v12, v12                ; 2 dt
    v_lshlrev_b32 v7, 2, v7
    s_waitcnt vmcnt(14)
    s_barrier                              ; B0
    """)
    stamp(a, 1)
    fill = k0[0] + k1[0]
    if E("X_NOFILL"): fill = []
    SL = [int(x) for x in E("SL", "40,40,40,40,40,60,40").split(",")]
    emit(dma_chunk(3))
    a("s_waitcnt vmcnt(15)")
    emit(dma_chunk(4), fill, SL[0])
    a("s_waitcnt vmcnt(15)\ns_barrier")
    emit(dma_chunk(5), fill, SL[1])
    a("s_waitcnt vmcnt(15)\ns_barrier")
    emit(dma_chunk(6), fill, SL[2])
    a("s_waitcnt vmcnt(15)\ns_barrier")
    emit(dma_x(1), fill, SL[3])
    a("s_waitcnt vmcnt(16)\ns_barrier")
    a(f"global_load_dword v6, v7, {sr(S_DBG,2)} sc1")
    emit(dma_x(2), fill, SL[4])
    a("s_waitcnt vmcnt(18)\ns_barrier")
    emit([[]], fill, SL[5])
    a("s_waitcnt vmcnt(13)\ns_barrier")
    stamp(a, 2)
    a(f"""
    s_mov_b32 s{T2}, 0
    s_waitcnt vmcnt(6)
L_hs:
    v_cmp_eq_u32 vcc, 0, v6
    s_cbranch_vccz L_hs_ok
    s_sleep 8
    global_load_dword v6, v7, {sr(S_DBG,2)} sc1
    s_add_u32 s{T2}, s{T2}, 1
    s_waitcnt vmcnt(0)
    s_cmp_lt_u32 s{T2}, {SPIN_MAX}
    s_cbranch_scc1 L_hs
L_hs_ok:
    s_barrier                              ; BX1
    s_setprio 1
    """)
    emit([[]], fill, SL[6])
    for ins in helper_setup(): a(ins)
    a(f"""
    s_waitcnt vmcnt(0)
    s_barrier                              ; BX2
    s_mov_b32 m0, s18
    s_cmp_ge_u32 s2, {0 if E("X_NOCONV") else 224}
    s_cbranch_scc1 L_p3
    """)
    for x in fill: a(x)
    for i in range(4):
        a(f"v_mov_b32 v{ZR+i}, 0")
    a(f"""
    v_lshl_add_u32 v6, v0, 3, s13
    ds_write_b64 v6, {vr(ZR,2)}
    v_add_u32 v6, s19, v0
    ds_write_b8 v6, v{ZR}
    """)
    def frags(base):
        return [f"ds_read_b128 {vr(base + 4*ks, 4)}, v24 offset:{32*ks}" for ks in range(8)]
    for x in k0[1] + frags(FV) + k0[2] + frags(FU): a(x)
    a(f"""
    s_mov_b64 exec, 1
    global_atomic_add v14, v{H_UTC}, v{ZR}, {sr(S_CNT,2)} sc0 sc1
    s_mov_b64 exec, -1
    """)
    for ks in range(8):
        a(f"s_waitcnt lgkmcnt({min(15, 7 + 3*ks)})")
        a(mfma(KA, FU + 4*ks, FV + 4*ks, None if ks == 0 else KA))
        for x in k1[1][4*ks:4*ks+4]: a(x)
    for x in frags(FV) + k1[2] + frags(FU): a(x)
    stamp(a, 3)
    a(f"""
    s_waitcnt vmcnt(0)
    v_readfirstlane_b32 s{T0}, v14
    s_cmp_eq_u32 s{T0}, 22
    s_cbranch_scc1 L_ok_u
    """)
    poll(a, "u", H_UTC, "22", 1)
    a(f"""
    s_add_u32 m0, s17, {L_U + 512}
    s_nop 0
    buffer_load_dwordx4 v{H_UTV}, {w}, s14 offen {LD} lds
    s_add_u32 m0, m0, 1024
    s_nop 0
    buffer_load_dwordx4 v{H_UTV}, {w}, s15 offen {LD} lds
    """)
    for ks in range(8):
        a(f"s_waitcnt lgkmcnt({7 - ks})")
        a(mfma(KA, FU + 4*ks, FV + 4*ks, KA))
    stamp(a, 4)
    a(f"""
    s_bitcmp1_b32 s{S_LW}, 0
    s_cbranch_scc0 L_even
    v_mov_b32 v15, 1
    s_nop 8
    ds_write_b128 v25, {vr(KA,4)}
    ds_write_b128 v25, {vr(KA+4,4)} offset:1024
    ds_write_b128 v25, {vr(KA+8,4)} offset:2048
    s_waitcnt lgkmcnt(0)
    s_mov_b64 exec, 1
    ds_add_u32 v{H_CNT}, v15
    s_mov_b64 exec, -1
    s_branch L_nofin
L_even:
    ds_read_b32 v15, v{H_CNT}
    s_waitcnt lgkmcnt(0)
    v_readfirstlane_b32 s{T0}, v15
    s_cmp_lt_u32 s{T0}, 2
    s_cbranch_scc1 L_even
    """)
    for k in range(3):
        a(f"ds_read_b128 {vr(60+4*k,4)}, v25 offset:{1024*k}")
    for k in range(3):
        a(f"s_waitcnt lgkmcnt({2-k})")
        for e in range(4):
            a(f"v_add_f32 v{KA+4*k+e}, v{KA+4*k+e}, v{60+4*k+e}")
    def store(nd, reg, off):
        if nd == 2:
            a(f"ds_write_b64 v{H_K2}, {vr(reg,2)} offset:{off}")
        else:
            a(f"ds_write_b128 v{H_K4}, {vr(reg,4)} offset:{off}")
    kgen_expand(a, store, KA)
    a.label("L_nofin")
    conv(a)
    a.label("L_p3")
    stamp(a, 7)
    outproj(a)

def fused():
    a = Asm()
    a(f"""
    s_load_dwordx4 s[4:7], s[0:1], 0
    s_load_dwordx2 s[22:23], s[0:1], 104
    s_load_dwordx4 s[96:99], s[0:1], 88
    s_load_dwordx8 s[8:15], s[0:1], 32
    s_load_dwordx4 s[16:19], s[0:1], 64
    s_load_dwordx2 s[20:21], s[0:1], 80
    s_load_dwordx2 s[100:101], s[0:1], 16
    s_cmp_ge_u32 s2, 256
    s_cbranch_scc1 L_quit0
    """)
    prof_begin(a)
    a(f"""
    v_lshrrev_b32 v1, 6, v0
    v_and_b32 v0, 63, v0
    s_and_b32 s{T0}, s2, 7
    v_readfirstlane_b32 s{S_WAVE}, v1
    s_lshr_b32 s{T1}, s2, 3
    s_lshl_b32 s{T2}, s{T1}, 2
    s_add_u32 s{T2}, s{T2}, s{S_WAVE}
    s_cmp_ge_u32 s{S_WAVE}, 4
    s_cselect_b32 s{T2}, 99, s{T2}
    s_cmp_ge_u32 s{T2}, (L_bad-L_pc+8191)/8192
    s_cbranch_scc1 L_nopf
    s_getpc_b64 s[48:49]
L_pc:
    s_lshl_b32 s{T2}, s{T2}, 13
    v_lshl_add_u32 v2, v0, 7, s{T2}
    v_min_u32 v2, L_bad-L_pc, v2
    global_load_dword v15, v2, s[48:49]
L_nopf:
    s_mul_i32 s{T0}, s{T0}, 31
    s_add_u32 s{T0}, s{T0}, s{T1}          ; t
    s_cmp_ge_u32 s{T1}, 31
    s_cselect_b32 s{T0}, 242, s{T0}
    s_min_u32 s{T0}, s{T0}, 242
    s_mov_b32 s{T2}, 205
    s_cmp_lt_u32 s{T0}, 110
    s_cselect_b32 s{T1}, 0, 110
    s_cselect_b32 s{T2}, s{T2}, 171
    s_cselect_b32 s{T3}, 5, 6
    s_cselect_b32 s{S_CB}, 0, 5
    s_sub_u32 s{T0}, s{T0}, s{T1}
    s_mul_i32 s{S_RB}, s{T0}, s{T2}
    s_lshr_b32 s{S_RB}, s{S_RB}, 10
    s_mul_i32 s{T1}, s{S_RB}, s{T3}
    s_sub_u32 s{T0}, s{T0}, s{T1}
    s_add_u32 s{S_CB}, s{S_CB}, s{T0}
    s_add_u32 s{S_C0}, s{S_RB}, s{S_CB}
    s_mul_i32 s{T0}, s{S_C0}, 37
    s_lshr_b32 s{T0}, s{T0}, 8
    s_mul_i32 s{T0}, s{T0}, 7
    s_sub_u32 s{S_C0}, s{S_C0}, s{T0}
    {"s_and_b32 s%d, s%d, %s" % (S_C0, S_C0, E("X_ROT")) if E("X_ROT") else ""}
    s_min_u32 s{S_P}, s2, 223
    s_and_b32 s{S_LW}, s{S_WAVE}, 3
    s_lshl_b32 s{S_LW1K}, s{S_LW}, 10
    v_lshrrev_b32 v4, 3, v0
    s_lshl_b32 s{T1}, s{S_LW}, 3
    v_add_u32 v4, s{T1}, v4
    v_lshrrev_b32 v5, 1, v4
    v_xor_b32 v5, v5, v0
    v_and_b32 v5, 7, v5
    v_mul_u32_u24 v2, 896, v4
    v_lshl_add_u32 v2, v5, 4, v2
    v_lshrrev_b32 v4, 4, v0
    v_lshlrev_b32 v5, 2, v4
    v_xor_b32 v5, v5, v0
    v_and_b32 v5, 15, v5
    s_lshl_b32 s{T1}, s{S_LW}, 2
    v_add_u32 v4, s{T1}, v4
    v_mul_u32_u24 v3, 2688, v4
    v_lshl_add_u32 v3, v5, 4, v3
    s_mov_b32 s{S_CH}, s{S_C0}
    s_mul_i32 s58, s{S_RB}, {96*896}
    s_sub_u32 s{SRD_X+2}, {X_BYTES}, s58
    s_mov_b32 s{SRD_X+3}, 0x20000
    s_lshl_b32 s59, s{S_CB}, 8
    s_sub_u32 s{SRD_W+2}, {W_BYTES}, s59
    s_mov_b32 s{SRD_W+3}, 0x20000
    s_cmp_ge_u32 s{S_RB}, 22
    s_cselect_b32 s{SRD_X+2}, 0, s{SRD_X+2}
    s_cselect_b32 s{SRD_W+2}, 0, s{SRD_W+2}
    s_waitcnt lgkmcnt(0)
    s_add_u32 s{S_CNT}, s{S_WS}, {WS_CNT}
    s_addc_u32 s{S_CNT+1}, s{S_WS+1}, 0
    s_cmp_lg_u32 s2, {ZWG}
    s_cbranch_scc1 L_nozero
    """)
    stamp(a, 3)
    a(f"""
    s_lshl_b32 s{T0}, s{S_WAVE}, 13
    v_lshl_add_u32 v4, v0, 7, s{T0}
    v_mov_b32 v5, 0
    {"global_atomic_swap v4, v5, %s sc1" % sr(S_CNT,2) if E("ZAT") else "global_store_dword v4, v5, %s sc0 sc1" % sr(S_CNT,2)}
    v_bfe_u32 v4, v0, 2, 3
    s_lshl_b32 s{T0}, s{S_WAVE}, 3
    v_add_u32 v4, s{T0}, v4
    v_mul_u32_u24 v4, {TILE_B}, v4
    v_and_b32 v5, 3, v0
    v_lshl_add_u32 v4, v5, 2, v4
    v_add_u32 v4, {WS_ONE}, v4
    v_mov_b32 v5, 0x3f803f80
    global_store_dword v4, v5, {sr(S_WS,2)} sc0 sc1
    s_lshl_b32 s{T0}, s{S_WAVE}, 2
    v_mov_b32 v6, s{T0}
    v_mov_b32 v7, 1
    s_waitcnt vmcnt(0)
    s_mov_b64 exec, 1
    global_store_dword v6, v7, {sr(S_DBG,2)} sc0 sc1
    s_mov_b64 exec, -1
    """)
    stamp(a, 4)
    a("s_waitcnt vmcnt(0)")
    stamp(a, 5)
    a(f"""
L_nozero:
    s_cmp_ge_u32 s{S_WAVE}, 4
    s_cbranch_scc0 L_gemm0
    """)
    helper_waves(a)
    a(f"""
L_quit0:
    s_endpgm
L_gemm0:
    s_setprio 2
    """)
    if E("PRE"):
        a(f"""
        v_min_u32 v4, 8, v0
        v_lshlrev_b32 v4, 21, v4
        v_add_u32 v4, 0x1f0000, v4
        s_cmp_lg_u32 s{S_WAVE}, 2
        s_cbranch_scc1 L_nopre
        global_load_dword v14, v4, {sr(S_WS,2)}
L_nopre:
        """)
    a(f"""
    v_mov_b32 v4, 0
    v_mov_b32 v5, 0
    v_lshlrev_b32 v6, 3, v0
    v_and_b32 v6, 63, v6
    v_add_u32 v6, {L_CNT}, v6
    ds_write_b64 v6, v[4:5]
    """)
    attn_setup(a)
    a("s_waitcnt vmcnt(0) lgkmcnt(0)")
    gemm_waves(a)
    attention(a)
    stamp(a, 8)
    reduce(a, True)
    a.label("L_fin")
    store_o(a)
    a.label("L_end")
    prof_end(a, 0, S_WS, S_WAVE)
    a.label("L_quit")
    a("s_endpgm")
    fallback(a)
    return a

def build():
    ref = open("cdna_kernels/%s.s.ref" % NAME).read().split("\n")
    out = "\n".join(ref[:15]) + "\n"
    out += f"; @launch grid=(256,1,1) block=(512,1,1) lds={LDS_TOTAL}\n"
    out += '.amdgcn_target "amdgcn-amd-amdhsa--gfx950"\n.text\n'
    out += kernel_head(NAME + "_kernel") + fused().text()
    out += '.section .rodata,"a"\n'
    out += kernel_desc(NAME + "_kernel", NV, 102)
    return out

if __name__ == "__main__":
    import sys
    dst = sys.argv[1] if len(sys.argv) > 1 else "cdna_kernels/%s.s" % NAME
    open(dst, "w").write(build())
```

```python
from common import *
from k1 import kgen_split, kgen_expand
E = os.environ.get

WS_CNT = 0x1100000
WS_ONE = WS_KC
WS_SIZE = 0x1200000
B_O, B_BP, B_U, B_Q = 4, 8, 12, 8192
SPIN_MAX = 4096
ZWG = 248

TAB_B = 32 * 272
L_XCH = 4 * TAB_B
PL_B = 8224
L_KC = 8 * PL_B
KC_B = 4160
L_U = L_KC + 2 * KC_B
U_B = 4608
L_RED = L_U + 2 * U_B
L_X2 = L_RED + 49152
L_X1 = L_X2 - 24576
L_GATE = L_X2 + 24576
L_CNT = L_GATE + 1024
L_MAX = L_CNT + 64
LDS_TOTAL = L_MAX + 4096
assert LDS_TOTAL <= 163840
SLOT_AT = [L_GATE - 28672 - 20480 * i for i in range(7)]
assert SLOT_AT[6] >= 0 and L_X1 >= SLOT_AT[1]

S_X, S_W = 4, 6
S_WS = 22
S_WAVE, S_RB, S_CB, S_P = 24, 25, 26, 27
SRD_X, SRD_W, SRD_WS = 28, 32, 36
T0, T1, T2, T3 = 40, 41, 42, 43
S_DSK = 44
S_LW1K = 45
S_C0 = 46
S_LW = 50
S_CT = 53
S_CH = 57
S_CNT = 60
S_H, S_QB = 62, 63
S_OUT, S_DBG, S_WO = 96, 98, 100
ST = E("ST", "sc1")
LD = "sc1"
NV = 256

def poll(a, tag, vaddr, vexp, lanes, sleep=0, limit=SPIN_MAX):
    a(f"""
    s_mov_b64 exec, {lanes}
    v_mov_b32 v15, 0
    s_mov_b32 s{T0}, 0
L_poll_{tag}:
    global_atomic_add v14, v{vaddr}, v15, {sr(S_CNT,2)} sc0 sc1
    s_add_u32 s{T0}, s{T0}, 1
    s_waitcnt vmcnt(0)
    v_cmp_ne_u32 vcc, {vexp}, v14
    s_cbranch_vccz L_ok_{tag}
    {"s_sleep %d" % sleep if sleep else ""}
    s_cmp_lt_u32 s{T0}, {limit}
    s_cbranch_scc1 L_poll_{tag}
L_ok_{tag}:
    s_mov_b64 exec, -1
    """)

def poll2(a, tag, vaddr, vexp, lanes, gap):
    at = lambda d: f"global_atomic_add v{d}, v{vaddr}, v15, {sr(S_CNT,2)} sc0 sc1"
    a(f"""
    s_mov_b64 exec, {lanes}
    v_mov_b32 v15, 0
    s_mov_b32 s{T0}, 0
    {at(14)}
L_poll_{tag}:
    s_sleep {gap}
    {at(13)}
    s_waitcnt vmcnt(1)
    v_cmp_ne_u32 vcc, {vexp}, v14
    s_cbranch_vccz L_ok_{tag}
    s_sleep {gap}
    {at(14)}
    s_add_u32 s{T0}, s{T0}, 1
    s_waitcnt vmcnt(1)
    v_cmp_ne_u32 vcc, {vexp}, v13
    s_cbranch_vccz L_ok_{tag}
    s_cmp_lt_u32 s{T0}, {SPIN_MAX}
    s_cbranch_scc1 L_poll_{tag}
L_ok_{tag}:
    s_mov_b64 exec, -1
    """)

def lds_sync(a, idx, tag, vm=True):
    a(f"""
    v_mov_b32 v15, 1
    s_waitcnt {"vmcnt(0) " if vm else ""}lgkmcnt(0)
    s_mov_b64 exec, 1
    ds_add_u32 v23, v15 offset:{4*idx}
    s_mov_b64 exec, -1
    s_branch L_spin1_{tag}
L_spin_{tag}:
    s_sleep {E("SPS", "0")}
L_spin1_{tag}:
    ds_read_b32 v15, v23 offset:{4*idx}
    s_waitcnt lgkmcnt(0)
    v_readfirstlane_b32 s{T0}, v15
    s_cmp_lt_u32 s{T0}, 4
    s_cbranch_scc1 L_spin_{tag}
    """ if E("SPS") else f"""
    v_mov_b32 v15, 1
    s_waitcnt {"vmcnt(0) " if vm else ""}lgkmcnt(0)
    s_mov_b64 exec, 1
    ds_add_u32 v23, v15 offset:{4*idx}
    s_mov_b64 exec, -1
L_spin_{tag}:
    ds_read_b32 v15, v23 offset:{4*idx}
    s_waitcnt lgkmcnt(0)
    v_readfirstlane_b32 s{T0}, v15
    s_cmp_lt_u32 s{T0}, 4
    s_cbranch_scc1 L_spin_{tag}
    """)

XA, XB, WA = 3, 10, 8
XAR = [3, 4, 5, 15]
WF, ACC, XF, PK = 16, 128, 176, 240
RING = 12
NG = int(E('NG', '4'))
SRD_R, SRD_T = 4, 92
ONES = [160 + 16*b + 8 + i for b in (3, 2, 1, 0) for i in range(8)]

def gemm_body(a, kind, tag):
    nw = 1 if kind == "gate" else 2
    GROUPS = [[0], [1, 2], [3, 4], [5, 6]]
    def soff(it):
        grp = [g_ for g_ in GROUPS if it in g_][0]
        return SLOT_AT[it] - SLOT_AT[grp[-1]]
    def rd_w(g):
        it, ks = divmod(g, 4)
        if kind == "gate":
            return [f"ds_read_b128 {vr(WF+4*g,4)}, v8 offset:{32*ks}"]
        return [f"ds_read_b64_tr_b16 {vr(WF+4*g,2)}, v8 offset:{soff(it) + ks*4096}",
                f"ds_read_b64_tr_b16 {vr(WF+4*g+2,2)}, v8 offset:{soff(it) + ks*4096+1024}"]
    def mm(g, i, x):
        w, d = WF + 4*g, ACC + 16*i
        c = None if g == 0 else d
        return mfma(d, x, w, c) if kind == "v" else mfma(d, w, x, c)
    def epi(i):
        r = []
        base = ACC + 16*i
        if kind == "gate":
            return [f"v_cvt_pk_bf16_f32 v{base}, v{base}, v{base}",
                    f"v_and_b32 v{base}, 0xffff0000, v{base}",
                    f"v_mul_f32 v{base}, {f32(-LOG2E)}, v{base}",
                    f"v_exp_f32 v{base}, v{base}", "s_nop 0",
                    f"v_add_f32 v{base}, 1.0, v{base}",
                    f"v_rcp_f32 v{base}, v{base}", "s_nop 0",
                    f"v_cvt_pk_bf16_f32 v{base}, v{base}, v{base}",
                    f"v_and_b32 v{base}, 0xffff0000, v{base}",
                    f"buffer_store_dword v{base}, v6, {sr(SRD_R,4)}, 0 offen offset:{128*i} {ST}"]
        so = ["0", "s96", "s97"][i]
        for h in range(2):
            if kind == "qk":
                r += [f"v_mul_f32 v{base+8*h+j}, s47, v{base+8*h+j}" for j in range(8)]
            r += [f"v_cvt_pk_bf16_f32 v{PK+4*h+j}, v{base+8*h+2*j}, v{base+8*h+2*j+1}" for j in range(4)]
            r.append(f"buffer_store_dwordx4 {vr(PK+4*h,4)}, v{6+h}, {sr(SRD_R,4)}, {so} offen {ST}")
        return r
    VX, VW = 252, 229
    ut = 0 if kind == "gate" else 3
    def usig(lbl):
        return f"""
            s_mov_b64 exec, s[48:49]
            s_cbranch_execz L_{lbl}_{tag}
            global_atomic_add v238, v239, {sr(S_CNT,2)} sc1
            s_mov_b32 s48, 0
L_{lbl}_{tag}:
            s_mov_b64 exec, -1"""
    for g_ in dma_chunk(1, VX, VW) + dma_chunk(2, VX, VW):
        for x in g_: a(x)
    loads = [dma_chunk(3, VX, VW) + dma_chunk(4, VX, VW),
             [[f"global_load_dword v253, v228, {sr(S_DBG,2)} sc1"]] + dma_chunk(5, VX, VW) + dma_chunk(6, VX, VW),
             dma_x(1, VX) + dma_x(2, VX), []]
    waits = [10, 10 + ut, 10, 12]
    xslot = 0
    for gi, grp in enumerate(GROUPS):
        a(f"s_waitcnt vmcnt({waits[gi]})")
        a("s_barrier")
        if gi in (0, 3): stamp(a, 1 + gi // 3)
        ld = loads[gi]
        queue, steps = [], []
        nread = 0
        order = [grp[1], grp[2], grp[0]] if False else grp
        for it in order:
            nt = 3 if it == 0 else 1
            for ks in range(4):
                g = 4*it + ks
                for r in rd_w(g): queue.append((r, None)); nread += 1
                ms = []
                for i in range(nt):
                    reg = XF + 4 * (xslot % RING)
                    queue.append((f"ds_read_b128 {vr(reg,4)}, v{XAR[ks]} offset:{soff(it) + i*4096}", xslot)); nread += 1
                    ms.append((mm(g, i, reg), xslot))
                    xslot += 1
                steps.append((nread, ms))
            if it == 0 and kind != "gate":
                for i in range(3):
                    queue.append((f"ds_read_b64_tr_b16 {vr(PK+4*i,2)}, v9 offset:{i*4096}", None))
                    queue.append((f"ds_read_b64_tr_b16 {vr(PK+4*i+2,2)}, v9 offset:{i*4096+2048}", None))
                    nread += 2
            if kind == "gate" and it < 6:
                queue[-1] = (queue[-1][0] + f"""
                s_add_u32 s{S_C0}, s{S_C0}, 1
                s_cmp_eq_u32 s{S_C0}, 7
                s_cselect_b32 s{S_C0}, 0, s{S_C0}
                s_lshl_b32 s47, s{S_C0}, 7
                v_add_u32 v8, s47, v9""", queue[-1][1])
        if gi < 3:
            upd = "".join(f"\nv_subrev_u32 v{r}, 40960, v{r}" for r in XAR + ([] if kind == "gate" else [8]))
            queue[-1] = (queue[-1][0] + upd, queue[-1][1])
        issued, freed = 0, steps[0][1][0][1]
        def issue(upto):
            nonlocal issued
            while issued < min(upto, len(queue)) and (queue[issued][1] is None or queue[issued][1] < freed + RING):
                a(queue[issued][0]); issued += 1
        prev = 0
        for si, (need, ms) in enumerate(steps):
            issue(max(need, prev + 15))
            assert issued >= need
            if si == 0:
                if gi == 2 and kind != "gate":
                    a(f"v_cmp_eq_u32 vcc, 0, v253\ns_cbranch_vccnz L_e_{tag}" + usig("e"))
                for g_ in ld[:2]:
                    for x in g_: a(x)
                ld = ld[2:]
            a(f"s_waitcnt lgkmcnt({issued - need})")
            prev = need
            if gi == 3 and si == len(steps) - 1:
                last = ms[0]
                break
            for m, xs in ms:
                a(m)
                freed = xs + 1
                issue(min(issued + 3, need + 15))
                k = 1 if gi == 0 else 2
                for g_ in ld[:k]:
                    for x in g_: a(x)
                ld = ld[k:]
        assert not ld
        assert issued == len(queue)
        if gi == 0 and kind != "gate":
            a("s_waitcnt lgkmcnt(0)")
            for i in range(3):
                a(f"buffer_store_dwordx4 {vr(PK+4*i,4)}, v14, {sr(SRD_T,4)}, {['0','s96','s97'][i]} offen {ST}")
    X0 = xslot % RING
    def rd_x(n):
        i, g = 1 + n // 24, 4 + n % 24
        return f"ds_read_b128 {vr(XF+4*((n+X0)%RING),4)}, v{XB + g%4} offset:{(i-1)*24576 + (g//4-1)*4096}"
    a("s_waitcnt vmcnt(6)\ns_barrier")
    stamp(a, 3)
    AHEAD = 8
    for n in range(AHEAD): a(rd_x(n))
    a(last[0])
    issued = AHEAD
    fill = []
    BX2 = int(E("BX2", "18"))
    for n in range(48):
        if n == BX2:
            a(f"s_waitcnt vmcnt({1 if kind == 'gate' else 2}) lgkmcnt(0)\ns_barrier")
            stamp(a, 10)
            while issued < n + AHEAD + 3:
                a(rd_x(issued)); issued += 1
        a(f"s_waitcnt lgkmcnt({issued - n - 1})")
        a(mm(4 + n % 24, 1 + n // 24, XF + 4*((n+X0) % RING)))
        lim = 24 if n < BX2 else 48
        if issued < min(lim, n + 1 + (AHEAD if n < BX2 else AHEAD + 3)):
            a(rd_x(issued)); issued += 1
        if n == 0 and kind != "gate":
            a(usig("l"))
        if n == 3: fill = epi(0)
        if n == 27: fill = epi(1)
        for x in fill[:4]: a(x)
        fill = fill[4:]
    assert issued == 48
    a("s_nop 11")
    for x in epi(2): a(x)

def gemm_waves(a):
    a(f"""
    s_lshl_b32 s{S_CT}, s{S_CB}, 2
    s_add_u32 s{S_CT}, s{S_CT}, s{S_WAVE}
    v_and_b32 v1, 31, v0
    v_lshrrev_b32 v2, 5, v0                ; hi
    v_lshrrev_b32 v3, 1, v0
    v_and_b32 v3, 7, v3
    v_xor_b32 v3, v3, v2
    v_lshlrev_b32 v10, 7, v1
    v_lshl_add_u32 v10, v3, 4, v10
    v_xor_b32 v11, 32, v10
    v_xor_b32 v12, 64, v10
    v_xor_b32 v13, 96, v10
    v_and_b32 v4, 15, v0
    v_lshrrev_b32 v5, 4, v0
    s_lshl_b32 s{T0}, s{S_WAVE}, 1
    v_lshrrev_b32 v6, 1, v5
    v_add_u32 v6, s{T0}, v6
    v_lshrrev_b32 v7, 1, v4
    v_xor_b32 v6, v6, v7
    v_lshlrev_b32 v9, 7, v4
    v_lshl_add_u32 v9, v6, 4, v9
    v_and_b32 v16, 1, v5                   ; ih
    v_lshl_add_u32 v9, v16, 3, v9
    v_add_u32 v9, {SLOT_AT[0] + 16384}, v9
    s_mul_i32 s56, s{S_RB}, {3*TILE_B}
    s_lshl_b32 s{T1}, s{S_C0}, 12
    s_add_u32 s{T1}, s{T1}, s{S_LW1K}
    s_add_u32 s{T1}, s{T1}, s56
    v_add_u32 v14, s{T1}, v{A_L16}
    s_add_u32 s{SRD_T}, s{S_WS}, {WS_UT}
    s_addc_u32 s{SRD_T+1}, s{S_WS+1}, 0
    s_mov_b32 s{SRD_T+3}, 0x20000
    s_cmp_lt_u32 s{S_CB}, 7
    s_cselect_b32 s{SRD_T+2}, {0 if E("X_NOUT") else 64*TILE_B}, 0
    s_cselect_b32 s48, 1, 0
    s_mov_b32 s49, 0
    s_lshl_b32 s{T0}, s{S_C0}, 2
    s_add_u32 s{T0}, s{T0}, s{S_WAVE}
    s_lshl_b32 s{T0}, s{T0}, 7
    s_add_u32 s{T0}, s{T0}, {B_U}
    v_mov_b32 v238, s{T0}
    v_mov_b32 v239, 1
    s_mul_i32 s{T0}, s{S_RB}, 3
    s_add_u32 s{T1}, s{T0}, 2
    s_min_u32 s{T1}, s{T1}, 63
    s_cmp_lt_u32 s{S_CT}, 14
    s_cselect_b32 s{T2}, 2, 4
    s_cselect_b32 s{T3}, 4, 2
    s_cselect_b32 s51, {B_Q}, 0
    s_lshr_b32 s{T0}, s{T0}, s{T2}
    s_lshr_b32 s{T1}, s{T1}, s{T2}
    s_cmp_eq_u32 s{T0}, s{T1}
    s_cselect_b32 s54, 3, 15
    s_mov_b32 s55, 0
    s_cmp_ge_u32 s{S_RB}, 22
    s_cselect_b32 s54, 0, s54
    s_cselect_b32 s48, 0, s48
    s_mul_i32 s{T2}, s{S_CT}, 37
    s_lshr_b32 s{T2}, s{T2}, 9
    s_mul_i32 s{T1}, s{T2}, 14
    s_sub_u32 s52, s{S_CT}, s{T1}          ; ct'
    s_mul_i32 s{T1}, s52, {8*147}
    s_lshr_b32 s{T1}, s{T1}, 10            ; (8 ct') / 7
    v_and_b32 v4, 1, v0
    v_add_u32 v4, s{T1}, v4
    v_lshlrev_b32 v4, s{T3}, v4
    v_bfe_u32 v5, v0, 1, 1
    s_mul_i32 s{T3}, s{T0}, 14             ; gate wave: first counter
    v_add3_u32 v4, v4, v5, s{T0}
    v_and_b32 v5, 63, v4
    v_lshrrev_b32 v4, 6, v4
    v_lshl_add_u32 v5, v5, 7, s51
    v_lshl_add_u32 v254, v4, 2, v5
    s_lshl_b32 s{T2}, s{T2}, 21
    s_add_u32 s{SRD_R}, s{S_WS}, s{T2}
    s_addc_u32 s{SRD_R+1}, s{S_WS+1}, 0
    s_mov_b32 s{SRD_R+2}, {64*TILE_B}
    s_mov_b32 s{SRD_R+3}, 0x20000
    s_mov_b32 s96, {TILE_B}
    s_mov_b32 s97, {2*TILE_B}
    v_bfe_u32 v4, v0, 2, 2                 ; r
    v_lshl_add_u32 v17, v2, 3, v4          ; 8 hi + r
    v_lshlrev_b32 v8, 8, v17
    v_xor_b32 v17, s{S_WAVE}, v4
    v_lshl_add_u32 v8, v17, 6, v8
    v_lshl_add_u32 v8, v16, 5, v8
    v_add_u32 v8, {SLOT_AT[0]}, v8
    v_and_b32 v17, 3, v0                   ; c
    v_add_u32 v3, {SLOT_AT[0] + 16384}, v10
    v_add_u32 v4, {SLOT_AT[0] + 16384}, v11
    v_add_u32 v5, {SLOT_AT[0] + 16384}, v12
    v_add_u32 v15, {SLOT_AT[0] + 16384}, v13
    v_add_u32 v10, {L_X1}, v10
    v_add_u32 v11, {L_X1}, v11
    v_add_u32 v12, {L_X1}, v12
    v_add_u32 v13, {L_X1}, v13
    s_cmp_ge_u32 s{S_CT}, 42
    s_cbranch_scc1 L_gate
    s_cmp_ge_u32 s{S_CT}, 28
    s_cbranch_scc1 L_v
    v_and_b32 v16, 1, v17
    v_lshrrev_b32 v17, 1, v17
    v_lshl_add_u32 v17, v16, 1, v17
    """)
    assert WS_Q == 0 and WS_K == 1 << 21 and WS_V == 2 << 21
    wa = "v_lshl_add_u32 v8, v17, 3, v8"
    a(wa)
    a(f"""
    s_cmp_ge_u32 s{S_CT}, 14
    s_cselect_b32 s47, 1.0, {f32(QSCALE)}
    s_lshl_b32 s{T1}, s52, 11
    s_add_u32 s{T0}, s56, s{T1}
    v_add_u32 v6, s{T0}, v{A_L16}
    v_add_u32 v7, 1024, v6
    """)
    gemm_body(a, "qk", "qk")
    a("s_branch L_signal")
    a.label("L_gate")
    a(f"""
    v_lshlrev_b32 v9, 4, v2
    v_add_u32 v9, {L_GATE}, v9
    s_lshl_b32 s47, s{S_C0}, 7
    v_add_u32 v8, s47, v9
    v_add_u32 v16, s{T3}, v0
    v_lshl_add_u32 v254, v16, 7, {B_BP}
    s_mov_b32 s{T0}, 0x3fff
    s_cmp_eq_u32 s54, 3
    s_cselect_b32 s54, s{T0}, 0xfffffff
    s_add_u32 s{SRD_R}, s{S_WS}, {WS_GT}
    s_addc_u32 s{SRD_R+1}, s{S_WS+1}, 0
    s_cmp_eq_u32 s{S_CT}, 42
    s_cselect_b32 s{SRD_R+2}, 8192, 0
    s_cselect_b32 s54, s54, 0
    s_mul_i32 s{T0}, s{S_RB}, {96*4}
    v_lshl_add_u32 v6, v1, 2, s{T0}
    """)
    gemm_body(a, "gate", "g")
    a("s_branch L_signal")
    a.label("L_v")
    a(wa)
    a(f"""
    s_lshl_b32 s{T0}, s52, 9
    s_add_u32 s{T0}, s{T0}, s56
    v_mul_u32_u24 v6, 7168, v2
    v_lshl_add_u32 v6, v1, 4, v6
    v_add_u32 v6, s{T0}, v6
    v_add_u32 v7, 14336, v6
    """)
    gemm_body(a, "v", "v")
    a.label("L_signal")
    stamp(a, 4)
    a(f"""
    s_setprio 0
    v_add_u32 v{A_RED}, s15, v{A_L16}
    v_add_u32 v{A_RED+1}, s16, v{A_L16}
    v_add_u32 v{A_RED+2}, s17, v{A_L16}
    """)
    a(f"""
    s_waitcnt vmcnt(0)
    s_mov_b64 exec, s[54:55]
    s_cbranch_execz L_nosig
    global_atomic_add v254, v239, {sr(S_CNT,2)} sc1
L_nosig:
    """)

Q, O, S, P, KV = 16, 48, 112, 144, 160
A_K, A_V0, A_V1, A_RED_, A_Q, A_L16, A_M0, A_M1, A_PA, A_PE, A_RR, A_OC, A_LC = 224, 225, 226, 227, 230, 231, 232, 233, 234, 235, 236, 237, 255
S_OFF = 9
A_RED = 1
S_EXV = 20

def kv_loads(b):
    r = KV + 16 * b
    w = sr(SRD_WS, 4)
    return [f"buffer_load_dwordx4 {vr(r,4)}, v{A_K}, {w}, s{S_OFF} offen {LD}",
            f"buffer_load_dwordx4 {vr(r+4,4)}, v{A_K}, {w}, s{S_OFF} offen offset:1024 {LD}",
            f"buffer_load_dwordx4 {vr(r+8,4)}, v{A_V0}, {w}, s{S_OFF} offen {LD}",
            f"buffer_load_dwordx4 {vr(r+12,4)}, v{A_V1}, {w}, s{S_OFF} offen {LD}",
            f"s_add_u32 s{S_OFF}, s{S_OFF}, {TILE_B}"]

def slot(a, n, qk, pv, post=None, first=False, mid=None, tight=False):
    sc, sn = S + 16 * (n & 1), S + 16 * ((n + 1) & 1)
    pc, pp = P + 8 * (n & 1), P + 8 * ((n + 1) & 1)
    ms = [None] * 4
    if qk is not None:
        k, q = KV + 16 * qk[0], Q + 8 * qk[1]
        ms[0] = mfma(sn, k, q, None)
        ms[1] = mfma(sn, k + 4, q + 4, sn)
    if pv is not None:
        v, o = KV + 16 * pv[0] + 8, O + 16 * pv[1]
        ms[2] = mfma(o, v, pp, None if first else o)
        ms[3] = mfma(o, v + 4, pp + 4, o)
    valu = []
    for g in range(4):
        for j in range(4):
            valu.append(f"v_exp_f32 v{sc+4*g+j}, v{sc+4*g+j}")
            if g > 0 and j == 0:
                valu.append(f"v_cvt_pk_bf16_f32 v{pc+2*g-2}, v{sc+4*g-4}, v{sc+4*g-3}")
                valu.append(f"v_cvt_pk_bf16_f32 v{pc+2*g-1}, v{sc+4*g-2}, v{sc+4*g-1}")
    valu.append(f"v_cvt_pk_bf16_f32 v{pc+6}, v{sc+12}, v{sc+13}")
    valu.append(f"v_cvt_pk_bf16_f32 v{pc+7}, v{sc+14}, v{sc+15}")
    cuts = [0, 3, 7, 10, 24] if tight else [0, 4, 10, 16, 24]
    for g in range(4):
        if g == 2 and mid:
            for e in mid: a(e)
        if ms[g]: a(ms[g])
        if post and post[g]: a(post[g])
        for x in valu[cuts[g]:cuts[g+1]]: a(x)

def red_writes(j):
    return [f"ds_write_b128 v{A_RED+j}, {vr(O+16*j+4*i,4)} offset:{1024*i}" for i in range(4)]

def attn_setup(a):
    a(f"""
    s_and_b32 s{S_H}, s2, 7
    s_lshl_b32 s{S_H}, s{S_H}, 1
    s_bfe_u32 s{T0}, s2, 0x10003
    s_add_u32 s{S_H}, s{S_H}, s{T0}
    s_lshr_b32 s{S_QB}, s2, 4
    s_mov_b32 s{SRD_WS}, s{S_WS}
    s_mov_b32 s{SRD_WS+1}, s{S_WS+1}
    s_mov_b32 s{SRD_WS+2}, {WS_SIZE}
    s_mov_b32 s{SRD_WS+3}, 0x20000
    s_mul_i32 s{T0}, s{S_H}, 7
    s_lshr_b32 s8, s{T0}, 1                ; u0
    s_mul_i32 s{S_OFF}, s{S_WAVE}, {16*TILE_B}
    s_lshl_b32 s{T2}, s8, 9
    v_lshlrev_b32 v{A_L16}, 4, v0
    v_add_u32 v{A_Q}, s{T2}, v{A_L16}
    v_add_u32 v{A_K}, {WS_K}, v{A_Q}
    v_bfe_u32 v8, v0, 2, 1
    v_bfe_u32 v9, v0, 3, 1
    v_and_b32 v10, 19, v0
    v_lshl_add_u32 v10, v8, 3, v10
    v_lshl_add_u32 v10, v9, 2, v10
    v_lshrrev_b32 v1, 5, v0                ; hi
    v_mul_u32_u24 v3, 7168, v1
    v_lshl_add_u32 v3, v10, 4, v3
    s_lshl_b32 s{T3}, s8, 7
    s_add_u32 s{T3}, s{T3}, {WS_V}
    v_add_u32 v{A_V0}, s{T3}, v3
    v_add_u32 v{A_V1}, 14336, v{A_V0}
    s_bitcmp1_b32 s{S_H}, 0
    s_mov_b32 s{S_EXV}, 0x0fffffff
    s_cselect_b32 s{S_EXV}, 0xfffffff0, s{S_EXV}
    s_cselect_b64 s[18:19], -1, 0
    s_mov_b32 s{S_EXV+1}, s{S_EXV}
    v_mov_b32 v8, {WS_ONE}
    v_cndmask_b32 v{A_V0}, v8, v{A_V0}, {sr(S_EXV,2)}
    v_cndmask_b32 v{A_V1}, v8, v{A_V1}, {sr(S_EXV,2)}
    """)
    for j in range(4):
        a(f"""
        s_add_u32 s{T3}, s{S_WAVE}, {j+1}
        s_and_b32 s{T3}, s{T3}, 3
        s_lshl_b32 s{T0}, s{S_QB}, 2
        s_add_u32 s{T0}, s{T0}, s{T3}
        s_mul_i32 s{10+j}, s{T0}, {TILE_B}
        s_mul_i32 s{T3}, s{T3}, 12288
        s_add_u32 s{T3}, s{T3}, {L_RED + (4096*j if j < 3 else 0)}
        {"s_mov_b32 s%d, s%d" % (15 + j, T3) if j < 3 else "v_add_u32 v%d, s%d, v%d" % (A_RR, T3, A_L16)}
        """)
    a(f"""
    s_lshl_b32 s3, s{T0}, 4
    s_add_u32 s3, s3, s{S_H}
    s_lshl_b32 s3, s3, 11
    s_add_u32 s3, s3, {WS_O}
    s_lshl_b32 s{T0}, s{T0}, 7
    s_add_u32 s{T0}, s{T0}, {B_O}
    v_mov_b32 v{A_OC}, s{T0}
    v_mov_b32 v{A_LC}, {L_CNT}
    v_mov_b32 v228, 0
    """)
    a(f"""
    s_and_b32 s{T0}, s{S_H}, 1
    v_cmp_lt_u32 vcc, v1, s{T0}
    v_cmp_gt_u32 s[100:101], v1, s{T0}
    s_add_u32 s{T0}, s{S_H}, 1
    s_and_b32 s{T0}, s{T0}, 6
    v_cndmask_b32 v{A_M0}, -1, 0, vcc
    v_cndmask_b32 v{A_M1}, -1, 0, s[100:101]
    s_cmp_eq_u32 s{T0}, 0
    s_cselect_b32 s{T0}, 12, 24
    s_cselect_b32 s{T1}, 2, 4
    v_mov_b32 v{A_PE}, s{T0}
    v_writelane_b32 v{A_PE}, s{T1}, 1
    s_lshl_b32 s{T0}, s{S_H}, 2
    s_add_u32 s{T0}, s{T0}, s{S_WAVE}
    s_lshl_b32 s{T0}, s{T0}, 7
    s_and_b32 s{T1}, s{S_H}, 3
    s_lshl_b32 s{T1}, s{T1}, 4
    s_add_u32 s{T1}, s{T1}, s{S_QB}
    s_lshl_b32 s{T1}, s{T1}, 7
    s_and_b32 s{T2}, s{S_H}, 12
    s_add_u32 s{T1}, s{T1}, s{T2}
    s_add_u32 s{T1}, s{T1}, {B_Q}
    v_mov_b32 v{A_PA}, s{T0}
    v_writelane_b32 v{A_PA}, s{T1}, 1
    """)

def qmask(j):
    return [f"v_and_b32 v{Q+8*j}, v{A_M0}, v{Q+8*j}", f"v_and_b32 v{Q+8*j+1}, v{A_M0}, v{Q+8*j+1}",
            f"v_and_b32 v{Q+8*j+6}, v{A_M1}, v{Q+8*j+6}", f"v_and_b32 v{Q+8*j+7}, v{A_M1}, v{Q+8*j+7}"]

def attention(a):
    w = sr(SRD_WS, 4)
    stamp(a, 5)
    if E("X_DELAY"): a("s_sleep 64")
    if E("GAPA"): poll2(a, "a", A_PA, f"v{A_PE}", 3, int(E("GAPA")))
    else: poll(a, "a", A_PA, f"v{A_PE}", 3)
    stamp(a, 6)
    def ldq(j):
        a(f"buffer_load_dwordx4 {vr(Q+8*j,4)}, v{A_Q}, {w}, s{10+j} offen {LD}")
        a(f"buffer_load_dwordx4 {vr(Q+8*j+4,4)}, v{A_Q}, {w}, s{10+j} offen offset:1024 {LD}")
    l0 = kv_loads(0)
    a(l0[0]); a(l0[1])
    ldq(0); ldq(1); ldq(2)
    for x in l0[2:]: a(x)
    ldq(3)
    a("s_waitcnt vmcnt(8)")
    for x in qmask(0): a(x)
    a("s_nop 1")
    a(mfma(S, KV, Q, None))
    l1 = kv_loads(1)
    a(l1[0])
    a(mfma(S, KV + 4, Q + 4, S))
    a(l1[1])
    a("s_waitcnt vmcnt(8)")
    for x in qmask(1): a(x)
    a("s_nop 4")
    stamp(a, 7)
    for t in range(16):
        b = t & 3
        ld = kv_loads((b + 3) & 3) if t <= 12 else [None] * 5
        for q in range(4):
            qk = (b, q + 1) if q < 3 else ((b + 1) & 3, 0)
            pv = (b, q - 1) if q > 0 else ((b - 1) & 3, 3)
            post, mid = [None] * 4, None
            if q == 0: post[0] = ld[0]
            if q == 1: post[0], post[2] = ld[1], ld[2]
            if q == 2:
                post[0], post[1] = ld[3], ld[4]
                if t < 15: post[3] = f"s_waitcnt vmcnt({8 if t <= 12 else 4 * (14 - t)})"
            first = (t == 0 and q > 0) or (t == 1 and q == 0)
            if t == 0:
                l2 = kv_loads(2)
                if q == 0:
                    pv = None
                    post = [l1[2], l1[3] + "\n" + l1[4], None, None]
                    mid = ["s_waitcnt vmcnt(8)"] + qmask(2)
                if q == 1:
                    post = [l2[0], l2[1], l2[2], l2[3] + "\n" + l2[4]]
                    mid = ["s_waitcnt vmcnt(6)"] + qmask(3)
                if q == 2:
                    post = [ld[0], ld[1], ld[2], ld[3] + "\n" + ld[4] + "\ns_waitcnt vmcnt(10)"]
                if q == 3:
                    post[3] = "s_waitcnt vmcnt(8)"
            if t == 1 and q == 3:
                post[0] = f"ds_write_b32 v{A_LC}, v239 offset:20"
            if t == 15:
                if q == 2: post = [None] + red_writes(0)[:3]
                if q == 3:
                    qk = None
                    r1 = red_writes(1)
                    post = [red_writes(0)[3], r1[0] + "\n" + r1[1], r1[2], r1[3]]
            slot(a, q, qk, pv, post, first, mid, tight=t < int(E('TIGHT', '6')))
    a("s_nop 0")
    a(mfma(O + 48, KV + 48 + 8, P + 8, O + 48))
    a(mfma(O + 48, KV + 48 + 12, P + 12, O + 48))
    a(f"""
    v_min_f32 v8, v{O}, v{O+16}
    v_max_f32 v9, v{O}, v{O+16}
    v_min_f32 v10, v{O+12}, v{O+28}
    v_max_f32 v13, v{O+12}, v{O+28}
    """)
    for x in red_writes(2): a(x)
    a(f"""
    s_mov_b32 s{T0}, {f32(2.0**-40)}
    s_mov_b32 s{T1}, {f32(2.0**40)}
    v_mov_b32 v11, {L_CNT}
    v_mov_b32 v12, 1
    v_min3_f32 v8, v8, v{O+32}, v{O+48}
    v_max3_f32 v9, v9, v{O+32}, v{O+48}
    v_min3_f32 v10, v10, v{O+44}, v{O+60}
    v_max3_f32 v13, v13, v{O+44}, v{O+60}
    v_cndmask_b32 v8, v10, v8, s[18:19]
    v_cndmask_b32 v9, v13, v9, s[18:19]
    v_cmp_le_f32 vcc, s{T0}, v8
    v_cmp_ge_f32 s[16:17], s{T1}, v9
    s_and_b64 s[16:17], s[16:17], vcc
    s_bitcmp1_b32 s{S_H}, 0
    s_cselect_b32 s16, s16, s17
    s_cmp_lg_u32 s16, {0x12345 if E("SLOW") else -1}
    s_cbranch_scc1 L_bad
L_fine:
    """)

def reduce(a, check):
    o = O + 48
    a("s_waitcnt lgkmcnt(0)\ns_barrier")
    if check:
        a("ds_read_b32 v9, v11 offset:16")
    seq = [(j, i) for i in (0, 3, 1, 2) for j in range(3)]
    for j, i in seq:
        a(f"ds_read_b128 {vr(O+16*j+4*i,4)}, v{A_RR} offset:{4096*j + 1024*i}")
    if check:
        a(f"""
        s_waitcnt lgkmcnt(12)
        v_readfirstlane_b32 s{T0}, v9
        s_cmp_lg_u32 s{T0}, 0
        s_cbranch_scc1 L_slow
        """)
    chain = [f"v_cndmask_b32 v10, v{o+12}, v{o}, s[18:19]",
             f"v_cndmask_b32 v13, v{o+12}, v{o}, s[18:19]",
             "v_permlane32_swap_b32 v10, v13",
             "v_cndmask_b32 v10, v13, v10, s[18:19]",
             "v_rcp_f32 v10, v10"]
    for k, (j, i) in enumerate(seq):
        a(f"s_waitcnt lgkmcnt({11 - k})")
        for e in (0, 2):
            a(f"v_pk_add_f32 {vr(o+4*i+e,2)}, {vr(o+4*i+e,2)}, {vr(O+16*j+4*i+e,2)}")
        if k == 5: a(chain[0]); a(chain[1])
        if k in (6, 7, 8): a(chain[k - 4])

def store_o(a):
    o = O + 48
    w = sr(SRD_WS, 4)
    for h in range(2):
        for i in range(4*h, 4*h + 4):
            a(f"v_pk_mul_f32 {vr(o+2*i,2)}, {vr(o+2*i,2)}, v[10:11] op_sel_hi:[1,0]")
        for i in range(4*h, 4*h + 4):
            a(f"v_cvt_pk_bf16_f32 v{16+i}, v{o+2*i}, v{o+2*i+1}")
        for x in qmask(0)[2*h:2*h+2]: a(x)
        a(f"buffer_store_dwordx4 {vr(16+4*h,4)}, v{A_L16}, {w}, s3 offen offset:{1024*h} {ST}")
    a("s_mov_b64 exec, 1")
    stamp(a, 9)
    a(f"""
    s_waitcnt vmcnt(0)
    global_atomic_add v{A_OC}, v12, {sr(S_CNT,2)} sc1
    """)

def fallback(a):
    M = 208
    a(f"""
L_bad:
    ds_write_b32 v11, v12 offset:16
    s_branch L_fine
L_slow:
    """)
    for j in range(4):
        a(f"v_mov_b32 v{M+j}, 0xff800000")
    l0 = kv_loads(0)
    a(f"""
    s_waitcnt lgkmcnt(0)
    s_mul_i32 s{S_OFF}, s{S_WAVE}, {16*TILE_B}
    s_mov_b32 s14, 0
L_s1:
    """)
    for x in (l0[0], l0[1], l0[4]): a(x)
    a("s_waitcnt vmcnt(0)")
    for j in range(4):
        a(mfma(S, KV, Q + 8*j, None))
        a(mfma(S, KV + 4, Q + 8*j + 4, S))
        a("s_nop 15")
        for i in range(8):
            a(f"v_max3_f32 v{M+j}, v{M+j}, v{S+2*i}, v{S+2*i+1}")
    a(f"""
    s_add_u32 s14, s14, 1
    s_cmp_lt_u32 s14, 16
    s_cbranch_scc1 L_s1
    v_lshlrev_b32 v8, 2, v0
    """)
    for j in range(4):
        a(f"""
        s_add_u32 s{T0}, s{S_WAVE}, {j+1}
        s_and_b32 s{T0}, s{T0}, 3
        s_lshl_b32 s{T0}, s{T0}, 10
        s_lshl_b32 s{T1}, s{S_WAVE}, 8
        s_add_u32 s{T1}, s{T1}, s{T0}
        s_add_u32 s{T1}, s{T1}, {L_MAX}
        v_add_u32 v9, s{T1}, v8
        ds_write_b32 v9, v{M+j}
        """)
    a(f"""
    s_waitcnt lgkmcnt(0)
    s_barrier
    v_and_b32 v8, 31, v0
    v_lshlrev_b32 v8, 2, v8
    """)
    for j in range(4):
        a(f"""
        s_add_u32 s{T0}, s{S_WAVE}, {j+1}
        s_and_b32 s{T0}, s{T0}, 3
        s_lshl_b32 s{T0}, s{T0}, 10
        s_add_u32 s{T0}, s{T0}, {L_MAX}
        v_add_u32 v9, s{T0}, v8
        """)
        for i in range(8):
            a(f"ds_read_b32 v{S+i}, v9 offset:{128*i}")
        a("s_waitcnt lgkmcnt(0)")
        for i in range(4):
            a(f"v_max3_f32 v{M+j}, v{M+j}, v{S+2*i}, v{S+2*i+1}")
    for i in range(64):
        a(f"v_mov_b32 v{O+i}, 0")
    a(f"""
    s_mul_i32 s{S_OFF}, s{S_WAVE}, {16*TILE_B}
    s_mov_b32 s14, 0
L_s2:
    """)
    for x in l0: a(x)
    a("s_waitcnt vmcnt(0)")
    for j in range(4):
        a(mfma(S, KV, Q + 8*j, None))
        a(mfma(S, KV + 4, Q + 8*j + 4, S))
        a("s_nop 15")
        for i in range(16):
            a(f"v_sub_f32 v{S+i}, v{S+i}, v{M+j}")
        for i in range(16):
            a(f"v_exp_f32 v{S+i}, v{S+i}")
        a("s_nop 0")
        for i in range(8):
            a(f"v_cvt_pk_bf16_f32 v{P+i}, v{S+2*i}, v{S+2*i+1}")
        a("s_nop 1")
        a(mfma(O + 16*j, KV + 8, P, O + 16*j))
        a(mfma(O + 16*j, KV + 12, P + 4, O + 16*j))
    a(f"""
    s_add_u32 s14, s14, 1
    s_cmp_lt_u32 s14, 16
    s_cbranch_scc1 L_s2
    s_nop 15
    """)
    for j in range(3):
        for x in red_writes(j): a(x)
    reduce(a, False)
    a("s_branch L_fin")

CA, ZR = 192, 28
H_T, H_UB, H_US, H_UTV, H_UTC, H_PL, H_BPC, H_CNT, H_K4, H_K2 = 16, 17, 18, 19, 20, 21, 22, 23, 18, 254

def next_chunk():
    return [f"s_add_u32 s{S_CH}, s{S_CH}, 1", f"s_cmp_eq_u32 s{S_CH}, 7", f"s_cselect_b32 s{S_CH}, 0, s{S_CH}"]

def dma_chunk(it, vx=2, vw=3):
    slot = SLOT_AT[it]
    g = []
    for j in range(4):
        x = [f"s_mul_i32 s58, s{S_CH}, {64*2688}", f"s_lshl_b32 s59, s{S_CH}, 7"] if j == 0 else []
        g.append(x + [f"s_add_u32 m0, s{S_LW1K}, {slot + j*4096}",
                      f"s_add_u32 s{T0}, s58, {16*j*2688}",
                      f"buffer_load_dwordx4 v{vw}, {sr(SRD_W,4)}, s{T0} offen lds"])
        if j < (3 if it == 0 else 1):
            g.append([f"s_add_u32 m0, s{S_LW1K}, {slot + 16384 + j*4096}",
                      f"s_add_u32 s{T1}, s59, {j*32*896}",
                      f"buffer_load_dwordx4 v{vx}, {sr(SRD_X,4)}, s{T1} offen lds"])
    g[-1] += next_chunk()
    return g

def dma_x(i, vx=2):
    g = []
    for it in range(1, 7):
        g.append(next_chunk() + [f"s_lshl_b32 s59, s{S_CH}, 7",
                                 f"s_add_u32 m0, s{S_LW1K}, {L_X1 + (i-1)*24576 + (it-1)*4096}",
                                 f"s_add_u32 s{T1}, s59, {i*32*896}",
                                 f"buffer_load_dwordx4 v{vx}, {sr(SRD_X,4)}, s{T1} offen lds"])
    g[-1] += next_chunk()
    return g

def helper_setup():
    t = f"""
    s_mov_b32 s{SRD_WS}, s{S_WS}
    s_mov_b32 s{SRD_WS+1}, s{S_WS+1}
    s_mov_b32 s{SRD_WS+2}, {WS_SIZE}
    s_mov_b32 s{SRD_WS+3}, 0x20000
    s_mul_i32 s18, s{S_LW}, {TAB_B}
    v_and_b32 v4, 31, v0
    v_lshrrev_b32 v5, 5, v0
    v_mul_u32_u24 v24, 272, v4
    v_lshl_add_u32 v24, v5, 4, v24
    v_add_u32 v24, s18, v24
    s_lshr_b32 s47, s{S_LW}, 1
    s_mul_i32 s{T0}, s47, 3072
    s_add_u32 s{T0}, s{T0}, {L_XCH}
    v_lshl_add_u32 v25, v0, 4, s{T0}
    v_mov_b32 v{H_CNT}, {L_CNT}
    s_lshr_b32 s{T0}, s2, 3
    s_lshl_b32 s{T0}, s{T0}, 7
    s_add_u32 s{T0}, s{T0}, {B_U}
    v_mov_b32 v{H_UTC}, s{T0}
    v_lshrrev_b32 v14, 2, v0
    v_mul_u32_u24 v14, {TILE_B}, v14
    v_and_b32 v15, 3, v0
    v_lshl_add_u32 v{H_UTV}, v15, 6, v14
    s_lshr_b32 s14, s2, 1
    s_lshl_b32 s14, s14, 8
    s_and_b32 s15, s2, 1
    s_lshl_b32 s15, s15, 1
    s_add_u32 s15, s15, s47
    s_lshl_b32 s15, s15, 4
    s_add_u32 s14, s14, s15
    s_and_b32 s16, s{S_LW}, 1
    s_mul_i32 s15, s16, {32*TILE_B}
    s_add_u32 s14, s14, s15
    s_add_u32 s14, s14, {WS_UT}
    s_add_u32 s15, s14, {16*TILE_B}
    s_mul_i32 s17, s47, {U_B}
    s_add_u32 s13, s17, {L_U}
    s_lshl_b32 s16, s16, 11
    s_add_u32 s17, s17, s16
    s_mul_i32 s19, s47, {KC_B}
    s_add_u32 s19, s19, {L_KC}
    s_add_u32 s{T0}, s19, 64
    v_lshl_add_u32 v{H_K4}, v0, 4, s{T0}
    v_lshl_add_u32 v{H_K2}, v4, 4, s{T0}
    v_lshl_add_u32 v{H_K2}, v5, 3, v{H_K2}
    v_bfe_u32 v14, v0, 4, 2
    v_lshlrev_b32 v{H_T}, 5, v14
    v_lshl_add_u32 v{H_T}, v15, 3, v{H_T}
    v_bfe_u32 v14, v0, 2, 2
    v_lshlrev_b32 v14, 3, v14
    v_sub_u32 v{H_T}, v{H_T}, v14
    s_add_u32 s{T0}, s19, {64 - 32}
    v_add_u32 v{H_T}, s{T0}, v{H_T}
    v_lshlrev_b32 v14, 4, v4
    v_lshlrev_b32 v15, 6, v5
    v_sub_u32 v14, v14, v15
    s_add_u32 s{T0}, s13, {512 - 384}
    v_add_u32 v{H_UB}, s{T0}, v14
    s_lshl_b32 s{T0}, s{S_LW}, 11
    v_lshl_add_u32 v{H_PL}, v0, 4, s{T0}
    s_lshl_b32 s12, s2, 13
    s_add_u32 s12, s12, {WS_BP}
    s_lshr_b32 s{T1}, s2, 4
    s_mul_i32 s{T0}, s{S_LW}, 14
    s_add_u32 s{T0}, s{T0}, s{T1}
    s_lshl_b32 s{T0}, s{T0}, 7
    s_add_u32 s{T0}, s{T0}, {B_BP}
    v_mov_b32 v{H_BPC}, s{T0}
    """
    return [l.strip() for l in t.split("\n") if l.strip() and not l.strip().startswith(";")]

def conv(a):
    w = sr(SRD_WS, 4)
    lds_sync(a, 1, "b")
    stamp(a, 5)
    UFR, TR, NT = 64, 32, 8
    def variant(tiles, tag):
        top = 4 * max(tiles) + 3
        def rd_t(ph):
            t = TR + 4 * (ph % NT)
            return [f"ds_read_b64_tr_b16 {vr(t,2)}, v{H_T} offset:{128*ph + 32}",
                    f"ds_read_b64_tr_b16 {vr(t+2,2)}, v{H_T} offset:{128*ph}"]
        have = set()
        need = []
        for ph in range(top + 1):
            r = rd_t(ph)
            for tau in tiles:
                b = 4 * tau - ph
                if b >= -3 and b not in have:
                    have.add(b)
                    r.append(f"ds_read_b128 {vr(UFR + 4*(b+3), 4)}, v{H_UB} offset:{128*(b+3)}")
            need.append(r)
        queue = [(ph, x) for ph in range(top + 1) for x in need[ph]]
        issued = 0
        def issue(k, maxph):
            nonlocal issued
            while k > 0 and issued < len(queue) and queue[issued][0] <= maxph:
                a(queue[issued][1]); issued += 1; k -= 1
        issue(12, 1)
        a(f"s_setprio {E('PRC', '0')}")
        done = 0
        for ph in range(top + 1):
            done += len(need[ph])
            issue(max(0, done - issued), ph)
            a(f"s_waitcnt lgkmcnt({min(15, issued - done)})")
            act = [k for k, tau in enumerate(tiles) if 4 * tau - ph >= -3]
            for k in act:
                b = 4 * tiles[k] - ph
                a(mfma(CA + 16*k, UFR + 4*(b+3), TR + 4*(ph % NT), None if ph == 0 else CA + 16*k))
                issue(min(2, 12 - (issued - done)), ph + NT - 1)
        assert issued == len(queue)
        a(f"s_setprio {E('PRE_', '1')}")
        stamp(a, 6)
        order = sorted(range(4), key=lambda k: tiles[k])
        for k in ([] if E("X_NOPL") else order):
            for r in range(16):
                a(f"ds_write_addtid_b32 v{CA+16*k+r} offset:{(r&3)*2*PL_B + 1024*tiles[k] + 256*(r>>2) + 4*(r&3)}")
    a(f"""
    s_mul_i32 m0, s47, {PL_B}
    s_bitcmp1_b32 s{S_LW}, 0
    s_cbranch_scc1 L_cB
    v_and_b32 v14, 3, v0
    v_mul_u32_u24 v14, {2*PL_B}, v14
    v_add_u32 v14, m0, v14
    ds_write_b128 v14, {vr(ZR,4)}
    """)
    variant([7, 4, 3, 0], "A")
    a("s_branch L_cC\nL_cB:")
    variant([6, 5, 2, 1], "B")
    a("L_cC:")
    if not E("NOWARM"):
        a(f"""
        s_lshr_b32 s{T0}, s2, 3
        s_lshl_b32 s{T0}, s{T0}, 2
        s_add_u32 s{T0}, s{T0}, s{S_LW}
        s_mul_i32 s{T0}, s{T0}, {28*128}
        v_min_u32 v14, 27, v0
        v_lshl_add_u32 v14, v14, 7, s{T0}
        global_load_dword v26, v14, {sr(S_WO,2)}
        """)
    lds_sync(a, 2, "c", vm=False)
    for hf in range(2):
        for pl in range(8):
            a(f"ds_read_b128 {vr(CA+32*hf+4*pl,4)}, v{H_PL} offset:{pl*PL_B + 1024*hf}")
    for hf in range(2):
        b = CA + 32*hf
        a(f"s_waitcnt lgkmcnt({8 - 8*hf})")
        for i in range(0 if E("X_NOADD") else 8):
            a(f"v_add_f32 v{b+i}, v{b+i}, v{b+8+i}")
            a(f"v_add_f32 v{b+16+i}, v{b+16+i}, v{b+24+i}")
        for i in range(0 if E("X_NOADD") else 8):
            a(f"v_add_f32 v{b+i}, v{b+i}, v{b+16+i}")
        for i in range(4):
            a(f"v_cvt_pk_bf16_f32 v{b+i}, v{b+i}, v{b+4+i}")
        a(f"buffer_store_dwordx4 {vr(b,4)}, v{H_PL}, {w}, s12 offen offset:{1024*hf} {ST}")
    lds_sync(a, 3, "d")
    a(f"""
    v_mov_b32 v15, 1
    s_mov_b64 exec, 1
    global_atomic_add v{H_BPC}, v15, {sr(S_CNT,2)} sc1
    s_mov_b64 exec, -1
    """)

def outproj(a):
    WOF, ACC3, BR, OF, BB = 32, 16, 208, 160, 192
    w = sr(SRD_WS, 4)
    a(f"""
    s_and_b32 s8, s2, 7
    s_lshl_b32 s8, s8, 3
    s_lshr_b32 s{T0}, s2, 5
    s_add_u32 s8, s8, s{T0}
    s_bfe_u32 s9, s2, 0x20003
    s_lshl_b32 s10, s9, 2
    s_add_u32 s10, s10, s{S_LW}
    s_cmp_ge_u32 s10, 14
    s_cbranch_scc1 L_nowo
    s_lshr_b32 s{T0}, s8, 4                ; quarter
    s_mul_i32 s{T1}, s{T0}, 14
    s_add_u32 s{T1}, s{T1}, s10
    s_lshl_b32 s{T1}, s{T1}, 7
    s_add_u32 s{T1}, s{T1}, {B_BP}
    v_mov_b32 v8, s{T1}
L_wait_at:
    ds_read_b32 v15, v{H_CNT} offset:20
    s_waitcnt lgkmcnt(0)
    v_readfirstlane_b32 s{T0}, v15
    s_cmp_lg_u32 s{T0}, 0
    s_cbranch_scc1 L_go_at
    s_sleep 8
    s_branch L_wait_at
L_go_at:
    v_lshrrev_b32 v6, 2, v0
    v_mul_u32_u24 v3, 896, v6
    v_and_b32 v7, 3, v0
    v_lshl_add_u32 v3, v7, 4, v3
    s_lshl_b32 s{T0}, s10, 6
    s_add_u32 s12, s{S_WO}, s{T0}
    s_addc_u32 s13, s{S_WO+1}, 0
    s_lshl_b32 s11, s{S_LW}, 14
    v_bfe_u32 v6, v0, 2, 2
    v_lshl_add_u32 v6, v5, 3, v6
    v_lshlrev_b32 v6, 6, v6
    v_bfe_u32 v7, v0, 4, 1
    v_lshl_add_u32 v6, v7, 5, v6
    v_and_b32 v7, 1, v0
    v_lshl_add_u32 v6, v7, 4, v6
    v_bfe_u32 v7, v0, 1, 1
    v_lshl_add_u32 v6, v7, 3, v6
    v_add_u32 v6, s11, v6
    """)
    for rnd in range(2):
        a(f"s_mov_b32 m0, s11")
        for i in range(14):
            a("s_nop 0" if (rnd == 0 and i == 0) else "s_addc_u32 s13, s13, 0")
            a("global_load_lds_dwordx4 v3, s[12:13]")
            a(f"s_waitcnt vmcnt({E('PACE', '4') if i < 13 else 0})")
            if i < 13:
                a("s_add_u32 m0, m0, 1024")
            else:
                for k in range(16):
                    row = 8 * ((7 * (k >> 1)) >> 1) + 16 * (k & 1)
                    a(f"ds_read_b64_tr_b16 {vr(WOF+64*rnd+4*k,2)}, v6 offset:{64*row}")
                    a(f"ds_read_b64_tr_b16 {vr(WOF+64*rnd+4*k+2,2)}, v6 offset:{64*row+256}")
                if rnd == 0: a("s_waitcnt lgkmcnt(0)")
            if not (rnd == 1 and i == 13):
                a(f"s_add_u32 s12, s12, {16*896}")
    if not E('PSTART'): stamp(a, 8)
    poll(a, "b", 8, "22", 1, sleep=16, limit=2 if E("X_NOCONV") else SPIN_MAX)
    a(f"""
    v_lshlrev_b32 v6, 2, v4
    v_lshl_add_u32 v7, v5, 15, v6
    s_lshl_b32 s{T0}, s10, 17
    s_lshl_b32 s{T1}, s8, 7
    s_add_u32 s{T0}, s{T0}, s{T1}
    s_add_u32 s{T0}, s{T0}, {WS_BP}
    s_add_u32 s{T1}, s{T1}, {WS_GT}
    buffer_load_dword v{BR+8}, v6, {w}, s{T1} offen {LD}
    """)
    for i in range(8):
        off = (8 * (i >> 2) + (i & 3)) * 8192
        a(f"s_add_u32 s{T2}, s{T0}, {off}")
        a(f"buffer_load_dword v{BR+i}, v7, {w}, s{T2} offen {LD}")
    a(f"""
    v_mul_u32_u24 v12, 896, v4
    v_lshl_add_u32 v12, v5, 4, v12
    s_mul_i32 s{T0}, s8, {32*896}
    s_lshl_b32 s{T1}, s10, 6
    s_add_u32 s{T0}, s{T0}, s{T1}
    s_add_u32 s{S_OUT}, s{S_OUT}, s{T0}
    s_addc_u32 s{S_OUT+1}, s{S_OUT+1}, 0
L_nowo:
    v_lshlrev_b32 v2, 4, v0
    s_lshl_b32 s{T0}, s8, 7
    s_add_u32 s{T0}, s{T0}, {B_O}
    v_mov_b32 v8, s{T0}
    s_lshl_b32 s12, s8, 15
    s_add_u32 s12, s12, {WS_O}
    s_add_u32 s12, s12, s{S_LW1K}
    s_mov_b32 m0, s{S_LW1K}
    s_waitcnt vmcnt(0) lgkmcnt(0)
    """)
    if not E('PSTART'): stamp(a, 9)
    a(f"""
    s_barrier
    s_setprio 0
    ds_read_b32 v11, v{H_CNT} offset:16
    v_sub_f32 v{BR+9}, 1.0, v{BR+8}
    v_cvt_pk_bf16_f32 v{BR+9}, v{BR+9}, v{BR+9}
    v_and_b32 v{BR+9}, 0xffff0000, v{BR+9}
    """)
    for i in range(8):
        a(f"v_lshlrev_b32 v{BB+2*i}, 16, v{BR+i}")
        a(f"v_and_b32 v{BB+2*i+1}, 0xffff0000, v{BR+i}")
    for i in range(16):
        a(f"v_mul_f32 v{BB+i}, v{BB+i}, v{BR+9}")
    a(f"""
    s_waitcnt lgkmcnt(0)
    v_readfirstlane_b32 s{T0}, v11
    s_cmp_eq_u32 s{T0}, 0
    s_cbranch_scc1 L_nofb
    s_barrier
    s_barrier
L_nofb:
    s_barrier
    """)
    if E("GAPO"): poll2(a, "o", 8, "16", 1, int(E("GAPO")))
    elif E("OP1"):
        a(f"s_cmp_lg_u32 s{S_LW}, 0\ns_cbranch_scc1 L_ok_o")
        poll(a, "o", 8, "16", 1)
        a("s_barrier")
    else: poll(a, "o", 8, "16", 1)
    stamp(a, 10)
    for i in range(8):
        a(f"buffer_load_dwordx4 v2, {w}, s12 offen {LD} lds")
        if i < 7: a("s_add_u32 m0, m0, 4096\ns_add_u32 s12, s12, 4096")
    bars = {0: 7, 4: 5, 12: 0}
    def rd(k):
        if k in bars:
            a(f"s_waitcnt vmcnt({bars[k]})\ns_barrier")
            if k == 0: a("s_cmp_ge_u32 s10, 14\ns_cbranch_scc1 L_idle3")
        a(f"ds_read_b128 {vr(OF+4*(k%8),4)}, v2 offset:{1024*k}")
    issued = 0
    for k in range(32):
        want = 4 if k == 0 else min(32, k + 6)
        while issued < want:
            rd(issued); issued += 1
        a(f"s_waitcnt lgkmcnt({issued - k - 1})")
        a(mfma(ACC3, WOF + 4*k, OF + 4*(k%8), None if k == 0 else ACC3))
    a("s_nop 11")
    for h in range(2):
        for i in range(8*h, 8*h + 8):
            a(f"v_fmac_f32 v{BB+i}, v{BR+8}, v{ACC3+i}")
        for i in range(4*h, 4*h + 4):
            a(f"v_cvt_pk_bf16_f32 v{OF+i}, v{BB+2*i}, v{BB+2*i+1}")
        a(f"global_store_dwordx4 v12, {vr(OF+4*h,4)}, {sr(S_OUT,2)} offset:{32*h} {E('STO', '')}")
    a(endp("L_end"))
    a("L_idle3:\ns_waitcnt vmcnt(0)")
    a(endp("L_end"))

def helper_waves(a):
    w = sr(SRD_WS, 4)
    def emit(groups, fill=None, n=0, head=50):
        if fill is not None:
            h = n * head // 100
            for x in fill[:h]: a(x)
            del fill[:h]
            n -= h
        for k, g in enumerate(groups):
            for x in g: a(x)
            if fill is not None:
                m = n * (k + 1) // len(groups) - n * k // len(groups)
                for x in fill[:m]: a(x)
                del fill[:m]
    O0, O1, FV0, FU0, FV1, FU1, KA = 148, 201, 36, 68, 148, 116, 100
    k0, k1 = kgen_split(0, O0, not E("PK0")), kgen_split(1, O1, True)
    for ins in helper_setup(): a(ins)
    a(f"""
    s_waitcnt lgkmcnt(0)
    s_lshl_b32 s{T1}, s51, 16
    s_and_b32 s51, s51, 0xffff0000
    s_lshl_b32 s{T2}, s52, 16
    s_and_b32 s52, s52, 0xffff0000
    s_cmp_ge_u32 s{S_LW}, 2
    s_cselect_b32 s51, s51, s{T1}
    s_cselect_b32 s{S_DSK}, s52, s{T2}
    v_mov_b32 v12, s51
    v_mul_f32 v12, {f32(LOG2E)}, v12
    v_exp_f32 v12, v12
    s_nop 0
    v_cvt_pk_bf16_f32 v12, v12, v12
    v_and_b32 v12, 0xffff0000, v12         ; dt
    v_add_f32 v13, v12, v12                ; 2 dt
    s_barrier                              ; B0
    s_waitcnt vmcnt(0)
    """)
    stamp(a, 1)
    fill = k0[0] + k1[0]
    SL = [int(x) for x in E("SL", "150,150,150").split(",")]
    emit([[]], fill, SL[0])
    a("s_barrier")
    emit([[]], fill, SL[1])
    a("s_barrier")
    a(f"global_load_dword v6, v7, {sr(S_DBG,2)} sc1")
    emit([[]], fill, SL[2])
    a("s_barrier")
    stamp(a, 2)
    a(f"""
    s_mov_b32 s{T2}, 0
    s_waitcnt vmcnt(0)
L_hs:
    v_cmp_eq_u32 vcc, 0, v6
    s_cbranch_vccz L_hs_ok
    s_sleep 8
    global_load_dword v6, v7, {sr(S_DBG,2)} sc1
    s_add_u32 s{T2}, s{T2}, 1
    s_waitcnt vmcnt(0)
    s_cmp_lt_u32 s{T2}, {SPIN_MAX}
    s_cbranch_scc1 L_hs
L_hs_ok:
    s_barrier                              ; BX1
    s_setprio 1
    """)
    for x in fill: a(x)
    for i in range(4):
        a(f"v_mov_b32 v{ZR+i}, 0")
    def frags(base):
        return [f"ds_read_b128 {vr(base + 4*ks, 4)}, v24 offset:{32*ks}" for ks in range(8)]
    ds = k0[1] + frags(FV0) + k0[2] + frags(FU0) + k1[1] + frags(FV1) + k1[2] + frags(FU1)
    early = int(E("DSE", "0"))
    a(f"""
    s_mov_b32 m0, s18
    v_lshl_add_u32 v6, v0, 3, s13
    ds_write_b64 v6, {vr(ZR,2)}
    v_add_u32 v6, s19, v0
    ds_write_b8 v6, v{ZR}
    """)
    for x in ds[:early]: a(x)
    a(f"""
    s_waitcnt vmcnt(0)
    s_barrier                              ; BX2
    s_cmp_ge_u32 s2, {0 if E("X_NOCONV") else 224}
    s_cbranch_scc1 L_p3
    """)
    pp = max(early, int(E("UPOLL", "0")))
    for x in ds[early:pp]: a(x)
    a(f"""
    s_mov_b64 exec, 1
    global_atomic_add v14, v{H_UTC}, v{ZR}, {sr(S_CNT,2)} sc0 sc1
    s_mov_b64 exec, -1
    """)
    for x in ds[pp:]: a(x)
    stamp(a, 3)
    for ks in range(8):
        if ks == 0: a("s_waitcnt lgkmcnt(15)")
        a(mfma(KA, FU0 + 4*ks, FV0 + 4*ks, None if ks == 0 else KA))
    a(f"""
    s_waitcnt vmcnt(0)
    v_readfirstlane_b32 s{T0}, v14
    s_cmp_eq_u32 s{T0}, 22
    s_cselect_b32 s11, 1, 0
    s_cbranch_scc0 L_u_late
    s_add_u32 m0, s17, {L_U + 512}
    s_nop 0
    buffer_load_dwordx4 v{H_UTV}, {w}, s14 offen {LD} lds
    s_add_u32 m0, m0, 1024
    s_nop 0
    buffer_load_dwordx4 v{H_UTV}, {w}, s15 offen {LD} lds
L_u_late:
    """)
    for ks in range(8):
        a(f"s_waitcnt lgkmcnt({7 - ks})")
        a(mfma(KA, FU1 + 4*ks, FV1 + 4*ks, KA))
    stamp(a, 4)
    a(f"""
    s_bitcmp1_b32 s{S_LW}, 0
    s_cbranch_scc0 L_even
    v_mov_b32 v15, 1
    s_nop 8
    ds_write_b128 v25, {vr(KA,4)}
    ds_write_b128 v25, {vr(KA+4,4)} offset:1024
    ds_write_b128 v25, {vr(KA+8,4)} offset:2048
    s_waitcnt lgkmcnt(0)
    s_mov_b64 exec, 1
    ds_add_u32 v{H_CNT}, v15
    s_mov_b64 exec, -1
    s_branch L_nofin
L_even:
    ds_read_b32 v15, v{H_CNT}
    s_waitcnt lgkmcnt(0)
    v_readfirstlane_b32 s{T0}, v15
    s_cmp_lt_u32 s{T0}, 2
    s_cbranch_scc1 L_even
    """)
    for k in range(3):
        a(f"ds_read_b128 {vr(60+4*k,4)}, v25 offset:{1024*k}")
    for k in range(3):
        a(f"s_waitcnt lgkmcnt({2-k})")
        for e in range(4):
            a(f"v_add_f32 v{KA+4*k+e}, v{KA+4*k+e}, v{60+4*k+e}")
    def store(nd, reg, off):
        if nd == 2:
            a(f"ds_write_b64 v{H_K2}, {vr(reg,2)} offset:{off}")
        else:
            a(f"ds_write_b128 v{H_K4}, {vr(reg,4)} offset:{off}")
    kgen_expand(a, store, KA)
    a(f"""
L_nofin:
    s_cmp_lg_u32 s11, 0
    s_cbranch_scc1 L_u_done
    """)
    poll(a, "u", H_UTC, "22", 1)
    a(f"""
    s_add_u32 m0, s17, {L_U + 512}
    s_nop 0
    buffer_load_dwordx4 v{H_UTV}, {w}, s14 offen {LD} lds
    s_add_u32 m0, m0, 1024
    s_nop 0
    buffer_load_dwordx4 v{H_UTV}, {w}, s15 offen {LD} lds
L_u_done:
    """)
    conv(a)
    a.label("L_p3")
    stamp(a, 7)
    outproj(a)

def fused():
    a = Asm()
    a(f"""
    s_load_dwordx4 s[4:7], s[0:1], 0
    s_load_dwordx2 s[22:23], s[0:1], 104
    s_load_dwordx4 s[96:99], s[0:1], 88
    s_load_dwordx8 s[8:15], s[0:1], 32
    s_load_dwordx4 s[16:19], s[0:1], 64
    s_load_dwordx2 s[20:21], s[0:1], 80
    s_load_dwordx2 s[100:101], s[0:1], 16
    s_cmp_ge_u32 s2, 256
    s_cbranch_scc1 L_quit0
    """)
    prof_begin(a)
    a(f"""
    v_lshrrev_b32 v1, 6, v0
    v_and_b32 v0, 63, v0
    s_and_b32 s{T0}, s2, 7
    v_readfirstlane_b32 s{S_WAVE}, v1
    s_lshr_b32 s{T1}, s2, 3
    s_lshl_b32 s{T2}, s{T1}, 2
    s_add_u32 s{T2}, s{T2}, s{S_WAVE}
    s_cmp_ge_u32 s{S_WAVE}, 4
    s_cselect_b32 s{T2}, 99, s{T2}
    s_cmp_ge_u32 s{T2}, (L_bad-L_pc+8191)/8192
    s_cbranch_scc1 L_nopf
    s_getpc_b64 s[48:49]
L_pc:
    s_lshl_b32 s{T2}, s{T2}, 13
    v_lshl_add_u32 v2, v0, 7, s{T2}
    v_min_u32 v2, L_bad-L_pc, v2
    global_load_dword v253, v2, s[48:49]
L_nopf:
    s_mul_i32 s{T0}, s{T0}, 31
    s_add_u32 s{T0}, s{T0}, s{T1}          ; t
    s_cmp_ge_u32 s{T1}, 31
    s_cselect_b32 s{T0}, 242, s{T0}
    s_min_u32 s{T0}, s{T0}, 242
    s_mov_b32 s{T2}, 205
    s_cmp_lt_u32 s{T0}, 110
    s_cselect_b32 s{T1}, 0, 110
    s_cselect_b32 s{T2}, s{T2}, 171
    s_cselect_b32 s{T3}, 5, 6
    s_cselect_b32 s{S_CB}, 0, 5
    s_sub_u32 s{T0}, s{T0}, s{T1}
    s_mul_i32 s{S_RB}, s{T0}, s{T2}
    s_lshr_b32 s{S_RB}, s{S_RB}, 10
    s_mul_i32 s{T1}, s{S_RB}, s{T3}
    s_sub_u32 s{T0}, s{T0}, s{T1}
    s_add_u32 s{S_CB}, s{S_CB}, s{T0}
    s_add_u32 s{S_C0}, s{S_RB}, s{S_CB}
    s_mul_i32 s{T0}, s{S_C0}, 37
    s_lshr_b32 s{T0}, s{T0}, 8
    s_mul_i32 s{T0}, s{T0}, 7
    s_sub_u32 s{S_C0}, s{S_C0}, s{T0}
    {"s_and_b32 s%d, s%d, %s" % (S_C0, S_C0, E("X_ROT")) if E("X_ROT") else ""}
    s_min_u32 s{S_P}, s2, 223
    s_and_b32 s{S_LW}, s{S_WAVE}, 3
    s_lshl_b32 s{S_LW1K}, s{S_LW}, 10
    v_lshrrev_b32 v4, 3, v0
    s_lshl_b32 s{T1}, s{S_LW}, 3
    v_add_u32 v4, s{T1}, v4
    v_lshrrev_b32 v5, 1, v4
    v_xor_b32 v5, v5, v0
    v_and_b32 v5, 7, v5
    v_mul_u32_u24 v2, 896, v4
    v_lshl_add_u32 v2, v5, 4, v2
    v_lshrrev_b32 v4, 4, v0
    v_lshlrev_b32 v5, 2, v4
    v_xor_b32 v5, v5, v0
    v_and_b32 v5, 15, v5
    s_lshl_b32 s{T1}, s{S_LW}, 2
    v_add_u32 v4, s{T1}, v4
    v_mul_u32_u24 v3, 2688, v4
    v_lshl_add_u32 v3, v5, 4, v3
    s_mov_b32 s{S_CH}, s{S_C0}
    s_mul_i32 s58, s{S_RB}, {96*896}
    s_sub_u32 s{SRD_X+2}, {X_BYTES}, s58
    s_mov_b32 s{SRD_X+3}, 0x20000
    s_lshl_b32 s59, s{S_CB}, 8
    s_sub_u32 s{SRD_W+2}, {W_BYTES}, s59
    s_mov_b32 s{SRD_W+3}, 0x20000
    s_cmp_ge_u32 s{S_RB}, 22
    s_cselect_b32 s{SRD_X+2}, 0, s{SRD_X+2}
    s_cselect_b32 s{SRD_W+2}, 0, s{SRD_W+2}
    s_lshl_b32 s{T2}, s{S_P}, 2
    s_lshl_b32 s{T0}, s{S_P}, 10
    s_lshl_b32 s{T1}, s{S_LW}, 8
    s_add_u32 s{T0}, s{T0}, s{T1}
    v_lshl_add_u32 v1, v0, 2, s{T0}
    s_cmp_eq_u32 s2, {ZWG}
    s_waitcnt lgkmcnt(0)
    s_cbranch_scc1 L_zero
L_nozero:
    s_add_u32 s{SRD_X}, s{S_X}, s58
    s_addc_u32 s{SRD_X+1}, s{S_X+1}, 0
    s_add_u32 s{SRD_W}, s{S_W}, s59
    s_addc_u32 s{SRD_W+1}, s{S_W+1}, 0
    s_cmp_ge_u32 s{S_WAVE}, 4
    s_cbranch_scc0 L_first
    global_load_dword v8, v1, s[8:9]
    global_load_dword v9, v1, s[10:11]
    global_load_dword v10, v1, s[12:13]
    global_load_dword v11, v1, s[14:15]
    v_mov_b32 v7, 0
        s_load_dword s51, s[16:17], s{T2}
    s_load_dword s52, s[18:19], s{T2}
    s_add_u32 s{S_CNT}, s{S_WS}, {WS_CNT}
    s_addc_u32 s{S_CNT+1}, s{S_WS+1}, 0
    s_branch L_helper
L_first:
    """)
    for g_ in dma_chunk(0):
        for x in g_: a(x)
    a(f"""
    s_mov_b32 s{SRD_WS}, s20
    s_mov_b32 s{SRD_WS+1}, s21
    s_mov_b32 s{SRD_WS+2}, 896
    s_mov_b32 s{SRD_WS+3}, 0x20000
    s_mov_b32 m0, {L_GATE}
    v_lshlrev_b32 v4, 4, v0
    buffer_load_dwordx4 v4, {sr(SRD_WS,4)}, 0 offen lds
    s_branch L_gemm0
L_zero:
    s_add_u32 s{S_CNT}, s{S_WS}, {WS_CNT}
    s_addc_u32 s{S_CNT+1}, s{S_WS+1}, 0
    """)
    stamp(a, 3)
    a(f"""
    s_lshl_b32 s{T0}, s{S_WAVE}, 11
    v_lshl_add_u32 v4, v0, 7, s{T0}
    v_mov_b32 v20, 0
    v_mov_b32 v21, 0
    v_mov_b32 v22, 0
    v_mov_b32 v23, 0
    s_mov_b64 exec, 0xffff
    global_store_dwordx4 v4, v[20:23], {sr(S_CNT,2)} sc0 sc1
    s_mov_b64 exec, -1
    s_lshl_b32 s{T0}, s{S_WAVE}, 3
    v_add_u32 v4, s{T0}, v0
    v_mul_u32_u24 v4, {TILE_B}, v4
    v_add_u32 v4, {WS_ONE}, v4
    v_mov_b32 v16, 0x3f803f80
    v_mov_b32 v17, v16
    v_mov_b32 v18, v16
    v_mov_b32 v19, v16
    s_mov_b64 exec, 0xff
    global_store_dwordx4 v4, v[16:19], {sr(S_WS,2)} sc0 sc1
    s_mov_b64 exec, -1
    v_mov_b32 v6, 0
    v_mov_b32 v7, 1
    s_waitcnt vmcnt(0)
    s_barrier
    s_cmp_lg_u32 s{S_WAVE}, 4
    s_cbranch_scc1 L_nozero
    s_mov_b64 exec, 1
    global_store_dword v6, v7, {sr(S_DBG,2)} sc0 sc1
    s_mov_b64 exec, -1
    """)
    stamp(a, 4)
    a("s_waitcnt vmcnt(0)")
    stamp(a, 5)
    a(f"""
    s_branch L_nozero
L_helper:
    """)
    helper_waves(a)
    a(f"""
L_quit0:
    s_endpgm
L_gemm0:
    s_setprio 2
    s_add_u32 s{S_CNT}, s{S_WS}, {WS_CNT}
    s_addc_u32 s{S_CNT+1}, s{S_WS+1}, 0
    v_mov_b32 v252, v2
    v_mov_b32 v229, v3
    v_mov_b32 v4, 0
    v_mov_b32 v5, 0
    v_lshlrev_b32 v6, 3, v0
    v_and_b32 v6, 63, v6
    v_add_u32 v6, {L_CNT}, v6
    ds_write_b64 v6, v[4:5]
    """)
    attn_setup(a)
    a("s_waitcnt lgkmcnt(0)")
    gemm_waves(a)
    attention(a)
    stamp(a, 8)
    reduce(a, True)
    a.label("L_fin")
    store_o(a)
    a.label("L_end")
    prof_end(a, 0, S_WS, S_WAVE)
    a.label("L_quit")
    a("s_endpgm")
    fallback(a)
    return a

def build():
    ref = open("cdna_kernels/%s.s.ref" % NAME).read().split("\n")
    out = "\n".join(ref[:15]) + "\n"
    out += f"; @launch grid=(256,1,1) block=(512,1,1) lds={LDS_TOTAL}\n"
    out += '.amdgcn_target "amdgcn-amd-amdhsa--gfx950"\n.text\n'
    out += kernel_head(NAME + "_kernel") + fused().text()
    out += '.section .rodata,"a"\n'
    out += kernel_desc(NAME + "_kernel", NV, 102)
    return out

if __name__ == "__main__":
    import sys
    dst = sys.argv[1] if len(sys.argv) > 1 else "cdna_kernels/%s.s" % NAME
    open(dst, "w").write(build())
```

```python
import gen1
from gen1 import HEAD
files = []
TAIL = """
    s_sub_u32 s20, s22, s20
    s_sub_u32 s24, s26, s24
    v_mov_b32 v1, s20
    v_mov_b32 v5, s24
    s_lshl_b32 s9, s9, 2
    v_mov_b32 v2, s9
    v_add_u32 v4, 262144, v2
    v_and_b32 v3, 63, v0
    v_cmp_eq_u32 vcc, 0, v3
    s_and_saveexec_b64 s[12:13], vcc
    global_store_dword v2, v1, s[6:7]
    global_store_dword v4, v5, s[6:7]
    s_waitcnt vmcnt(0)
    s_endpgm
.section .rodata,"a"
.p2align 6
.amdhsa_kernel mb_kernel
  .amdhsa_next_free_vgpr 128
  .amdhsa_next_free_sgpr 64
  .amdhsa_accum_offset 128
  .amdhsa_group_segment_fixed_size 0
  .amdhsa_kernarg_size 16
  .amdhsa_user_sgpr_count 2
  .amdhsa_user_sgpr_kernarg_segment_ptr 1
  .amdhsa_system_sgpr_workgroup_id_x 1
.end_amdhsa_kernel
"""
def make(fname, body, iters, rnd=True):
    s = HEAD.format(grid=256, block=256, lds=100000, wpb=4)
    s += "    v_lshlrev_b32 v2, 4, v0\n"
    for r in range(16, 128):
        s += f"    v_mov_b32 v{r}, 0\n"
    if rnd:
        for i, r in enumerate(range(80, 128, 4)):
            s += f"    global_load_dwordx4 v[8:11], v2, s[4:5]\n    v_add_u32 v2, 4096, v2\n    global_load_dwordx4 v[12:15], v2, s[4:5]\n    v_add_u32 v2, 4096, v2\n    s_waitcnt vmcnt(0)\n"
            for j in range(4):
                s += f"    v_cvt_pk_bf16_f32 v{r+j}, v{8+j}, v{12+j}\n"
    s += f"""    s_barrier
    s_mov_b32 s10, {iters}
    s_memrealtime s[24:25]
    s_memtime s[20:21]
    s_waitcnt lgkmcnt(0)
.p2align 6
L_loop:
{body}
    s_sub_u32 s10, s10, 1
    s_cmp_lg_u32 s10, 0
    s_cbranch_scc1 L_loop
    s_nop 15
    s_memtime s[22:23]
    s_memrealtime s[26:27]
    s_waitcnt lgkmcnt(0)
"""
    s += TAIL
    open(fname, "w").write(s); files.append(fname)

def body(kind, nt=16):
    out = []
    for t in range(nt):
        Sc, Sn, Pc, Pp = ((16, 32, 48, 56), (32, 16, 56, 48))[t & 1]
        K = 80 + 16 * ((t >> 2) & 1); V = K + 8; Q = 112 + 8 * (t & 1)
        if kind in ("full", "mfma"):
            ms = [[f"v_mfma_f32_32x32x16_bf16 v[{Sn}:{Sn+15}], v[{K}:{K+3}], v[{Q}:{Q+3}], 0"],
                  [f"v_mfma_f32_32x32x16_bf16 v[{Sn}:{Sn+15}], v[{K+4}:{K+7}], v[{Q+4}:{Q+7}], v[{Sn}:{Sn+15}]"],
                  [f"v_mfma_f32_32x32x16_bf16 v[64:79], v[{V}:{V+3}], v[{Pp}:{Pp+3}], v[64:79]"],
                  [f"v_mfma_f32_32x32x16_bf16 v[64:79], v[{V+4}:{V+7}], v[{Pp+4}:{Pp+7}], v[64:79]"]]
        elif kind == "full16":
            ms = [[f"v_mfma_f32_16x16x32_bf16 v[{Sn}:{Sn+3}], v[{K}:{K+3}], v[{Q}:{Q+3}], 0",
                   f"v_mfma_f32_16x16x32_bf16 v[{Sn+4}:{Sn+7}], v[{K+4}:{K+7}], v[{Q}:{Q+3}], 0"],
                  [f"v_mfma_f32_16x16x32_bf16 v[{Sn+8}:{Sn+11}], v[{K}:{K+3}], v[{Q+4}:{Q+7}], 0",
                   f"v_mfma_f32_16x16x32_bf16 v[{Sn+12}:{Sn+15}], v[{K+4}:{K+7}], v[{Q+4}:{Q+7}], 0"],
                  [f"v_mfma_f32_16x16x32_bf16 v[64:67], v[{V}:{V+3}], v[{Pp}:{Pp+3}], v[64:67]",
                   f"v_mfma_f32_16x16x32_bf16 v[68:71], v[{V+4}:{V+7}], v[{Pp}:{Pp+3}], v[68:71]"],
                  [f"v_mfma_f32_16x16x32_bf16 v[72:75], v[{V}:{V+3}], v[{Pp+4}:{Pp+7}], v[72:75]",
                   f"v_mfma_f32_16x16x32_bf16 v[76:79], v[{V+4}:{V+7}], v[{Pp+4}:{Pp+7}], v[76:79]"]]
        else:
            ms = [[], [], [], []]
        for g in range(4):
            if ms[g]: out.append(ms[g][0])
            for j in range(4):
                r = Sc + 4*g + j
                if kind == "mfma":
                    out.append("s_nop 1")
                elif kind == "valu":
                    out.append(f"v_exp_f32 v{r}, v{80+(r+t)%40}")
                else:
                    out.append(f"v_exp_f32 v{r}, v{r}")
                if j == 1 and len(ms[g]) > 1: out.append(ms[g][1])
                if g > 0 and j == 0 and kind != "mfma":
                    gg = g - 1
                    out.append(f"v_cvt_pk_bf16_f32 v{Pc+2*gg}, v{Sc+4*gg}, v{Sc+4*gg+1}")
                    out.append(f"v_cvt_pk_bf16_f32 v{Pc+2*gg+1}, v{Sc+4*gg+2}, v{Sc+4*gg+3}")
        if kind != "mfma":
            out.append(f"v_cvt_pk_bf16_f32 v{Pc+6}, v{Sc+12}, v{Sc+13}")
            out.append(f"v_cvt_pk_bf16_f32 v{Pc+7}, v{Sc+14}, v{Sc+15}")
    return "\n".join("    " + x for x in out)
for kind in ("full", "full16", "valu", "mfma"):
    for it in (4, 16):
        make(f"clk_{kind}_{it}.s", body(kind), it)
make("clk_full_zero_4.s", body("full"), 4, rnd=False)
print(" ".join(files))
```

```python
import gen1, gen11
from gen1 import HEAD
files = []
def make(fname, burn_before, burn_between, st="sc1", kind="global"):
    s = HEAD.format(grid=256, block=256, lds=100000, wpb=4)
    s += """
    v_and_b32 v3, 63, v0
    v_lshlrev_b32 v2, 4, v3
    v_mov_b32 v20, 0x9e3779b1
    v_add_u32 v21, s9, v0
    v_mul_lo_u32 v21, v21, v20
"""
    for i in range(40):
        s += f"    v_mul_lo_u32 v21, v21, v20\n    v_add_u32 v21, 12345, v21\n    v_lshrrev_b32 v22, 7, v21\n    v_xor_b32 v22, v22, v21\n    v_and_b32 v22, 0xbfffbfff, v22\n    v_and_b32 v{24+i}, 0xdfffdfff, v22\n"
    s += """    s_mul_i32 s14, s9, 6144
    v_add_u32 v6, s14, v2
    v_add_u32 v7, 1024, v6
    s_mov_b32 s40, 2048
    s_mov_b32 s44, s4
    s_mov_b32 s45, s5
    s_mov_b32 s46, 0x1000000
    s_mov_b32 s47, 0x20000
    s_memrealtime s[32:33]
    s_waitcnt lgkmcnt(0)
    s_add_u32 s34, s32, 300
    s_or_b32 s34, s34, 1023
L_al:
    s_memrealtime s[32:33]
    s_waitcnt lgkmcnt(0)
    s_sub_u32 s35, s32, s34
    s_cmp_lt_i32 s35, 0
    s_cbranch_scc1 L_al
"""
    def burn(n):
        return "".join(f"    v_mfma_f32_32x32x16_bf16 v[64:79], v[{24+4*(i%10)}:{27+4*(i%10)}], v[{24+4*((i*3+1)%10)}:{27+4*((i*3+1)%10)}], v[64:79]\n" for i in range(n))
    s += burn(burn_before)
    s += "    s_memrealtime s[24:25]\n    s_memtime s[20:21]\n    s_waitcnt lgkmcnt(0)\n"
    for i in range(3):
        if kind == "global":
            s += f"    global_store_dwordx4 v6, v[{24+8*i}:{27+8*i}], s[4:5] {st}\n    global_store_dwordx4 v7, v[{28+8*i}:{31+8*i}], s[4:5] {st}\n"
        else:
            s += f"    buffer_store_dwordx4 v[{24+8*i}:{27+8*i}], v6, s[44:47], 0 offen {st}\n    buffer_store_dwordx4 v[{28+8*i}:{31+8*i}], v7, s[44:47], 0 offen {st}\n"
        s += "    v_add_u32 v6, s40, v6\n    v_add_u32 v7, s40, v7\n"
        if i < 2: s += burn(burn_between)
    s += "    s_waitcnt vmcnt(0)\n    s_memtime s[22:23]\n    s_memrealtime s[26:27]\n    s_waitcnt lgkmcnt(0)\n"
    s += gen11.TAIL
    open(fname, "w").write(s); files.append(fname)
make("wb_0_0.s", 0, 0)
make("wb_60_0.s", 60, 0)
make("wb_60_24.s", 60, 24)
make("wb_0_24.s", 0, 24)
make("wb_0_0_buf.s", 0, 0, kind="buffer")
print(" ".join(files))
```

```python
import math, struct

NAME = "gated_mix__mha_block__ssm_conv_s4d__prompt"

TILE_B = 28672
WS_Q  = 0x000000
WS_K  = 0x200000
WS_V  = 0x400000
WS_UT = 0x600000
WS_KC = 0x800000
WS_GT = 0xA00000
WS_O  = 0xC00000
WS_BP = 0xE00000

X_BYTES = 2048 * 896
W_BYTES = 448 * 2688
WO_BYTES = 448 * 896

def f32(x):
    return "0x%08x" % struct.unpack("<I", struct.pack("<f", x))[0]

LOG2E = math.log2(math.e)
QSCALE = (28 ** -0.5) * LOG2E

class Asm:
    def __init__(self):
        self.lines = []
    def __call__(self, s):
        for l in s.split("\n"):
            l = l.strip()
            if l:
                self.lines.append(l if l.endswith(":") else "    " + l)
    def label(self, n):
        self.lines.append(n + ":")
    def extend(self, other):
        self.lines.extend(other.lines if isinstance(other, Asm) else other)
    def text(self):
        return "\n".join(self.lines) + "\n"

def vr(b, n=1):
    return f"v{b}" if n == 1 else f"v[{b}:{b+n-1}]"
def sr(b, n=1):
    return f"s{b}" if n == 1 else f"s[{b}:{b+n-1}]"

def mfma(d, a, b, c=None):
    cs = "0" if c is None else vr(c, 16)
    return f"v_mfma_f32_32x32x16_bf16 {vr(d,16)}, {vr(a,4)}, {vr(b,4)}, {cs}"

def kernel_head(label):
    return f""".globl {label}
.p2align 8
.type {label},@function
{label}:
"""

def kernel_desc(label, nv, ns=96):
    nv4 = (nv + 3) // 4 * 4
    return f""".p2align 6
.amdhsa_kernel {label}
  .amdhsa_next_free_vgpr {nv}
  .amdhsa_next_free_sgpr {ns}
  .amdhsa_accum_offset {nv4}
  .amdhsa_group_segment_fixed_size 0
  .amdhsa_kernarg_size 112
  .amdhsa_user_sgpr_count 2
  .amdhsa_user_sgpr_kernarg_segment_ptr 1
  .amdhsa_system_sgpr_workgroup_id_x 1
.end_amdhsa_kernel
"""

import os
PROF = os.environ.get('PROF') == '1'
WS_PROF = 0x1000000
def stamp(a, i):
    if PROF:
        a(f"{'s_memtime' if os.environ.get('CYC') else 's_memrealtime'} s[{64+2*i}:{65+2*i}]\ns_waitcnt lgkmcnt(0)")
def prof_begin(a):
    if PROF:
        a("s_memrealtime s[88:89]\ns_memtime s[64:65]")
        for i in range(1, 12):
            a(f"s_mov_b32 s{64+2*i}, 0")
def prof_end(a, kern, s_ws, s_wave):
    if PROF and os.environ.get("AMP"):
        wv, st = os.environ["AMP"].split(",")
        reg = 90 if st == "e" else 64 + 2 * int(st)
        a(f"""
        s_memrealtime s[90:91]
        s_waitcnt lgkmcnt(0)
        s_cmp_lg_u32 s2, {os.environ.get("AMPWG", "100")}
        s_cbranch_scc1 L_quit
        s_cmp_lg_u32 s{s_wave}, {wv}
        s_cbranch_scc1 L_quit
        s_sub_u32 s92, s{reg}, s88
        s_mul_i32 s92, s92, 10
        s_add_u32 s92, s92, s90
L_amp:
        s_sleep 8
        s_memrealtime s[90:91]
        s_waitcnt lgkmcnt(0)
        s_sub_u32 s93, s90, s92
        s_cmp_lt_i32 s93, 0
        s_cbranch_scc1 L_amp
        """)
        return
    if PROF:
        a(f"""
        s_memtime s[86:87]
        s_memrealtime s[90:91]
        s_waitcnt lgkmcnt(0)
        s_mov_b64 exec, 1
        """)
        if os.environ.get("DBGPROF"):
            a(f"s_cmp_ge_u32 s{s_wave}, 4\ns_cselect_b32 s92, 64, 0\nv_mov_b32 v60, s92\ns_not_b32 s92, s88\nv_mov_b32 v61, s92\nglobal_atomic_umax v60, v61, s[98:99] offset:8")
            a("v_mov_b32 v61, s88\nglobal_atomic_umax v60, v61, s[98:99] offset:12")
            for k, i in enumerate([1, 3, 5, 6, 7, 8, 9]):
                a(f"v_mov_b32 v61, s{64+2*i}\nglobal_atomic_umax v60, v61, s[98:99] offset:{16+4*k}")
            a("v_mov_b32 v60, 0\nv_mov_b32 v61, s90\nglobal_atomic_umax v60, v61, s[98:99] offset:44")
        a(f"""
        s_mov_b64 exec, 0xffff
        s_lshl_b32 s92, s2, 3
        s_add_u32 s92, s92, s{s_wave}
        s_lshl_b32 s92, s92, 6
        s_add_u32 s92, s92, {WS_PROF + kern * 256 * 8 * 64}
        v_lshl_add_u32 v60, v0, 2, s92
        """)
        for i in range(12):
            a(f"v_writelane_b32 v61, s{64+2*i}, {i}")
        a("v_writelane_b32 v61, s88, 12\nv_writelane_b32 v61, s90, 13")
        a("s_getreg_b32 s92, hwreg(HW_REG_HW_ID)\nv_writelane_b32 v61, s92, 14")
        a("s_getreg_b32 s92, hwreg(HW_REG_XCC_ID)\nv_writelane_b32 v61, s92, 15")
        a(f"global_store_dword v60, v61, s[{s_ws}:{s_ws+1}]")

def endp(lbl):
    return f"s_branch {lbl}" if PROF else "s_endpgm"
```

```python
from common import *
from k1 import kgen_split, kgen_expand
E = os.environ.get

WS_CNT = 0x1100000
WS_ONE = WS_KC
WS_SIZE = 0x1200000
QL = int(E('QL', '6'))
CS = int(E('CS', '8'))
B_O, B_BP, B_U, B_Q = 4, 8, (12 if QL == 6 else 64 << CS), ((64 if QL == 6 else 96) << CS)
KVR = int(E('KVR', '1'))
REPM = sum(1 << (4 * i) for i in range(KVR))
B_R = B_Q + ((1 << QL) << CS) - (64 << CS)
NLINE = (B_Q >> CS) + (1 << QL) + 64 * (KVR - 1)
SPIN_MAX = 4096
ZWG = 248

TAB_B = 32 * 272
L_XCH = 4 * TAB_B
PL_B = 8224
L_KC = 8 * PL_B
KC_B = 4160
L_U = L_KC + 2 * KC_B
U_B = 4608
L_RED = L_U + 2 * U_B
L_X2 = L_RED + 49152
L_X1 = L_X2 - 24576
L_GATE = L_X2 + 24576
L_CNT = L_GATE + 1024
L_MAX = L_CNT + 64
LDS_TOTAL = L_MAX + 4096
assert LDS_TOTAL <= 163840
SLOT_AT = [L_GATE - 28672 - 20480 * i for i in range(7)]
assert SLOT_AT[6] >= 0 and L_X1 >= SLOT_AT[1]

S_X, S_W = 4, 6
S_WS = 22
S_WAVE, S_RB, S_CB, S_P = 24, 25, 26, 27
SRD_X, SRD_W, SRD_WS = 28, 32, 36
T0, T1, T2, T3 = 40, 41, 42, 43
S_DSK = 44
S_LW1K = 45
S_C0 = 46
S_LW = 50
S_CT = 53
S_CH = 57
S_CNT = 60
S_H, S_QB = 62, 63
S_OUT, S_DBG, S_WO = 96, 98, 100
ST = E("ST", "sc1")
LD = "sc1"
NV = 256

def poll(a, tag, vaddr, vexp, lanes, sleep=0, limit=SPIN_MAX):
    first = f"s_branch L_poll1_{tag}" if sleep else ""
    a(f"""
    s_mov_b64 exec, {lanes}
    v_mov_b32 v15, 0
    s_mov_b32 s{T0}, 0
    {first}
L_poll_{tag}:
    {"s_sleep %d" % sleep if sleep else ""}
L_poll1_{tag}:
    global_atomic_add v14, v{vaddr}, v15, {sr(S_CNT,2)} sc0 sc1
    s_add_u32 s{T0}, s{T0}, 1
    s_cmp_ge_u32 s{T0}, {limit}
    s_cbranch_scc1 L_give_{tag}
    s_waitcnt vmcnt(0)
    v_cmp_ne_u32 vcc, {vexp}, v14
    s_cbranch_vccnz L_poll_{tag}
L_give_{tag}:
L_ok_{tag}:
    s_mov_b64 exec, -1
    """)

def poll2(a, tag, vaddr, vexp, lanes, gap):
    at = lambda d: f"global_atomic_add v{d}, v{vaddr}, v15, {sr(S_CNT,2)} sc0 sc1"
    a(f"""
    s_mov_b64 exec, {lanes}
    v_mov_b32 v15, 0
    s_mov_b32 s{T0}, 0
    {at(14)}
L_poll_{tag}:
    s_sleep {gap}
    {at(13)}
    s_waitcnt vmcnt(1)
    v_cmp_ne_u32 vcc, {vexp}, v14
    s_cbranch_vccz L_ok_{tag}
    s_sleep {gap}
    {at(14)}
    s_add_u32 s{T0}, s{T0}, 1
    s_waitcnt vmcnt(1)
    v_cmp_ne_u32 vcc, {vexp}, v13
    s_cbranch_vccz L_ok_{tag}
    s_cmp_lt_u32 s{T0}, {SPIN_MAX}
    s_cbranch_scc1 L_poll_{tag}
L_ok_{tag}:
    s_mov_b64 exec, -1
    """)

def lds_sync(a, idx, tag, vm=True):
    a(f"""
    v_mov_b32 v15, 1
    s_waitcnt {"vmcnt(0) " if vm else ""}lgkmcnt(0)
    s_mov_b64 exec, 1
    ds_add_u32 v23, v15 offset:{4*idx}
    s_mov_b64 exec, -1
    s_branch L_spin1_{tag}
L_spin_{tag}:
    s_sleep {E("SPS", "0")}
L_spin1_{tag}:
    ds_read_b32 v15, v23 offset:{4*idx}
    s_waitcnt lgkmcnt(0)
    v_readfirstlane_b32 s{T0}, v15
    s_cmp_lt_u32 s{T0}, 4
    s_cbranch_scc1 L_spin_{tag}
    """ if E("SPS") else f"""
    v_mov_b32 v15, 1
    s_waitcnt {"vmcnt(0) " if vm else ""}lgkmcnt(0)
    s_mov_b64 exec, 1
    ds_add_u32 v23, v15 offset:{4*idx}
    s_mov_b64 exec, -1
L_spin_{tag}:
    ds_read_b32 v15, v23 offset:{4*idx}
    s_waitcnt lgkmcnt(0)
    v_readfirstlane_b32 s{T0}, v15
    s_cmp_lt_u32 s{T0}, 4
    s_cbranch_scc1 L_spin_{tag}
    """)

XA, XB, WA = 3, 10, 8
XAR = [3, 4, 5, 15]
WF, ACC, XF, PK = 16, 128, 176, 240
RING = 12
NX = int(E('NX', '0'))
NG = int(E('NG', '4'))
SRD_R, SRD_T = 4, 92
ONES = [160 + 16*b + 8 + i for b in (3, 2, 1, 0) for i in range(8)]

def gemm_body(a, kind, tag):
    nw = 1 if kind == "gate" else 2
    GROUPS = [[0], [1, 2], [3, 4], [5, 6]]
    def soff(it):
        grp = [g_ for g_ in GROUPS if it in g_][0]
        return SLOT_AT[it] - SLOT_AT[grp[-1]]
    def rd_w(g):
        it, ks = divmod(g, 4)
        if kind == "gate":
            return [f"ds_read_b128 {vr(WF+4*g,4)}, v8 offset:{32*ks}"]
        return [f"ds_read_b64_tr_b16 {vr(WF+4*g,2)}, v8 offset:{soff(it) + ks*4096}",
                f"ds_read_b64_tr_b16 {vr(WF+4*g+2,2)}, v8 offset:{soff(it) + ks*4096+1024}"]
    def mm(g, i, x):
        w, d = WF + 4*g, ACC + 16*i
        c = None if g == 0 else d
        return mfma(d, x, w, c) if kind == "v" else mfma(d, w, x, c)
    def epi(i):
        r = []
        base = ACC + 16*i
        if kind == "gate":
            return [f"v_cvt_pk_bf16_f32 v{base}, v{base}, v{base}",
                    f"v_and_b32 v{base}, 0xffff0000, v{base}",
                    f"v_mul_f32 v{base}, {f32(-LOG2E)}, v{base}",
                    f"v_exp_f32 v{base}, v{base}", "s_nop 0",
                    f"v_add_f32 v{base}, 1.0, v{base}",
                    f"v_rcp_f32 v{base}, v{base}", "s_nop 0",
                    f"v_cvt_pk_bf16_f32 v{base}, v{base}, v{base}",
                    f"v_and_b32 v{base}, 0xffff0000, v{base}",
                    f"buffer_store_dword v{base}, v6, {sr(SRD_R,4)}, 0 offen offset:{128*i} {ST}"]
        so = ["0", "s96", "s97"][i]
        for h in range(2):
            if kind == "qk":
                r += [f"v_mul_f32 v{base+8*h+j}, s47, v{base+8*h+j}" for j in range(8)]
            r += [f"v_cvt_pk_bf16_f32 v{PK+4*h+j}, v{base+8*h+2*j}, v{base+8*h+2*j+1}" for j in range(4)]
            r.append(f"buffer_store_dwordx4 {vr(PK+4*h,4)}, v{6+h}, {sr(SRD_R,4)}, {so} offen {ST}")
        return r
    VX, VW = 252, 229
    ut = 0 if kind == "gate" else 3
    def usig(lbl):
        return f"""
            s_mov_b64 exec, s[48:49]
            s_cbranch_execz L_{lbl}_{tag}
            global_atomic_add v238, v239, {sr(S_CNT,2)} sc1
            s_mov_b32 s48, 0
L_{lbl}_{tag}:
            s_mov_b64 exec, -1"""
    if E("PB"): stamp(a, 8)
    for g_ in dma_chunk(1, VX, VW) + dma_chunk(2, VX, VW):
        for x in g_: a(x)
    if E("PB"): stamp(a, 9)
    loads = [dma_chunk(3, VX, VW) + dma_chunk(4, VX, VW),
             [[f"global_load_dword v253, v228, {sr(S_DBG,2)} sc1"]] + dma_chunk(5, VX, VW) + dma_chunk(6, VX, VW),
             None, None]
    xs_ = dma_x(1, VX) + dma_x(2, VX)
    loads[2], loads[3] = xs_[:NX], []
    waits = [10, 10 + ut, 10, NX + (0 if kind == 'gate' else 1)]
    xslot = 0
    for gi, grp in enumerate(GROUPS):
        a(f"s_waitcnt vmcnt({waits[gi]})" + (" lgkmcnt(0)" if gi == 0 else ""))
        a("s_barrier")
        if gi in (0, 3): stamp(a, 1 + gi // 3)
        if E('PA') and not E('PB') and gi in (1, 2): stamp(a, 7 + gi)
        ld = loads[gi]
        queue, steps = [], []
        nread = 0
        order = [grp[1], grp[2], grp[0]] if False else grp
        for it in order:
            nt = 3 if it == 0 else 1
            for ks in range(4):
                g = 4*it + ks
                for r in rd_w(g): queue.append((r, None)); nread += 1
                ms = []
                for i in range(nt):
                    reg = XF + 4 * (xslot % RING)
                    queue.append((f"ds_read_b128 {vr(reg,4)}, v{XAR[ks]} offset:{soff(it) + i*4096}", xslot)); nread += 1
                    ms.append((mm(g, i, reg), xslot))
                    xslot += 1
                steps.append((nread, ms))
            if it == 0 and kind != "gate":
                for i in range(3):
                    queue.append((f"ds_read_b64_tr_b16 {vr(PK+4*i,2)}, v9 offset:{i*4096}", None))
                    queue.append((f"ds_read_b64_tr_b16 {vr(PK+4*i+2,2)}, v9 offset:{i*4096+2048}", None))
                    nread += 2
            if kind == "gate" and it < 6:
                queue[-1] = (queue[-1][0] + f"""
                s_add_u32 s{S_C0}, s{S_C0}, 1
                s_cmp_eq_u32 s{S_C0}, 7
                s_cselect_b32 s{S_C0}, 0, s{S_C0}
                s_lshl_b32 s47, s{S_C0}, 7
                v_add_u32 v8, s47, v9""", queue[-1][1])
        if gi < 3:
            upd = "".join(f"\nv_subrev_u32 v{r}, 40960, v{r}" for r in XAR + ([] if kind == "gate" else [8]))
            queue[-1] = (queue[-1][0] + upd, queue[-1][1])
        issued, freed = 0, steps[0][1][0][1]
        def issue(upto):
            nonlocal issued
            while issued < min(upto, len(queue)) and (queue[issued][1] is None or queue[issued][1] < freed + RING):
                a(queue[issued][0]); issued += 1
        prev = 0
        for si, (need, ms) in enumerate(steps):
            issue(max(need, prev + 15))
            assert issued >= need
            if si == 0:
                if gi == 2 and kind != "gate":
                    a(f"""
                    v_readfirstlane_b32 s{T2}, v253
                    s_and_b32 s{T2}, s{T2}, s48
                    s_sub_u32 s48, s48, s{T2}
                    v_mov_b32 v253, s{T2}
                    s_mov_b64 exec, 1
                    global_atomic_add v238, v253, {sr(S_CNT,2)} sc1
                    s_mov_b64 exec, -1
                    """)
                for g_ in ld[:2]:
                    for x in g_: a(x)
                ld = ld[2:]
            a(f"s_waitcnt lgkmcnt({issued - need})")
            prev = need
            if gi == 3 and si == len(steps) - 1:
                last = ms[0]
                break
            for m, xs in ms:
                a(m)
                freed = xs + 1
                issue(min(issued + 3, need + 15))
                k = 1 if gi == 0 else 2
                for g_ in ld[:k]:
                    for x in g_: a(x)
                ld = ld[k:]
        assert not ld
        assert issued == len(queue)
        if gi == 0 and kind != "gate":
            a("s_waitcnt lgkmcnt(0)")
            for i in range(3):
                a(f"buffer_store_dwordx4 {vr(PK+4*i,4)}, v14, {sr(SRD_T,4)}, {['0','s96','s97'][i]} offen {ST}")
    X0 = xslot % RING
    def rd_x(n):
        i, g = 1 + n // 24, 4 + n % 24
        return f"ds_read_b128 {vr(XF+4*((n+X0)%RING),4)}, v{XB + g%4} offset:{(i-1)*24576 + (g//4-1)*4096}"
    if NX: a(f"s_waitcnt vmcnt({NX - 6})")
    a("s_barrier")
    stamp(a, 3)
    AHEAD = 8
    for n in range(AHEAD): a(rd_x(n))
    a(last[0])
    issued = AHEAD
    fill = []
    BX2 = int(E("BX2", "18"))
    for n in range(48):
        if n == BX2:
            if NX == 12: a(f"s_waitcnt vmcnt({1 if kind == 'gate' else 2})")
            a(f"s_waitcnt lgkmcnt(0)\ns_barrier")
            if not E('PB'): stamp(a, 10)
            while issued < n + AHEAD + 3:
                a(rd_x(issued)); issued += 1
        a(f"s_waitcnt lgkmcnt({issued - n - 1})")
        a(mm(4 + n % 24, 1 + n // 24, XF + 4*((n+X0) % RING)))
        lim = 24 if n < BX2 else 48
        if issued < min(lim, n + 1 + (AHEAD if n < BX2 else AHEAD + 3)):
            a(rd_x(issued)); issued += 1
        if n == 0 and kind != "gate":
            a(usig("l"))
        if n == 3: fill = epi(0)
        if n == 27: fill = epi(1)
        for x in fill[:4]: a(x)
        fill = fill[4:]
    assert issued == 48
    a("s_nop 11")
    for x in epi(2): a(x)

def gemm_waves(a):
    a(f"""
    s_lshl_b32 s{S_CT}, s{S_CB}, 2
    s_add_u32 s{S_CT}, s{S_CT}, s{S_WAVE}
    v_and_b32 v1, 31, v0
    v_lshrrev_b32 v2, 5, v0                ; hi
    v_lshrrev_b32 v3, 1, v0
    v_and_b32 v3, 7, v3
    v_xor_b32 v3, v3, v2
    v_lshlrev_b32 v10, 7, v1
    v_lshl_add_u32 v10, v3, 4, v10
    v_xor_b32 v11, 32, v10
    v_xor_b32 v12, 64, v10
    v_xor_b32 v13, 96, v10
    v_and_b32 v4, 15, v0
    v_lshrrev_b32 v5, 4, v0
    s_lshl_b32 s{T0}, s{S_WAVE}, 1
    v_lshrrev_b32 v6, 1, v5
    v_add_u32 v6, s{T0}, v6
    v_lshrrev_b32 v7, 1, v4
    v_xor_b32 v6, v6, v7
    v_lshlrev_b32 v9, 7, v4
    v_lshl_add_u32 v9, v6, 4, v9
    v_and_b32 v16, 1, v5                   ; ih
    v_lshl_add_u32 v9, v16, 3, v9
    v_add_u32 v9, {SLOT_AT[0] + 16384}, v9
    s_mul_i32 s56, s{S_RB}, {3*TILE_B}
    s_lshl_b32 s{T1}, s{S_C0}, 12
    s_add_u32 s{T1}, s{T1}, s{S_LW1K}
    s_add_u32 s{T1}, s{T1}, s56
    v_add_u32 v14, s{T1}, v{A_L16}
    s_add_u32 s{SRD_T}, s{S_WS}, {WS_UT}
    s_addc_u32 s{SRD_T+1}, s{S_WS+1}, 0
    s_mov_b32 s{SRD_T+3}, 0x20000
    s_sub_u32 s{T0}, s{S_CB}, {E('UCB', '2')}
    s_cmp_lt_u32 s{T0}, 7
    s_cselect_b32 s{SRD_T+2}, {0 if E("X_NOUT") else 64*TILE_B}, 0
    s_cselect_b32 s48, 1, 0
    s_mov_b32 s49, 0
    s_lshl_b32 s{T0}, s{S_C0}, 2
    s_add_u32 s{T0}, s{T0}, s{S_WAVE}
    s_lshl_b32 s{T0}, s{T0}, {CS}
    s_add_u32 s{T0}, s{T0}, {B_U}
    v_mov_b32 v238, s{T0}
    v_mov_b32 v239, 1
    s_cmp_ge_u32 s{S_RB}, 22
    s_cselect_b32 s48, 0, s48
    s_mul_i32 s{T2}, s{S_CT}, 37
    s_lshr_b32 s{T2}, s{T2}, 9
    s_mul_i32 s{T1}, s{T2}, 14
    s_sub_u32 s52, s{S_CT}, s{T1}          ; ct'
    s_lshl_b32 s{T2}, s{T2}, 21
    s_add_u32 s{SRD_R}, s{S_WS}, s{T2}
    s_addc_u32 s{SRD_R+1}, s{S_WS+1}, 0
    s_mov_b32 s{SRD_R+2}, {64*TILE_B}
    s_mov_b32 s{SRD_R+3}, 0x20000
    s_mov_b32 s96, {TILE_B}
    s_mov_b32 s97, {2*TILE_B}
    v_bfe_u32 v4, v0, 2, 2                 ; r
    v_lshl_add_u32 v17, v2, 3, v4          ; 8 hi + r
    v_lshlrev_b32 v8, 8, v17
    v_xor_b32 v17, s{S_WAVE}, v4
    v_lshl_add_u32 v8, v17, 6, v8
    v_lshl_add_u32 v8, v16, 5, v8
    v_add_u32 v8, {SLOT_AT[0]}, v8
    v_and_b32 v17, 3, v0                   ; c
    v_add_u32 v3, {SLOT_AT[0] + 16384}, v10
    v_add_u32 v4, {SLOT_AT[0] + 16384}, v11
    v_add_u32 v5, {SLOT_AT[0] + 16384}, v12
    v_add_u32 v15, {SLOT_AT[0] + 16384}, v13
    v_add_u32 v10, {L_X1}, v10
    v_add_u32 v11, {L_X1}, v11
    v_add_u32 v12, {L_X1}, v12
    v_add_u32 v13, {L_X1}, v13
    s_cmp_ge_u32 s{S_CT}, 42
    s_cbranch_scc1 L_gate
    s_cmp_ge_u32 s{S_CT}, 28
    s_cbranch_scc1 L_v
    v_and_b32 v16, 1, v17
    v_lshrrev_b32 v17, 1, v17
    v_lshl_add_u32 v17, v16, 1, v17
    """)
    assert WS_Q == 0 and WS_K == 1 << 21 and WS_V == 2 << 21
    wa = "v_lshl_add_u32 v8, v17, 3, v8"
    a(wa)
    a(f"""
    s_cmp_ge_u32 s{S_CT}, 14
    s_cselect_b32 s47, 1.0, {f32(QSCALE)}
    s_lshl_b32 s{T1}, s52, 11
    s_add_u32 s{T0}, s56, s{T1}
    v_add_u32 v6, s{T0}, v{A_L16}
    v_add_u32 v7, 1024, v6
    """)
    gemm_body(a, "qk", "qk")
    a("s_branch L_signal")
    a.label("L_gate")
    a(f"""
    v_lshlrev_b32 v9, 4, v2
    v_add_u32 v9, {L_GATE}, v9
    s_lshl_b32 s47, s{S_C0}, 7
    v_add_u32 v8, s47, v9
    s_add_u32 s{SRD_R}, s{S_WS}, {WS_GT}
    s_addc_u32 s{SRD_R+1}, s{S_WS+1}, 0
    s_cmp_eq_u32 s{S_CT}, 42
    s_cselect_b32 s{SRD_R+2}, 8192, 0
    s_mul_i32 s{T0}, s{S_RB}, {96*4}
    v_lshl_add_u32 v6, v1, 2, s{T0}
    """)
    gemm_body(a, "gate", "g")
    a("s_branch L_signal")
    a.label("L_v")
    a(wa)
    a(f"""
    s_lshl_b32 s{T0}, s52, 9
    s_add_u32 s{T0}, s{T0}, s56
    v_mul_u32_u24 v6, 7168, v2
    v_lshl_add_u32 v6, v1, 4, v6
    v_add_u32 v6, s{T0}, v6
    v_add_u32 v7, 14336, v6
    """)
    gemm_body(a, "v", "v")
    a.label("L_signal")
    stamp(a, 4)
    a(f"""
    s_mul_i32 s{T0}, s{S_RB}, 3
    s_add_u32 s{T1}, s{T0}, 2
    s_min_u32 s{T1}, s{T1}, 63
    s_cmp_lt_u32 s{S_CT}, 14
    s_cselect_b32 s{T2}, 2, 4
    s_cselect_b32 s{T3}, 4, 2
    s_cselect_b32 s51, {B_Q}, 0
    s_cselect_b32 s55, 1, {REPM}
    s_lshr_b32 s{T0}, s{T0}, s{T2}
    s_lshr_b32 s{T1}, s{T1}, s{T2}
    s_cmp_eq_u32 s{T0}, s{T1}
    s_cselect_b32 s54, 3, 15
    s_mul_i32 s54, s54, s55
    s_mov_b32 s55, 0
    s_cmp_ge_u32 s{S_RB}, 22
    s_cselect_b32 s54, 0, s54
    s_mul_i32 s{T1}, s52, {8*147}
    s_lshr_b32 s{T1}, s{T1}, 10            ; (8 ct') / 7
    v_and_b32 v4, 1, v0
    v_add_u32 v4, s{T1}, v4
    v_lshlrev_b32 v4, s{T3}, v4
    v_bfe_u32 v5, v0, 1, 1
    s_mul_i32 s{T3}, s{T0}, 14             ; gate wave: first counter
    v_add3_u32 v4, v4, v5, s{T0}
    v_and_b32 v5, {(1 << QL) - 1}, v4
    v_lshrrev_b32 v4, {QL}, v4
    v_lshl_add_u32 v5, v5, {CS}, s51
    v_lshl_add_u32 v254, v4, 2, v5
    v_lshrrev_b32 v4, 2, v0
    v_lshlrev_b32 v5, {6 + CS}, v4
    v_min_u32 v4, 1, v4
    v_mul_u32_u24 v4, {B_R}, v4
    v_add3_u32 v254, v254, v4, v5
    s_cmp_lt_u32 s{S_CT}, 42
    s_cbranch_scc1 L_cnt_done
    v_add_u32 v16, s{T3}, v0
    v_lshl_add_u32 v254, v16, {CS}, {B_BP}
    s_mov_b32 s{T0}, 0x3fff
    s_cmp_eq_u32 s54, {3 * REPM}
    s_cselect_b32 s54, s{T0}, 0xfffffff
    s_cmp_eq_u32 s{S_CT}, 42
    s_cselect_b32 s54, s54, 0
L_cnt_done:
    """)
    attn_setup(a)
    a(f"""
    s_setprio {E("PRP", "3")}
    s_waitcnt vmcnt(0)
    s_mov_b64 exec, s[54:55]
    s_cbranch_execz L_nosig
    global_atomic_add v254, v239, {sr(S_CNT,2)} sc1
L_nosig:
    """)

Q, O, S, P, KV = 16, 48, 112, 144, 160
A_K, A_V0, A_V1, A_RED_, A_Q, A_L16, A_M0, A_M1, A_PA, A_PE, A_RR, A_OC, A_LC = 224, 225, 226, 227, 230, 231, 232, 233, 234, 235, 236, 237, 255
S_OFF = 9
A_RED = 227
S_EXV = 20

def kv_loads(b):
    r = KV + 16 * b
    w = sr(SRD_WS, 4)
    return [f"buffer_load_dwordx4 {vr(r,4)}, v{A_K}, {w}, s{S_OFF} offen {LD}",
            f"buffer_load_dwordx4 {vr(r+4,4)}, v{A_K}, {w}, s{S_OFF} offen offset:1024 {LD}",
            f"buffer_load_dwordx4 {vr(r+8,4)}, v{A_V0}, {w}, s{S_OFF} offen {LD}",
            f"buffer_load_dwordx4 {vr(r+12,4)}, v{A_V1}, {w}, s{S_OFF} offen {LD}",
            f"s_add_u32 s{S_OFF}, s{S_OFF}, {TILE_B}"]

def slot(a, n, qk, pv, post=None, first=False, mid=None, tight=False):
    sc, sn = S + 16 * (n & 1), S + 16 * ((n + 1) & 1)
    pc, pp = P + 8 * (n & 1), P + 8 * ((n + 1) & 1)
    ms = [None] * 4
    if qk is not None:
        k, q = KV + 16 * qk[0], Q + 8 * qk[1]
        ms[0] = mfma(sn, k, q, None)
        ms[1] = mfma(sn, k + 4, q + 4, sn)
    if pv is not None:
        v, o = KV + 16 * pv[0] + 8, O + 16 * pv[1]
        ms[2] = mfma(o, v, pp, None if first else o)
        ms[3] = mfma(o, v + 4, pp + 4, o)
    valu = []
    for g in range(4):
        for j in range(4):
            valu.append(f"v_exp_f32 v{sc+4*g+j}, v{sc+4*g+j}")
            if g > 0 and j == 0:
                valu.append(f"v_cvt_pk_bf16_f32 v{pc+2*g-2}, v{sc+4*g-4}, v{sc+4*g-3}")
                valu.append(f"v_cvt_pk_bf16_f32 v{pc+2*g-1}, v{sc+4*g-2}, v{sc+4*g-1}")
    valu.append(f"v_cvt_pk_bf16_f32 v{pc+6}, v{sc+12}, v{sc+13}")
    valu.append(f"v_cvt_pk_bf16_f32 v{pc+7}, v{sc+14}, v{sc+15}")
    cuts = [0, 3, 7, 10, 24] if tight else [0, 4, 10, 16, 24]
    for g in range(4):
        if g == 2 and mid:
            for e in mid: a(e)
        if ms[g]: a(ms[g])
        if post and post[g]: a(post[g])
        for x in valu[cuts[g]:cuts[g+1]]: a(x)

def red_writes(j):
    return [f"ds_write_b128 v{A_RED+j}, {vr(O+16*j+4*i,4)} offset:{1024*i}" for i in range(4)]

def attn_setup(a):
    a(f"""
    s_and_b32 s{S_H}, s2, 7
    s_lshl_b32 s{S_H}, s{S_H}, 1
    s_bfe_u32 s{T0}, s2, 0x10003
    s_add_u32 s{S_H}, s{S_H}, s{T0}
    s_lshr_b32 s{S_QB}, s2, 4
    s_mov_b32 s{SRD_WS}, s{S_WS}
    s_mov_b32 s{SRD_WS+1}, s{S_WS+1}
    s_mov_b32 s{SRD_WS+2}, {WS_SIZE}
    s_mov_b32 s{SRD_WS+3}, 0x20000
    s_mul_i32 s{T0}, s{S_H}, 7
    s_lshr_b32 s8, s{T0}, 1                ; u0
    s_mul_i32 s{S_OFF}, s{S_WAVE}, {16*TILE_B}
    s_lshl_b32 s{T2}, s8, 9
    v_add_u32 v{A_Q}, s{T2}, v{A_L16}
    v_add_u32 v{A_K}, {WS_K}, v{A_Q}
    v_bfe_u32 v8, v0, 2, 1
    v_bfe_u32 v9, v0, 3, 1
    v_and_b32 v10, 19, v0
    v_lshl_add_u32 v10, v8, 3, v10
    v_lshl_add_u32 v10, v9, 2, v10
    v_lshrrev_b32 v1, 5, v0                ; hi
    v_mul_u32_u24 v3, 7168, v1
    v_lshl_add_u32 v3, v10, 4, v3
    s_lshl_b32 s{T3}, s8, 7
    s_add_u32 s{T3}, s{T3}, {WS_V}
    v_add_u32 v{A_V0}, s{T3}, v3
    v_add_u32 v{A_V1}, 14336, v{A_V0}
    s_bitcmp1_b32 s{S_H}, 0
    s_mov_b32 s{S_EXV}, 0x0fffffff
    s_cselect_b32 s{S_EXV}, 0xfffffff0, s{S_EXV}
    s_cselect_b64 s[18:19], -1, 0
    s_mov_b32 s{S_EXV+1}, s{S_EXV}
    v_mov_b32 v8, {WS_ONE}
    v_cndmask_b32 v{A_V0}, v8, v{A_V0}, {sr(S_EXV,2)}
    v_cndmask_b32 v{A_V1}, v8, v{A_V1}, {sr(S_EXV,2)}
    """)
    for j in range(4):
        a(f"""
        s_add_u32 s{T3}, s{S_WAVE}, {j+1}
        s_and_b32 s{T3}, s{T3}, 3
        s_lshl_b32 s{T0}, s{S_QB}, 2
        s_add_u32 s{T0}, s{T0}, s{T3}
        s_mul_i32 s{10+j}, s{T0}, {TILE_B}
        s_mul_i32 s{T3}, s{T3}, 12288
        s_add_u32 s{T3}, s{T3}, {L_RED + (4096*j if j < 3 else 0)}
        v_add_u32 v{A_RED+j if j < 3 else A_RR}, s{T3}, v{A_L16}
        """)
    a(f"""
    s_lshl_b32 s3, s{T0}, 4
    s_add_u32 s3, s3, s{S_H}
    s_lshl_b32 s3, s3, 11
    s_add_u32 s3, s3, {WS_O}
    s_lshl_b32 s{T0}, s{T0}, {CS}
    s_add_u32 s{T0}, s{T0}, {B_O}
    v_mov_b32 v{A_OC}, s{T0}
    v_mov_b32 v{A_LC}, {L_CNT}
    """)
    a(f"""
    s_and_b32 s{T0}, s{S_H}, 1
    v_cmp_lt_u32 vcc, v1, s{T0}
    v_cmp_gt_u32 s[100:101], v1, s{T0}
    s_add_u32 s{T0}, s{S_H}, 1
    s_and_b32 s{T0}, s{T0}, 6
    v_cndmask_b32 v{A_M0}, -1, 0, vcc
    v_cndmask_b32 v{A_M1}, -1, 0, s[100:101]
    s_cmp_eq_u32 s{T0}, 0
    s_cselect_b32 s{T0}, 12, 24
    s_cselect_b32 s{T1}, 2, 4
    v_mov_b32 v{A_PE}, s{T0}
    v_writelane_b32 v{A_PE}, s{T1}, {4 if E("AP1") else 1}
    s_lshl_b32 s{T0}, s{S_H}, 2
    s_add_u32 s{T0}, s{T0}, s{S_WAVE}
    s_lshl_b32 s{T0}, s{T0}, {CS}
    s_and_b32 s{T1}, s{S_QB}, {KVR - 1}
    s_lshl_b32 s{T2}, s{T1}, {6 + CS}
    s_add_u32 s{T0}, s{T0}, s{T2}
    s_cmp_lg_u32 s{T1}, 0
    s_cselect_b32 s{T1}, {B_R}, 0
    s_add_u32 s{T0}, s{T0}, s{T1}
    s_and_b32 s{T1}, s{S_H}, {(1 << (QL - 4)) - 1}
    s_lshl_b32 s{T1}, s{T1}, 4
    s_add_u32 s{T1}, s{T1}, s{S_QB}
    s_lshl_b32 s{T1}, s{T1}, {CS}
    s_lshr_b32 s{T2}, s{S_H}, {QL - 4}
    s_lshl_b32 s{T2}, s{T2}, 2
    s_add_u32 s{T1}, s{T1}, s{T2}
    s_add_u32 s{T1}, s{T1}, {B_Q}
    {"v_lshl_add_u32 v%d, v0, %d, s%d" % (A_PA, CS, T0) if E("AP1") else "v_mov_b32 v%d, s%d" % (A_PA, T0)}
    v_writelane_b32 v{A_PA}, s{T1}, {4 if E("AP1") else 1}
    """)

def qmask(j):
    return [f"v_and_b32 v{Q+8*j}, v{A_M0}, v{Q+8*j}", f"v_and_b32 v{Q+8*j+1}, v{A_M0}, v{Q+8*j+1}",
            f"v_and_b32 v{Q+8*j+6}, v{A_M1}, v{Q+8*j+6}", f"v_and_b32 v{Q+8*j+7}, v{A_M1}, v{Q+8*j+7}"]

def attention(a):
    w = sr(SRD_WS, 4)
    stamp(a, 5)
    if E("X_DELAY"): a("s_sleep 64")
    if E("AP1"):
        a(f"""
        s_mov_b64 exec, -1
        s_cmp_eq_u32 s{S_WAVE}, 0
        s_cbranch_scc1 L_pa0
L_paw:
        ds_read_b32 v15, v{A_LC} offset:24
        s_waitcnt lgkmcnt(0)
        v_readfirstlane_b32 s{T0}, v15
        s_cmp_eq_u32 s{T0}, 0
        s_cbranch_scc1 L_paw
        s_branch L_pa1
L_pa0:
        """)
        if E("GAPA"): poll2(a, "a", A_PA, f"v{A_PE}", 31, int(E("GAPA")))
        else: poll(a, "a", A_PA, f"v{A_PE}", 31)
        a(f"ds_write_b32 v{A_LC}, v239 offset:24\nL_pa1:")
    elif E("GAPA"): poll2(a, "a", A_PA, f"v{A_PE}", 3, int(E("GAPA")))
    else: poll(a, "a", A_PA, f"v{A_PE}", 3)
    stamp(a, 6)
    if PROF and E("PCNT"): a(f"s_mov_b32 s84, s{T0}")
    def ldq(j):
        a(f"buffer_load_dwordx4 {vr(Q+8*j,4)}, v{A_Q}, {w}, s{10+j} offen {LD}")
        a(f"buffer_load_dwordx4 {vr(Q+8*j+4,4)}, v{A_Q}, {w}, s{10+j} offen offset:1024 {LD}")
    l0 = kv_loads(0)
    a(l0[0]); a(l0[1])
    ldq(0); ldq(1); ldq(2)
    for x in l0[2:]: a(x)
    ldq(3)
    a("s_waitcnt vmcnt(8)")
    for x in qmask(0): a(x)
    a("s_nop 1")
    a(mfma(S, KV, Q, None))
    l1 = kv_loads(1)
    a(l1[0])
    a(mfma(S, KV + 4, Q + 4, S))
    a(l1[1])
    a("s_waitcnt vmcnt(8)")
    for x in qmask(1): a(x)
    a("s_setprio 0\ns_nop 3")
    stamp(a, 7)
    for t in range(16):
        b = t & 3
        ld = kv_loads((b + 3) & 3) if t <= 12 else [None] * 5
        for q in range(4):
            qk = (b, q + 1) if q < 3 else ((b + 1) & 3, 0)
            pv = (b, q - 1) if q > 0 else ((b - 1) & 3, 3)
            post, mid = [None] * 4, None
            if q == 0: post[0] = ld[0]
            if q == 1: post[0], post[2] = ld[1], ld[2]
            if q == 2:
                post[0], post[1] = ld[3], ld[4]
                if t < 15: post[3] = f"s_waitcnt vmcnt({8 if t <= 12 else 4 * (14 - t)})"
            first = (t == 0 and q > 0) or (t == 1 and q == 0)
            if t == 0:
                l2 = kv_loads(2)
                if q == 0:
                    pv = None
                    post = [l1[2], l1[3] + "\n" + l1[4], None, None]
                    mid = ["s_waitcnt vmcnt(8)"] + qmask(2)
                if q == 1:
                    post = [l2[0], l2[1], l2[2], l2[3] + "\n" + l2[4]]
                    mid = ["s_waitcnt vmcnt(6)"] + qmask(3)
                if q == 2:
                    post = [ld[0], ld[1], ld[2], ld[3] + "\n" + ld[4] + "\ns_waitcnt vmcnt(10)"]
                if q == 3:
                    post[3] = "s_waitcnt vmcnt(8)"
            if t == 1 and q == 3:
                post[0] = f"ds_write_b32 v{A_LC}, v239 offset:20"
            if t == 15:
                if q == 2: post = [None] + red_writes(0)[:3]
                if q == 3:
                    qk = None
                    r1 = red_writes(1)
                    post = [red_writes(0)[3], r1[0] + "\n" + r1[1], r1[2], r1[3]]
            slot(a, q, qk, pv, post, first, mid, tight=t < int(E('TIGHT', '6')))
    a("s_nop 0")
    a(mfma(O + 48, KV + 48 + 8, P + 8, O + 48))
    a(mfma(O + 48, KV + 48 + 12, P + 12, O + 48))
    a(f"""
    v_min_f32 v8, v{O}, v{O+16}
    v_max_f32 v9, v{O}, v{O+16}
    v_min_f32 v10, v{O+12}, v{O+28}
    v_max_f32 v13, v{O+12}, v{O+28}
    """)
    for x in red_writes(2): a(x)
    a(f"""
    s_mov_b32 s{T0}, {f32(2.0**-40)}
    s_mov_b32 s{T1}, {f32(2.0**40)}
    v_mov_b32 v11, {L_CNT}
    v_mov_b32 v12, 1
    v_min3_f32 v8, v8, v{O+32}, v{O+48}
    v_max3_f32 v9, v9, v{O+32}, v{O+48}
    v_min3_f32 v10, v10, v{O+44}, v{O+60}
    v_max3_f32 v13, v13, v{O+44}, v{O+60}
    v_cndmask_b32 v8, v10, v8, s[18:19]
    v_cndmask_b32 v9, v13, v9, s[18:19]
    v_cmp_le_f32 vcc, s{T0}, v8
    v_cmp_ge_f32 s[16:17], s{T1}, v9
    s_and_b64 s[16:17], s[16:17], vcc
    s_bitcmp1_b32 s{S_H}, 0
    s_cselect_b32 s16, s16, s17
    s_cmp_lg_u32 s16, {0x12345 if E("SLOW") else -1}
    s_cbranch_scc1 L_bad
L_fine:
    """)

def reduce(a, check):
    o = O + 48
    a("s_waitcnt lgkmcnt(0)\ns_barrier")
    if check:
        a("ds_read_b32 v9, v11 offset:16")
    seq = [(j, i) for i in (0, 3, 1, 2) for j in range(3)]
    for j, i in seq:
        a(f"ds_read_b128 {vr(O+16*j+4*i,4)}, v{A_RR} offset:{4096*j + 1024*i}")
    if check:
        a(f"""
        s_waitcnt lgkmcnt(12)
        v_readfirstlane_b32 s{T0}, v9
        s_cmp_lg_u32 s{T0}, 0
        s_cbranch_scc1 L_slow
        """)
    chain = [f"v_cndmask_b32 v10, v{o+12}, v{o}, s[18:19]",
             f"v_cndmask_b32 v13, v{o+12}, v{o}, s[18:19]",
             "v_permlane32_swap_b32 v10, v13",
             "v_cndmask_b32 v10, v13, v10, s[18:19]",
             "v_rcp_f32 v10, v10"]
    for k, (j, i) in enumerate(seq):
        a(f"s_waitcnt lgkmcnt({11 - k})")
        for e in (0, 2):
            a(f"v_pk_add_f32 {vr(o+4*i+e,2)}, {vr(o+4*i+e,2)}, {vr(O+16*j+4*i+e,2)}")
        if k == 5: a(chain[0]); a(chain[1])
        if k in (6, 7, 8): a(chain[k - 4])

def store_o(a):
    o = O + 48
    w = sr(SRD_WS, 4)
    for h in range(2):
        for i in range(4*h, 4*h + 4):
            a(f"v_pk_mul_f32 {vr(o+2*i,2)}, {vr(o+2*i,2)}, v[10:11] op_sel_hi:[1,0]")
        for i in range(4*h, 4*h + 4):
            a(f"v_cvt_pk_bf16_f32 v{16+i}, v{o+2*i}, v{o+2*i+1}")
        for x in qmask(0)[2*h:2*h+2]: a(x)
        a(f"buffer_store_dwordx4 {vr(16+4*h,4)}, v{A_L16}, {w}, s3 offen offset:{1024*h} {ST}")
    a("s_mov_b64 exec, 1")
    if not E('PA'): stamp(a, 9)
    a(f"""
    s_waitcnt vmcnt(0)
    global_atomic_add v{A_OC}, v12, {sr(S_CNT,2)} sc1
    """)

def fallback(a):
    M = 208
    a(f"""
L_bad:
    ds_write_b32 v11, v12 offset:16
    s_branch L_fine
L_slow:
    """)
    for j in range(4):
        a(f"v_mov_b32 v{M+j}, 0xff800000")
    l0 = kv_loads(0)
    a(f"""
    s_waitcnt lgkmcnt(0)
    s_mul_i32 s{S_OFF}, s{S_WAVE}, {16*TILE_B}
    s_mov_b32 s14, 0
L_s1:
    """)
    for x in (l0[0], l0[1], l0[4]): a(x)
    a("s_waitcnt vmcnt(0)")
    for j in range(4):
        a(mfma(S, KV, Q + 8*j, None))
        a(mfma(S, KV + 4, Q + 8*j + 4, S))
        a("s_nop 15")
        for i in range(8):
            a(f"v_max3_f32 v{M+j}, v{M+j}, v{S+2*i}, v{S+2*i+1}")
    a(f"""
    s_add_u32 s14, s14, 1
    s_cmp_lt_u32 s14, 16
    s_cbranch_scc1 L_s1
    v_lshlrev_b32 v8, 2, v0
    """)
    for j in range(4):
        a(f"""
        s_add_u32 s{T0}, s{S_WAVE}, {j+1}
        s_and_b32 s{T0}, s{T0}, 3
        s_lshl_b32 s{T0}, s{T0}, 10
        s_lshl_b32 s{T1}, s{S_WAVE}, 8
        s_add_u32 s{T1}, s{T1}, s{T0}
        s_add_u32 s{T1}, s{T1}, {L_MAX}
        v_add_u32 v9, s{T1}, v8
        ds_write_b32 v9, v{M+j}
        """)
    a(f"""
    s_waitcnt lgkmcnt(0)
    s_barrier
    v_and_b32 v8, 31, v0
    v_lshlrev_b32 v8, 2, v8
    """)
    for j in range(4):
        a(f"""
        s_add_u32 s{T0}, s{S_WAVE}, {j+1}
        s_and_b32 s{T0}, s{T0}, 3
        s_lshl_b32 s{T0}, s{T0}, 10
        s_add_u32 s{T0}, s{T0}, {L_MAX}
        v_add_u32 v9, s{T0}, v8
        """)
        for i in range(8):
            a(f"ds_read_b32 v{S+i}, v9 offset:{128*i}")
        a("s_waitcnt lgkmcnt(0)")
        for i in range(4):
            a(f"v_max3_f32 v{M+j}, v{M+j}, v{S+2*i}, v{S+2*i+1}")
    for i in range(64):
        a(f"v_mov_b32 v{O+i}, 0")
    a(f"""
    s_mul_i32 s{S_OFF}, s{S_WAVE}, {16*TILE_B}
    s_mov_b32 s14, 0
L_s2:
    """)
    for x in l0: a(x)
    a("s_waitcnt vmcnt(0)")
    for j in range(4):
        a(mfma(S, KV, Q + 8*j, None))
        a(mfma(S, KV + 4, Q + 8*j + 4, S))
        a("s_nop 15")
        for i in range(16):
            a(f"v_sub_f32 v{S+i}, v{S+i}, v{M+j}")
        for i in range(16):
            a(f"v_exp_f32 v{S+i}, v{S+i}")
        a("s_nop 0")
        for i in range(8):
            a(f"v_cvt_pk_bf16_f32 v{P+i}, v{S+2*i}, v{S+2*i+1}")
        a("s_nop 1")
        a(mfma(O + 16*j, KV + 8, P, O + 16*j))
        a(mfma(O + 16*j, KV + 12, P + 4, O + 16*j))
    a(f"""
    s_add_u32 s14, s14, 1
    s_cmp_lt_u32 s14, 16
    s_cbranch_scc1 L_s2
    s_nop 15
    """)
    for j in range(3):
        for x in red_writes(j): a(x)
    reduce(a, False)
    a("s_branch L_fin")

CA, ZR = 192, 28
H_T, H_UB, H_US, H_UTV, H_UTC, H_PL, H_BPC, H_CNT, H_K4, H_K2 = 16, 17, 18, 19, 20, 21, 22, 23, 18, 254

def next_chunk():
    return [f"s_add_u32 s{S_CH}, s{S_CH}, 1", f"s_cmp_eq_u32 s{S_CH}, 7", f"s_cselect_b32 s{S_CH}, 0, s{S_CH}"]

def dma_chunk(it, vx=2, vw=3):
    slot = SLOT_AT[it]
    g = []
    for j in range(4):
        x = [f"s_mul_i32 s58, s{S_CH}, {64*2688}", f"s_lshl_b32 s59, s{S_CH}, 7"] if j == 0 else []
        g.append(x + [f"s_add_u32 m0, s{S_LW1K}, {slot + j*4096}",
                      f"s_add_u32 s{T0}, s58, {16*j*2688}",
                      f"buffer_load_dwordx4 v{vw}, {sr(SRD_W,4)}, s{T0} offen lds"])
        if j < (3 if it == 0 else 1):
            g.append([f"s_add_u32 m0, s{S_LW1K}, {slot + 16384 + j*4096}",
                      f"s_add_u32 s{T1}, s59, {j*32*896}",
                      f"buffer_load_dwordx4 v{vx}, {sr(SRD_X,4)}, s{T1} offen lds"])
    g[-1] += next_chunk()
    return g

def dma_x(i, vx=2):
    g = []
    for it in range(1, 7):
        g.append(next_chunk() + [f"s_lshl_b32 s59, s{S_CH}, 7",
                                 f"s_add_u32 m0, s{S_LW1K}, {L_X1 + (i-1)*24576 + (it-1)*4096}",
                                 f"s_add_u32 s{T1}, s59, {i*32*896}",
                                 f"buffer_load_dwordx4 v{vx}, {sr(SRD_X,4)}, s{T1} offen lds"])
    g[-1] += next_chunk()
    return g

def helper_setup():
    t = f"""
    s_mov_b32 s{SRD_WS}, s{S_WS}
    s_mov_b32 s{SRD_WS+1}, s{S_WS+1}
    s_mov_b32 s{SRD_WS+2}, {WS_SIZE}
    s_mov_b32 s{SRD_WS+3}, 0x20000
    s_mul_i32 s18, s{S_LW}, {TAB_B}
    v_and_b32 v4, 31, v0
    v_lshrrev_b32 v5, 5, v0
    v_mul_u32_u24 v24, 272, v4
    v_lshl_add_u32 v24, v5, 4, v24
    v_add_u32 v24, s18, v24
    s_lshr_b32 s47, s{S_LW}, 1
    s_mul_i32 s{T0}, s47, 3072
    s_add_u32 s{T0}, s{T0}, {L_XCH}
    v_lshl_add_u32 v25, v0, 4, s{T0}
    v_mov_b32 v{H_CNT}, {L_CNT}
    s_lshr_b32 s{T0}, s2, 3
    s_lshl_b32 s{T0}, s{T0}, {CS}
    s_add_u32 s{T0}, s{T0}, {B_U}
    v_mov_b32 v{H_UTC}, s{T0}
    v_lshrrev_b32 v14, 2, v0
    v_mul_u32_u24 v14, {TILE_B}, v14
    v_and_b32 v15, 3, v0
    v_lshl_add_u32 v{H_UTV}, v15, 6, v14
    s_lshr_b32 s14, s2, 1
    s_lshl_b32 s14, s14, 8
    s_and_b32 s15, s2, 1
    s_lshl_b32 s15, s15, 1
    s_add_u32 s15, s15, s47
    s_lshl_b32 s15, s15, 4
    s_add_u32 s14, s14, s15
    s_and_b32 s16, s{S_LW}, 1
    s_mul_i32 s15, s16, {32*TILE_B}
    s_add_u32 s14, s14, s15
    s_add_u32 s14, s14, {WS_UT}
    s_add_u32 s15, s14, {16*TILE_B}
    s_mul_i32 s17, s47, {U_B}
    s_add_u32 s13, s17, {L_U}
    s_lshl_b32 s16, s16, 11
    s_add_u32 s17, s17, s16
    s_mul_i32 s19, s47, {KC_B}
    s_add_u32 s19, s19, {L_KC}
    s_add_u32 s{T0}, s19, 64
    v_lshl_add_u32 v{H_K4}, v0, 4, s{T0}
    v_lshl_add_u32 v{H_K2}, v4, 4, s{T0}
    v_lshl_add_u32 v{H_K2}, v5, 3, v{H_K2}
    v_bfe_u32 v14, v0, 4, 2
    v_lshlrev_b32 v{H_T}, 5, v14
    v_lshl_add_u32 v{H_T}, v15, 3, v{H_T}
    v_bfe_u32 v14, v0, 2, 2
    v_lshlrev_b32 v14, 3, v14
    v_sub_u32 v{H_T}, v{H_T}, v14
    s_add_u32 s{T0}, s19, {64 - 32}
    v_add_u32 v{H_T}, s{T0}, v{H_T}
    v_lshlrev_b32 v14, 4, v4
    v_lshlrev_b32 v15, 6, v5
    v_sub_u32 v14, v14, v15
    s_add_u32 s{T0}, s13, {512 - 384}
    v_add_u32 v{H_UB}, s{T0}, v14
    s_lshl_b32 s{T0}, s{S_LW}, 11
    v_lshl_add_u32 v{H_PL}, v0, 4, s{T0}
    s_lshl_b32 s12, s2, 13
    s_add_u32 s12, s12, {WS_BP}
    s_lshr_b32 s{T1}, s2, 4
    s_mul_i32 s{T0}, s{S_LW}, 14
    s_add_u32 s{T0}, s{T0}, s{T1}
    s_lshl_b32 s{T0}, s{T0}, {CS}
    s_add_u32 s{T0}, s{T0}, {B_BP}
    v_mov_b32 v{H_BPC}, s{T0}
    """
    return [l.strip() for l in t.split("\n") if l.strip() and not l.strip().startswith(";")]

def conv(a):
    w = sr(SRD_WS, 4)
    lds_sync(a, 1, "b")
    stamp(a, 5)
    UFR, TR, NT = 64, 32, 8
    def variant(tiles, tag):
        top = 4 * max(tiles) + 3
        def rd_t(ph):
            t = TR + 4 * (ph % NT)
            return [f"ds_read_b64_tr_b16 {vr(t,2)}, v{H_T} offset:{128*ph + 32}",
                    f"ds_read_b64_tr_b16 {vr(t+2,2)}, v{H_T} offset:{128*ph}"]
        have = set()
        need = []
        for ph in range(top + 1):
            r = rd_t(ph)
            for tau in tiles:
                b = 4 * tau - ph
                if b >= -3 and b not in have:
                    have.add(b)
                    r.append(f"ds_read_b128 {vr(UFR + 4*(b+3), 4)}, v{H_UB} offset:{128*(b+3)}")
            need.append(r)
        queue = [(ph, x) for ph in range(top + 1) for x in need[ph]]
        issued = 0
        def issue(k, maxph):
            nonlocal issued
            while k > 0 and issued < len(queue) and queue[issued][0] <= maxph:
                a(queue[issued][1]); issued += 1; k -= 1
        issue(12, 1)
        a(f"s_setprio {E('PRC', '0')}")
        done = 0
        for ph in range(top + 1):
            done += len(need[ph])
            issue(max(0, done - issued), ph)
            a(f"s_waitcnt lgkmcnt({min(15, issued - done)})")
            act = [k for k, tau in enumerate(tiles) if 4 * tau - ph >= -3]
            for k in act:
                b = 4 * tiles[k] - ph
                a(mfma(CA + 16*k, UFR + 4*(b+3), TR + 4*(ph % NT), None if ph == 0 else CA + 16*k))
                issue(min(2, 12 - (issued - done)), ph + NT - 1)
        assert issued == len(queue)
        a(f"s_setprio {E('PRE_', '1')}")
        stamp(a, 6)
        order = sorted(range(4), key=lambda k: tiles[k])
        for k in ([] if E("X_NOPL") else order):
            for r in range(16):
                a(f"ds_write_addtid_b32 v{CA+16*k+r} offset:{(r&3)*2*PL_B + 1024*tiles[k] + 256*(r>>2) + 4*(r&3)}")
    a(f"""
    s_mul_i32 m0, s47, {PL_B}
    s_bitcmp1_b32 s{S_LW}, 0
    s_cbranch_scc1 L_cB
    v_and_b32 v14, 3, v0
    v_mul_u32_u24 v14, {2*PL_B}, v14
    v_add_u32 v14, m0, v14
    ds_write_b128 v14, {vr(ZR,4)}
    """)
    variant([7, 4, 3, 0], "A")
    a("s_branch L_cC\nL_cB:")
    variant([6, 5, 2, 1], "B")
    a("L_cC:")
    lds_sync(a, 2, "c", vm=False)
    for hf in range(2):
        for pl in range(8):
            a(f"ds_read_b128 {vr(CA+32*hf+4*pl,4)}, v{H_PL} offset:{pl*PL_B + 1024*hf}")
    for hf in range(2):
        b = CA + 32*hf
        a(f"s_waitcnt lgkmcnt({8 - 8*hf})")
        for i in range(0 if E("X_NOADD") else 8):
            a(f"v_add_f32 v{b+i}, v{b+i}, v{b+8+i}")
            a(f"v_add_f32 v{b+16+i}, v{b+16+i}, v{b+24+i}")
        for i in range(0 if E("X_NOADD") else 8):
            a(f"v_add_f32 v{b+i}, v{b+i}, v{b+16+i}")
        for i in range(4):
            a(f"v_cvt_pk_bf16_f32 v{b+i}, v{b+i}, v{b+4+i}")
        a(f"buffer_store_dwordx4 {vr(b,4)}, v{H_PL}, {w}, s12 offen offset:{1024*hf} {ST}")
    lds_sync(a, 3, "d")
    a(f"""
    v_mov_b32 v15, 1
    s_mov_b64 exec, 1
    global_atomic_add v{H_BPC}, v15, {sr(S_CNT,2)} sc1
    s_mov_b64 exec, -1
    """)
    if not E("NOWARM"):
        a(f"""
        s_lshr_b32 s{T0}, s2, 3
        s_lshl_b32 s{T0}, s{T0}, 2
        s_add_u32 s{T0}, s{T0}, s{S_LW}
        s_mul_i32 s{T0}, s{T0}, {28*128}
        v_min_u32 v14, 27, v0
        v_lshl_add_u32 v14, v14, 7, s{T0}
        global_load_dword v26, v14, {sr(S_WO,2)}
        """)

def outproj(a):
    WOF, ACC3, BR, OF, BB = 32, 16, 208, 160, 192
    w = sr(SRD_WS, 4)
    a(f"""
    s_and_b32 s8, s2, 7
    s_lshl_b32 s8, s8, 3
    s_lshr_b32 s{T0}, s2, 5
    s_add_u32 s8, s8, s{T0}
    s_bfe_u32 s9, s2, 0x20003
    s_lshl_b32 s10, s9, 2
    s_add_u32 s10, s10, s{S_LW}
    v_lshrrev_b32 v6, 4, v0
    v_lshlrev_b32 v7, 2, v6
    v_xor_b32 v7, v7, v0
    v_and_b32 v7, 15, v7
    s_lshl_b32 s{T0}, s{S_LW}, 2
    v_add_u32 v6, s{T0}, v6
    v_mul_u32_u24 v3, 896, v6
    v_lshl_add_u32 v3, v7, 4, v3
    s_cmp_eq_u32 s9, 3
    s_cselect_b32 s{T0}, 8, 16
    v_cmp_le_u32 vcc, s{T0}, v7
    s_lshl_b32 s{T0}, s9, 8
    s_add_u32 s{SRD_X}, s{S_WO}, s{T0}
    s_addc_u32 s{SRD_X+1}, s{S_WO+1}, 0
    s_sub_u32 s{SRD_X+2}, {WO_BYTES}, s{T0}
    v_mov_b32 v7, 0x1000000
    v_cndmask_b32 v3, v3, v7, vcc
    v_bfe_u32 v7, v0, 2, 2
    v_lshl_add_u32 v6, v5, 3, v7
    v_lshlrev_b32 v6, 8, v6
    v_xor_b32 v7, s{S_LW}, v7
    v_lshl_add_u32 v6, v7, 6, v6
    v_bfe_u32 v7, v0, 4, 1
    v_lshl_add_u32 v6, v7, 5, v6
    v_and_b32 v7, 1, v0
    v_lshl_add_u32 v6, v7, 4, v6
    v_bfe_u32 v7, v0, 1, 1
    v_lshl_add_u32 v6, v7, 3, v6
    s_mov_b32 s12, 0
L_wait_at:
    ds_read_b32 v15, v{H_CNT} offset:20
    s_waitcnt lgkmcnt(0)
    v_readfirstlane_b32 s{T0}, v15
    s_cmp_lg_u32 s{T0}, 0
    s_cbranch_scc1 L_go_at
    s_sleep 8
    s_branch L_wait_at
L_go_at:
    """)
    for rnd in range(2):
        a(f"s_mov_b32 m0, s{S_LW1K}\ns_nop 0")
        for i in range(14):
            a(f"buffer_load_dwordx4 v3, {sr(SRD_X,4)}, s12 offen lds")
            a(f"s_add_u32 s12, s12, {16*896}")
            if i < 13:
                a(f"s_add_u32 m0, m0, 4096\ns_waitcnt vmcnt({E('PACE', '3')})")
        lds_sync(a, 8 + 2*rnd, f"w{rnd}")
        for k in range(16):
            row = 8 * ((7 * (k >> 1)) >> 1) + 16 * (k & 1)
            a(f"ds_read_b64_tr_b16 {vr(WOF+64*rnd+4*k,2)}, v6 offset:{256*row}")
            a(f"ds_read_b64_tr_b16 {vr(WOF+64*rnd+4*k+2,2)}, v6 offset:{256*row+1024}")
        if rnd == 0: lds_sync(a, 9, "wx", vm=False)
    a(f"""
    s_cmp_ge_u32 s10, 14
    s_cbranch_scc1 L_nowo
    s_lshr_b32 s{T0}, s8, 4                ; quarter
    s_mul_i32 s{T1}, s{T0}, 14
    s_add_u32 s{T1}, s{T1}, s10
    s_lshl_b32 s{T1}, s{T1}, {CS}
    s_add_u32 s{T1}, s{T1}, {B_BP}
    v_mov_b32 v8, s{T1}
    """)
    if not E('PSTART'): stamp(a, 8)
    poll(a, "b", 8, "22", 1, sleep=16, limit=2 if E("X_NOCONV") else SPIN_MAX)
    a(f"""
    v_lshlrev_b32 v6, 2, v4
    v_lshl_add_u32 v7, v5, 15, v6
    s_lshl_b32 s{T0}, s10, 17
    s_lshl_b32 s{T1}, s8, 7
    s_add_u32 s{T0}, s{T0}, s{T1}
    s_add_u32 s{T0}, s{T0}, {WS_BP}
    s_add_u32 s{T1}, s{T1}, {WS_GT}
    buffer_load_dword v{BR+8}, v6, {w}, s{T1} offen {LD}
    """)
    for i in range(8):
        off = (8 * (i >> 2) + (i & 3)) * 8192
        a(f"s_add_u32 s{T2}, s{T0}, {off}")
        a(f"buffer_load_dword v{BR+i}, v7, {w}, s{T2} offen {LD}")
    a(f"""
    v_mul_u32_u24 v12, 896, v4
    v_lshl_add_u32 v12, v5, 4, v12
    s_mul_i32 s{T0}, s8, {32*896}
    s_lshl_b32 s{T1}, s10, 6
    s_add_u32 s{T0}, s{T0}, s{T1}
    s_add_u32 s{S_OUT}, s{S_OUT}, s{T0}
    s_addc_u32 s{S_OUT+1}, s{S_OUT+1}, 0
L_nowo:
    v_lshlrev_b32 v2, 4, v0
    s_lshl_b32 s{T0}, s8, {CS}
    s_add_u32 s{T0}, s{T0}, {B_O}
    v_mov_b32 v8, s{T0}
    s_lshl_b32 s12, s8, 15
    s_add_u32 s12, s12, {WS_O}
    s_add_u32 s12, s12, s{S_LW1K}
    s_mov_b32 m0, s{S_LW1K}
    s_waitcnt vmcnt(0) lgkmcnt(0)
    """)
    if not E('PSTART'): stamp(a, 9)
    a(f"""
    s_barrier
    s_setprio 0
    ds_read_b32 v11, v{H_CNT} offset:16
    v_sub_f32 v{BR+9}, 1.0, v{BR+8}
    v_cvt_pk_bf16_f32 v{BR+9}, v{BR+9}, v{BR+9}
    v_and_b32 v{BR+9}, 0xffff0000, v{BR+9}
    """)
    for i in range(8):
        a(f"v_lshlrev_b32 v{BB+2*i}, 16, v{BR+i}")
        a(f"v_and_b32 v{BB+2*i+1}, 0xffff0000, v{BR+i}")
    for i in range(16):
        a(f"v_mul_f32 v{BB+i}, v{BB+i}, v{BR+9}")
    a(f"""
    s_waitcnt lgkmcnt(0)
    v_readfirstlane_b32 s{T0}, v11
    s_cmp_lg_u32 s{T0}, 0
    s_cbranch_scc1 L_fb
L_nofb:
    {"" if E("NOB") else "s_barrier"}
    """)
    if E("OP1"):
        a(f"s_cmp_lg_u32 s{S_LW}, 0\ns_cbranch_scc1 L_ok_o")
        if E("GAPO"): poll2(a, "o", 8, "16", 1, int(E("GAPO")))
        else: poll(a, "o", 8, "16", 1)
        a("s_barrier")
    else: poll(a, "o", 8, "16", 1)
    stamp(a, 10)
    for i in range(8):
        a(f"buffer_load_dwordx4 v2, {w}, s12 offen {LD} lds")
        if i < 7: a("s_add_u32 m0, m0, 4096\ns_add_u32 s12, s12, 4096")
    bars = {0: 7, 4: 5, 12: 0}
    def rd(k):
        if k in bars:
            a(f"s_waitcnt vmcnt({bars[k]})\ns_barrier")
            if k == 0: a("s_cmp_ge_u32 s10, 14\ns_cbranch_scc1 L_idle3")
        a(f"ds_read_b128 {vr(OF+4*(k%8),4)}, v2 offset:{1024*k}")
    issued = 0
    for k in range(32):
        want = 4 if k == 0 else min(32, k + 6)
        while issued < want:
            rd(issued); issued += 1
        a(f"s_waitcnt lgkmcnt({issued - k - 1})")
        a(mfma(ACC3, WOF + 4*k, OF + 4*(k%8), None if k == 0 else ACC3))
    a("s_nop 11")
    for h in range(2):
        for i in range(8*h, 8*h + 8):
            a(f"v_fmac_f32 v{BB+i}, v{BR+8}, v{ACC3+i}")
        for i in range(4*h, 4*h + 4):
            a(f"v_cvt_pk_bf16_f32 v{OF+i}, v{BB+2*i}, v{BB+2*i+1}")
        a(f"global_store_dwordx4 v12, {vr(OF+4*h,4)}, {sr(S_OUT,2)} offset:{32*h} {E('STO', '')}")
    if PROF and E("PEND"): stamp(a, 9); a("s_waitcnt vmcnt(0)")
    a(endp("L_end"))
    a("L_idle3:\ns_waitcnt vmcnt(0)")
    a(endp("L_end"))
    a("L_fb:\ns_barrier\ns_barrier\ns_branch L_nofb")

def helper_waves(a):
    w = sr(SRD_WS, 4)
    def emit(groups, fill=None, n=0, head=50):
        if fill is not None:
            h = n * head // 100
            for x in fill[:h]: a(x)
            del fill[:h]
            n -= h
        for k, g in enumerate(groups):
            for x in g: a(x)
            if fill is not None:
                m = n * (k + 1) // len(groups) - n * k // len(groups)
                for x in fill[:m]: a(x)
                del fill[:m]
    O0, O1, FV0, FU0, FV1, FU1, KA = 148, 201, 36, 68, 148, 116, 100
    k0, k1 = kgen_split(0, O0, not E("PK0")), kgen_split(1, O1, True)
    if E("PB"): stamp(a, 8)
    if E("XT"):
        a(f"""
        s_cmp_lg_u32 s{S_LW}, 0
        s_cbranch_scc1 L_noxt
        s_add_u32 s{T0}, s{S_C0}, 2
        s_sub_u32 s{T1}, s{T0}, 7
        s_cmp_ge_u32 s{T0}, 7
        s_cselect_b32 s{T0}, s{T1}, s{T0}
        s_lshl_b32 s{T0}, s{T0}, 7
        s_add_u32 s{T0}, s{T0}, {32*896}
        v_mul_u32_u24 v14, 896, v0
        buffer_load_dword v6, v14, {sr(SRD_X,4)}, s{T0} offen
L_noxt:
        """)
    for ins in helper_setup(): a(ins)
    a(f"""
    s_waitcnt lgkmcnt(0)
    s_lshl_b32 s{T1}, s51, 16
    s_and_b32 s51, s51, 0xffff0000
    s_lshl_b32 s{T2}, s52, 16
    s_and_b32 s52, s52, 0xffff0000
    s_cmp_ge_u32 s{S_LW}, 2
    s_cselect_b32 s51, s51, s{T1}
    s_cselect_b32 s{S_DSK}, s52, s{T2}
    v_mov_b32 v12, s51
    v_mul_f32 v12, {f32(LOG2E)}, v12
    v_exp_f32 v12, v12
    s_nop 0
    v_cvt_pk_bf16_f32 v12, v12, v12
    v_and_b32 v12, 0xffff0000, v12         ; dt
    v_add_f32 v13, v12, v12                ; 2 dt
    """)
    if E("PB"): stamp(a, 9)
    a("""
    s_barrier                              ; B0
    s_waitcnt vmcnt(0)
    """)
    stamp(a, 1)
    fill = k0[0] + k1[0]
    if E("X_NOFILL"): fill = []
    SL = [int(x) for x in E("SL", "120,150,50").split(",")]
    emit([[]], fill, SL[0])
    a("s_barrier")
    emit([[]], fill, SL[1])
    a("s_barrier")
    a(f"global_load_dword v6, v7, {sr(S_DBG,2)} sc1")
    hx = (dma_x(1) + dma_x(2))[NX:]
    HB = min(len(hx), int(E("HB", "6")))
    emit(hx[:HB] or [[]], fill, SL[2], 0)
    a("s_barrier")
    stamp(a, 2)
    HC = min(len(hx), HB + int(E("HC", "6")))
    assert NX + HC >= 6
    emit(hx[HB:HC] or [[]], fill, int(E("SLC", "10")), 0)
    a(f"""
    s_mov_b32 s{T2}, 0
    s_waitcnt vmcnt({min(HC, NX + HC - 6)})
L_hs:
    v_cmp_eq_u32 vcc, 0, v6
    s_cbranch_vccz L_hs_ok
    s_sleep 8
    global_load_dword v6, v7, {sr(S_DBG,2)} sc1
    s_add_u32 s{T2}, s{T2}, 1
    s_waitcnt vmcnt(0)
    s_cmp_lt_u32 s{T2}, {SPIN_MAX}
    s_cbranch_scc1 L_hs
L_hs_ok:
    s_barrier                              ; BX1
    s_setprio 1
    """)
    emit(hx[HC:] or [[]])
    emit([[]], fill, int(E("SLX", "110")))
    a("s_waitcnt vmcnt(0)\ns_barrier")
    for x in fill: a(x)
    for i in range(4):
        a(f"v_mov_b32 v{ZR+i}, 0")
    def frags(base):
        return [f"ds_read_b128 {vr(base + 4*ks, 4)}, v24 offset:{32*ks}" for ks in range(8)]
    ds = k0[1] + frags(FV0) + k0[2] + frags(FU0) + k1[1] + frags(FV1) + k1[2] + frags(FU1)
    early = int(E("DSE", "0"))
    a(f"""
    s_mov_b32 m0, s18
    v_lshl_add_u32 v6, v0, 3, s13
    ds_write_b64 v6, {vr(ZR,2)}
    v_add_u32 v6, s19, v0
    ds_write_b8 v6, v{ZR}
    """)
    for x in ds[:early]: a(x)
    a(f"""
    s_cmp_ge_u32 s2, {0 if E("X_NOCONV") else 224}
    s_cbranch_scc1 L_p3
    """)
    pp = max(early, int(E("UPOLL", "0")))
    for x in ds[early:pp]: a(x)
    a(f"""
    s_mov_b64 exec, 1
    global_atomic_add v14, v{H_UTC}, v{ZR}, {sr(S_CNT,2)} sc0 sc1
    s_mov_b64 exec, -1
    """)
    for x in ds[pp:]: a(x)
    stamp(a, 3)
    for ks in range(8):
        if ks == 0: a("s_waitcnt lgkmcnt(15)")
        a(mfma(KA, FU0 + 4*ks, FV0 + 4*ks, None if ks == 0 else KA))
    a(f"""
    s_waitcnt vmcnt(0)
    v_readfirstlane_b32 s{T0}, v14
    s_cmp_eq_u32 s{T0}, 22
    s_cselect_b32 s11, 1, 0
    s_cbranch_scc0 L_u_late
    s_add_u32 m0, s17, {L_U + 512}
    s_nop 0
    buffer_load_dwordx4 v{H_UTV}, {w}, s14 offen {LD} lds
    s_add_u32 m0, m0, 1024
    s_nop 0
    buffer_load_dwordx4 v{H_UTV}, {w}, s15 offen {LD} lds
L_u_late:
    """)
    for ks in range(8):
        a(f"s_waitcnt lgkmcnt({7 - ks})")
        a(mfma(KA, FU1 + 4*ks, FV1 + 4*ks, KA))
    stamp(a, 4)
    a(f"""
    s_bitcmp1_b32 s{S_LW}, 0
    s_cbranch_scc0 L_even
    v_mov_b32 v15, 1
    s_nop 8
    ds_write_b128 v25, {vr(KA,4)}
    ds_write_b128 v25, {vr(KA+4,4)} offset:1024
    ds_write_b128 v25, {vr(KA+8,4)} offset:2048
    s_waitcnt lgkmcnt(0)
    s_mov_b64 exec, 1
    ds_add_u32 v{H_CNT}, v15
    s_mov_b64 exec, -1
    s_branch L_nofin
L_even:
    ds_read_b32 v15, v{H_CNT}
    s_waitcnt lgkmcnt(0)
    v_readfirstlane_b32 s{T0}, v15
    s_cmp_lt_u32 s{T0}, 2
    s_cbranch_scc1 L_even
    s_nop 0
    """)
    for k in range(3):
        a(f"ds_read_b128 {vr(60+4*k,4)}, v25 offset:{1024*k}")
    for k in range(3):
        a(f"s_waitcnt lgkmcnt({2-k})")
        for e in range(4):
            a(f"v_add_f32 v{KA+4*k+e}, v{KA+4*k+e}, v{60+4*k+e}")
    def store(nd, reg, off):
        if nd == 2:
            a(f"ds_write_b64 v{H_K2}, {vr(reg,2)} offset:{off}")
        else:
            a(f"ds_write_b128 v{H_K4}, {vr(reg,4)} offset:{off}")
    kgen_expand(a, store, KA)
    a(f"""
L_nofin:
    s_cmp_lg_u32 s11, 0
    s_cbranch_scc1 L_u_done
    """)
    poll(a, "u", H_UTC, "22", 1)
    a(f"""
    s_add_u32 m0, s17, {L_U + 512}
    s_nop 0
    buffer_load_dwordx4 v{H_UTV}, {w}, s14 offen {LD} lds
    s_add_u32 m0, m0, 1024
    s_nop 0
    buffer_load_dwordx4 v{H_UTV}, {w}, s15 offen {LD} lds
L_u_done:
    """)
    conv(a)
    a.label("L_p3")
    stamp(a, 7)
    outproj(a)

def fused():
    a = Asm()
    a(f"""
    s_load_dwordx4 s[4:7], s[0:1], 0
    s_load_dwordx2 s[22:23], s[0:1], 104
    s_load_dwordx4 s[96:99], s[0:1], 88
    s_load_dwordx8 s[8:15], s[0:1], 32
    s_load_dwordx4 s[16:19], s[0:1], 64
    s_load_dwordx2 s[20:21], s[0:1], 80
    s_load_dwordx2 s[100:101], s[0:1], 16
    s_cmp_ge_u32 s2, 256
    s_cbranch_scc1 L_quit0
    """)
    prof_begin(a)
    a(f"""
    v_lshrrev_b32 v1, 6, v0
    v_and_b32 v0, 63, v0
    s_and_b32 s{T0}, s2, 7
    v_readfirstlane_b32 s{S_WAVE}, v1
    s_lshr_b32 s{T1}, s2, 3
    s_lshl_b32 s{T2}, s{T1}, 2
    s_add_u32 s{T2}, s{T2}, s{S_WAVE}
    s_cmp_ge_u32 s{S_WAVE}, 4
    s_cselect_b32 s{T2}, 99, s{T2}
    s_cmp_ge_u32 s{T2}, {"0" if E("X_NOPF") else "(L_bad-L_pc+8191)/8192"}
    s_cbranch_scc1 L_nopf
    s_getpc_b64 s[48:49]
L_pc:
    s_lshl_b32 s{T2}, s{T2}, 13
    v_lshl_add_u32 v2, v0, 7, s{T2}
    v_min_u32 v2, L_bad-L_pc, v2
    global_load_dword v253, v2, s[48:49]
L_nopf:
    s_mul_i32 s{T0}, s{T0}, 31
    s_add_u32 s{T0}, s{T0}, s{T1}          ; t
    s_cmp_ge_u32 s{T1}, 31
    s_cselect_b32 s{T0}, 242, s{T0}
    s_min_u32 s{T0}, s{T0}, 242
    s_mov_b32 s{T2}, 205
    s_cmp_lt_u32 s{T0}, 110
    s_cselect_b32 s{T1}, 0, 110
    s_cselect_b32 s{T2}, s{T2}, 171
    s_cselect_b32 s{T3}, 5, 6
    s_cselect_b32 s{S_CB}, 0, 5
    s_sub_u32 s{T0}, s{T0}, s{T1}
    s_mul_i32 s{S_RB}, s{T0}, s{T2}
    s_lshr_b32 s{S_RB}, s{S_RB}, 10
    s_mul_i32 s{T1}, s{S_RB}, s{T3}
    s_sub_u32 s{T0}, s{T0}, s{T1}
    s_add_u32 s{S_CB}, s{S_CB}, s{T0}
    s_add_u32 s{S_C0}, s{S_RB}, s{S_CB}
    s_mul_i32 s{T0}, s{S_C0}, 37
    s_lshr_b32 s{T0}, s{T0}, 8
    s_mul_i32 s{T0}, s{T0}, 7
    s_sub_u32 s{S_C0}, s{S_C0}, s{T0}
    {"s_and_b32 s%d, s%d, %s" % (S_C0, S_C0, E("X_ROT")) if E("X_ROT") else ""}
    s_min_u32 s{S_P}, s2, 223
    s_and_b32 s{S_LW}, s{S_WAVE}, 3
    s_lshl_b32 s{S_LW1K}, s{S_LW}, 10
    v_lshrrev_b32 v4, 3, v0
    s_lshl_b32 s{T1}, s{S_LW}, 3
    v_add_u32 v4, s{T1}, v4
    v_lshrrev_b32 v5, 1, v4
    v_xor_b32 v5, v5, v0
    v_and_b32 v5, 7, v5
    v_mul_u32_u24 v2, 896, v4
    v_lshl_add_u32 v2, v5, 4, v2
    v_lshrrev_b32 v4, 4, v0
    v_lshlrev_b32 v5, 2, v4
    v_xor_b32 v5, v5, v0
    v_and_b32 v5, 15, v5
    s_lshl_b32 s{T1}, s{S_LW}, 2
    v_add_u32 v4, s{T1}, v4
    v_mul_u32_u24 v3, 2688, v4
    v_lshl_add_u32 v3, v5, 4, v3
    s_mov_b32 s{S_CH}, s{S_C0}
    s_mul_i32 s58, s{S_RB}, {96*896}
    s_sub_u32 s{SRD_X+2}, {X_BYTES}, s58
    s_mov_b32 s{SRD_X+3}, 0x20000
    s_lshl_b32 s59, s{S_CB}, 8
    s_sub_u32 s{SRD_W+2}, {W_BYTES}, s59
    s_mov_b32 s{SRD_W+3}, 0x20000
    s_cmp_ge_u32 s{S_RB}, 22
    s_cselect_b32 s{SRD_X+2}, 0, s{SRD_X+2}
    s_cselect_b32 s{SRD_W+2}, 0, s{SRD_W+2}
    s_lshl_b32 s{T2}, s{S_P}, 2
    s_lshl_b32 s{T0}, s{S_P}, 10
    s_lshl_b32 s{T1}, s{S_LW}, 8
    s_add_u32 s{T0}, s{T0}, s{T1}
    v_lshl_add_u32 v1, v0, 2, s{T0}
    s_cmp_eq_u32 s2, {ZWG}
    s_waitcnt lgkmcnt(0)
    s_cbranch_scc1 L_zero
L_nozero:
    s_add_u32 s{SRD_X}, s{S_X}, s58
    s_addc_u32 s{SRD_X+1}, s{S_X+1}, 0
    s_add_u32 s{SRD_W}, s{S_W}, s59
    s_addc_u32 s{SRD_W+1}, s{S_W+1}, 0
    s_cmp_ge_u32 s{S_WAVE}, 4
    s_cbranch_scc0 L_first
    s_setprio 3
    {"s_sleep %s" % E("X_PDEL") if E("X_PDEL") else ""}
    global_load_dword v8, v1, s[8:9]
    global_load_dword v9, v1, s[10:11]
    global_load_dword v10, v1, s[12:13]
    global_load_dword v11, v1, s[14:15]
    v_mov_b32 v7, 0
        s_load_dword s51, s[16:17], s{T2}
    s_load_dword s52, s[18:19], s{T2}
    s_add_u32 s{S_CNT}, s{S_WS}, {WS_CNT}
    s_addc_u32 s{S_CNT+1}, s{S_WS+1}, 0
    s_setprio 0
    s_branch L_helper
L_first:
    """)
    for g_ in dma_chunk(0):
        for x in g_: a(x)
    a(f"""
    s_mov_b32 s{SRD_WS}, s20
    s_mov_b32 s{SRD_WS+1}, s21
    s_mov_b32 s{SRD_WS+2}, 896
    s_mov_b32 s{SRD_WS+3}, 0x20000
    s_mov_b32 m0, {L_GATE}
    v_lshlrev_b32 v4, 4, v0
    buffer_load_dwordx4 v4, {sr(SRD_WS,4)}, 0 offen lds
    """)
    a(f"""
    s_branch L_gemm0
L_zero:
    s_add_u32 s{S_CNT}, s{S_WS}, {WS_CNT}
    s_addc_u32 s{S_CNT+1}, s{S_WS+1}, 0
    """)
    stamp(a, 3)
    a(f"""
    s_mul_i32 s{T0}, s{S_WAVE}, {(NLINE // 8) << CS}
    v_lshl_add_u32 v4, v0, {CS}, s{T0}
    v_mov_b32 v20, 0
    v_mov_b32 v21, 0
    v_mov_b32 v22, 0
    v_mov_b32 v23, 0
    s_bfm_b64 exec, {NLINE // 8}, 0
    global_store_dwordx4 v4, v[20:23], {sr(S_CNT,2)} sc0 sc1
    s_mov_b64 exec, -1
    s_lshl_b32 s{T0}, s{S_WAVE}, 3
    v_add_u32 v4, s{T0}, v0
    v_mul_u32_u24 v4, {TILE_B}, v4
    v_add_u32 v4, {WS_ONE}, v4
    v_mov_b32 v16, 0x3f803f80
    v_mov_b32 v17, v16
    v_mov_b32 v18, v16
    v_mov_b32 v19, v16
    s_mov_b64 exec, 0xff
    global_store_dwordx4 v4, v[16:19], {sr(S_WS,2)} sc0 sc1
    s_mov_b64 exec, -1
    v_mov_b32 v6, 0
    v_mov_b32 v7, 1
    s_waitcnt vmcnt(0)
    s_barrier
    s_cmp_lg_u32 s{S_WAVE}, 4
    s_cbranch_scc1 L_nozero
    s_mov_b64 exec, 1
    global_store_dword v6, v7, {sr(S_DBG,2)} sc0 sc1
    s_mov_b64 exec, -1
    """)
    stamp(a, 4)
    a("s_waitcnt vmcnt(0)")
    stamp(a, 5)
    a(f"""
    s_branch L_nozero
L_helper:
    """)
    helper_waves(a)
    a(f"""
L_quit0:
    s_endpgm
L_gemm0:
    """)
    if E("PB"): stamp(a, 10)
    a(f"""
    s_setprio 2
    s_add_u32 s{S_CNT}, s{S_WS}, {WS_CNT}
    s_addc_u32 s{S_CNT+1}, s{S_WS+1}, 0
    v_mov_b32 v252, v2
    v_mov_b32 v229, v3
    v_mov_b32 v4, 0
    v_mov_b32 v5, 0
    v_lshlrev_b32 v6, 3, v0
    v_and_b32 v6, 63, v6
    v_add_u32 v6, {L_CNT}, v6
    ds_write_b64 v6, v[4:5]
    v_lshlrev_b32 v{A_L16}, 4, v0
    v_mov_b32 v228, 0
    """)
    gemm_waves(a)
    attention(a)
    if not E('PA'): stamp(a, 8)
    reduce(a, True)
    a.label("L_fin")
    store_o(a)
    a.label("L_end")
    prof_end(a, 0, S_WS, S_WAVE)
    a.label("L_quit")
    a("s_endpgm")
    fallback(a)
    return a

def build():
    ref = open("cdna_kernels/%s.s.ref" % NAME).read().split("\n")
    out = "\n".join(ref[:15]) + "\n"
    out += f"; @launch grid=(256,1,1) block=(512,1,1) lds={LDS_TOTAL}\n"
    out += '.amdgcn_target "amdgcn-amd-amdhsa--gfx950"\n.text\n'
    out += kernel_head(NAME + "_kernel") + fused().text()
    out += '.section .rodata,"a"\n'
    out += kernel_desc(NAME + "_kernel", NV, 102)
    return out

if __name__ == "__main__":
    import sys
    dst = sys.argv[1] if len(sys.argv) > 1 else "cdna_kernels/%s.s" % NAME
    open(dst, "w").write(build())
```

```python
from common import *
from k1 import kgen_split, kgen_expand
E = os.environ.get

WS_CNT = 0x1100000
WS_ONE = WS_KC
WS_SIZE = 0x1200000
QL = int(E('QL', '6'))
CS = int(E('CS', '8'))
B_O, B_BP, B_U, B_Q = 4, 8, (12 if QL == 6 else 64 << CS), ((64 if QL == 6 else 96) << CS)
KVR = int(E('KVR', '1'))
REPM = sum(1 << (4 * i) for i in range(KVR))
B_R = B_Q + ((1 << QL) << CS) - (64 << CS)
NLINE = (B_Q >> CS) + (1 << QL) + 64 * (KVR - 1)
SPIN_MAX = 4096
ZWG = 248

TAB_B = 32 * 272
L_XCH = 4 * TAB_B
PL_B = 8224
L_KC = 8 * PL_B
KC_B = 4160
L_U = L_KC + 2 * KC_B
U_B = 4608
L_RED = L_U + 2 * U_B
L_X2 = L_RED + 49152
L_X1 = L_X2 - 24576
L_GATE = L_X2 + 24576
L_CNT = L_GATE + 1024
L_MAX = L_CNT + 64
LDS_TOTAL = L_MAX + 4096
assert LDS_TOTAL <= 163840
SLOT_AT = [L_GATE - 28672 - 20480 * i for i in range(7)]
assert SLOT_AT[6] >= 0 and L_X1 >= SLOT_AT[1]

S_X, S_W = 4, 6
S_WS = 22
S_WAVE, S_RB, S_CB, S_P = 24, 25, 26, 27
SRD_X, SRD_W, SRD_WS = 28, 32, 36
T0, T1, T2, T3 = 40, 41, 42, 43
S_DSK = 44
S_LW1K = 45
S_C0 = 46
S_LW = 50
S_CT = 53
S_CH = 57
S_CNT = 60
S_H, S_QB = 62, 63
S_OUT, S_DBG, S_WO = 96, 98, 100
ST = E("ST", "sc1")
LD = "sc1"
NV = 256

def poll(a, tag, vaddr, vexp, lanes, sleep=0, limit=SPIN_MAX):
    first = f"s_branch L_poll1_{tag}" if sleep else ""
    a(f"""
    s_mov_b64 exec, {lanes}
    v_mov_b32 v15, 0
    s_mov_b32 s{T0}, 0
    {first}
L_poll_{tag}:
    {"s_sleep %d" % sleep if sleep else ""}
L_poll1_{tag}:
    global_atomic_add v14, v{vaddr}, v15, {sr(S_CNT,2)} sc0 sc1
    s_add_u32 s{T0}, s{T0}, 1
    s_cmp_ge_u32 s{T0}, {limit}
    s_cbranch_scc1 L_give_{tag}
    s_waitcnt vmcnt(0)
    v_cmp_ne_u32 vcc, {vexp}, v14
    s_cbranch_vccnz L_poll_{tag}
L_give_{tag}:
L_ok_{tag}:
    s_mov_b64 exec, -1
    """)

def poll2(a, tag, vaddr, vexp, lanes, gap):
    at = lambda d: f"global_atomic_add v{d}, v{vaddr}, v15, {sr(S_CNT,2)} sc0 sc1"
    a(f"""
    s_mov_b64 exec, {lanes}
    v_mov_b32 v15, 0
    s_mov_b32 s{T0}, 0
    {at(14)}
L_poll_{tag}:
    s_sleep {gap}
    {at(13)}
    s_waitcnt vmcnt(1)
    v_cmp_ne_u32 vcc, {vexp}, v14
    s_cbranch_vccz L_ok_{tag}
    s_sleep {gap}
    {at(14)}
    s_add_u32 s{T0}, s{T0}, 1
    s_waitcnt vmcnt(1)
    v_cmp_ne_u32 vcc, {vexp}, v13
    s_cbranch_vccz L_ok_{tag}
    s_cmp_lt_u32 s{T0}, {SPIN_MAX}
    s_cbranch_scc1 L_poll_{tag}
L_ok_{tag}:
    s_mov_b64 exec, -1
    """)

def lds_sync(a, idx, tag, vm=True):
    a(f"""
    v_mov_b32 v15, 1
    s_waitcnt {"vmcnt(0) " if vm else ""}lgkmcnt(0)
    s_mov_b64 exec, 1
    ds_add_u32 v23, v15 offset:{4*idx}
    s_mov_b64 exec, -1
    s_branch L_spin1_{tag}
L_spin_{tag}:
    s_sleep {E("SPS", "0")}
L_spin1_{tag}:
    ds_read_b32 v15, v23 offset:{4*idx}
    s_waitcnt lgkmcnt(0)
    v_readfirstlane_b32 s{T0}, v15
    s_cmp_lt_u32 s{T0}, 4
    s_cbranch_scc1 L_spin_{tag}
    """ if E("SPS") else f"""
    v_mov_b32 v15, 1
    s_waitcnt {"vmcnt(0) " if vm else ""}lgkmcnt(0)
    s_mov_b64 exec, 1
    ds_add_u32 v23, v15 offset:{4*idx}
    s_mov_b64 exec, -1
L_spin_{tag}:
    ds_read_b32 v15, v23 offset:{4*idx}
    s_waitcnt lgkmcnt(0)
    v_readfirstlane_b32 s{T0}, v15
    s_cmp_lt_u32 s{T0}, 4
    s_cbranch_scc1 L_spin_{tag}
    """)

XA, XB, WA = 3, 10, 8
XAR = [3, 4, 5, 15]
WF, ACC, XF, PK = 16, 128, 176, 240
RING = 12
NX = int(E('NX', '0'))
NG = int(E('NG', '4'))
SRD_R, SRD_T = 4, 92
ONES = [160 + 16*b + 8 + i for b in (3, 2, 1, 0) for i in range(8)]

def gemm_body(a, kind, tag):
    nw = 1 if kind == "gate" else 2
    GROUPS = [[0], [1, 2], [3, 4], [5, 6]]
    def soff(it):
        grp = [g_ for g_ in GROUPS if it in g_][0]
        return SLOT_AT[it] - SLOT_AT[grp[-1]]
    def rd_w(g):
        it, ks = divmod(g, 4)
        if kind == "gate":
            return [f"ds_read_b128 {vr(WF+4*g,4)}, v8 offset:{32*ks}"]
        return [f"ds_read_b64_tr_b16 {vr(WF+4*g,2)}, v8 offset:{soff(it) + ks*4096}",
                f"ds_read_b64_tr_b16 {vr(WF+4*g+2,2)}, v8 offset:{soff(it) + ks*4096+1024}"]
    def mm(g, i, x):
        w, d = WF + 4*g, ACC + 16*i
        c = None if g == 0 else d
        return mfma(d, x, w, c) if kind == "v" else mfma(d, w, x, c)
    def epi(i):
        r = []
        base = ACC + 16*i
        if kind == "gate":
            return [f"v_cvt_pk_bf16_f32 v{base}, v{base}, v{base}",
                    f"v_and_b32 v{base}, 0xffff0000, v{base}",
                    f"v_mul_f32 v{base}, {f32(-LOG2E)}, v{base}",
                    f"v_exp_f32 v{base}, v{base}", "s_nop 0",
                    f"v_add_f32 v{base}, 1.0, v{base}",
                    f"v_rcp_f32 v{base}, v{base}", "s_nop 0",
                    f"v_cvt_pk_bf16_f32 v{base}, v{base}, v{base}",
                    f"v_and_b32 v{base}, 0xffff0000, v{base}",
                    f"buffer_store_dword v{base}, v6, {sr(SRD_R,4)}, 0 offen offset:{128*i} {ST}"]
        so = ["0", "s96", "s97"][i]
        for h in range(2):
            if kind == "qk":
                r += [f"v_mul_f32 v{base+8*h+j}, s47, v{base+8*h+j}" for j in range(8)]
            r += [f"v_cvt_pk_bf16_f32 v{PK+4*h+j}, v{base+8*h+2*j}, v{base+8*h+2*j+1}" for j in range(4)]
            r.append(f"buffer_store_dwordx4 {vr(PK+4*h,4)}, v{6+h}, {sr(SRD_R,4)}, {so} offen {ST}")
        return r
    VX, VW = 252, 229
    ut = 0 if kind == "gate" else 3
    def usig(lbl):
        return f"""
            s_mov_b64 exec, s[48:49]
            s_cbranch_execz L_{lbl}_{tag}
            global_atomic_add v238, v239, {sr(S_CNT,2)} sc1
            s_mov_b32 s48, 0
L_{lbl}_{tag}:
            s_mov_b64 exec, -1"""
    if E("PB"): stamp(a, 8)
    for g_ in dma_chunk(1, VX, VW) + dma_chunk(2, VX, VW):
        for x in g_: a(x)
    if E("PB"): stamp(a, 9)
    loads = [dma_chunk(3, VX, VW) + dma_chunk(4, VX, VW),
             [[f"global_load_dword v253, v228, {sr(S_DBG,2)} sc1"]] + dma_chunk(5, VX, VW) + dma_chunk(6, VX, VW),
             None, None]
    xs_ = dma_x(1, VX) + dma_x(2, VX)
    loads[2], loads[3] = xs_[:NX], []
    waits = [10, 10 + ut, 10, NX + (0 if kind == 'gate' else 1)]
    xslot = 0
    for gi, grp in enumerate(GROUPS):
        a(f"s_waitcnt vmcnt({waits[gi]})" + (" lgkmcnt(0)" if gi == 0 else ""))
        a("s_barrier")
        if gi in (0, 3): stamp(a, 1 + gi // 3)
        if E('PA') and not E('PB') and gi in (1, 2): stamp(a, 7 + gi)
        ld = loads[gi]
        queue, steps = [], []
        nread = 0
        order = [grp[1], grp[2], grp[0]] if False else grp
        for it in order:
            nt = 3 if it == 0 else 1
            for ks in range(4):
                g = 4*it + ks
                for r in rd_w(g): queue.append((r, None)); nread += 1
                ms = []
                for i in range(nt):
                    reg = XF + 4 * (xslot % RING)
                    queue.append((f"ds_read_b128 {vr(reg,4)}, v{XAR[ks]} offset:{soff(it) + i*4096}", xslot)); nread += 1
                    ms.append((mm(g, i, reg), xslot))
                    xslot += 1
                steps.append((nread, ms))
            if it == 0 and kind != "gate":
                for i in range(3):
                    queue.append((f"ds_read_b64_tr_b16 {vr(PK+4*i,2)}, v9 offset:{i*4096}", None))
                    queue.append((f"ds_read_b64_tr_b16 {vr(PK+4*i+2,2)}, v9 offset:{i*4096+2048}", None))
                    nread += 2
            if kind == "gate" and it < 6:
                queue[-1] = (queue[-1][0] + f"""
                s_add_u32 s{S_C0}, s{S_C0}, 1
                s_cmp_eq_u32 s{S_C0}, 7
                s_cselect_b32 s{S_C0}, 0, s{S_C0}
                s_lshl_b32 s47, s{S_C0}, 7
                v_add_u32 v8, s47, v9""", queue[-1][1])
        if gi < 3:
            upd = "".join(f"\nv_subrev_u32 v{r}, 40960, v{r}" for r in XAR + ([] if kind == "gate" else [8]))
            queue[-1] = (queue[-1][0] + upd, queue[-1][1])
        issued, freed = 0, steps[0][1][0][1]
        def issue(upto):
            nonlocal issued
            while issued < min(upto, len(queue)) and (queue[issued][1] is None or queue[issued][1] < freed + RING):
                a(queue[issued][0]); issued += 1
        prev = 0
        for si, (need, ms) in enumerate(steps):
            issue(max(need, prev + 15))
            assert issued >= need
            if si == 0:
                if gi == 2 and kind != "gate":
                    a(f"""
                    v_readfirstlane_b32 s{T2}, v253
                    s_and_b32 s{T2}, s{T2}, s48
                    s_sub_u32 s48, s48, s{T2}
                    v_mov_b32 v253, s{T2}
                    s_mov_b64 exec, 1
                    global_atomic_add v238, v253, {sr(S_CNT,2)} sc1
                    s_mov_b64 exec, -1
                    """)
                for g_ in ld[:2]:
                    for x in g_: a(x)
                ld = ld[2:]
            a(f"s_waitcnt lgkmcnt({issued - need})")
            prev = need
            if gi == 3 and si == len(steps) - 1:
                last = ms[0]
                break
            for m, xs in ms:
                a(m)
                freed = xs + 1
                issue(min(issued + 3, need + 15))
                k = 1 if gi == 0 else 2
                for g_ in ld[:k]:
                    for x in g_: a(x)
                ld = ld[k:]
        assert not ld
        assert issued == len(queue)
        if gi == 0 and kind != "gate":
            a("s_waitcnt lgkmcnt(0)")
            for i in range(3):
                a(f"buffer_store_dwordx4 {vr(PK+4*i,4)}, v14, {sr(SRD_T,4)}, {['0','s96','s97'][i]} offen {ST}")
    X0 = xslot % RING
    def rd_x(n):
        i, g = 1 + n // 24, 4 + n % 24
        return f"ds_read_b128 {vr(XF+4*((n+X0)%RING),4)}, v{XB + g%4} offset:{(i-1)*24576 + (g//4-1)*4096}"
    if NX: a(f"s_waitcnt vmcnt({NX - 6})")
    a("s_barrier")
    stamp(a, 3)
    AHEAD = 8
    for n in range(AHEAD): a(rd_x(n))
    a(last[0])
    issued = AHEAD
    fill = []
    BX2 = int(E("BX2", "18"))
    for n in range(48):
        if n == BX2:
            if NX == 12: a(f"s_waitcnt vmcnt({1 if kind == 'gate' else 2})")
            a(f"s_waitcnt lgkmcnt(0)\ns_barrier")
            if not E('PB'): stamp(a, 10)
            while issued < n + AHEAD + 3:
                a(rd_x(issued)); issued += 1
        a(f"s_waitcnt lgkmcnt({issued - n - 1})")
        a(mm(4 + n % 24, 1 + n // 24, XF + 4*((n+X0) % RING)))
        lim = 24 if n < BX2 else 48
        if issued < min(lim, n + 1 + (AHEAD if n < BX2 else AHEAD + 3)):
            a(rd_x(issued)); issued += 1
        if n == 0 and kind != "gate":
            a(usig("l"))
        if n == 3: fill = epi(0)
        if n == 27: fill = epi(1)
        for x in fill[:4]: a(x)
        fill = fill[4:]
    assert issued == 48
    a("s_nop 11")
    for x in epi(2): a(x)

def gemm_waves(a):
    a(f"""
    s_lshl_b32 s{S_CT}, s{S_CB}, 2
    s_add_u32 s{S_CT}, s{S_CT}, s{S_WAVE}
    v_and_b32 v1, 31, v0
    v_lshrrev_b32 v2, 5, v0                ; hi
    v_lshrrev_b32 v3, 1, v0
    v_and_b32 v3, 7, v3
    v_xor_b32 v3, v3, v2
    v_lshlrev_b32 v10, 7, v1
    v_lshl_add_u32 v10, v3, 4, v10
    v_xor_b32 v11, 32, v10
    v_xor_b32 v12, 64, v10
    v_xor_b32 v13, 96, v10
    v_and_b32 v4, 15, v0
    v_lshrrev_b32 v5, 4, v0
    s_lshl_b32 s{T0}, s{S_WAVE}, 1
    v_lshrrev_b32 v6, 1, v5
    v_add_u32 v6, s{T0}, v6
    v_lshrrev_b32 v7, 1, v4
    v_xor_b32 v6, v6, v7
    v_lshlrev_b32 v9, 7, v4
    v_lshl_add_u32 v9, v6, 4, v9
    v_and_b32 v16, 1, v5                   ; ih
    v_lshl_add_u32 v9, v16, 3, v9
    v_add_u32 v9, {SLOT_AT[0] + 16384}, v9
    s_mul_i32 s56, s{S_RB}, {3*TILE_B}
    s_lshl_b32 s{T1}, s{S_C0}, 12
    s_add_u32 s{T1}, s{T1}, s{S_LW1K}
    s_add_u32 s{T1}, s{T1}, s56
    v_add_u32 v14, s{T1}, v{A_L16}
    s_add_u32 s{SRD_T}, s{S_WS}, {WS_UT}
    s_addc_u32 s{SRD_T+1}, s{S_WS+1}, 0
    s_mov_b32 s{SRD_T+3}, 0x20000
    s_sub_u32 s{T0}, s{S_CB}, {E('UCB', '2')}
    s_cmp_lt_u32 s{T0}, 7
    s_cselect_b32 s{SRD_T+2}, {0 if E("X_NOUT") else 64*TILE_B}, 0
    s_cselect_b32 s48, 1, 0
    s_mov_b32 s49, 0
    s_lshl_b32 s{T0}, s{S_C0}, 2
    s_add_u32 s{T0}, s{T0}, s{S_WAVE}
    s_lshl_b32 s{T0}, s{T0}, {CS}
    s_add_u32 s{T0}, s{T0}, {B_U}
    v_mov_b32 v238, s{T0}
    v_mov_b32 v239, 1
    s_cmp_ge_u32 s{S_RB}, 22
    s_cselect_b32 s48, 0, s48
    s_mul_i32 s{T2}, s{S_CT}, 37
    s_lshr_b32 s{T2}, s{T2}, 9
    s_mul_i32 s{T1}, s{T2}, 14
    s_sub_u32 s52, s{S_CT}, s{T1}          ; ct'
    s_lshl_b32 s{T2}, s{T2}, 21
    s_add_u32 s{SRD_R}, s{S_WS}, s{T2}
    s_addc_u32 s{SRD_R+1}, s{S_WS+1}, 0
    s_mov_b32 s{SRD_R+2}, {64*TILE_B}
    s_mov_b32 s{SRD_R+3}, 0x20000
    s_mov_b32 s96, {TILE_B}
    s_mov_b32 s97, {2*TILE_B}
    v_bfe_u32 v4, v0, 2, 2                 ; r
    v_lshl_add_u32 v17, v2, 3, v4          ; 8 hi + r
    v_lshlrev_b32 v8, 8, v17
    v_xor_b32 v17, s{S_WAVE}, v4
    v_lshl_add_u32 v8, v17, 6, v8
    v_lshl_add_u32 v8, v16, 5, v8
    v_add_u32 v8, {SLOT_AT[0]}, v8
    v_and_b32 v17, 3, v0                   ; c
    v_add_u32 v3, {SLOT_AT[0] + 16384}, v10
    v_add_u32 v4, {SLOT_AT[0] + 16384}, v11
    v_add_u32 v5, {SLOT_AT[0] + 16384}, v12
    v_add_u32 v15, {SLOT_AT[0] + 16384}, v13
    v_add_u32 v10, {L_X1}, v10
    v_add_u32 v11, {L_X1}, v11
    v_add_u32 v12, {L_X1}, v12
    v_add_u32 v13, {L_X1}, v13
    s_cmp_ge_u32 s{S_CT}, 42
    s_cbranch_scc1 L_gate
    s_cmp_ge_u32 s{S_CT}, 28
    s_cbranch_scc1 L_v
    v_and_b32 v16, 1, v17
    v_lshrrev_b32 v17, 1, v17
    v_lshl_add_u32 v17, v16, 1, v17
    """)
    assert WS_Q == 0 and WS_K == 1 << 21 and WS_V == 2 << 21
    wa = "v_lshl_add_u32 v8, v17, 3, v8"
    a(wa)
    a(f"""
    s_cmp_ge_u32 s{S_CT}, 14
    s_cselect_b32 s47, 1.0, {f32(QSCALE)}
    s_lshl_b32 s{T1}, s52, 11
    s_add_u32 s{T0}, s56, s{T1}
    v_add_u32 v6, s{T0}, v{A_L16}
    v_add_u32 v7, 1024, v6
    """)
    gemm_body(a, "qk", "qk")
    a("s_branch L_signal")
    a.label("L_gate")
    a(f"""
    v_lshlrev_b32 v9, 4, v2
    v_add_u32 v9, {L_GATE}, v9
    s_lshl_b32 s47, s{S_C0}, 7
    v_add_u32 v8, s47, v9
    s_add_u32 s{SRD_R}, s{S_WS}, {WS_GT}
    s_addc_u32 s{SRD_R+1}, s{S_WS+1}, 0
    s_cmp_eq_u32 s{S_CT}, 42
    s_cselect_b32 s{SRD_R+2}, 8192, 0
    s_mul_i32 s{T0}, s{S_RB}, {96*4}
    v_lshl_add_u32 v6, v1, 2, s{T0}
    """)
    gemm_body(a, "gate", "g")
    a("s_branch L_signal")
    a.label("L_v")
    a(wa)
    a(f"""
    s_lshl_b32 s{T0}, s52, 9
    s_add_u32 s{T0}, s{T0}, s56
    v_mul_u32_u24 v6, 7168, v2
    v_lshl_add_u32 v6, v1, 4, v6
    v_add_u32 v6, s{T0}, v6
    v_add_u32 v7, 14336, v6
    """)
    gemm_body(a, "v", "v")
    a.label("L_signal")
    stamp(a, 4)
    a(f"""
    s_mul_i32 s{T0}, s{S_RB}, 3
    s_add_u32 s{T1}, s{T0}, 2
    s_min_u32 s{T1}, s{T1}, 63
    s_cmp_lt_u32 s{S_CT}, 14
    s_cselect_b32 s{T2}, 2, 4
    s_cselect_b32 s{T3}, 4, 2
    s_cselect_b32 s51, {B_Q}, 0
    s_cselect_b32 s55, 1, {REPM}
    s_lshr_b32 s{T0}, s{T0}, s{T2}
    s_lshr_b32 s{T1}, s{T1}, s{T2}
    s_cmp_eq_u32 s{T0}, s{T1}
    s_cselect_b32 s54, 3, 15
    s_mul_i32 s54, s54, s55
    s_mov_b32 s55, 0
    s_cmp_ge_u32 s{S_RB}, 22
    s_cselect_b32 s54, 0, s54
    s_mul_i32 s{T1}, s52, {8*147}
    s_lshr_b32 s{T1}, s{T1}, 10            ; (8 ct') / 7
    v_and_b32 v4, 1, v0
    v_add_u32 v4, s{T1}, v4
    v_lshlrev_b32 v4, s{T3}, v4
    v_bfe_u32 v5, v0, 1, 1
    s_mul_i32 s{T3}, s{T0}, 14             ; gate wave: first counter
    v_add3_u32 v4, v4, v5, s{T0}
    v_and_b32 v5, {(1 << QL) - 1}, v4
    v_lshrrev_b32 v4, {QL}, v4
    v_lshl_add_u32 v5, v5, {CS}, s51
    v_lshl_add_u32 v254, v4, 2, v5
    v_lshrrev_b32 v4, 2, v0
    v_lshlrev_b32 v5, {6 + CS}, v4
    v_min_u32 v4, 1, v4
    v_mul_u32_u24 v4, {B_R}, v4
    v_add3_u32 v254, v254, v4, v5
    s_cmp_lt_u32 s{S_CT}, 42
    s_cbranch_scc1 L_cnt_done
    v_add_u32 v16, s{T3}, v0
    v_lshl_add_u32 v254, v16, {CS}, {B_BP}
    s_mov_b32 s{T0}, 0x3fff
    s_cmp_eq_u32 s54, {3 * REPM}
    s_cselect_b32 s54, s{T0}, 0xfffffff
    s_cmp_eq_u32 s{S_CT}, 42
    s_cselect_b32 s54, s54, 0
L_cnt_done:
    """)
    attn_setup(a)
    a(f"""
    s_setprio {E("PRP", "3")}
    s_waitcnt vmcnt(0)
    s_mov_b64 exec, s[54:55]
    s_cbranch_execz L_nosig
    global_atomic_add v254, v239, {sr(S_CNT,2)} sc1
L_nosig:
    """)

Q, O, S, P, KV = 16, 48, 112, 144, 160
A_K, A_V0, A_V1, A_RED_, A_Q, A_L16, A_M0, A_M1, A_PA, A_PE, A_RR, A_OC, A_LC = 224, 225, 226, 227, 230, 231, 232, 233, 234, 235, 236, 237, 255
S_OFF = 9
A_RED = 227
S_EXV = 20

def kv_loads(b):
    r = KV + 16 * b
    w = sr(SRD_WS, 4)
    return [f"buffer_load_dwordx4 {vr(r,4)}, v{A_K}, {w}, s{S_OFF} offen {LD}",
            f"buffer_load_dwordx4 {vr(r+4,4)}, v{A_K}, {w}, s{S_OFF} offen offset:1024 {LD}",
            f"buffer_load_dwordx4 {vr(r+8,4)}, v{A_V0}, {w}, s{S_OFF} offen {LD}",
            f"buffer_load_dwordx4 {vr(r+12,4)}, v{A_V1}, {w}, s{S_OFF} offen {LD}",
            f"s_add_u32 s{S_OFF}, s{S_OFF}, {TILE_B}"]

def slot(a, n, qk, pv, post=None, first=False, mid=None, tight=False):
    sc, sn = S + 16 * (n & 1), S + 16 * ((n + 1) & 1)
    pc, pp = P + 8 * (n & 1), P + 8 * ((n + 1) & 1)
    ms = [None] * 4
    if qk is not None:
        k, q = KV + 16 * qk[0], Q + 8 * qk[1]
        ms[0] = mfma(sn, k, q, None)
        ms[1] = mfma(sn, k + 4, q + 4, sn)
    if pv is not None:
        v, o = KV + 16 * pv[0] + 8, O + 16 * pv[1]
        ms[2] = mfma(o, v, pp, None if first else o)
        ms[3] = mfma(o, v + 4, pp + 4, o)
    valu = []
    for g in range(4):
        for j in range(4):
            valu.append(f"v_exp_f32 v{sc+4*g+j}, v{sc+4*g+j}")
            if g > 0 and j == 0:
                valu.append(f"v_cvt_pk_bf16_f32 v{pc+2*g-2}, v{sc+4*g-4}, v{sc+4*g-3}")
                valu.append(f"v_cvt_pk_bf16_f32 v{pc+2*g-1}, v{sc+4*g-2}, v{sc+4*g-1}")
    valu.append(f"v_cvt_pk_bf16_f32 v{pc+6}, v{sc+12}, v{sc+13}")
    valu.append(f"v_cvt_pk_bf16_f32 v{pc+7}, v{sc+14}, v{sc+15}")
    cuts = [0, 3, 7, 10, 24] if tight else [0, 4, 10, 16, 24]
    for g in range(4):
        if g == 2 and mid:
            for e in mid: a(e)
        if ms[g]: a(ms[g])
        if post and post[g]: a(post[g])
        for x in valu[cuts[g]:cuts[g+1]]: a(x)

def red_writes(j):
    return [f"ds_write_b128 v{A_RED+j}, {vr(O+16*j+4*i,4)} offset:{1024*i}" for i in range(4)]

def attn_setup(a):
    a(f"""
    s_and_b32 s{S_H}, s2, 7
    s_lshl_b32 s{S_H}, s{S_H}, 1
    s_bfe_u32 s{T0}, s2, 0x10003
    s_add_u32 s{S_H}, s{S_H}, s{T0}
    s_lshr_b32 s{S_QB}, s2, 4
    s_mov_b32 s{SRD_WS}, s{S_WS}
    s_mov_b32 s{SRD_WS+1}, s{S_WS+1}
    s_mov_b32 s{SRD_WS+2}, {WS_SIZE}
    s_mov_b32 s{SRD_WS+3}, 0x20000
    s_mul_i32 s{T0}, s{S_H}, 7
    s_lshr_b32 s8, s{T0}, 1                ; u0
    s_mul_i32 s{S_OFF}, s{S_WAVE}, {16*TILE_B}
    s_lshl_b32 s{T2}, s8, 9
    v_add_u32 v{A_Q}, s{T2}, v{A_L16}
    v_add_u32 v{A_K}, {WS_K}, v{A_Q}
    v_bfe_u32 v8, v0, 2, 1
    v_bfe_u32 v9, v0, 3, 1
    v_and_b32 v10, 19, v0
    v_lshl_add_u32 v10, v8, 3, v10
    v_lshl_add_u32 v10, v9, 2, v10
    v_lshrrev_b32 v1, 5, v0                ; hi
    v_mul_u32_u24 v3, 7168, v1
    v_lshl_add_u32 v3, v10, 4, v3
    s_lshl_b32 s{T3}, s8, 7
    s_add_u32 s{T3}, s{T3}, {WS_V}
    v_add_u32 v{A_V0}, s{T3}, v3
    v_add_u32 v{A_V1}, 14336, v{A_V0}
    s_bitcmp1_b32 s{S_H}, 0
    s_mov_b32 s{S_EXV}, 0x0fffffff
    s_cselect_b32 s{S_EXV}, 0xfffffff0, s{S_EXV}
    s_cselect_b64 s[18:19], -1, 0
    s_mov_b32 s{S_EXV+1}, s{S_EXV}
    v_mov_b32 v8, {WS_ONE}
    v_cndmask_b32 v{A_V0}, v8, v{A_V0}, {sr(S_EXV,2)}
    v_cndmask_b32 v{A_V1}, v8, v{A_V1}, {sr(S_EXV,2)}
    """)
    for j in range(4):
        a(f"""
        s_add_u32 s{T3}, s{S_WAVE}, {j+1}
        s_and_b32 s{T3}, s{T3}, 3
        s_lshl_b32 s{T0}, s{S_QB}, 2
        s_add_u32 s{T0}, s{T0}, s{T3}
        s_mul_i32 s{10+j}, s{T0}, {TILE_B}
        s_mul_i32 s{T3}, s{T3}, 12288
        s_add_u32 s{T3}, s{T3}, {L_RED + (4096*j if j < 3 else 0)}
        v_add_u32 v{A_RED+j if j < 3 else A_RR}, s{T3}, v{A_L16}
        """)
    a(f"""
    s_lshl_b32 s3, s{T0}, 4
    s_add_u32 s3, s3, s{S_H}
    s_lshl_b32 s3, s3, 11
    s_add_u32 s3, s3, {WS_O}
    s_lshl_b32 s{T0}, s{T0}, {CS}
    s_add_u32 s{T0}, s{T0}, {B_O}
    v_mov_b32 v{A_OC}, s{T0}
    v_mov_b32 v{A_LC}, {L_CNT}
    """)
    a(f"""
    s_and_b32 s{T0}, s{S_H}, 1
    v_cmp_lt_u32 vcc, v1, s{T0}
    v_cmp_gt_u32 s[100:101], v1, s{T0}
    s_add_u32 s{T0}, s{S_H}, 1
    s_and_b32 s{T0}, s{T0}, 6
    v_cndmask_b32 v{A_M0}, -1, 0, vcc
    v_cndmask_b32 v{A_M1}, -1, 0, s[100:101]
    s_cmp_eq_u32 s{T0}, 0
    s_cselect_b32 s{T0}, 12, 24
    s_cselect_b32 s{T1}, 2, 4
    v_mov_b32 v{A_PE}, s{T0}
    v_writelane_b32 v{A_PE}, s{T1}, {4 if E("AP1") else 1}
    s_lshl_b32 s{T0}, s{S_H}, 2
    s_add_u32 s{T0}, s{T0}, s{S_WAVE}
    s_lshl_b32 s{T0}, s{T0}, {CS}
    s_and_b32 s{T1}, s{S_QB}, {KVR - 1}
    s_lshl_b32 s{T2}, s{T1}, {6 + CS}
    s_add_u32 s{T0}, s{T0}, s{T2}
    s_cmp_lg_u32 s{T1}, 0
    s_cselect_b32 s{T1}, {B_R}, 0
    s_add_u32 s{T0}, s{T0}, s{T1}
    s_and_b32 s{T1}, s{S_H}, {(1 << (QL - 4)) - 1}
    s_lshl_b32 s{T1}, s{T1}, 4
    s_add_u32 s{T1}, s{T1}, s{S_QB}
    s_lshl_b32 s{T1}, s{T1}, {CS}
    s_lshr_b32 s{T2}, s{S_H}, {QL - 4}
    s_lshl_b32 s{T2}, s{T2}, 2
    s_add_u32 s{T1}, s{T1}, s{T2}
    s_add_u32 s{T1}, s{T1}, {B_Q}
    {"v_lshl_add_u32 v%d, v0, %d, s%d" % (A_PA, CS, T0) if E("AP1") else "v_mov_b32 v%d, s%d" % (A_PA, T0)}
    v_writelane_b32 v{A_PA}, s{T1}, {4 if E("AP1") else 1}
    """)

def qmask(j):
    return [f"v_and_b32 v{Q+8*j}, v{A_M0}, v{Q+8*j}", f"v_and_b32 v{Q+8*j+1}, v{A_M0}, v{Q+8*j+1}",
            f"v_and_b32 v{Q+8*j+6}, v{A_M1}, v{Q+8*j+6}", f"v_and_b32 v{Q+8*j+7}, v{A_M1}, v{Q+8*j+7}"]

def attention(a):
    w = sr(SRD_WS, 4)
    stamp(a, 5)
    if E("X_DELAY"): a("s_sleep 64")
    if E("AP1"):
        a(f"""
        s_mov_b64 exec, -1
        s_cmp_eq_u32 s{S_WAVE}, 0
        s_cbranch_scc1 L_pa0
L_paw:
        ds_read_b32 v15, v{A_LC} offset:24
        s_waitcnt lgkmcnt(0)
        v_readfirstlane_b32 s{T0}, v15
        s_cmp_eq_u32 s{T0}, 0
        s_cbranch_scc1 L_paw
        s_branch L_pa1
L_pa0:
        """)
        if E("GAPA"): poll2(a, "a", A_PA, f"v{A_PE}", 31, int(E("GAPA")))
        else: poll(a, "a", A_PA, f"v{A_PE}", 31)
        a(f"ds_write_b32 v{A_LC}, v239 offset:24\nL_pa1:")
    elif E("GAPA"): poll2(a, "a", A_PA, f"v{A_PE}", 3, int(E("GAPA")))
    else: poll(a, "a", A_PA, f"v{A_PE}", 3)
    stamp(a, 6)
    if PROF and E("PCNT"): a(f"s_mov_b32 s84, s{T0}")
    def ldq(j):
        a(f"buffer_load_dwordx4 {vr(Q+8*j,4)}, v{A_Q}, {w}, s{10+j} offen {LD}")
        a(f"buffer_load_dwordx4 {vr(Q+8*j+4,4)}, v{A_Q}, {w}, s{10+j} offen offset:1024 {LD}")
    l0 = kv_loads(0)
    a(l0[0]); a(l0[1])
    ldq(0); ldq(1); ldq(2)
    for x in l0[2:]: a(x)
    ldq(3)
    a("s_waitcnt vmcnt(8)")
    for x in qmask(0): a(x)
    a("s_nop 1")
    a(mfma(S, KV, Q, None))
    l1 = kv_loads(1)
    a(l1[0])
    a(mfma(S, KV + 4, Q + 4, S))
    a(l1[1])
    a("s_waitcnt vmcnt(8)")
    for x in qmask(1): a(x)
    a("s_setprio 0\ns_nop 3")
    stamp(a, 7)
    for t in range(16):
        b = t & 3
        ld = kv_loads((b + 3) & 3) if t <= 12 else [None] * 5
        for q in range(4):
            qk = (b, q + 1) if q < 3 else ((b + 1) & 3, 0)
            pv = (b, q - 1) if q > 0 else ((b - 1) & 3, 3)
            post, mid = [None] * 4, None
            if q == 0: post[0] = ld[0]
            if q == 1: post[0], post[2] = ld[1], ld[2]
            if q == 2:
                post[0], post[1] = ld[3], ld[4]
                if t < 15: post[3] = f"s_waitcnt vmcnt({8 if t <= 12 else 4 * (14 - t)})"
            first = (t == 0 and q > 0) or (t == 1 and q == 0)
            if t == 0:
                l2 = kv_loads(2)
                if q == 0:
                    pv = None
                    post = [l1[2], l1[3] + "\n" + l1[4], None, None]
                    mid = ["s_waitcnt vmcnt(8)"] + qmask(2)
                if q == 1:
                    post = [l2[0], l2[1], l2[2], l2[3] + "\n" + l2[4]]
                    mid = ["s_waitcnt vmcnt(6)"] + qmask(3)
                if q == 2:
                    post = [ld[0], ld[1], ld[2], ld[3] + "\n" + ld[4] + "\ns_waitcnt vmcnt(10)"]
                if q == 3:
                    post[3] = "s_waitcnt vmcnt(8)"
            if t == 1 and q == 3:
                post[0] = f"ds_write_b32 v{A_LC}, v239 offset:20"
            if t == 15:
                if q == 2: post = [None] + red_writes(0)[:3]
                if q == 3:
                    qk = None
                    r1 = red_writes(1)
                    post = [red_writes(0)[3], r1[0] + "\n" + r1[1], r1[2], r1[3]]
            slot(a, q, qk, pv, post, first, mid, tight=t < int(E('TIGHT', '6')))
    a("s_nop 0")
    a(mfma(O + 48, KV + 48 + 8, P + 8, O + 48))
    a(mfma(O + 48, KV + 48 + 12, P + 12, O + 48))
    a(f"""
    v_min_f32 v8, v{O}, v{O+16}
    v_max_f32 v9, v{O}, v{O+16}
    v_min_f32 v10, v{O+12}, v{O+28}
    v_max_f32 v13, v{O+12}, v{O+28}
    """)
    for x in red_writes(2): a(x)
    a(f"""
    s_mov_b32 s{T0}, {f32(2.0**-40)}
    s_mov_b32 s{T1}, {f32(2.0**40)}
    v_mov_b32 v11, {L_CNT}
    v_mov_b32 v12, 1
    v_min3_f32 v8, v8, v{O+32}, v{O+48}
    v_max3_f32 v9, v9, v{O+32}, v{O+48}
    v_min3_f32 v10, v10, v{O+44}, v{O+60}
    v_max3_f32 v13, v13, v{O+44}, v{O+60}
    v_cndmask_b32 v8, v10, v8, s[18:19]
    v_cndmask_b32 v9, v13, v9, s[18:19]
    v_cmp_le_f32 vcc, s{T0}, v8
    v_cmp_ge_f32 s[16:17], s{T1}, v9
    s_and_b64 s[16:17], s[16:17], vcc
    s_bitcmp1_b32 s{S_H}, 0
    s_cselect_b32 s16, s16, s17
    s_cmp_lg_u32 s16, {0x12345 if E("SLOW") else -1}
    s_cbranch_scc1 L_bad
L_fine:
    """)

def reduce(a, check):
    o = O + 48
    a("s_waitcnt lgkmcnt(0)\ns_barrier")
    if check:
        a("ds_read_b32 v9, v11 offset:16")
    seq = [(j, i) for i in (0, 3, 1, 2) for j in range(3)]
    for j, i in seq:
        a(f"ds_read_b128 {vr(O+16*j+4*i,4)}, v{A_RR} offset:{4096*j + 1024*i}")
    if check:
        a(f"""
        s_waitcnt lgkmcnt(12)
        v_readfirstlane_b32 s{T0}, v9
        s_cmp_lg_u32 s{T0}, 0
        s_cbranch_scc1 L_slow
        """)
    chain = [f"v_cndmask_b32 v10, v{o+12}, v{o}, s[18:19]",
             f"v_cndmask_b32 v13, v{o+12}, v{o}, s[18:19]",
             "v_permlane32_swap_b32 v10, v13",
             "v_cndmask_b32 v10, v13, v10, s[18:19]",
             "v_rcp_f32 v10, v10"]
    for k, (j, i) in enumerate(seq):
        a(f"s_waitcnt lgkmcnt({11 - k})")
        for e in (0, 2):
            a(f"v_pk_add_f32 {vr(o+4*i+e,2)}, {vr(o+4*i+e,2)}, {vr(O+16*j+4*i+e,2)}")
        if k == 5: a(chain[0]); a(chain[1])
        if k in (6, 7, 8): a(chain[k - 4])

def store_o(a):
    o = O + 48
    w = sr(SRD_WS, 4)
    for h in range(2):
        for i in range(4*h, 4*h + 4):
            a(f"v_pk_mul_f32 {vr(o+2*i,2)}, {vr(o+2*i,2)}, v[10:11] op_sel_hi:[1,0]")
        for i in range(4*h, 4*h + 4):
            a(f"v_cvt_pk_bf16_f32 v{16+i}, v{o+2*i}, v{o+2*i+1}")
        for x in qmask(0)[2*h:2*h+2]: a(x)
        a(f"buffer_store_dwordx4 {vr(16+4*h,4)}, v{A_L16}, {w}, s3 offen offset:{1024*h} {ST}")
    a("s_mov_b64 exec, 1")
    if not E('PA'): stamp(a, 9)
    a(f"""
    s_waitcnt vmcnt(0)
    global_atomic_add v{A_OC}, v12, {sr(S_CNT,2)} sc1
    """)

def fallback(a):
    M = 208
    a(f"""
L_bad:
    ds_write_b32 v11, v12 offset:16
    s_branch L_fine
L_slow:
    """)
    for j in range(4):
        a(f"v_mov_b32 v{M+j}, 0xff800000")
    l0 = kv_loads(0)
    a(f"""
    s_waitcnt lgkmcnt(0)
    s_mul_i32 s{S_OFF}, s{S_WAVE}, {16*TILE_B}
    s_mov_b32 s14, 0
L_s1:
    """)
    for x in (l0[0], l0[1], l0[4]): a(x)
    a("s_waitcnt vmcnt(0)")
    for j in range(4):
        a(mfma(S, KV, Q + 8*j, None))
        a(mfma(S, KV + 4, Q + 8*j + 4, S))
        a("s_nop 15")
        for i in range(8):
            a(f"v_max3_f32 v{M+j}, v{M+j}, v{S+2*i}, v{S+2*i+1}")
    a(f"""
    s_add_u32 s14, s14, 1
    s_cmp_lt_u32 s14, 16
    s_cbranch_scc1 L_s1
    v_lshlrev_b32 v8, 2, v0
    """)
    for j in range(4):
        a(f"""
        s_add_u32 s{T0}, s{S_WAVE}, {j+1}
        s_and_b32 s{T0}, s{T0}, 3
        s_lshl_b32 s{T0}, s{T0}, 10
        s_lshl_b32 s{T1}, s{S_WAVE}, 8
        s_add_u32 s{T1}, s{T1}, s{T0}
        s_add_u32 s{T1}, s{T1}, {L_MAX}
        v_add_u32 v9, s{T1}, v8
        ds_write_b32 v9, v{M+j}
        """)
    a(f"""
    s_waitcnt lgkmcnt(0)
    s_barrier
    v_and_b32 v8, 31, v0
    v_lshlrev_b32 v8, 2, v8
    """)
    for j in range(4):
        a(f"""
        s_add_u32 s{T0}, s{S_WAVE}, {j+1}
        s_and_b32 s{T0}, s{T0}, 3
        s_lshl_b32 s{T0}, s{T0}, 10
        s_add_u32 s{T0}, s{T0}, {L_MAX}
        v_add_u32 v9, s{T0}, v8
        """)
        for i in range(8):
            a(f"ds_read_b32 v{S+i}, v9 offset:{128*i}")
        a("s_waitcnt lgkmcnt(0)")
        for i in range(4):
            a(f"v_max3_f32 v{M+j}, v{M+j}, v{S+2*i}, v{S+2*i+1}")
    for i in range(64):
        a(f"v_mov_b32 v{O+i}, 0")
    a(f"""
    s_mul_i32 s{S_OFF}, s{S_WAVE}, {16*TILE_B}
    s_mov_b32 s14, 0
L_s2:
    """)
    for x in l0: a(x)
    a("s_waitcnt vmcnt(0)")
    for j in range(4):
        a(mfma(S, KV, Q + 8*j, None))
        a(mfma(S, KV + 4, Q + 8*j + 4, S))
        a("s_nop 15")
        for i in range(16):
            a(f"v_sub_f32 v{S+i}, v{S+i}, v{M+j}")
        for i in range(16):
            a(f"v_exp_f32 v{S+i}, v{S+i}")
        a("s_nop 0")
        for i in range(8):
            a(f"v_cvt_pk_bf16_f32 v{P+i}, v{S+2*i}, v{S+2*i+1}")
        a("s_nop 1")
        a(mfma(O + 16*j, KV + 8, P, O + 16*j))
        a(mfma(O + 16*j, KV + 12, P + 4, O + 16*j))
    a(f"""
    s_add_u32 s14, s14, 1
    s_cmp_lt_u32 s14, 16
    s_cbranch_scc1 L_s2
    s_nop 15
    """)
    for j in range(3):
        for x in red_writes(j): a(x)
    reduce(a, False)
    a("s_branch L_fin")

CA, ZR = 192, 28
H_T, H_UB, H_US, H_UTV, H_UTC, H_PL, H_BPC, H_CNT, H_K4, H_K2 = 16, 17, 18, 19, 20, 21, 22, 23, 18, 254

def next_chunk():
    return [f"s_add_u32 s{S_CH}, s{S_CH}, 1", f"s_cmp_eq_u32 s{S_CH}, 7", f"s_cselect_b32 s{S_CH}, 0, s{S_CH}"]

def dma_chunk(it, vx=2, vw=3):
    slot = SLOT_AT[it]
    g = []
    for j in range(4):
        x = [f"s_mul_i32 s58, s{S_CH}, {64*2688}", f"s_lshl_b32 s59, s{S_CH}, 7"] if j == 0 else []
        g.append(x + [f"s_add_u32 m0, s{S_LW1K}, {slot + j*4096}",
                      f"s_add_u32 s{T0}, s58, {16*j*2688}",
                      f"buffer_load_dwordx4 v{vw}, {sr(SRD_W,4)}, s{T0} offen lds"])
        if j < (3 if it == 0 else 1):
            g.append([f"s_add_u32 m0, s{S_LW1K}, {slot + 16384 + j*4096}",
                      f"s_add_u32 s{T1}, s59, {j*32*896}",
                      f"buffer_load_dwordx4 v{vx}, {sr(SRD_X,4)}, s{T1} offen lds"])
    g[-1] += next_chunk()
    return g

def dma_x(i, vx=2):
    g = []
    for it in range(1, 7):
        g.append(next_chunk() + [f"s_lshl_b32 s59, s{S_CH}, 7",
                                 f"s_add_u32 m0, s{S_LW1K}, {L_X1 + (i-1)*24576 + (it-1)*4096}",
                                 f"s_add_u32 s{T1}, s59, {i*32*896}",
                                 f"buffer_load_dwordx4 v{vx}, {sr(SRD_X,4)}, s{T1} offen lds"])
    g[-1] += next_chunk()
    return g

def helper_setup():
    t = f"""
    s_mov_b32 s{SRD_WS}, s{S_WS}
    s_mov_b32 s{SRD_WS+1}, s{S_WS+1}
    s_mov_b32 s{SRD_WS+2}, {WS_SIZE}
    s_mov_b32 s{SRD_WS+3}, 0x20000
    s_mul_i32 s18, s{S_LW}, {TAB_B}
    v_and_b32 v4, 31, v0
    v_lshrrev_b32 v5, 5, v0
    v_mul_u32_u24 v24, 272, v4
    v_lshl_add_u32 v24, v5, 4, v24
    v_add_u32 v24, s18, v24
    s_lshr_b32 s47, s{S_LW}, 1
    s_mul_i32 s{T0}, s47, 3072
    s_add_u32 s{T0}, s{T0}, {L_XCH}
    v_lshl_add_u32 v25, v0, 4, s{T0}
    v_mov_b32 v{H_CNT}, {L_CNT}
    s_lshr_b32 s{T0}, s2, 3
    s_lshl_b32 s{T0}, s{T0}, {CS}
    s_add_u32 s{T0}, s{T0}, {B_U}
    v_mov_b32 v{H_UTC}, s{T0}
    v_lshrrev_b32 v14, 2, v0
    v_mul_u32_u24 v14, {TILE_B}, v14
    v_and_b32 v15, 3, v0
    v_lshl_add_u32 v{H_UTV}, v15, 6, v14
    s_lshr_b32 s14, s2, 1
    s_lshl_b32 s14, s14, 8
    s_and_b32 s15, s2, 1
    s_lshl_b32 s15, s15, 1
    s_add_u32 s15, s15, s47
    s_lshl_b32 s15, s15, 4
    s_add_u32 s14, s14, s15
    s_and_b32 s16, s{S_LW}, 1
    s_mul_i32 s15, s16, {32*TILE_B}
    s_add_u32 s14, s14, s15
    s_add_u32 s14, s14, {WS_UT}
    s_add_u32 s15, s14, {16*TILE_B}
    s_mul_i32 s17, s47, {U_B}
    s_add_u32 s13, s17, {L_U}
    s_lshl_b32 s16, s16, 11
    s_add_u32 s17, s17, s16
    s_mul_i32 s19, s47, {KC_B}
    s_add_u32 s19, s19, {L_KC}
    s_add_u32 s{T0}, s19, 64
    v_lshl_add_u32 v{H_K4}, v0, 4, s{T0}
    v_lshl_add_u32 v{H_K2}, v4, 4, s{T0}
    v_lshl_add_u32 v{H_K2}, v5, 3, v{H_K2}
    v_bfe_u32 v14, v0, 4, 2
    v_lshlrev_b32 v{H_T}, 5, v14
    v_lshl_add_u32 v{H_T}, v15, 3, v{H_T}
    v_bfe_u32 v14, v0, 2, 2
    v_lshlrev_b32 v14, 3, v14
    v_sub_u32 v{H_T}, v{H_T}, v14
    s_add_u32 s{T0}, s19, {64 - 32}
    v_add_u32 v{H_T}, s{T0}, v{H_T}
    v_lshlrev_b32 v14, 4, v4
    v_lshlrev_b32 v15, 6, v5
    v_sub_u32 v14, v14, v15
    s_add_u32 s{T0}, s13, {512 - 384}
    v_add_u32 v{H_UB}, s{T0}, v14
    s_lshl_b32 s{T0}, s{S_LW}, 11
    v_lshl_add_u32 v{H_PL}, v0, 4, s{T0}
    s_lshl_b32 s12, s2, 13
    s_add_u32 s12, s12, {WS_BP}
    s_lshr_b32 s{T1}, s2, 4
    s_mul_i32 s{T0}, s{S_LW}, 14
    s_add_u32 s{T0}, s{T0}, s{T1}
    s_lshl_b32 s{T0}, s{T0}, {CS}
    s_add_u32 s{T0}, s{T0}, {B_BP}
    v_mov_b32 v{H_BPC}, s{T0}
    """
    return [l.strip() for l in t.split("\n") if l.strip() and not l.strip().startswith(";")]

def conv(a):
    w = sr(SRD_WS, 4)
    lds_sync(a, 1, "b")
    stamp(a, 5)
    UFR, TR, NT = 64, 32, 8
    def variant(tiles, tag):
        top = 4 * max(tiles) + 3
        def rd_t(ph):
            t = TR + 4 * (ph % NT)
            return [f"ds_read_b64_tr_b16 {vr(t,2)}, v{H_T} offset:{128*ph + 32}",
                    f"ds_read_b64_tr_b16 {vr(t+2,2)}, v{H_T} offset:{128*ph}"]
        have = set()
        need = []
        for ph in range(top + 1):
            r = rd_t(ph)
            for tau in tiles:
                b = 4 * tau - ph
                if b >= -3 and b not in have:
                    have.add(b)
                    r.append(f"ds_read_b128 {vr(UFR + 4*(b+3), 4)}, v{H_UB} offset:{128*(b+3)}")
            need.append(r)
        queue = [(ph, x) for ph in range(top + 1) for x in need[ph]]
        issued = 0
        def issue(k, maxph):
            nonlocal issued
            while k > 0 and issued < len(queue) and queue[issued][0] <= maxph:
                a(queue[issued][1]); issued += 1; k -= 1
        issue(12, 1)
        a(f"s_setprio {E('PRC', '0')}")
        done = 0
        for ph in range(top + 1):
            done += len(need[ph])
            issue(max(0, done - issued), ph)
            a(f"s_waitcnt lgkmcnt({min(15, issued - done)})")
            act = [k for k, tau in enumerate(tiles) if 4 * tau - ph >= -3]
            for k in act:
                b = 4 * tiles[k] - ph
                a(mfma(CA + 16*k, UFR + 4*(b+3), TR + 4*(ph % NT), None if ph == 0 else CA + 16*k))
                issue(min(2, 12 - (issued - done)), ph + NT - 1)
        assert issued == len(queue)
        a(f"s_setprio {E('PRE_', '1')}")
        stamp(a, 6)
        order = sorted(range(4), key=lambda k: tiles[k])
        for k in ([] if E("X_NOPL") else order):
            for r in range(16):
                a(f"ds_write_addtid_b32 v{CA+16*k+r} offset:{(r&3)*2*PL_B + 1024*tiles[k] + 256*(r>>2) + 4*(r&3)}")
    a(f"""
    s_mul_i32 m0, s47, {PL_B}
    s_bitcmp1_b32 s{S_LW}, 0
    s_cbranch_scc1 L_cB
    v_and_b32 v14, 3, v0
    v_mul_u32_u24 v14, {2*PL_B}, v14
    v_add_u32 v14, m0, v14
    ds_write_b128 v14, {vr(ZR,4)}
    """)
    variant([7, 4, 3, 0], "A")
    a("s_branch L_cC\nL_cB:")
    variant([6, 5, 2, 1], "B")
    a("L_cC:")
    lds_sync(a, 2, "c", vm=False)
    for hf in range(2):
        for pl in range(8):
            a(f"ds_read_b128 {vr(CA+32*hf+4*pl,4)}, v{H_PL} offset:{pl*PL_B + 1024*hf}")
    for hf in range(2):
        b = CA + 32*hf
        a(f"s_waitcnt lgkmcnt({8 - 8*hf})")
        for i in range(0 if E("X_NOADD") else 8):
            a(f"v_add_f32 v{b+i}, v{b+i}, v{b+8+i}")
            a(f"v_add_f32 v{b+16+i}, v{b+16+i}, v{b+24+i}")
        for i in range(0 if E("X_NOADD") else 8):
            a(f"v_add_f32 v{b+i}, v{b+i}, v{b+16+i}")
        for i in range(4):
            a(f"v_cvt_pk_bf16_f32 v{b+i}, v{b+i}, v{b+4+i}")
        a(f"buffer_store_dwordx4 {vr(b,4)}, v{H_PL}, {w}, s12 offen offset:{1024*hf} {ST}")
    lds_sync(a, 3, "d")
    a(f"""
    v_mov_b32 v15, 1
    s_mov_b64 exec, 1
    global_atomic_add v{H_BPC}, v15, {sr(S_CNT,2)} sc1
    s_mov_b64 exec, -1
    """)
    if not E("NOWARM"):
        a(f"""
        s_lshr_b32 s{T0}, s2, 3
        s_lshl_b32 s{T0}, s{T0}, 2
        s_add_u32 s{T0}, s{T0}, s{S_LW}
        s_mul_i32 s{T0}, s{T0}, {28*128}
        v_min_u32 v14, 27, v0
        v_lshl_add_u32 v14, v14, 7, s{T0}
        global_load_dword v26, v14, {sr(S_WO,2)}
        """)

def outproj(a):
    WOF, ACC3, BR, OF, BB = 32, 16, 208, 160, 192
    w = sr(SRD_WS, 4)
    a(f"""
    s_and_b32 s8, s2, 7
    s_lshl_b32 s8, s8, 3
    s_lshr_b32 s{T0}, s2, 5
    s_add_u32 s8, s8, s{T0}
    s_bfe_u32 s9, s2, 0x20003
    s_lshl_b32 s10, s9, 2
    s_add_u32 s10, s10, s{S_LW}
    v_lshrrev_b32 v6, 4, v0
    v_lshlrev_b32 v7, 2, v6
    v_xor_b32 v7, v7, v0
    v_and_b32 v7, 15, v7
    s_lshl_b32 s{T0}, s{S_LW}, 2
    v_add_u32 v6, s{T0}, v6
    v_mul_u32_u24 v3, 896, v6
    v_lshl_add_u32 v3, v7, 4, v3
    s_cmp_eq_u32 s9, 3
    s_cselect_b32 s{T0}, 8, 16
    v_cmp_le_u32 vcc, s{T0}, v7
    s_lshl_b32 s{T0}, s9, 8
    s_add_u32 s{SRD_X}, s{S_WO}, s{T0}
    s_addc_u32 s{SRD_X+1}, s{S_WO+1}, 0
    s_sub_u32 s{SRD_X+2}, {WO_BYTES}, s{T0}
    v_mov_b32 v7, 0x1000000
    v_cndmask_b32 v3, v3, v7, vcc
    v_bfe_u32 v7, v0, 2, 2
    v_lshl_add_u32 v6, v5, 3, v7
    v_lshlrev_b32 v6, 8, v6
    v_xor_b32 v7, s{S_LW}, v7
    v_lshl_add_u32 v6, v7, 6, v6
    v_bfe_u32 v7, v0, 4, 1
    v_lshl_add_u32 v6, v7, 5, v6
    v_and_b32 v7, 1, v0
    v_lshl_add_u32 v6, v7, 4, v6
    v_bfe_u32 v7, v0, 1, 1
    v_lshl_add_u32 v6, v7, 3, v6
    s_mov_b32 s12, 0
L_wait_at:
    ds_read_b32 v15, v{H_CNT} offset:20
    s_waitcnt lgkmcnt(0)
    v_readfirstlane_b32 s{T0}, v15
    s_cmp_lg_u32 s{T0}, 0
    s_cbranch_scc1 L_go_at
    s_sleep 8
    s_branch L_wait_at
L_go_at:
    """)
    for rnd in range(2):
        a(f"s_mov_b32 m0, s{S_LW1K}\ns_nop 0")
        for i in range(14):
            a(f"buffer_load_dwordx4 v3, {sr(SRD_X,4)}, s12 offen lds")
            a(f"s_add_u32 s12, s12, {16*896}")
            if i < 13:
                a(f"s_add_u32 m0, m0, 4096\ns_waitcnt vmcnt({E('PACE', '3')})")
        lds_sync(a, 8 + 2*rnd, f"w{rnd}")
        for k in range(16):
            row = 8 * ((7 * (k >> 1)) >> 1) + 16 * (k & 1)
            a(f"ds_read_b64_tr_b16 {vr(WOF+64*rnd+4*k,2)}, v6 offset:{256*row}")
            a(f"ds_read_b64_tr_b16 {vr(WOF+64*rnd+4*k+2,2)}, v6 offset:{256*row+1024}")
        if rnd == 0: lds_sync(a, 9, "wx", vm=False)
    a(f"""
    s_cmp_ge_u32 s10, 14
    s_cbranch_scc1 L_nowo
    s_lshr_b32 s{T0}, s8, 4                ; quarter
    s_mul_i32 s{T1}, s{T0}, 14
    s_add_u32 s{T1}, s{T1}, s10
    s_lshl_b32 s{T1}, s{T1}, {CS}
    s_add_u32 s{T1}, s{T1}, {B_BP}
    v_mov_b32 v8, s{T1}
    """)
    if not E('PSTART'): stamp(a, 8)
    poll(a, "b", 8, "22", 1, sleep=16, limit=2 if E("X_NOCONV") else SPIN_MAX)
    a(f"""
    v_lshlrev_b32 v6, 2, v4
    v_lshl_add_u32 v7, v5, 15, v6
    s_lshl_b32 s{T0}, s10, 17
    s_lshl_b32 s{T1}, s8, 7
    s_add_u32 s{T0}, s{T0}, s{T1}
    s_add_u32 s{T0}, s{T0}, {WS_BP}
    s_add_u32 s{T1}, s{T1}, {WS_GT}
    buffer_load_dword v{BR+8}, v6, {w}, s{T1} offen {LD}
    """)
    for i in range(8):
        off = (8 * (i >> 2) + (i & 3)) * 8192
        a(f"s_add_u32 s{T2}, s{T0}, {off}")
        a(f"buffer_load_dword v{BR+i}, v7, {w}, s{T2} offen {LD}")
    a(f"""
    """)
    if E("FULL"):
        a(f"""
        s_and_b32 s{T2}, s{S_LW}, 1
        s_lshr_b32 s{T3}, s{S_LW}, 1
        s_lshl_b32 s{T3}, s{T3}, 12
        s_add_u32 s{T3}, s{T3}, 32768
        s_lshl_b32 s{T0}, s{T2}, 2
        v_add_u32 v9, s{T0}, v5
        v_and_b32 v10, 7, v0
        v_xor_b32 v9, v9, v10
        v_lshl_add_u32 v13, v4, 7, s{T3}
        v_lshl_add_u32 v9, v9, 4, v13
        v_xor_b32 v3, 32, v9
        v_lshrrev_b32 v13, 3, v0
        v_mul_u32_u24 v12, 896, v13
        v_lshl_add_u32 v12, v10, 4, v12
        v_xor_b32 v10, v10, v13
        v_lshlrev_b32 v13, 7, v13
        v_lshl_add_u32 v10, v10, 4, v13
        s_lshl_b32 s{T0}, s{T2}, 11
        s_add_u32 s{T3}, s{T3}, s{T0}
        v_add_u32 v10, s{T3}, v10
        v_add_u32 v13, {8*896}, v12
        s_mul_i32 s{T0}, s8, {32*896}
        s_lshr_b32 s{T1}, s10, 1
        s_lshl_b32 s{T1}, s{T1}, 7
        s_add_u32 s{T0}, s{T0}, s{T1}
        s_mul_i32 s{T1}, s{T2}, {16*896}
        """)
    else:
        a(f"""
        v_mul_u32_u24 v12, 896, v4
        v_lshl_add_u32 v12, v5, 4, v12
        s_mul_i32 s{T0}, s8, {32*896}
        s_lshl_b32 s{T1}, s10, 6
        """)
    a(f"""
    s_add_u32 s{T0}, s{T0}, s{T1}
    s_add_u32 s{S_OUT}, s{S_OUT}, s{T0}
    s_addc_u32 s{S_OUT+1}, s{S_OUT+1}, 0
L_nowo:
    v_lshlrev_b32 v2, 4, v0
    s_lshl_b32 s{T0}, s8, {CS}
    s_add_u32 s{T0}, s{T0}, {B_O}
    v_mov_b32 v8, s{T0}
    s_lshl_b32 s12, s8, 15
    s_add_u32 s12, s12, {WS_O}
    s_add_u32 s12, s12, s{S_LW1K}
    s_mov_b32 m0, s{S_LW1K}
    s_waitcnt vmcnt(0) lgkmcnt(0)
    """)
    if not E('PSTART'): stamp(a, 9)
    a(f"""
    s_barrier
    s_setprio 0
    ds_read_b32 v11, v{H_CNT} offset:16
    v_sub_f32 v{BR+9}, 1.0, v{BR+8}
    v_cvt_pk_bf16_f32 v{BR+9}, v{BR+9}, v{BR+9}
    v_and_b32 v{BR+9}, 0xffff0000, v{BR+9}
    """)
    for i in range(8):
        a(f"v_lshlrev_b32 v{BB+2*i}, 16, v{BR+i}")
        a(f"v_and_b32 v{BB+2*i+1}, 0xffff0000, v{BR+i}")
    for i in range(16):
        a(f"v_mul_f32 v{BB+i}, v{BB+i}, v{BR+9}")
    a(f"""
    s_waitcnt lgkmcnt(0)
    v_readfirstlane_b32 s{T0}, v11
    s_cmp_lg_u32 s{T0}, 0
    s_cbranch_scc1 L_fb
L_nofb:
    {"" if E("NOB") else "s_barrier"}
    """)
    if E("OP1"):
        a(f"s_cmp_lg_u32 s{S_LW}, 0\ns_cbranch_scc1 L_ok_o")
        if E("GAPO"): poll2(a, "o", 8, "16", 1, int(E("GAPO")))
        else: poll(a, "o", 8, "16", 1)
        a("s_barrier")
    else: poll(a, "o", 8, "16", 1)
    stamp(a, 10)
    for i in range(8):
        a(f"buffer_load_dwordx4 v2, {w}, s12 offen {LD} lds")
        if i < 7: a("s_add_u32 m0, m0, 4096\ns_add_u32 s12, s12, 4096")
    bars = {0: 7, 4: 5, 12: 0}
    def rd(k):
        if k in bars:
            a(f"s_waitcnt vmcnt({bars[k]})\ns_barrier")
            if k == 0: a("s_cmp_ge_u32 s10, 14\ns_cbranch_scc1 L_idle3")
        a(f"ds_read_b128 {vr(OF+4*(k%8),4)}, v2 offset:{1024*k}")
    issued = 0
    for k in range(32):
        want = 4 if k == 0 else min(32, k + 6)
        while issued < want:
            rd(issued); issued += 1
        a(f"s_waitcnt lgkmcnt({issued - k - 1})")
        a(mfma(ACC3, WOF + 4*k, OF + 4*(k%8), None if k == 0 else ACC3))
    a("s_nop 11")
    for h in range(2):
        for i in range(8*h, 8*h + 8):
            a(f"v_fmac_f32 v{BB+i}, v{BR+8}, v{ACC3+i}")
        for i in range(4*h, 4*h + 4):
            a(f"v_cvt_pk_bf16_f32 v{OF+i}, v{BB+2*i}, v{BB+2*i+1}")
        if E("FULL"):
            a(f"ds_write_b128 v{(9, 3)[h]}, {vr(OF+4*h,4)}")
        else:
            a(f"global_store_dwordx4 v12, {vr(OF+4*h,4)}, {sr(S_OUT,2)} offset:{32*h} {E('STO', '')}")
    if E("FULL"):
        a(f"""
        s_waitcnt lgkmcnt(0)
        s_barrier
        ds_read_b128 {vr(OF+8,4)}, v10
        ds_read_b128 {vr(OF+12,4)}, v10 offset:1024
        s_waitcnt lgkmcnt(1)
        global_store_dwordx4 v12, {vr(OF+8,4)}, {sr(S_OUT,2)} {E('STO', '')}
        s_waitcnt lgkmcnt(0)
        global_store_dwordx4 v13, {vr(OF+12,4)}, {sr(S_OUT,2)} {E('STO', '')}
        """)
    if PROF and E("PEND"): stamp(a, 9); a("s_waitcnt vmcnt(0)")
    a(endp("L_end"))
    a("L_idle3:\ns_waitcnt vmcnt(0)")
    a(endp("L_end"))
    a("L_fb:\ns_barrier\ns_barrier\ns_branch L_nofb")

def helper_waves(a):
    w = sr(SRD_WS, 4)
    def emit(groups, fill=None, n=0, head=50):
        if fill is not None:
            h = n * head // 100
            for x in fill[:h]: a(x)
            del fill[:h]
            n -= h
        for k, g in enumerate(groups):
            for x in g: a(x)
            if fill is not None:
                m = n * (k + 1) // len(groups) - n * k // len(groups)
                for x in fill[:m]: a(x)
                del fill[:m]
    O0, O1, FV0, FU0, FV1, FU1, KA = 148, 201, 36, 68, 148, 116, 100
    k0, k1 = kgen_split(0, O0, not E("PK0")), kgen_split(1, O1, True)
    if E("PB"): stamp(a, 8)
    if E("XT"):
        a(f"""
        s_cmp_lg_u32 s{S_LW}, 0
        s_cbranch_scc1 L_noxt
        s_add_u32 s{T0}, s{S_C0}, 2
        s_sub_u32 s{T1}, s{T0}, 7
        s_cmp_ge_u32 s{T0}, 7
        s_cselect_b32 s{T0}, s{T1}, s{T0}
        s_lshl_b32 s{T0}, s{T0}, 7
        s_add_u32 s{T0}, s{T0}, {32*896}
        v_mul_u32_u24 v14, 896, v0
        buffer_load_dword v6, v14, {sr(SRD_X,4)}, s{T0} offen
L_noxt:
        """)
    for ins in helper_setup(): a(ins)
    a(f"""
    s_waitcnt lgkmcnt(0)
    s_lshl_b32 s{T1}, s51, 16
    s_and_b32 s51, s51, 0xffff0000
    s_lshl_b32 s{T2}, s52, 16
    s_and_b32 s52, s52, 0xffff0000
    s_cmp_ge_u32 s{S_LW}, 2
    s_cselect_b32 s51, s51, s{T1}
    s_cselect_b32 s{S_DSK}, s52, s{T2}
    v_mov_b32 v12, s51
    v_mul_f32 v12, {f32(LOG2E)}, v12
    v_exp_f32 v12, v12
    s_nop 0
    v_cvt_pk_bf16_f32 v12, v12, v12
    v_and_b32 v12, 0xffff0000, v12         ; dt
    v_add_f32 v13, v12, v12                ; 2 dt
    """)
    if E("PB"): stamp(a, 9)
    a("""
    s_barrier                              ; B0
    s_waitcnt vmcnt(0)
    """)
    stamp(a, 1)
    fill = k0[0] + k1[0]
    if E("X_NOFILL"): fill = []
    SL = [int(x) for x in E("SL", "120,150,50").split(",")]
    emit([[]], fill, SL[0])
    a("s_barrier")
    emit([[]], fill, SL[1])
    a("s_barrier")
    a(f"global_load_dword v6, v7, {sr(S_DBG,2)} sc1")
    hx = (dma_x(1) + dma_x(2))[NX:]
    HB = min(len(hx), int(E("HB", "6")))
    emit(hx[:HB] or [[]], fill, SL[2], 0)
    a("s_barrier")
    stamp(a, 2)
    HC = min(len(hx), HB + int(E("HC", "6")))
    assert NX + HC >= 6
    emit(hx[HB:HC] or [[]], fill, int(E("SLC", "10")), 0)
    a(f"""
    s_mov_b32 s{T2}, 0
    s_waitcnt vmcnt({min(HC, NX + HC - 6)})
L_hs:
    v_cmp_eq_u32 vcc, 0, v6
    s_cbranch_vccz L_hs_ok
    s_sleep 8
    global_load_dword v6, v7, {sr(S_DBG,2)} sc1
    s_add_u32 s{T2}, s{T2}, 1
    s_waitcnt vmcnt(0)
    s_cmp_lt_u32 s{T2}, {SPIN_MAX}
    s_cbranch_scc1 L_hs
L_hs_ok:
    s_barrier                              ; BX1
    s_setprio 1
    """)
    emit(hx[HC:] or [[]])
    emit([[]], fill, int(E("SLX", "110")))
    a("s_waitcnt vmcnt(0)\ns_barrier")
    for x in fill: a(x)
    for i in range(4):
        a(f"v_mov_b32 v{ZR+i}, 0")
    def frags(base):
        return [f"ds_read_b128 {vr(base + 4*ks, 4)}, v24 offset:{32*ks}" for ks in range(8)]
    ds = k0[1] + frags(FV0) + k0[2] + frags(FU0) + k1[1] + frags(FV1) + k1[2] + frags(FU1)
    early = int(E("DSE", "0"))
    a(f"""
    s_mov_b32 m0, s18
    v_lshl_add_u32 v6, v0, 3, s13
    ds_write_b64 v6, {vr(ZR,2)}
    v_add_u32 v6, s19, v0
    ds_write_b8 v6, v{ZR}
    """)
    for x in ds[:early]: a(x)
    a(f"""
    s_cmp_ge_u32 s2, {0 if E("X_NOCONV") else 224}
    s_cbranch_scc1 L_p3
    """)
    pp = max(early, int(E("UPOLL", "0")))
    for x in ds[early:pp]: a(x)
    a(f"""
    s_mov_b64 exec, 1
    global_atomic_add v14, v{H_UTC}, v{ZR}, {sr(S_CNT,2)} sc0 sc1
    s_mov_b64 exec, -1
    """)
    for x in ds[pp:]: a(x)
    stamp(a, 3)
    for ks in range(8):
        if ks == 0: a("s_waitcnt lgkmcnt(15)")
        a(mfma(KA, FU0 + 4*ks, FV0 + 4*ks, None if ks == 0 else KA))
    a(f"""
    s_waitcnt vmcnt(0)
    v_readfirstlane_b32 s{T0}, v14
    s_cmp_eq_u32 s{T0}, 22
    s_cselect_b32 s11, 1, 0
    s_cbranch_scc0 L_u_late
    s_add_u32 m0, s17, {L_U + 512}
    s_nop 0
    buffer_load_dwordx4 v{H_UTV}, {w}, s14 offen {LD} lds
    s_add_u32 m0, m0, 1024
    s_nop 0
    buffer_load_dwordx4 v{H_UTV}, {w}, s15 offen {LD} lds
L_u_late:
    """)
    for ks in range(8):
        a(f"s_waitcnt lgkmcnt({7 - ks})")
        a(mfma(KA, FU1 + 4*ks, FV1 + 4*ks, KA))
    stamp(a, 4)
    a(f"""
    s_bitcmp1_b32 s{S_LW}, 0
    s_cbranch_scc0 L_even
    v_mov_b32 v15, 1
    s_nop 8
    ds_write_b128 v25, {vr(KA,4)}
    ds_write_b128 v25, {vr(KA+4,4)} offset:1024
    ds_write_b128 v25, {vr(KA+8,4)} offset:2048
    s_waitcnt lgkmcnt(0)
    s_mov_b64 exec, 1
    ds_add_u32 v{H_CNT}, v15
    s_mov_b64 exec, -1
    s_branch L_nofin
L_even:
    ds_read_b32 v15, v{H_CNT}
    s_waitcnt lgkmcnt(0)
    v_readfirstlane_b32 s{T0}, v15
    s_cmp_lt_u32 s{T0}, 2
    s_cbranch_scc1 L_even
    s_nop 0
    """)
    for k in range(3):
        a(f"ds_read_b128 {vr(60+4*k,4)}, v25 offset:{1024*k}")
    for k in range(3):
        a(f"s_waitcnt lgkmcnt({2-k})")
        for e in range(4):
            a(f"v_add_f32 v{KA+4*k+e}, v{KA+4*k+e}, v{60+4*k+e}")
    def store(nd, reg, off):
        if nd == 2:
            a(f"ds_write_b64 v{H_K2}, {vr(reg,2)} offset:{off}")
        else:
            a(f"ds_write_b128 v{H_K4}, {vr(reg,4)} offset:{off}")
    kgen_expand(a, store, KA)
    a(f"""
L_nofin:
    s_cmp_lg_u32 s11, 0
    s_cbranch_scc1 L_u_done
    """)
    poll(a, "u", H_UTC, "22", 1)
    a(f"""
    s_add_u32 m0, s17, {L_U + 512}
    s_nop 0
    buffer_load_dwordx4 v{H_UTV}, {w}, s14 offen {LD} lds
    s_add_u32 m0, m0, 1024
    s_nop 0
    buffer_load_dwordx4 v{H_UTV}, {w}, s15 offen {LD} lds
L_u_done:
    """)
    conv(a)
    a.label("L_p3")
    stamp(a, 7)
    outproj(a)

def fused():
    a = Asm()
    a(f"""
    s_load_dwordx4 s[4:7], s[0:1], 0
    s_load_dwordx2 s[22:23], s[0:1], 104
    s_load_dwordx4 s[96:99], s[0:1], 88
    s_load_dwordx8 s[8:15], s[0:1], 32
    s_load_dwordx4 s[16:19], s[0:1], 64
    s_load_dwordx2 s[20:21], s[0:1], 80
    s_load_dwordx2 s[100:101], s[0:1], 16
    s_cmp_ge_u32 s2, 256
    s_cbranch_scc1 L_quit0
    """)
    prof_begin(a)
    a(f"""
    v_lshrrev_b32 v1, 6, v0
    v_and_b32 v0, 63, v0
    s_and_b32 s{T0}, s2, 7
    v_readfirstlane_b32 s{S_WAVE}, v1
    s_lshr_b32 s{T1}, s2, 3
    s_lshl_b32 s{T2}, s{T1}, 2
    s_add_u32 s{T2}, s{T2}, s{S_WAVE}
    s_cmp_ge_u32 s{S_WAVE}, 4
    s_cselect_b32 s{T2}, 99, s{T2}
    s_cmp_ge_u32 s{T2}, {"0" if E("X_NOPF") else "(L_bad-L_pc+8191)/8192"}
    s_cbranch_scc1 L_nopf
    s_getpc_b64 s[48:49]
L_pc:
    s_lshl_b32 s{T2}, s{T2}, 13
    v_lshl_add_u32 v2, v0, 7, s{T2}
    v_min_u32 v2, L_bad-L_pc, v2
    global_load_dword v253, v2, s[48:49]
L_nopf:
    s_mul_i32 s{T0}, s{T0}, 31
    s_add_u32 s{T0}, s{T0}, s{T1}          ; t
    s_cmp_ge_u32 s{T1}, 31
    s_cselect_b32 s{T0}, 242, s{T0}
    s_min_u32 s{T0}, s{T0}, 242
    s_mov_b32 s{T2}, 205
    s_cmp_lt_u32 s{T0}, 110
    s_cselect_b32 s{T1}, 0, 110
    s_cselect_b32 s{T2}, s{T2}, 171
    s_cselect_b32 s{T3}, 5, 6
    s_cselect_b32 s{S_CB}, 0, 5
    s_sub_u32 s{T0}, s{T0}, s{T1}
    s_mul_i32 s{S_RB}, s{T0}, s{T2}
    s_lshr_b32 s{S_RB}, s{S_RB}, 10
    s_mul_i32 s{T1}, s{S_RB}, s{T3}
    s_sub_u32 s{T0}, s{T0}, s{T1}
    s_add_u32 s{S_CB}, s{S_CB}, s{T0}
    s_add_u32 s{S_C0}, s{S_RB}, s{S_CB}
    s_mul_i32 s{T0}, s{S_C0}, 37
    s_lshr_b32 s{T0}, s{T0}, 8
    s_mul_i32 s{T0}, s{T0}, 7
    s_sub_u32 s{S_C0}, s{S_C0}, s{T0}
    {"s_and_b32 s%d, s%d, %s" % (S_C0, S_C0, E("X_ROT")) if E("X_ROT") else ""}
    s_min_u32 s{S_P}, s2, 223
    s_and_b32 s{S_LW}, s{S_WAVE}, 3
    s_lshl_b32 s{S_LW1K}, s{S_LW}, 10
    v_lshrrev_b32 v4, 3, v0
    s_lshl_b32 s{T1}, s{S_LW}, 3
    v_add_u32 v4, s{T1}, v4
    v_lshrrev_b32 v5, 1, v4
    v_xor_b32 v5, v5, v0
    v_and_b32 v5, 7, v5
    v_mul_u32_u24 v2, 896, v4
    v_lshl_add_u32 v2, v5, 4, v2
    v_lshrrev_b32 v4, 4, v0
    v_lshlrev_b32 v5, 2, v4
    v_xor_b32 v5, v5, v0
    v_and_b32 v5, 15, v5
    s_lshl_b32 s{T1}, s{S_LW}, 2
    v_add_u32 v4, s{T1}, v4
    v_mul_u32_u24 v3, 2688, v4
    v_lshl_add_u32 v3, v5, 4, v3
    s_mov_b32 s{S_CH}, s{S_C0}
    s_mul_i32 s58, s{S_RB}, {96*896}
    s_sub_u32 s{SRD_X+2}, {X_BYTES}, s58
    s_mov_b32 s{SRD_X+3}, 0x20000
    s_lshl_b32 s59, s{S_CB}, 8
    s_sub_u32 s{SRD_W+2}, {W_BYTES}, s59
    s_mov_b32 s{SRD_W+3}, 0x20000
    s_cmp_ge_u32 s{S_RB}, 22
    s_cselect_b32 s{SRD_X+2}, 0, s{SRD_X+2}
    s_cselect_b32 s{SRD_W+2}, 0, s{SRD_W+2}
    s_lshl_b32 s{T2}, s{S_P}, 2
    s_lshl_b32 s{T0}, s{S_P}, 10
    s_lshl_b32 s{T1}, s{S_LW}, 8
    s_add_u32 s{T0}, s{T0}, s{T1}
    v_lshl_add_u32 v1, v0, 2, s{T0}
    s_cmp_eq_u32 s2, {ZWG}
    s_waitcnt lgkmcnt(0)
    s_cbranch_scc1 L_zero
L_nozero:
    s_add_u32 s{SRD_X}, s{S_X}, s58
    s_addc_u32 s{SRD_X+1}, s{S_X+1}, 0
    s_add_u32 s{SRD_W}, s{S_W}, s59
    s_addc_u32 s{SRD_W+1}, s{S_W+1}, 0
    s_cmp_ge_u32 s{S_WAVE}, 4
    s_cbranch_scc0 L_first
    s_setprio 3
    {"s_sleep %s" % E("X_PDEL") if E("X_PDEL") else ""}
    global_load_dword v8, v1, s[8:9]
    global_load_dword v9, v1, s[10:11]
    global_load_dword v10, v1, s[12:13]
    global_load_dword v11, v1, s[14:15]
    v_mov_b32 v7, 0
        s_load_dword s51, s[16:17], s{T2}
    s_load_dword s52, s[18:19], s{T2}
    s_add_u32 s{S_CNT}, s{S_WS}, {WS_CNT}
    s_addc_u32 s{S_CNT+1}, s{S_WS+1}, 0
    s_setprio 0
    s_branch L_helper
L_first:
    """)
    for g_ in dma_chunk(0):
        for x in g_: a(x)
    a(f"""
    s_mov_b32 s{SRD_WS}, s20
    s_mov_b32 s{SRD_WS+1}, s21
    s_mov_b32 s{SRD_WS+2}, 896
    s_mov_b32 s{SRD_WS+3}, 0x20000
    s_mov_b32 m0, {L_GATE}
    v_lshlrev_b32 v4, 4, v0
    buffer_load_dwordx4 v4, {sr(SRD_WS,4)}, 0 offen lds
    """)
    a(f"""
    s_branch L_gemm0
L_zero:
    s_add_u32 s{S_CNT}, s{S_WS}, {WS_CNT}
    s_addc_u32 s{S_CNT+1}, s{S_WS+1}, 0
    """)
    stamp(a, 3)
    a(f"""
    s_mul_i32 s{T0}, s{S_WAVE}, {(NLINE // 8) << CS}
    v_lshl_add_u32 v4, v0, {CS}, s{T0}
    v_mov_b32 v20, 0
    v_mov_b32 v21, 0
    v_mov_b32 v22, 0
    v_mov_b32 v23, 0
    s_bfm_b64 exec, {NLINE // 8}, 0
    global_store_dwordx4 v4, v[20:23], {sr(S_CNT,2)} sc0 sc1
    s_mov_b64 exec, -1
    s_lshl_b32 s{T0}, s{S_WAVE}, 3
    v_add_u32 v4, s{T0}, v0
    v_mul_u32_u24 v4, {TILE_B}, v4
    v_add_u32 v4, {WS_ONE}, v4
    v_mov_b32 v16, 0x3f803f80
    v_mov_b32 v17, v16
    v_mov_b32 v18, v16
    v_mov_b32 v19, v16
    s_mov_b64 exec, 0xff
    global_store_dwordx4 v4, v[16:19], {sr(S_WS,2)} sc0 sc1
    s_mov_b64 exec, -1
    v_mov_b32 v6, 0
    v_mov_b32 v7, 1
    s_waitcnt vmcnt(0)
    s_barrier
    s_cmp_lg_u32 s{S_WAVE}, 4
    s_cbranch_scc1 L_nozero
    s_mov_b64 exec, 1
    global_store_dword v6, v7, {sr(S_DBG,2)} sc0 sc1
    s_mov_b64 exec, -1
    """)
    stamp(a, 4)
    a("s_waitcnt vmcnt(0)")
    stamp(a, 5)
    a(f"""
    s_branch L_nozero
L_helper:
    """)
    helper_waves(a)
    a(f"""
L_quit0:
    s_endpgm
L_gemm0:
    """)
    if E("PB"): stamp(a, 10)
    a(f"""
    s_setprio 2
    s_add_u32 s{S_CNT}, s{S_WS}, {WS_CNT}
    s_addc_u32 s{S_CNT+1}, s{S_WS+1}, 0
    v_mov_b32 v252, v2
    v_mov_b32 v229, v3
    v_mov_b32 v4, 0
    v_mov_b32 v5, 0
    v_lshlrev_b32 v6, 3, v0
    v_and_b32 v6, 63, v6
    v_add_u32 v6, {L_CNT}, v6
    ds_write_b64 v6, v[4:5]
    v_lshlrev_b32 v{A_L16}, 4, v0
    v_mov_b32 v228, 0
    """)
    gemm_waves(a)
    attention(a)
    if not E('PA'): stamp(a, 8)
    reduce(a, True)
    a.label("L_fin")
    store_o(a)
    a.label("L_end")
    prof_end(a, 0, S_WS, S_WAVE)
    a.label("L_quit")
    a("s_endpgm")
    fallback(a)
    return a

def build():
    ref = open("cdna_kernels/%s.s.ref" % NAME).read().split("\n")
    out = "\n".join(ref[:15]) + "\n"
    out += f"; @launch grid=(256,1,1) block=(512,1,1) lds={LDS_TOTAL}\n"
    out += '.amdgcn_target "amdgcn-amd-amdhsa--gfx950"\n.text\n'
    out += kernel_head(NAME + "_kernel") + fused().text()
    out += '.section .rodata,"a"\n'
    out += kernel_desc(NAME + "_kernel", NV, 102)
    return out

if __name__ == "__main__":
    import sys
    dst = sys.argv[1] if len(sys.argv) > 1 else "cdna_kernels/%s.s" % NAME
    open(dst, "w").write(build())
```

```python
import gen1, gen11, re
from gen1 import HEAD
files = []
def make(fname, perm=False, oacc=False, kvacc=False, qacc=False, rows="rand"):
    s = HEAD.format(grid=256, block=256, lds=100000, wpb=4)
    s += "    v_lshlrev_b32 v2, 4, v0\n    v_and_b32 v3, 31, v0\n    s_mov_b32 s40, 0x07060302\n"
    for r in range(16, 128):
        s += f"    v_mov_b32 v{r}, 0\n"
    for i, r in enumerate(range(80, 128, 4)):
        s += f"    global_load_dwordx4 v[8:11], v2, s[4:5]\n    v_add_u32 v2, 4096, v2\n    global_load_dwordx4 v[12:15], v2, s[4:5]\n    v_add_u32 v2, 4096, v2\n    s_waitcnt vmcnt(0)\n"
        for j in range(4):
            s += f"    v_cvt_pk_bf16_f32 v{r+j}, v{8+j}, v{12+j}\n"
    if rows != "rand":
        s += "    v_mov_b32 v4, 0x3f803f80\n    v_cmp_le_u32 vcc, 28, v3\n    v_cmp_le_u32 s[42:43], 29, v3\n    s_nop 1\n"
        for r in list(range(88, 96)) + list(range(104, 112)):
            s += f"    v_cndmask_b32 v{r}, v{r}, v4, vcc\n"
            if rows == "one": s += f"    v_cndmask_b32 v{r}, v{r}, 0, s[42:43]\n"
    for r in range(64, 128):
        s += f"    v_accvgpr_write_b32 a{r-64}, v{r}\n"
    body = gen11.body("full")
    if perm:
        body = re.sub(r"v_cvt_pk_bf16_f32 (v\d+), (v\d+), (v\d+)", r"v_perm_b32 \1, \3, \2, s40", body)
    def toa(m):
        lo, hi = int(m.group(1)), int(m.group(2))
        if (oacc and lo == 64) or (kvacc and 80 <= lo < 112) or (qacc and lo >= 112):
            return f"a[{lo-64}:{hi-64}]"
        return m.group(0)
    body = re.sub(r"v\[(\d+):(\d+)\]", toa, body)
    s += """    s_memrealtime s[32:33]
    s_waitcnt lgkmcnt(0)
    s_add_u32 s34, s32, 300
    s_or_b32 s34, s34, 1023
L_al:
    s_memrealtime s[32:33]
    s_waitcnt lgkmcnt(0)
    s_sub_u32 s35, s32, s34
    s_cmp_lt_i32 s35, 0
    s_cbranch_scc1 L_al
"""
    s += f"""    s_mov_b32 s10, 4
    s_memrealtime s[24:25]
    s_memtime s[20:21]
    s_waitcnt lgkmcnt(0)
.p2align 6
L_loop:
{body}
    s_sub_u32 s10, s10, 1
    s_cmp_lg_u32 s10, 0
    s_cbranch_scc1 L_loop
    s_nop 15
    s_memtime s[22:23]
    s_memrealtime s[26:27]
    s_waitcnt lgkmcnt(0)
""" + gen11.TAIL.replace(".amdhsa_next_free_vgpr 128", ".amdhsa_next_free_vgpr 192")
    open(fname, "w").write(s); files.append(fname)
make("en_base.s", rows="four")
make("en_one.s", rows="one")
make("en_perm.s", rows="four", perm=True)
make("en_oacc.s", rows="four", oacc=True)
make("en_kvacc.s", rows="four", kvacc=True, qacc=True)
make("en_all.s", rows="one", perm=True, oacc=True, kvacc=True, qacc=True)
print(" ".join(files))
```

```python
import gen1
from gen1 import HEAD
files = []
def make(fname, mode, reads=True):
    s = HEAD.format(grid=256, block=512, lds=160000, wpb=8)
    s += """    v_and_b32 v0, 63, v0
    s_and_b32 s14, s2, 7
    s_lshl_b32 s14, s14, 2
    s_bfe_u32 s15, s2, 0x20003
    s_add_u32 s14, s14, s15
    s_mul_i32 s14, s14, 114688
    s_and_b32 s15, s8, 3
    s_lshl_b32 s15, s15, 10
    s_add_u32 s14, s14, s15
    s_add_u32 s16, s4, s14
    s_addc_u32 s17, s5, 0
    v_lshlrev_b32 v3, 4, v0
    v_add_u32 v4, s15, v3
    v_add_u32 v5, 61440, v4
    v_add_u32 v6, 122880, v3
    s_barrier
    s_memtime s[20:21]
    s_waitcnt lgkmcnt(0)
    s_cmp_ge_u32 s8, 4
    s_cbranch_scc1 L_ld
"""
    if reads:
        for i in range(112):
            s += f"    ds_read_b128 v[{8+4*(i%12)}:{11+4*(i%12)}], v6 offset:{(i%16)*1024}\n"
            if i >= 8: s += "    s_waitcnt lgkmcnt(8)\n"
    s += "    s_branch L_j\nL_ld:\n"
    if mode == "dma":
        s += "    s_mov_b32 m0, s15\n    s_nop 0\n"
        for i in range(28):
            s += "    global_load_lds_dwordx4 v3, s[16:17]\n    s_add_u32 m0, m0, 4096\n    v_add_u32 v3, 4096, v3\n"
    elif mode in ("reg", "tid"):
        D = 8
        s += "    s_mov_b32 m0, s15\n"
        for i in range(28 + D):
            if i < 28:
                s += f"    global_load_dwordx4 v[{8+4*i}:{11+4*i}], v3, s[16:17]\n    v_add_u32 v3, 4096, v3\n"
            if i >= D:
                j = i - D
                s += f"    s_waitcnt vmcnt({min(D, 27 - j)})\n"
                if mode == "reg":
                    s += f"    ds_write_b128 v{4 if j < 15 else 5}, v[{8+4*j}:{11+4*j}] offset:{(j%15)*4096}\n"
                else:
                    for d in range(4):
                        s += f"    ds_write_addtid_b32 v{8+4*j+d} offset:{(j%15)*4096 + d*256}\n"
    s += "L_j:\n    s_waitcnt vmcnt(0) lgkmcnt(0)\n    s_memtime s[22:23]\n    s_waitcnt lgkmcnt(0)\n"
    s += gen1.TAIL.format(nv=128)
    open(fname, "w").write(s); files.append(fname)
make("lw_rd.s", "none")
for m in ("dma", "reg", "tid"):
    make(f"lw_{m}.s", m, reads=False)
    make(f"lw_{m}_rd.s", m)
print(" ".join(files))
```

```python
import math, struct

NAME = "gated_mix__mha_block__ssm_conv_s4d__prompt"

TILE_B = 28672
WS_Q  = 0x000000
WS_K  = 0x200000
WS_V  = 0x400000
WS_UT = 0x600000
WS_KC = 0x800000
WS_GT = 0xA00000
WS_O  = 0xC00000
WS_BP = 0xE00000

X_BYTES = 2048 * 896
W_BYTES = 448 * 2688
WO_BYTES = 448 * 896

def f32(x):
    return "0x%08x" % struct.unpack("<I", struct.pack("<f", x))[0]

LOG2E = math.log2(math.e)
QSCALE = (28 ** -0.5) * LOG2E

class Asm:
    def __init__(self):
        self.lines = []
    def __call__(self, s):
        for l in s.split("\n"):
            l = l.strip()
            if l:
                self.lines.append(l if l.endswith(":") else "    " + l)
    def label(self, n):
        self.lines.append(n + ":")
    def extend(self, other):
        self.lines.extend(other.lines if isinstance(other, Asm) else other)
    def text(self):
        return "\n".join(self.lines) + "\n"

def vr(b, n=1):
    return f"v{b}" if n == 1 else f"v[{b}:{b+n-1}]"
def sr(b, n=1):
    return f"s{b}" if n == 1 else f"s[{b}:{b+n-1}]"

def mfma(d, a, b, c=None):
    cs = "0" if c is None else vr(c, 16)
    return f"v_mfma_f32_32x32x16_bf16 {vr(d,16)}, {vr(a,4)}, {vr(b,4)}, {cs}"

def kernel_head(label):
    return f""".globl {label}
.p2align 8
.type {label},@function
{label}:
"""

def kernel_desc(label, nv, ns=96):
    nv4 = (nv + 3) // 4 * 4
    return f""".p2align 6
.amdhsa_kernel {label}
  .amdhsa_next_free_vgpr {nv}
  .amdhsa_next_free_sgpr {ns}
  .amdhsa_accum_offset {nv4}
  .amdhsa_group_segment_fixed_size 0
  .amdhsa_kernarg_size 112
  .amdhsa_user_sgpr_count 2
  .amdhsa_user_sgpr_kernarg_segment_ptr 1
  .amdhsa_system_sgpr_workgroup_id_x 1
.end_amdhsa_kernel
"""

import os
PROF = os.environ.get('PROF') == '1'
WS_PROF = 0x1000000
def stamp(a, i):
    only = os.environ.get("AMP", ",").split(",")[1]
    if PROF and not os.environ.get("MIN") and (not only or only == str(i)):
        a(f"{'s_memtime' if os.environ.get('CYC') else 's_memrealtime'} s[{64+2*i}:{65+2*i}]\ns_waitcnt lgkmcnt(0)")
def prof_begin(a):
    if PROF:
        a("s_memrealtime s[88:89]\ns_memtime s[64:65]")
        for i in range(1, 12):
            a(f"s_mov_b32 s{64+2*i}, 0")
def prof_end(a, kern, s_ws, s_wave):
    if PROF and os.environ.get("MIN"):
        a(f"""
        s_cmp_lg_u32 s{s_wave}, 0
        s_cbranch_scc1 L_quit
        s_mov_b64 exec, 1
        s_lshl_b32 s92, s2, 9
        s_add_u32 s92, s92, {WS_PROF + 48}
        v_mov_b32 v60, s92
        v_mov_b32 v61, s88
        global_store_dword v60, v61, s[{s_ws}:{s_ws+1}] sc0 sc1
        """)
        return
    if PROF and os.environ.get("AMP"):
        wv, st = os.environ["AMP"].split(",")
        reg = 90 if st == "e" else 64 + 2 * int(st)
        a(f"""
        s_memrealtime s[90:91]
        s_waitcnt lgkmcnt(0)
        s_cmp_lg_u32 s2, {os.environ.get("AMPWG", "100")}
        s_cbranch_scc1 L_quit
        s_cmp_lg_u32 s{s_wave}, {wv}
        s_cbranch_scc1 L_quit
        s_sub_u32 s92, s{reg}, s88
        s_mul_i32 s92, s92, 10
        s_add_u32 s92, s92, s90
L_amp:
        s_sleep 8
        s_memrealtime s[90:91]
        s_waitcnt lgkmcnt(0)
        s_sub_u32 s93, s90, s92
        s_cmp_lt_i32 s93, 0
        s_cbranch_scc1 L_amp
        """)
        return
    if PROF:
        a(f"""
        s_memtime s[86:87]
        s_memrealtime s[90:91]
        s_waitcnt lgkmcnt(0)
        s_mov_b64 exec, 1
        """)
        if os.environ.get("DBGPROF"):
            a(f"s_cmp_ge_u32 s{s_wave}, 4\ns_cselect_b32 s92, 64, 0\nv_mov_b32 v60, s92\ns_not_b32 s92, s88\nv_mov_b32 v61, s92\nglobal_atomic_umax v60, v61, s[98:99] offset:8")
            a("v_mov_b32 v61, s88\nglobal_atomic_umax v60, v61, s[98:99] offset:12")
            for k, i in enumerate([1, 3, 5, 6, 7, 8, 9]):
                a(f"v_mov_b32 v61, s{64+2*i}\nglobal_atomic_umax v60, v61, s[98:99] offset:{16+4*k}")
            a("v_mov_b32 v60, 0\nv_mov_b32 v61, s90\nglobal_atomic_umax v60, v61, s[98:99] offset:44")
        a(f"""
        s_mov_b64 exec, 0xffff
        s_lshl_b32 s92, s2, 3
        s_add_u32 s92, s92, s{s_wave}
        s_lshl_b32 s92, s92, 6
        s_add_u32 s92, s92, {WS_PROF + kern * 256 * 8 * 64}
        v_lshl_add_u32 v60, v0, 2, s92
        """)
        for i in range(12):
            a(f"v_writelane_b32 v61, s{64+2*i}, {i}")
        a("v_writelane_b32 v61, s88, 12\nv_writelane_b32 v61, s90, 13")
        a("s_getreg_b32 s92, hwreg(HW_REG_HW_ID)\nv_writelane_b32 v61, s92, 14")
        a("s_getreg_b32 s92, hwreg(HW_REG_XCC_ID)\nv_writelane_b32 v61, s92, 15")
        a(f"global_store_dword v60, v61, s[{s_ws}:{s_ws+1}]")

def endp(lbl):
    return f"s_branch {lbl}" if PROF else "s_endpgm"
```

```python
from common import *
from k1 import kgen_split, kgen_expand
E = os.environ.get

WS_CNT = 0x1100000
WS_ONE = WS_KC
WS_SIZE = 0x1200000
QL = int(E('QL', '6'))
CS = int(E('CS', '8'))
B_O, B_BP, B_U, B_Q = 4, 8, (12 if QL == 6 else 64 << CS), ((64 if QL == 6 else 96) << CS)
KVR = int(E('KVR', '1'))
REPM = sum(1 << (4 * i) for i in range(KVR))
B_R = B_Q + ((1 << QL) << CS) - (64 << CS)
assert KVR == 1
B_L = B_Q + ((1 << QL) << CS)
NLINE = (B_L >> CS) + 64
SPIN_MAX = 4096
ZWG = 248

TAB_B = 32 * 272
L_XCH = 4 * TAB_B
PL_B = 8224
L_KC = 8 * PL_B
KC_B = 4160
L_U = L_KC + 2 * KC_B
U_B = 4608
L_RED = L_U + 2 * U_B
L_X2 = L_RED + 49152
L_X1 = L_X2 - 24576
L_GATE = L_X2 + 24576
L_CNT = L_GATE + 1024
LDS_TOTAL = L_CNT + 64
assert LDS_TOTAL <= 163840
SLOT_AT = [L_X2 - 28672, L_X2] + [L_X2 - 28672 - 20480 * i for i in range(1, 6)]
assert SLOT_AT[6] >= 0 and L_X1 >= SLOT_AT[0]

S_X, S_W = 4, 6
S_WS = 22
S_WAVE, S_RB, S_CB, S_P = 24, 25, 26, 27
SRD_X, SRD_W, SRD_WS = 28, 32, 36
T0, T1, T2, T3 = 40, 41, 42, 43
S_DSK = 44
S_LW1K = 45
S_C0 = 46
S_LW = 50
S_CT = 53
S_CH = 57
S_CNT = 60
S_H, S_QB = 62, 63
S_OUT, S_DBG, S_WO = 96, 98, 100
ST = E("ST", "sc1")
LD = "sc1"
NV = 256

STUBS = []
def giveup(tag):
    if not E("DIAG"): return ""
    k = 8 + 2 * "auobsh".index(tag)
    return f"""
    v_mov_b32 v15, {4*k}
    global_store_dword v15, v14, {sr(S_DBG,2)} offset:4 sc0 sc1
    v_mov_b32 v14, s2
    v_add_u32 v14, 1000, v14
    global_store_dword v15, v14, {sr(S_DBG,2)} sc0 sc1
    s_waitcnt vmcnt(0)
    """

def poll(a, tag, vaddr, vexp, lanes, sleep=0, limit=SPIN_MAX):
    first = f"s_branch L_poll1_{tag}" if sleep else ""
    a(f"""
    s_mov_b64 exec, {lanes}
    v_mov_b32 v15, 0
    s_mov_b32 s{T0}, 0
    {first}
L_poll_{tag}:
    {"s_sleep %d" % sleep if sleep else ""}
L_poll1_{tag}:
    global_atomic_add v14, v{vaddr}, v15, {sr(S_CNT,2)} sc0 sc1
    s_add_u32 s{T0}, s{T0}, 1
    s_cmp_ge_u32 s{T0}, {limit}
    s_cbranch_scc1 L_give_{tag}
    s_waitcnt vmcnt(0)
    v_cmp_ne_u32 vcc, {vexp}, v14
    s_cbranch_vccnz L_poll_{tag}
L_ok_{tag}:
    s_mov_b64 exec, -1
    """)
    STUBS.append(f"""
L_give_{tag}:
    s_waitcnt vmcnt(0)
    {giveup(tag)}
    s_branch L_ok_{tag}
    """)

def poll2(a, tag, vaddr, vexp, lanes, gap):
    at = lambda d: f"global_atomic_add v{d}, v{vaddr}, v15, {sr(S_CNT,2)} sc0 sc1"
    a(f"""
    s_mov_b64 exec, {lanes}
    v_mov_b32 v15, 0
    s_mov_b32 s{T0}, 0
    {at(14)}
L_poll_{tag}:
    s_sleep {gap}
    {at(13)}
    s_waitcnt vmcnt(1)
    v_cmp_ne_u32 vcc, {vexp}, v14
    s_cbranch_vccz L_ok_{tag}
    s_sleep {gap}
    {at(14)}
    s_add_u32 s{T0}, s{T0}, 1
    s_waitcnt vmcnt(1)
    v_cmp_ne_u32 vcc, {vexp}, v13
    s_cbranch_vccz L_ok_{tag}
    s_cmp_lt_u32 s{T0}, {SPIN_MAX}
    s_cbranch_scc1 L_poll_{tag}
L_ok_{tag}:
    s_mov_b64 exec, -1
    """)

def lds_sync(a, idx, tag, vm=True):
    a(f"""
    v_mov_b32 v15, 1
    s_waitcnt {"vmcnt(0) " if vm else ""}lgkmcnt(0)
    s_mov_b64 exec, 1
    ds_add_u32 v23, v15 offset:{4*idx}
    s_mov_b64 exec, -1
    s_branch L_spin1_{tag}
L_spin_{tag}:
    s_sleep {E("SPS", "0")}
L_spin1_{tag}:
    ds_read_b32 v15, v23 offset:{4*idx}
    s_waitcnt lgkmcnt(0)
    v_readfirstlane_b32 s{T0}, v15
    s_cmp_lt_u32 s{T0}, 4
    s_cbranch_scc1 L_spin_{tag}
    """ if E("SPS") else f"""
    v_mov_b32 v15, 1
    s_waitcnt {"vmcnt(0) " if vm else ""}lgkmcnt(0)
    s_mov_b64 exec, 1
    ds_add_u32 v23, v15 offset:{4*idx}
    s_mov_b64 exec, -1
L_spin_{tag}:
    ds_read_b32 v15, v23 offset:{4*idx}
    s_waitcnt lgkmcnt(0)
    v_readfirstlane_b32 s{T0}, v15
    s_cmp_lt_u32 s{T0}, 4
    s_cbranch_scc1 L_spin_{tag}
    """)

XA, XB, WA = 3, 10, 8
XAR = [3, 4, 5, 15]
WF, ACC, XF, PK = 16, 128, 176, 240
RING = 12
NX = 6
XE = not E('XLATE')
DEF = int(E('DEF', '3'))
NG = int(E('NG', '4'))
SRD_R, SRD_T = 4, 92
ONES = [160 + 16*b + 8 + i for b in (3, 2, 1, 0) for i in range(8)]

def gemm_body(a, kind, tag):
    nw = 1 if kind == "gate" else 2
    GROUPS = [[0], [1, 2], [3, 4], [5, 6]]
    def soff(it):
        grp = [g_ for g_ in GROUPS if it in g_][0]
        return SLOT_AT[it] - SLOT_AT[grp[-1]]
    def rd_w(g):
        it, ks = divmod(g, 4)
        if kind == "gate":
            return [f"ds_read_b128 {vr(WF+4*g,4)}, v8 offset:{32*ks}"]
        return [f"ds_read_b64_tr_b16 {vr(WF+4*g,2)}, v8 offset:{soff(it) + ks*4096}",
                f"ds_read_b64_tr_b16 {vr(WF+4*g+2,2)}, v8 offset:{soff(it) + ks*4096+1024}"]
    def mm(g, i, x):
        w, d = WF + 4*g, ACC + 16*i
        c = None if g == 0 else d
        return mfma(d, x, w, c) if kind == "v" else mfma(d, w, x, c)
    def epi(i):
        r = []
        base = ACC + 16*i
        if kind == "gate":
            return [f"v_cvt_pk_bf16_f32 v{base}, v{base}, v{base}",
                    f"v_and_b32 v{base}, 0xffff0000, v{base}",
                    f"v_mul_f32 v{base}, {f32(-LOG2E)}, v{base}",
                    f"v_exp_f32 v{base}, v{base}", "s_nop 0",
                    f"v_add_f32 v{base}, 1.0, v{base}",
                    f"v_rcp_f32 v{base}, v{base}", "s_nop 0",
                    f"v_cvt_pk_bf16_f32 v{base}, v{base}, v{base}",
                    f"v_and_b32 v{base}, 0xffff0000, v{base}",
                    f"buffer_store_dword v{base}, v6, {sr(SRD_R,4)}, 0 offen offset:{128*i} {ST}"]
        so = ["s92", "s93", "s94"][i]
        for h in range(2):
            if kind == "qk" and i == 2 and E("PKE"):
                r += [f"v_pk_mul_f32 {vr(base+8*h+j,2)}, {vr(base+8*h+j,2)}, s[46:47] op_sel:[0,1] op_sel_hi:[1,1]" for j in range(0, 8, 2)]
            elif kind == "qk":
                r += [f"v_mul_f32 v{base+8*h+j}, s47, v{base+8*h+j}" for j in range(8)]
            r += [f"v_cvt_pk_bf16_f32 v{PK+4*h+j}, v{base+8*h+2*j}, v{base+8*h+2*j+1}" for j in range(4)]
            if not (kind == "v" and i == 2):
                r.append(f"buffer_store_dwordx4 {vr(PK+4*h,4)}, v{6+h}, {sr(SRD_R,4)}, {so} offen {ST}")
        return r
    VX, VW = 252, 229
    if E("PB"): stamp(a, 8)
    for g_ in items(PLAN_G[0], VX, VW):
        for x in g_: a(x)
    loads = [items(PLAN_G[k], VX, VW) for k in (1, 2, 3)] + [[]]
    waits = [nld(PLAN_G[0]), wait_for(PLAN_G, 1, "12"), wait_for(PLAN_G, 2, "34"), wait_for(PLAN_G, 3, "56")]
    assert "b" not in "".join(PLAN_G)
    xslot = 0
    for gi, grp in enumerate(GROUPS):
        if waits[gi] is not None: a(f"s_waitcnt vmcnt({waits[gi]})" + (" lgkmcnt(0)" if gi == 0 else ""))
        a("s_barrier")
        if gi in (0, 3): stamp(a, 1 + gi // 3)
        if E('PA') and not E('PB') and gi in (1, 2): stamp(a, 7 + gi)
        ld = loads[gi]
        queue, steps = [], []
        nread = 0
        order = [grp[1], grp[2], grp[0]] if False else grp
        for it in order:
            nt = 3 if it == 0 else 1
            for ks in range(4):
                g = 4*it + ks
                for r in rd_w(g): queue.append((r, None)); nread += 1
                ms = []
                for i in range(nt):
                    reg = XF + 4 * (xslot % RING)
                    queue.append((f"ds_read_b128 {vr(reg,4)}, v{XAR[ks]} offset:{soff(it) + i*4096}", xslot)); nread += 1
                    ms.append((mm(g, i, reg), xslot))
                    xslot += 1
                steps.append((nread, ms))
            if kind == "gate" and it < 6:
                queue[-1] = (queue[-1][0] + f"""
                s_add_u32 s{S_C0}, s{S_C0}, 1
                s_cmp_eq_u32 s{S_C0}, 7
                s_cselect_b32 s{S_C0}, 0, s{S_C0}
                s_lshl_b32 s47, s{S_C0}, 7
                v_add_u32 v8, s47, v9""", queue[-1][1])
        if gi < 3:
            upd = "".join(f"\nv_subrev_u32 v{r}, {SLOT_AT[grp[-1]] - SLOT_AT[GROUPS[gi+1][-1]]}, v{r}" for r in XAR + ([] if kind == "gate" else [8]))
            queue[-1] = (queue[-1][0] + upd, queue[-1][1])
        issued, freed = 0, steps[0][1][0][1]
        def issue(upto):
            nonlocal issued
            while issued < min(upto, len(queue)) and (queue[issued][1] is None or queue[issued][1] < freed + RING):
                a(queue[issued][0]); issued += 1
        prev = 0
        for si, (need, ms) in enumerate(steps):
            issue(max(need, prev + 15))
            assert issued >= need
            if si == 0:
                for g_ in ld[:2]:
                    for x in g_: a(x)
                ld = ld[2:]
            a(f"s_waitcnt lgkmcnt({issued - need})")
            prev = need
            if gi == 3 and si == len(steps) - DEF:
                last = [st_[1][0][0] for st_ in steps[si:]]
                a("s_waitcnt lgkmcnt(0)")
                break
            for m, xs in ms:
                a(m)
                freed = xs + 1
                issue(min(issued + 3, need + 15))
                k = 1 if gi == 0 else 2
                for g_ in ld[:k]:
                    for x in g_: a(x)
                ld = ld[k:]
        for g_ in ld:
            for x in g_: a(x)
        assert issued == len(queue)
    X0 = xslot % RING
    def rd_x(n):
        i, g = 1 + n // 24, 4 + n % 24
        return f"ds_read_b128 {vr(XF+4*((n+X0)%RING),4)}, v{XB + g%4} offset:{(i-1)*24576 + (g//4-1)*4096}"
    a("s_waitcnt vmcnt(0)")
    a("s_barrier")
    stamp(a, 3)
    AHEAD = 8
    assert AHEAD + DEF <= RING
    per = AHEAD // DEF
    for k in range(DEF):
        if k: a(last[k - 1])
        for n in range(k * per, AHEAD if k == DEF - 1 else (k + 1) * per): a(rd_x(n))
    a(last[-1])
    issued = AHEAD
    fill = []
    BX2 = int(E("BX2", "18"))
    for n in range(48):
        if n == BX2:
            if NX == 12: a(f"s_waitcnt vmcnt({1 if kind == 'gate' else 2})")
            a(f"s_waitcnt lgkmcnt(0)\ns_barrier")
            if not E('PB'): stamp(a, 10)
            while issued < n + AHEAD + 3:
                a(rd_x(issued)); issued += 1
        a(f"s_waitcnt lgkmcnt({issued - n - 1})")
        a(mm(4 + n % 24, 1 + n // 24, XF + 4*((n+X0) % RING)))
        lim = 24 if n < BX2 else 48
        if issued < min(lim, n + 1 + (AHEAD if n < BX2 else AHEAD + 3)):
            a(rd_x(issued)); issued += 1
        if n == 3: fill = epi(0)
        if n == 27: fill = epi(1)
        for x in fill[:4]: a(x)
        fill = fill[4:]
    assert issued == 48
    a("s_nop 11")
    for x in epi(2): a(x)

def gemm_waves(a):
    a(f"""
    s_lshl_b32 s{S_CT}, s{S_CB}, 2
    s_add_u32 s{S_CT}, s{S_CT}, s{S_WAVE}
    v_and_b32 v1, 31, v0
    v_lshrrev_b32 v2, 5, v0                ; hi
    v_lshrrev_b32 v3, 1, v0
    v_and_b32 v3, 7, v3
    v_xor_b32 v3, v3, v2
    v_lshlrev_b32 v10, 7, v1
    v_lshl_add_u32 v10, v3, 4, v10
    v_xor_b32 v11, 32, v10
    v_xor_b32 v12, 64, v10
    v_xor_b32 v13, 96, v10
    v_mov_b32 v239, 1
    s_mul_i32 s{T2}, s{S_CT}, 37
    s_lshr_b32 s{T2}, s{T2}, 9
    s_mul_i32 s{T1}, s{T2}, 14
    s_sub_u32 s52, s{S_CT}, s{T1}          ; ct'
    s_lshl_b32 s{T2}, s{T2}, 21
    s_add_u32 s{SRD_R}, s{S_WS}, s{T2}
    s_addc_u32 s{SRD_R+1}, s{S_WS+1}, 0
    s_mov_b32 s{SRD_R+2}, {64*TILE_B}
    s_mov_b32 s{SRD_R+3}, 0x20000
    s_mul_i32 s56, s{S_RB}, 205
    s_lshr_b32 s56, s56, 10
    s_mul_i32 s{T0}, s56, 5
    s_sub_u32 s{T0}, s{S_RB}, s{T0}
    s_lshl_b32 s{T1}, s56, 4
    s_add_u32 s{T1}, s{T1}, s{T0}
    s_add_u32 s92, s{T1}, s{T0}
    s_add_u32 s93, s92, 1
    s_add_u32 s95, s{T1}, 10
    s_cmp_eq_u32 s{S_RB}, 20
    s_cselect_b32 s92, 15, s92
    s_cselect_b32 s93, 31, s93
    s_cselect_b32 s95, 47, s95
    s_cmp_eq_u32 s{S_RB}, 21
    s_cselect_b32 s92, 63, s92
    s_mul_i32 s{T0}, s{S_RB}, 3
    s_add_u32 s{T1}, s{T0}, 1
    s_add_u32 s94, s{T0}, 2
    s_sub_u32 s{T2}, s{S_CT}, 14
    s_cmp_lt_u32 s{T2}, 28                 ; K or V
    s_cselect_b32 s92, s92, s{T0}
    s_cselect_b32 s93, s93, s{T1}
    s_cselect_b32 s94, 64, s94
    s_cselect_b32 s95, s95, 64
    s_mul_i32 s92, s92, {TILE_B}
    s_mul_i32 s93, s93, {TILE_B}
    s_mul_i32 s94, s94, {TILE_B}
    s_mul_i32 s95, s95, {TILE_B}
    s_mul_i32 s{T0}, s{S_RB}, 3
    s_add_u32 s{T1}, s{T0}, 2
    s_min_u32 s{T1}, s{T1}, 63
    s_cmp_lt_u32 s{S_CT}, 14
    s_cselect_b32 s{T2}, 2, 4
    s_lshr_b32 s{T0}, s{T0}, s{T2}
    s_lshr_b32 s{T1}, s{T1}, s{T2}
    s_cmp_eq_u32 s{T0}, s{T1}
    s_cselect_b32 s54, 3, 15
    s_mov_b32 s55, 0
    s_mov_b32 s49, 0
    s_mul_i32 s51, s{T0}, 14               ; gate wave: first counter
    s_mul_i32 s{T1}, s52, {8*147}
    s_lshr_b32 s{T1}, s{T1}, 10            ; (8 ct') / 7
    v_and_b32 v4, 1, v0
    v_add_u32 v4, s{T1}, v4                ; head
    v_bfe_u32 v5, v0, 1, 2
    s_cmp_eq_u32 s{S_RB}, 20
    s_cselect_b32 s48, 63, 3
    s_cselect_b32 s{T2}, 0, s56
    s_min_u32 s{T2}, s{T2}, 3
    v_lshl_add_u32 v16, v4, 2, s{T2}
    v_add_u32 v16, v16, v5
    v_lshlrev_b32 v16, {CS}, v16
    v_add_u32 v238, {B_L}, v16
    s_sub_u32 s{T2}, s{S_CT}, 14
    s_cmp_lt_u32 s{T2}, 28
    s_cselect_b32 s{T3}, 1, 0
    s_cmp_lt_u32 s{S_RB}, 22
    s_cselect_b32 s{T3}, s{T3}, 0
    s_cselect_b32 s54, s54, 0
    v_mov_b32 v253, s{T3}
    s_cmp_lt_u32 s{T2}, 28
    s_cbranch_scc0 L_cnt_q
    v_mov_b32 v254, v16
    s_cmp_lt_u32 s{S_RB}, 20
    s_cselect_b32 s54, 3, 0
L_cnt_done:
    v_bfe_u32 v16, v0, 4, 1                ; ih
    v_bfe_u32 v4, v0, 2, 2                 ; r
    v_lshl_add_u32 v17, v2, 3, v4          ; 8 hi + r
    v_lshlrev_b32 v8, 8, v17
    v_xor_b32 v17, s{S_WAVE}, v4
    v_lshl_add_u32 v8, v17, 6, v8
    v_lshl_add_u32 v8, v16, 5, v8
    v_add_u32 v8, {SLOT_AT[0]}, v8
    v_and_b32 v17, 3, v0                   ; c
    v_add_u32 v3, {SLOT_AT[0] + 16384}, v10
    v_add_u32 v4, {SLOT_AT[0] + 16384}, v11
    v_add_u32 v5, {SLOT_AT[0] + 16384}, v12
    v_add_u32 v15, {SLOT_AT[0] + 16384}, v13
    v_add_u32 v10, {L_X1}, v10
    v_add_u32 v11, {L_X1}, v11
    v_add_u32 v12, {L_X1}, v12
    v_add_u32 v13, {L_X1}, v13
    s_cmp_ge_u32 s{S_CT}, 42
    s_cbranch_scc1 L_gate
    s_cmp_ge_u32 s{S_CT}, 28
    s_cbranch_scc1 L_v
    v_and_b32 v16, 1, v17
    v_lshrrev_b32 v17, 1, v17
    v_lshl_add_u32 v17, v16, 1, v17
    """)
    assert WS_Q == 0 and WS_K == 1 << 21 and WS_V == 2 << 21
    wa = "v_lshl_add_u32 v8, v17, 3, v8"
    a(wa)
    a(f"""
    s_cmp_ge_u32 s{S_CT}, 14
    s_cselect_b32 s47, 1.0, {f32(QSCALE)}
    s_lshl_b32 s{T0}, s52, 11
    v_add_u32 v6, s{T0}, v{A_L16}
    v_add_u32 v7, 1024, v6
    """)
    gemm_body(a, "qk", "qk")
    a("s_branch L_signal")
    a.label("L_gate")
    a(f"""
    v_lshlrev_b32 v9, 4, v2
    v_add_u32 v9, {L_GATE}, v9
    s_lshl_b32 s47, s{S_C0}, 7
    v_add_u32 v8, s47, v9
    s_add_u32 s{SRD_R}, s{S_WS}, {WS_GT}
    s_addc_u32 s{SRD_R+1}, s{S_WS+1}, 0
    s_cmp_eq_u32 s{S_CT}, 42
    s_cselect_b32 s{SRD_R+2}, 8192, 0
    s_mul_i32 s{T0}, s{S_RB}, {96*4}
    v_lshl_add_u32 v6, v1, 2, s{T0}
    v_mov_b32 v7, v6
    """)
    gemm_body(a, "gate", "g")
    a("s_branch L_signal")
    a.label("L_v")
    a(wa)
    a(f"""
    s_lshl_b32 s{T0}, s52, 9
    v_mul_u32_u24 v6, 7168, v2
    v_lshl_add_u32 v6, v1, 4, v6
    v_add_u32 v6, s{T0}, v6
    v_add_u32 v7, 14336, v6
    """)
    gemm_body(a, "v", "v")
    a.label("L_signal")
    stamp(a, 4)
    a(f"""
    """)
    STUBS.append(f"""
L_cnt_q:
    s_mov_b32 s48, 1
    v_lshlrev_b32 v4, 4, v4
    v_add3_u32 v4, v4, v5, s{T0}
    v_and_b32 v5, {(1 << QL) - 1}, v4
    v_lshrrev_b32 v4, {QL}, v4
    v_lshlrev_b32 v5, {CS}, v5
    v_add_u32 v5, {B_Q}, v5
    v_lshl_add_u32 v254, v4, 2, v5
    s_cmp_lt_u32 s{S_CT}, 42
    s_cbranch_scc1 L_cnt_done
    v_add_u32 v16, s51, v0
    v_lshl_add_u32 v254, v16, {CS}, {B_BP}
    s_mov_b32 s{T0}, 0x3fff
    s_cmp_eq_u32 s54, 3
    s_cselect_b32 s54, s{T0}, 0xfffffff
    s_cmp_eq_u32 s{S_CT}, 42
    s_cselect_b32 s54, s54, 0
    s_branch L_cnt_done
    """)
    if E("SBEF"): attn_setup(a)
    a(f"""
    s_setprio {E("PRP", "3")}
    s_waitcnt vmcnt(0)
    s_mov_b64 exec, s[54:55]
    s_cbranch_execz L_nosig
    global_atomic_add v254, v239, {sr(S_CNT,2)} sc1
L_nosig:
    s_mov_b64 exec, -1
    """)
    if not E("SBEF"): attn_setup(a)

Q, O, S, P, KV = 16, 48, 112, 144, 160
A_K, A_V0, A_V1, A_RED_, A_Q, A_L16, A_M0, A_M1, A_PA, A_PE, A_RR, A_OC, A_LC = 224, 225, 226, 227, 230, 231, 232, 233, 234, 235, 236, 237, 255
S_OFF = 9
S_KB = 28
A_RED = 227
S_EXV = 20

def kv_loads(b):
    r = KV + 16 * b
    w = sr(SRD_WS, 4)
    kb = sr(S_KB, 2)
    return [f"global_load_dwordx4 {vr(r,4)}, v{A_K}, {kb} {LD}",
            f"global_load_dwordx4 {vr(r+4,4)}, v{A_K}, {kb} offset:1024 {LD}",
            f"global_load_dwordx4 {vr(r+8,4)}, v{A_V0}, {kb} {LD}",
            f"global_load_dwordx4 {vr(r+12,4)}, v{A_V1}, {kb} {LD}",
            f"s_add_u32 s{S_KB}, s{S_KB}, {TILE_B}\ns_addc_u32 s{S_KB+1}, s{S_KB+1}, 0"]

def slot(a, n, qk, pv, post=None, first=False, mid=None, tight=False, tail=None):
    sc, sn = S + 16 * (n & 1), S + 16 * ((n + 1) & 1)
    pc, pp = P + 8 * (n & 1), P + 8 * ((n + 1) & 1)
    ms = [None] * 4
    if qk is not None:
        k, q = KV + 16 * qk[0], Q + 8 * qk[1]
        ms[0] = mfma(sn, k, q, None)
        ms[1] = mfma(sn, k + 4, q + 4, sn)
    if pv is not None:
        v, o = KV + 16 * pv[0] + 8, O + 16 * pv[1]
        ms[2] = mfma(o, v, pp, None if first else o)
        ms[3] = mfma(o, v + 4, pp + 4, o)
    if tail:
        ms = [ms[2], ms[3], None, tail]
    valu = []
    for g in range(4):
        for j in range(4):
            valu.append(f"v_exp_f32 v{sc+4*g+j}, v{sc+4*g+j}")
            if g > 0 and j == 0:
                valu.append(f"v_cvt_pk_bf16_f32 v{pc+2*g-2}, v{sc+4*g-4}, v{sc+4*g-3}")
                valu.append(f"v_cvt_pk_bf16_f32 v{pc+2*g-1}, v{sc+4*g-2}, v{sc+4*g-1}")
    valu.append(f"v_cvt_pk_bf16_f32 v{pc+6}, v{sc+12}, v{sc+13}")
    valu.append(f"v_cvt_pk_bf16_f32 v{pc+7}, v{sc+14}, v{sc+15}")
    cuts = [0, 3, 7, 10, 24] if tight else [0, 4, 10, 16, 24]
    for g in range(4):
        if g == 2 and mid:
            for e in mid: a(e)
        if ms[g]: a(ms[g])
        if post and post[g]: a(post[g])
        for x in valu[cuts[g]:cuts[g+1]]: a(x)

def red_writes(j):
    return [f"ds_write_b128 v{A_RED+j}, {vr(O+16*j+4*i,4)} offset:{1024*i}" for i in range(4)]

def attn_setup(a):
    a(f"""
    s_and_b32 s{S_H}, s2, 7
    s_lshl_b32 s{S_H}, s{S_H}, 1
    s_bfe_u32 s{T0}, s2, 0x10003
    s_add_u32 s{S_H}, s{S_H}, s{T0}
    s_lshr_b32 s{S_QB}, s2, 4
    s_mov_b32 s{SRD_WS}, s{S_WS}
    s_mov_b32 s{SRD_WS+1}, s{S_WS+1}
    s_mov_b32 s{SRD_WS+2}, {WS_SIZE}
    s_mov_b32 s{SRD_WS+3}, 0x20000
    s_mul_i32 s{T0}, s{S_H}, 7
    s_lshr_b32 s8, s{T0}, 1                ; u0
    s_mul_i32 s{S_OFF}, s{S_WAVE}, {16*TILE_B}
    s_add_u32 s{S_KB}, s{S_WS}, s{S_OFF}
    s_addc_u32 s{S_KB+1}, s{S_WS+1}, 0
    s_lshl_b32 s{T2}, s8, 9
    v_add_u32 v{A_Q}, s{T2}, v{A_L16}
    v_add_u32 v{A_K}, {WS_K}, v{A_Q}
    v_bfe_u32 v8, v0, 2, 1
    v_bfe_u32 v9, v0, 3, 1
    v_and_b32 v10, 19, v0
    v_lshl_add_u32 v10, v8, 3, v10
    v_lshl_add_u32 v10, v9, 2, v10
    v_lshrrev_b32 v1, 5, v0                ; hi
    v_mul_u32_u24 v3, 7168, v1
    v_lshl_add_u32 v3, v10, 4, v3
    s_lshl_b32 s{T3}, s8, 7
    s_add_u32 s{T3}, s{T3}, {WS_V}
    v_add_u32 v{A_V0}, s{T3}, v3
    v_add_u32 v{A_V1}, 14336, v{A_V0}
    s_bitcmp1_b32 s{S_H}, 0
    s_mov_b32 s{S_EXV}, 0x0fffffff
    s_cselect_b32 s{S_EXV}, 0xfffffff0, s{S_EXV}
    s_cselect_b64 s[18:19], -1, 0
    s_mov_b32 s{S_EXV+1}, s{S_EXV}
    v_mov_b32 v8, {WS_ONE}
    v_cndmask_b32 v{A_V0}, v8, v{A_V0}, {sr(S_EXV,2)}
    v_cndmask_b32 v{A_V1}, v8, v{A_V1}, {sr(S_EXV,2)}
    """)
    for j in range(4):
        a(f"""
        s_add_u32 s{T3}, s{S_WAVE}, {j+1}
        s_and_b32 s{T3}, s{T3}, 3
        s_lshl_b32 s{T0}, s{S_QB}, 2
        s_add_u32 s{T0}, s{T0}, s{T3}
        s_mul_i32 s{10+j}, s{T0}, {TILE_B}
        s_mul_i32 s{T3}, s{T3}, 12288
        s_add_u32 s{T3}, s{T3}, {L_RED + (4096*j if j < 3 else 0)}
        v_add_u32 v{A_RED+j if j < 3 else A_RR}, s{T3}, v{A_L16}
        """)
    a(f"""
    s_lshl_b32 s3, s{T0}, 4
    s_add_u32 s3, s3, s{S_H}
    s_lshl_b32 s3, s3, 11
    s_add_u32 s3, s3, {WS_O}
    s_lshl_b32 s{T0}, s{T0}, {CS}
    s_add_u32 s{T0}, s{T0}, {B_O}
    v_mov_b32 v{A_OC}, s{T0}
    v_mov_b32 v{A_LC}, {L_CNT}
    s_mov_b32 s14, {f32(2.0**60 if E("SLOW") else 2.0**-60)}
    s_mov_b32 s15, {f32(2.0**60)}
    """)
    a(f"""
    s_and_b32 s{T0}, s{S_H}, 1
    v_cmp_lt_u32 vcc, v1, s{T0}
    v_cmp_gt_u32 s[100:101], v1, s{T0}
    s_add_u32 s{T0}, s{S_H}, 1
    s_and_b32 s{T0}, s{T0}, 6
    v_cndmask_b32 v{A_M0}, -1, 0, vcc
    v_cndmask_b32 v{A_M1}, -1, 0, s[100:101]
    s_mov_b64 s[100:101], 0
    s_cmp_eq_u32 s{T0}, 0
    s_cselect_b32 s{T0}, 10, 20
    s_cselect_b32 s{T1}, 2, 4
    s_cselect_b32 s30, 12, 24
    v_mov_b32 v{A_PE}, s{T0}
    v_writelane_b32 v{A_PE}, s{T1}, {4 if E("AP1") else 1}
    s_lshl_b32 s{T0}, s{S_H}, 2
    s_add_u32 s{T0}, s{T0}, s{S_WAVE}
    s_lshl_b32 s{T0}, s{T0}, {CS}
    s_add_u32 s{T1}, s{T0}, {B_L}
    v_mov_b32 v12, s{T1}
    s_and_b32 s{T1}, s{S_H}, {(1 << (QL - 4)) - 1}
    s_lshl_b32 s{T1}, s{T1}, 4
    s_add_u32 s{T1}, s{T1}, s{S_QB}
    s_lshl_b32 s{T1}, s{T1}, {CS}
    s_lshr_b32 s{T2}, s{S_H}, {QL - 4}
    s_lshl_b32 s{T2}, s{T2}, 2
    s_add_u32 s{T1}, s{T1}, s{T2}
    s_add_u32 s{T1}, s{T1}, {B_Q}
    {"v_lshl_add_u32 v%d, v0, %d, s%d" % (A_PA, CS, T0) if E("AP1") else "v_mov_b32 v%d, s%d" % (A_PA, T0)}
    v_writelane_b32 v{A_PA}, s{T1}, {4 if E("AP1") else 1}
    """)

def qmask(j):
    return [f"v_and_b32 v{Q+8*j}, v{A_M0}, v{Q+8*j}", f"v_and_b32 v{Q+8*j+1}, v{A_M0}, v{Q+8*j+1}",
            f"v_and_b32 v{Q+8*j+6}, v{A_M1}, v{Q+8*j+6}", f"v_and_b32 v{Q+8*j+7}, v{A_M1}, v{Q+8*j+7}"]

def attention(a):
    w = sr(SRD_WS, 4)
    stamp(a, 5)
    if E("X_DELAY"): a("s_sleep 64")
    if E("AP1"):
        a(f"""
        s_mov_b64 exec, -1
        s_cmp_eq_u32 s{S_WAVE}, 0
        s_cbranch_scc1 L_pa0
L_paw:
        ds_read_b32 v15, v{A_LC} offset:24
        s_waitcnt lgkmcnt(0)
        v_readfirstlane_b32 s{T0}, v15
        s_cmp_eq_u32 s{T0}, 0
        s_cbranch_scc1 L_paw
        s_branch L_pa1
L_pa0:
        """)
        if E("GAPA"): poll2(a, "a", A_PA, f"v{A_PE}", 31, int(E("GAPA")))
        else: poll(a, "a", A_PA, f"v{A_PE}", 31)
        a(f"ds_write_b32 v{A_LC}, v239 offset:24\nL_pa1:")
    elif E("GAPA"): poll2(a, "a", A_PA, f"v{A_PE}", 3, int(E("GAPA")))
    else: poll(a, "a", A_PA, f"v{A_PE}", 3)
    stamp(a, 6)
    if PROF and E("PCNT"): a(f"s_mov_b32 s84, s{T0}")
    def ldq(j):
        a(f"buffer_load_dwordx4 {vr(Q+8*j,4)}, v{A_Q}, {w}, s{10+j} offen {LD}")
        a(f"buffer_load_dwordx4 {vr(Q+8*j+4,4)}, v{A_Q}, {w}, s{10+j} offen offset:1024 {LD}")
    l0 = kv_loads(0)
    a(l0[0]); a(l0[1])
    ldq(0); ldq(1); ldq(2)
    for x in l0[2:]: a(x)
    ldq(3)
    a("s_waitcnt vmcnt(8)")
    for x in qmask(0): a(x)
    a("s_nop 1")
    a(mfma(S, KV, Q, None))
    l1 = kv_loads(1)
    a(l1[0])
    a(mfma(S, KV + 4, Q + 4, S))
    a(l1[1])
    a("s_waitcnt vmcnt(8)")
    for x in qmask(1): a(x)
    a("s_setprio 0\ns_nop 3")
    stamp(a, 7)
    seq = [(t, q) for t in range(12) for q in range(4)]
    seq += [(12,0),(12,1),(12,2),(13,0),(13,1),(13,2),(14,0),(15,0),(14,1),(15,1),(14,2),(15,2),(12,3),(13,3),(14,3),(15,3)]
    rseq = [(j, i) for i in (0, 3, 1, 2) for j in range(3)]
    rd = [f"ds_read_b128 {vr(O+16*j+4*i,4)}, v{A_RR} offset:{4096*j + 1024*i}" for j, i in rseq]
    for n, (t, q) in enumerate(seq):
        qk = (seq[n+1][0] & 3, seq[n+1][1]) if n < 63 else None
        pv = (seq[n-1][0] & 3, seq[n-1][1]) if n > 0 else None
        post, mid = [None] * 4, None
        if n < 51:
            ld = kv_loads((t + 3) & 3)
            if q == 0: post[0] = ld[0]
            if q == 1: post[0], post[2] = ld[1], ld[2]
            if q == 2:
                post[0], post[1], post[2] = [ld[3]] + ld[4].split('\n')
                if t < 12: post[3] = f"s_waitcnt vmcnt({ {1: 10, 3: 9, 4: 9, 6: 9}.get(t, 8) })"
            if (t, q) == (12, 1): post[3] = "s_waitcnt vmcnt(7)"
        if (t, q) == (13, 1): post[3] = "s_waitcnt vmcnt(4)"
        if (t, q) == (13, 2): post[3] = "s_waitcnt vmcnt(0)"
        first = 1 <= n <= 4
        if t == 0:
            l2 = kv_loads(2)
            if q == 0:
                post = [l1[2], l1[3] + "\n" + l1[4], None, None]
                mid = ["s_waitcnt vmcnt(8)"] + qmask(2)
            if q == 1:
                post = [l2[0], l2[1], l2[2], l2[3] + "\n" + l2[4]]
                mid = ["s_waitcnt vmcnt(6)"] + qmask(3)
            if q == 2:
                post = [ld[0], ld[1], ld[2], ld[3] + "\n" + ld[4] + "\ns_waitcnt vmcnt(10)"]
            if q == 3:
                post[0], post[1] = [f"buffer_store_dwordx4 {vr(PK+4*h,4)}, v{6+h}, {sr(SRD_R,4)}, s95 offen {ST}" for h in range(2)]
                post[3] = "s_waitcnt vmcnt(10)"
        if t == int(E("TGO", "3")) and q == 3:
            post[0] = f"ds_write_b32 v{A_LC}, v239 offset:20"
        if (t, q) == (2, 3):
            post[1] = f"s_mov_b64 exec, s[48:49]\nglobal_atomic_add v238, v253, {sr(S_CNT,2)} sc1\ns_mov_b64 exec, -1"
        if (t, q) == (5, 3):
            post[0] = f"s_mov_b64 exec, 1\nglobal_atomic_add v14, v12, v15, {sr(S_CNT,2)} sc0 sc1\ns_mov_b64 exec, -1"
        if (t, q) == (6, 3):
            post[1] = f"s_waitcnt vmcnt(4)\nv_readfirstlane_b32 s{T1}, v14"
            post[2] = f"s_cmp_lg_u32 s{T1}, s30"
            post[3] = "s_cbranch_scc1 L_late\nL_late_ok:"
            st = Asm(); st("L_late:"); poll(st, "s", 12, "s30", 1); st("s_branch L_late_ok")
            STUBS.append(st.text())
        if (t, q) == (15, 1): post = [None] + red_writes(0)[:3]
        if (t, q) == (14, 2): post[0] = red_writes(0)[3]
        if (t, q) == (15, 2): post = [None] + red_writes(1)[:3]
        if (t, q) == (12, 3): post[0] = red_writes(1)[3]
        if (t, q) == (13, 3):
            r2 = red_writes(2)
            post = [None, r2[0] + "\n" + r2[1], r2[2], r2[3]]
        if (t, q) == (14, 3):
            post = ["s_waitcnt lgkmcnt(0)", "s_barrier", "\n".join(rd[0:3]), "\n".join(rd[3:6])]
        if (t, q) == (15, 3):
            post = ["\n".join(rd[6:9]), "\n".join(rd[9:12]), None, None]
        o = O + 48
        if E("ATS") and n == int(E("ATS")): stamp(a, 2)
        slot(a, n, qk, pv, post, first, mid, tight=t < int(E('TIGHT', '6')),
             tail=mfma(o, KV + 48 + 8, P + 8, o) if n == 63 else None)
    a("s_waitcnt lgkmcnt(0)")
    a(f"v_add_f32 v{O}, v{O}, v{O+16}")
    a(mfma(o, KV + 48 + 12, P + 12, o))
    for i in range(1, 16): a(f"v_add_f32 v{O+i}, v{O+i}, v{O+16+i}")
    if not E('PA'): stamp(a, 8)
    for i in (0, 12, 2, 14, 4, 6, 8, 10):
        a(f"v_pk_add_f32 {vr(O+i,2)}, {vr(O+i,2)}, {vr(O+32+i,2)}")
    for i in (0, 12):
        a(f"v_pk_add_f32 {vr(o+i,2)}, {vr(o+i,2)}, {vr(O+i,2)}")
    rest = [f"v_pk_add_f32 {vr(o+i,2)}, {vr(o+i,2)}, {vr(O+i,2)}" for i in (2, 14, 4, 6, 8, 10)]
    row_sum(a, rest)

def row_sum(a, fill):
    o = O + 48
    a(f"""
    v_cndmask_b32 v10, v{o+12}, v{o}, s[18:19]
    v_cndmask_b32 v13, v{o+12}, v{o}, s[18:19]
    {fill[0]}
    {fill[1]}
    v_permlane32_swap_b32 v10, v13
    {fill[2]}
    v_cndmask_b32 v13, v13, v10, s[18:19]
    {fill[3]}
    v_rcp_f32 v10, v13
    {fill[4]}
    {fill[5]}
    """)

def store_o(a):
    o = O + 48
    w = sr(SRD_WS, 4)
    for h in range(2):
        for i in range(4*h, 4*h + 4):
            a(f"v_pk_mul_f32 {vr(o+2*i,2)}, {vr(o+2*i,2)}, v[10:11] op_sel_hi:[1,0]")
        for i in range(4*h, 4*h + 4):
            a(f"v_cvt_pk_bf16_f32 v{16+i}, v{o+2*i}, v{o+2*i+1}")
        a(f"buffer_store_dwordx4 {vr(16+4*h,4)}, v{A_L16}, {w}, s3 offen offset:{1024*h} {ST}")
    if not E('PA'): stamp(a, 9)
    a(f"v_pk_mul_f32 v[8:9], {vr(o,2)}, 0 op_sel_hi:[1,0]")
    for i in range(2, 16, 2):
        a(f"v_pk_fma_f32 v[8:9], {vr(o+i,2)}, 0, v[8:9] op_sel_hi:[1,0,1]")
    a(f"""
    v_cmp_le_f32 vcc, s14, v13
    v_cmp_ge_f32 s[16:17], s15, v13
    s_and_b64 s[16:17], s[16:17], vcc
    v_cmp_o_f32 vcc, v8, v9
    s_and_b64 s[16:17], s[16:17], vcc
    s_or_b64 s[16:17], s[16:17], s[100:101]
    s_cmp_lg_u64 s[16:17], -1
    s_cbranch_scc1 L_slow
    """)
    a("s_mov_b64 exec, 1")
    a(f"""
    s_waitcnt vmcnt(0)
    global_atomic_add v{A_OC}, v239, {sr(S_CNT,2)} sc1
    """)

def fallback(a):
    M, q, o = 208, Q + 24, O + 48
    l0 = kv_loads(0)
    a(f"""
L_slow:
    s_mov_b64 s[100:101], -1
    s_waitcnt vmcnt(0)
    v_mov_b32 v{M}, 0xff800000
    s_mov_b64 {sr(S_KB,2)}, {sr(S_WS,2)}
    s_mov_b32 s16, 0
L_s1:
    """)
    for x in (l0[0], l0[1], l0[4]): a(x)
    a("s_waitcnt vmcnt(0)")
    a(mfma(S, KV, q, None))
    a(mfma(S, KV + 4, q + 4, S))
    a("s_nop 15")
    for i in range(8):
        a(f"v_max3_f32 v{M}, v{M}, v{S+2*i}, v{S+2*i+1}")
    a(f"""
    s_add_u32 s16, s16, 1
    s_cmp_lt_u32 s16, 64
    s_cbranch_scc1 L_s1
    v_mov_b32 v{M+1}, v{M}
    s_nop 1
    v_permlane32_swap_b32 v{M}, v{M+1}
    s_nop 1
    v_max_f32 v{M}, v{M}, v{M+1}
    """)
    for i in range(16):
        a(f"v_mov_b32 v{o+i}, 0")
    a(f"""
    s_mov_b64 {sr(S_KB,2)}, {sr(S_WS,2)}
    s_mov_b32 s16, 0
L_s2:
    """)
    for x in l0: a(x)
    a("s_waitcnt vmcnt(0)")
    a(mfma(S, KV, q, None))
    a(mfma(S, KV + 4, q + 4, S))
    a("s_nop 15")
    for i in range(16):
        a(f"v_sub_f32 v{S+i}, v{S+i}, v{M}")
    for i in range(16):
        a(f"v_exp_f32 v{S+i}, v{S+i}")
    a("s_nop 0")
    for i in range(8):
        a(f"v_cvt_pk_bf16_f32 v{P+i}, v{S+2*i}, v{S+2*i+1}")
    a("s_nop 1")
    a(mfma(o, KV + 8, P, o))
    a(mfma(o, KV + 12, P + 4, o))
    a(f"""
    s_add_u32 s16, s16, 1
    s_cmp_lt_u32 s16, 64
    s_cbranch_scc1 L_s2
    s_nop 15
    """)
    row_sum(a, ["s_nop 0"] * 6)
    a("s_branch L_fin")

CA, ZR = 192, 28
H_T, H_UB, H_US, H_UTV, H_UTC, H_PL, H_BPC, H_CNT, H_K4, H_K2 = 16, 17, 18, 19, 20, 21, 22, 23, 18, 254

def chunk_of(it):
    if it == 0: return [f"s_mov_b32 s59, s{S_CH}"]
    return [f"s_add_u32 s59, s{S_CH}, {it}", "s_sub_u32 s58, s59, 7", "s_min_u32 s59, s59, s58"]

def dma_chunk(it, vx=2, vw=3):
    slot = SLOT_AT[it]
    g = []
    for j in range(4):
        x = chunk_of(it) + [f"s_mul_i32 s58, s59, {64*2688}", "s_lshl_b32 s59, s59, 7"] if j == 0 else []
        g.append(x + [f"s_add_u32 m0, s{S_LW1K}, {slot + j*4096}",
                      f"s_add_u32 s{T0}, s58, {16*j*2688}",
                      f"buffer_load_dwordx4 v{vw}, {sr(SRD_W,4)}, s{T0} offen lds"])
        if j < (3 if it == 0 else 1):
            g.append([f"s_add_u32 m0, s{S_LW1K}, {slot + 16384 + j*4096}",
                      f"s_add_u32 s{T1}, s59, {j*32*896}",
                      f"buffer_load_dwordx4 v{vx}, {sr(SRD_X,4)}, s{T1} offen lds"])
    return g

def dma_x(i, vx=2):
    g = []
    for it in range(1, 7):
        g.append(chunk_of(it) + ["s_lshl_b32 s59, s59, 7",
                                 f"s_add_u32 m0, s{S_LW1K}, {L_X1 + (i-1)*24576 + (it-1)*4096}",
                                 f"s_add_u32 s{T1}, s59, {i*32*896}",
                                 f"buffer_load_dwordx4 v{vx}, {sr(SRD_X,4)}, s{T1} offen lds"])
    return g

PLAN_G = E("PG", "12,34,56a,").split(",")
PLAN_H = E("PH", ",,,b").split(",")
def items(st, vx, vw):
    g = []
    for c in st:
        g += dma_x(1 + "ab".index(c), vx) if c in "ab" else dma_chunk(int(c), vx, vw)
    return g
def nld(st): return sum(6 if c in "ab" else 5 for c in st)
def wait_for(plan, upto, need, extra=None):
    seq = "".join(plan[:upto + 1])
    pos = max([seq.index(c) for c in need if c in seq], default=-1)
    return None if pos < 0 else nld(seq[pos + 1:])

def helper_setup():
    t = f"""
    s_mov_b32 s{SRD_WS}, s{S_WS}
    s_mov_b32 s{SRD_WS+1}, s{S_WS+1}
    s_mov_b32 s{SRD_WS+2}, {WS_SIZE}
    s_mov_b32 s{SRD_WS+3}, 0x20000
    s_mul_i32 s18, s{S_LW}, {TAB_B}
    v_and_b32 v4, 31, v0
    v_lshrrev_b32 v5, 5, v0
    v_mul_u32_u24 v24, 272, v4
    v_lshl_add_u32 v24, v5, 4, v24
    v_add_u32 v24, s18, v24
    s_lshr_b32 s47, s{S_LW}, 1
    s_mul_i32 s{T0}, s{S_LW}, 3072
    s_add_u32 s{T0}, s{T0}, {L_XCH}
    v_lshl_add_u32 v25, v0, 4, s{T0}
    s_lshl_b32 s{T0}, s{S_LW}, 2
    s_add_u32 s{T0}, s{T0}, {L_CNT + 48}
    v_mov_b32 v255, s{T0}
    v_mov_b32 v{H_CNT}, {L_CNT}
    v_and_b32 v14, 15, v0
    v_lshrrev_b32 v15, 5, v0
    s_lshl_b32 s{T0}, s{S_LW}, 1
    v_add_u32 v15, s{T0}, v15
    v_lshrrev_b32 v78, 1, v14
    v_xor_b32 v15, v15, v78
    v_lshlrev_b32 v78, 7, v14
    v_lshl_add_u32 v78, v15, 4, v78
    v_bfe_u32 v15, v0, 4, 1
    v_lshl_add_u32 v78, v15, 3, v78
    v_add_u32 v78, {SLOT_AT[0] + 16384}, v78
    s_mul_i32 s{T0}, s{S_RB}, {3*TILE_B}
    s_lshl_b32 s{T1}, s{S_C0}, 12
    s_add_u32 s{T1}, s{T1}, s{S_LW1K}
    s_add_u32 s{T1}, s{T1}, s{T0}
    v_lshl_add_u32 v79, v0, 4, s{T1}
    s_add_u32 s92, s{S_WS}, {WS_UT}
    s_addc_u32 s93, s{S_WS+1}, 0
    s_sub_u32 s{T0}, s{S_CB}, {E('UCB', '2')}
    s_cmp_lt_u32 s{T0}, 7
    s_cselect_b32 s94, {64*TILE_B}, 0
    s_mov_b32 s95, 0x20000
    s_cselect_b32 s48, 1, 0
    s_cmp_ge_u32 s{S_RB}, 22
    s_cselect_b32 s48, 0, s48
    s_mov_b32 s54, {TILE_B}
    s_mov_b32 s55, {2*TILE_B}
    s_lshl_b32 s{T0}, s{S_C0}, 2
    s_add_u32 s{T0}, s{T0}, s{S_LW}
    s_lshl_b32 s{T0}, s{T0}, {CS}
    s_add_u32 s{T0}, s{T0}, {B_U}
    v_mov_b32 v92, s{T0}
    v_mov_b32 v93, s48
    s_lshr_b32 s{T0}, s{S_P}, 3
    s_lshl_b32 s{T0}, s{T0}, {CS}
    s_add_u32 s{T0}, s{T0}, {B_U}
    v_mov_b32 v{H_UTC}, s{T0}
    v_lshrrev_b32 v14, 2, v0
    v_mul_u32_u24 v14, {TILE_B}, v14
    v_and_b32 v15, 3, v0
    v_lshl_add_u32 v{H_UTV}, v15, 6, v14
    s_lshr_b32 s14, s{S_P}, 1
    s_lshl_b32 s14, s14, 8
    s_and_b32 s15, s{S_P}, 1
    s_lshl_b32 s15, s15, 1
    s_add_u32 s15, s15, s47
    s_lshl_b32 s15, s15, 4
    s_add_u32 s14, s14, s15
    s_and_b32 s16, s{S_LW}, 1
    s_mul_i32 s15, s16, {32*TILE_B}
    s_add_u32 s14, s14, s15
    s_add_u32 s14, s14, {WS_UT}
    s_add_u32 s15, s14, {16*TILE_B}
    s_mul_i32 s17, s47, {U_B}
    s_add_u32 s13, s17, {L_U}
    s_lshl_b32 s16, s16, 11
    s_add_u32 s17, s17, s16
    s_mul_i32 s19, s47, {KC_B}
    s_add_u32 s19, s19, {L_KC}
    s_add_u32 s{T0}, s19, 64
    v_lshl_add_u32 v{H_K4}, v0, 4, s{T0}
    v_lshl_add_u32 v{H_K2}, v4, 4, s{T0}
    v_lshl_add_u32 v{H_K2}, v5, 3, v{H_K2}
    v_bfe_u32 v14, v0, 4, 2
    v_lshlrev_b32 v{H_T}, 5, v14
    v_lshl_add_u32 v{H_T}, v15, 3, v{H_T}
    v_bfe_u32 v14, v0, 2, 2
    v_lshlrev_b32 v14, 3, v14
    v_sub_u32 v{H_T}, v{H_T}, v14
    s_add_u32 s{T0}, s19, {64 - 32}
    v_add_u32 v{H_T}, s{T0}, v{H_T}
    v_lshlrev_b32 v14, 4, v4
    v_lshlrev_b32 v15, 6, v5
    v_sub_u32 v14, v14, v15
    s_add_u32 s{T0}, s13, {512 - 384}
    v_add_u32 v{H_UB}, s{T0}, v14
    s_lshl_b32 s{T0}, s{S_LW}, 11
    v_lshl_add_u32 v{H_PL}, v0, 4, s{T0}
    s_lshl_b32 s12, s{S_P}, 13
    s_add_u32 s12, s12, {WS_BP}
    s_lshr_b32 s{T1}, s{S_P}, 4
    s_mul_i32 s{T0}, s{S_LW}, 14
    s_add_u32 s{T0}, s{T0}, s{T1}
    s_lshl_b32 s{T0}, s{T0}, {CS}
    s_add_u32 s{T0}, s{T0}, {B_BP}
    v_mov_b32 v{H_BPC}, s{T0}
    """
    return [l.strip() for l in t.split("\n") if l.strip() and not l.strip().startswith(";")]

def conv(a):
    w = sr(SRD_WS, 4)
    stamp(a, 5)
    UFR, TR, NT = 64, 32, 8
    def variant(tiles, tag):
        top = min(4 * max(tiles) + 3, int(E('X_TOP', '99')))
        def rd_t(ph):
            t = TR + 4 * (ph % NT)
            return [f"ds_read_b64_tr_b16 {vr(t,2)}, v{H_T} offset:{128*ph + 32}",
                    f"ds_read_b64_tr_b16 {vr(t+2,2)}, v{H_T} offset:{128*ph}"]
        have = set()
        need = []
        for ph in range(top + 1):
            r = rd_t(ph)
            for tau in tiles:
                b = 4 * tau - ph
                if b >= -3 and b not in have:
                    have.add(b)
                    r.append(f"ds_read_b128 {vr(UFR + 4*(b+3), 4)}, v{H_UB} offset:{128*(b+3)}")
            need.append(r)
        queue = [(ph, x) for ph in range(top + 1) for x in need[ph]]
        issued = 0
        def issue(k, maxph):
            nonlocal issued
            while k > 0 and issued < len(queue) and queue[issued][0] <= maxph:
                a(queue[issued][1]); issued += 1; k -= 1
        issue(12, 1)
        a(f"s_setprio {E('PRC', '0')}")
        done = 0
        for ph in range(top + 1):
            done += len(need[ph])
            issue(max(0, done - issued), ph)
            a(f"s_waitcnt lgkmcnt({min(15, issued - done)})")
            act = [k for k, tau in enumerate(tiles) if 4 * tau - ph >= -3]
            for k in act:
                b = 4 * tiles[k] - ph
                a(mfma(CA + 16*k, UFR + 4*(b+3), TR + 4*(ph % NT), None if ph == 0 else CA + 16*k))
                issue(min(2, 12 - (issued - done)), ph + NT - 1)
        assert issued == len(queue)
        a(f"s_setprio {E('PRE_', '1')}")
        stamp(a, 6)
        a(f"""
L_tab_{tag}:
        ds_read_b32 v15, v{H_CNT} offset:4
        s_waitcnt lgkmcnt(0)
        v_readfirstlane_b32 s{T0}, v15
        s_cmp_lt_u32 s{T0}, 4
        s_cbranch_scc1 L_tab_{tag}
        """)
        if 0 in tiles:
            a(f"""
            v_and_b32 v14, 3, v0
            v_mul_u32_u24 v14, {2*PL_B}, v14
            v_add_u32 v14, m0, v14
            ds_write_b128 v14, {vr(ZR,4)}
            """)
        order = sorted(range(4), key=lambda k: tiles[k])
        for k in ([] if E("X_NOPL") else order):
            for r in range(16):
                a(f"ds_write_addtid_b32 v{CA+16*k+r} offset:{(r&3)*2*PL_B + 1024*tiles[k] + 256*(r>>2) + 4*(r&3)}")
    a(f"""
    s_mul_i32 m0, s47, {PL_B}
    s_bitcmp1_b32 s{S_LW}, 0
    s_cbranch_scc1 L_cB
    """)
    variant([7, 4, 3, 0], "A")
    a("s_branch L_cC\nL_cB:")
    variant([6, 5, 2, 1], "B")
    a("L_cC:")
    lds_sync(a, 2, "c", vm=False)
    for hf in range(2):
        for pl in range(8):
            a(f"ds_read_b128 {vr(CA+32*hf+4*pl,4)}, v{H_PL} offset:{pl*PL_B + 1024*hf}")
    for hf in range(2):
        b = CA + 32*hf
        a(f"s_waitcnt lgkmcnt({8 - 8*hf})")
        for i in range(0 if E("X_NOADD") else 8):
            a(f"v_add_f32 v{b+i}, v{b+i}, v{b+8+i}")
            a(f"v_add_f32 v{b+16+i}, v{b+16+i}, v{b+24+i}")
        for i in range(0 if E("X_NOADD") else 8):
            a(f"v_add_f32 v{b+i}, v{b+i}, v{b+16+i}")
        for i in range(4):
            a(f"v_cvt_pk_bf16_f32 v{b+i}, v{b+i}, v{b+4+i}")
        if E("NOBGATE"):
            a(f"buffer_store_dwordx4 {vr(b,4)}, v{H_PL}, {w}, s12 offen offset:{1024*hf} {ST}")
    if not E("NOBGATE"):
        a(f"""
L_wait_b:
        ds_read_b32 v15, v{H_CNT} offset:20
        s_waitcnt lgkmcnt(0)
        v_readfirstlane_b32 s{T0}, v15
        s_cmp_lg_u32 s{T0}, 0
        s_cbranch_scc1 L_go_b
        s_sleep 4
        s_branch L_wait_b
L_go_b:
        """)
        for hf in range(2):
            a(f"buffer_store_dwordx4 {vr(CA+32*hf,4)}, v{H_PL}, {w}, s12 offen offset:{1024*hf} {ST}")
    lds_sync(a, 3, "d")
    a(f"""
    v_mov_b32 v15, 1
    s_mov_b64 exec, 1
    global_atomic_add v{H_BPC}, v15, {sr(S_CNT,2)} sc1
    s_mov_b64 exec, -1
    """)
    if not E("NOWARM"):
        a(f"""
        s_lshr_b32 s{T0}, s2, 3
        s_lshl_b32 s{T0}, s{T0}, 2
        s_add_u32 s{T0}, s{T0}, s{S_LW}
        s_mul_i32 s{T0}, s{T0}, {28*128}
        v_min_u32 v14, 27, v0
        v_lshl_add_u32 v14, v14, 7, s{T0}
        global_load_dword v26, v14, {sr(S_WO,2)}
        """)

def outproj(a):
    WOF, ACC3, BR, OF, BB = 32, 224, 208, 160, 192
    KS = []
    for pp in range(0, 8, 2):
        for p_ in (pp, pp + 1):
            KS += [(p_, 4096*p_, 56*p_, 0), (p_, 4096*p_ + 1024, 56*p_ + 16, 1), (p_, 4096*p_ + 3072, 56*p_ + 40, 0)]
        KS.append((pp + 1, 4096*pp, 56*pp + 24, 2))
    w = sr(SRD_WS, 4)
    a(f"""
    s_and_b32 s8, s2, 7
    s_lshl_b32 s8, s8, 3
    s_lshr_b32 s{T0}, s2, 5
    s_add_u32 s8, s8, s{T0}
    s_bfe_u32 s9, s2, 0x20003
    s_lshl_b32 s10, s9, 2
    s_add_u32 s10, s10, s{S_LW}
    v_lshrrev_b32 v6, 4, v0
    v_lshlrev_b32 v7, 2, v6
    v_xor_b32 v7, v7, v0
    v_and_b32 v7, 15, v7
    s_lshl_b32 s{T0}, s{S_LW}, 2
    v_add_u32 v6, s{T0}, v6
    v_mul_u32_u24 v3, 896, v6
    v_lshl_add_u32 v3, v7, 4, v3
    s_cmp_eq_u32 s9, 3
    s_cselect_b32 s{T0}, 8, 16
    v_cmp_le_u32 vcc, s{T0}, v7
    s_lshl_b32 s{T0}, s9, 8
    s_add_u32 s{SRD_X}, s{S_WO}, s{T0}
    s_addc_u32 s{SRD_X+1}, s{S_WO+1}, 0
    s_sub_u32 s{SRD_X+2}, {WO_BYTES}, s{T0}
    v_mov_b32 v7, 0x1000000
    v_cndmask_b32 v3, v3, v7, vcc
    v_bfe_u32 v7, v0, 2, 2
    v_lshl_add_u32 v6, v5, 3, v7
    v_lshlrev_b32 v6, 8, v6
    v_xor_b32 v7, s{S_LW}, v7
    v_lshl_add_u32 v6, v7, 6, v6
    v_bfe_u32 v7, v0, 4, 1
    v_lshl_add_u32 v6, v7, 5, v6
    v_and_b32 v7, 1, v0
    v_lshl_add_u32 v6, v7, 4, v6
    v_bfe_u32 v7, v0, 1, 1
    v_lshl_add_u32 v6, v7, 3, v6
    v_lshl_add_u32 v24, v5, 11, v6
    v_mul_u32_u24 v7, {48*256}, v5
    v_add_u32 v25, v7, v6
    s_mov_b32 s12, 0
L_wait_at:
    ds_read_b32 v15, v{H_CNT} offset:20
    s_waitcnt lgkmcnt(0)
    v_readfirstlane_b32 s{T0}, v15
    s_cmp_lg_u32 s{T0}, 0
    s_cbranch_scc1 L_go_at
    s_sleep 8
    s_branch L_wait_at
L_go_at:
    """)
    for rnd in range(0 if E("X_NOWO") else 2):
        a(f"s_mov_b32 m0, s{S_LW1K}\ns_nop 0")
        for i in range(14):
            a(f"buffer_load_dwordx4 v3, {sr(SRD_X,4)}, s12 offen lds")
            a(f"s_add_u32 s12, s12, {16*896}")
            if i < 13:
                a(f"s_add_u32 m0, m0, 4096\ns_waitcnt vmcnt({E('PACE', '3')})")
        lds_sync(a, 8 + 2*rnd, f"w{rnd}")
        for k in range(14):
            _, _, row, kind = KS[k]
            va = (6, 24, 25)[kind]
            a(f"ds_read_b64_tr_b16 {vr(WOF+56*rnd+4*k,2)}, v{va} offset:{256*row}")
            a(f"ds_read_b64_tr_b16 {vr(WOF+56*rnd+4*k+2,2)}, v{va} offset:{256*row+1024}")
        if rnd == 0: lds_sync(a, 9, "wx", vm=False)
    a(f"""
    s_cmp_ge_u32 s10, 14
    s_cbranch_scc1 L_nowo
    s_lshr_b32 s{T0}, s8, 4                ; quarter
    s_mul_i32 s{T1}, s{T0}, 14
    s_add_u32 s{T1}, s{T1}, s10
    s_lshl_b32 s{T1}, s{T1}, {CS}
    s_add_u32 s{T1}, s{T1}, {B_BP}
    v_mov_b32 v8, s{T1}
    """)
    if not E('PSTART'): stamp(a, 8)
    poll(a, "b", 8, "22", 1, sleep=16, limit=2 if E("X_NOCONV") else SPIN_MAX)
    a(f"""
    v_lshlrev_b32 v6, 2, v4
    v_lshl_add_u32 v7, v5, 15, v6
    s_lshl_b32 s{T0}, s10, 17
    s_lshl_b32 s{T1}, s8, 7
    s_add_u32 s{T0}, s{T0}, s{T1}
    s_add_u32 s{T0}, s{T0}, {WS_BP}
    s_add_u32 s{T1}, s{T1}, {WS_GT}
    buffer_load_dword v{BR+8}, v6, {w}, s{T1} offen {LD}
    """)
    for i in range(8):
        off = (8 * (i >> 2) + (i & 3)) * 8192
        a(f"s_add_u32 s{T2}, s{T0}, {off}")
        a(f"buffer_load_dword v{BR+i}, v7, {w}, s{T2} offen {LD}")
    a(f"""
    """)
    if (not E("NOHALF")):
        a(f"""
        s_lshl_b32 s{T3}, s{S_LW}, 11
        s_add_u32 s{T3}, s{T3}, 32768
        v_bfe_u32 v10, v0, 1, 2
        v_xor_b32 v9, v5, v10
        v_lshl_add_u32 v13, v4, 6, s{T3}
        v_lshl_add_u32 v9, v9, 4, v13
        v_xor_b32 v3, 32, v9
        v_lshrrev_b32 v13, 2, v0               ; row
        v_and_b32 v10, 3, v0
        v_mul_u32_u24 v12, 896, v13
        v_lshl_add_u32 v12, v10, 4, v12
        v_bfe_u32 v11, v0, 3, 2
        v_xor_b32 v10, v10, v11
        v_lshl_add_u32 v13, v13, 6, s{T3}
        v_lshl_add_u32 v10, v10, 4, v13
        v_add_u32 v13, {16*896}, v12
        s_mul_i32 s{T0}, s8, {32*896}
        s_lshl_b32 s{T1}, s10, 6
        """)
    elif not E("NOFULL"):
        a(f"""
        s_and_b32 s{T2}, s{S_LW}, 1
        s_lshr_b32 s{T3}, s{S_LW}, 1
        s_lshl_b32 s{T3}, s{T3}, 12
        s_add_u32 s{T3}, s{T3}, 32768
        s_lshl_b32 s{T0}, s{T2}, 2
        v_add_u32 v9, s{T0}, v5
        v_and_b32 v10, 7, v0
        v_xor_b32 v9, v9, v10
        v_lshl_add_u32 v13, v4, 7, s{T3}
        v_lshl_add_u32 v9, v9, 4, v13
        v_xor_b32 v3, 32, v9
        v_lshrrev_b32 v13, 3, v0
        v_mul_u32_u24 v12, 896, v13
        v_lshl_add_u32 v12, v10, 4, v12
        v_xor_b32 v10, v10, v13
        v_lshlrev_b32 v13, 7, v13
        v_lshl_add_u32 v10, v10, 4, v13
        s_lshl_b32 s{T0}, s{T2}, 11
        s_add_u32 s{T3}, s{T3}, s{T0}
        v_add_u32 v10, s{T3}, v10
        v_add_u32 v13, {8*896}, v12
        s_mul_i32 s{T0}, s8, {32*896}
        s_lshr_b32 s{T1}, s10, 1
        s_lshl_b32 s{T1}, s{T1}, 7
        s_add_u32 s{T0}, s{T0}, s{T1}
        s_mul_i32 s{T1}, s{T2}, {16*896}
        """)
    else:
        a(f"""
        v_mul_u32_u24 v12, 896, v4
        v_lshl_add_u32 v12, v5, 4, v12
        s_mul_i32 s{T0}, s8, {32*896}
        s_lshl_b32 s{T1}, s10, 6
        """)
    a(f"""
    s_add_u32 s{T0}, s{T0}, s{T1}
    s_add_u32 s{S_OUT}, s{S_OUT}, s{T0}
    s_addc_u32 s{S_OUT+1}, s{S_OUT+1}, 0
L_nowo:
    v_lshlrev_b32 v2, 4, v0
    v_lshl_add_u32 v16, v5, 10, v2
    v_mul_u32_u24 v17, 3584, v5
    v_add_u32 v17, v17, v2
    s_lshl_b32 s{T0}, s8, {CS}
    s_add_u32 s{T0}, s{T0}, {B_O}
    v_mov_b32 v8, s{T0}
    s_lshl_b32 s12, s8, 15
    s_add_u32 s12, s12, {WS_O}
    s_add_u32 s12, s12, s{S_LW1K}
    s_mov_b32 m0, s{S_LW1K}
    s_waitcnt vmcnt(0) lgkmcnt(0)
    """)
    if not E('PSTART'): stamp(a, 9)
    a(f"""
    s_barrier
    s_setprio 0
    v_sub_f32 v{BR+9}, 1.0, v{BR+8}
    v_cvt_pk_bf16_f32 v{BR+9}, v{BR+9}, v{BR+9}
    v_and_b32 v{BR+9}, 0xffff0000, v{BR+9}
    """)
    for i in range(8):
        a(f"v_lshlrev_b32 v{BB+2*i}, 16, v{BR+i}")
        a(f"v_and_b32 v{BB+2*i+1}, 0xffff0000, v{BR+i}")
    for i in range(16):
        a(f"v_mul_f32 v{BB+i}, v{BB+i}, v{BR+9}")
    a(f"""
    {"s_barrier" if E("WAITB") else ""}
    """)
    if not E("OP4"):
        a(f"s_cmp_lg_u32 s{S_LW}, 0\ns_cbranch_scc1 L_ok_o")
        if E("GAPO"): poll2(a, "o", 8, "16", 1, int(E("GAPO")))
        else: poll(a, "o", 8, "16", 1)
        a("s_barrier")
    else: poll(a, "o", 8, "16", 1)
    stamp(a, 10)
    for i in range(8):
        a(f"buffer_load_dwordx4 v2, {w}, s12 offen {LD} lds")
        if i < 7: a("s_add_u32 m0, m0, 4096\ns_add_u32 s12, s12, 4096")
    bars = {0: 6, 7: 4, 14: 0}
    cnt = [2 if x[3] == 2 else 1 for x in KS]
    def rd(k):
        if k in bars:
            a(f"s_waitcnt vmcnt({bars[k]})\ns_barrier")
            if k == 0: a("s_cmp_ge_u32 s10, 14\ns_cbranch_scc1 L_idle3")
        _, off, _, kind = KS[k]
        r = OF + 4*(k % 8)
        if kind == 2:
            a(f"ds_read_b64 {vr(r,2)}, v17 offset:{off + 1536}")
            a(f"ds_read_b64 {vr(r+2,2)}, v17 offset:{off + 2048 + 8}")
        else:
            a(f"ds_read_b128 {vr(r,4)}, v{(2, 16)[kind]} offset:{off}")
    issued = 0
    for k in range(28):
        want = min(28, k + 6)
        if k < 2: want = 5 + k
        while issued < want:
            rd(issued); issued += 1
        a(f"s_waitcnt lgkmcnt({sum(cnt[k+1:issued])})")
        a(mfma(ACC3, WOF + 4*k, OF + 4*(k%8), None if k == 0 else ACC3))
    a("s_nop 11")
    for h in range(2):
        for i in range(8*h, 8*h + 8, 2):
            a(f"v_pk_fma_f32 {vr(BB+i,2)}, {vr(ACC3+i,2)}, {vr(BR+8,2)}, {vr(BB+i,2)} op_sel_hi:[1,0,1]")
        for i in range(4*h, 4*h + 4):
            a(f"v_cvt_pk_bf16_f32 v{OF+i}, v{BB+2*i}, v{BB+2*i+1}")
        if not E("NOFULL"):
            a(f"ds_write_b128 v{(9, 3)[h]}, {vr(OF+4*h,4)}")
        else:
            a(f"global_store_dwordx4 v12, {vr(OF+4*h,4)}, {sr(S_OUT,2)} offset:{32*h} {E('STO', 'sc1')}")
    if not E("NOFULL"):
        a(f"""
        {"" if (not E("NOHALF")) else "s_waitcnt lgkmcnt(0)"}
        {"" if (not E("NOHALF")) else "s_barrier"}
        ds_read_b128 {vr(OF+8,4)}, v10
        ds_read_b128 {vr(OF+12,4)}, v10 offset:1024
        s_waitcnt lgkmcnt(1)
        global_store_dwordx4 v12, {vr(OF+8,4)}, {sr(S_OUT,2)} {E('STO', 'sc1')}
        s_waitcnt lgkmcnt(0)
        global_store_dwordx4 v13, {vr(OF+12,4)}, {sr(S_OUT,2)} {E('STO', 'sc1')}
        """)
    if PROF and E("PEND"): stamp(a, 9); a("s_waitcnt vmcnt(0)")
    a(endp("L_end"))
    a("L_idle3:\ns_waitcnt vmcnt(0)")
    a(endp("L_end"))


def expand2(a, store, A):
    a(f"""
    v_add_f32 v{A}, v{A}, v36
    v_cvt_pk_bf16_f32 v45, v{A+2}, v{A+3}
    v_cvt_pk_bf16_f32 v44, v{A}, v{A+1}
    v_mov_b32_dpp v40, v{A+8} wave_rol:1 row_mask:0xf bank_mask:0xf
    """)
    store(2, 44, 0)
    a(f"""
    v_mov_b32_dpp v41, v{A+10} wave_rol:1 row_mask:0xf bank_mask:0xf
    v_mov_b32_dpp v40, v{A+6} wave_shl:1 row_mask:0xc bank_mask:0xf
    v_cvt_pk_bf16_f32 v46, v{A+4}, v{A+4}
    v_mov_b32_dpp v41, v{A+8} wave_shl:1 row_mask:0xf bank_mask:0xf
    v_mov_b32_dpp v40, v{A+6} quad_perm:[0,1,2,3] row_mask:0x3 bank_mask:0xf
    v_cvt_pk_bf16_f32 v48, v{A+8}, v{A+8}
    v_cvt_pk_bf16_f32 v47, v{A+5}, v40
    v_cvt_pk_bf16_f32 v49, v{A+8}, v{A+9}
    """)
    store(2, 46, 512)
    a(f"""
    v_cvt_pk_bf16_f32 v50, v{A+9}, v{A+9}
    v_cvt_pk_bf16_f32 v51, v41, v41
    v_mov_b32_dpp v42, v{A+11} wave_rol:1 row_mask:0xf bank_mask:0xf
    """)
    store(4, 48, 1024)
    a(f"""
    v_mov_b32_dpp v43, v{A+7} wave_rol:1 row_mask:0xf bank_mask:0xf
    v_mov_b32_dpp v42, v{A+10} wave_shl:1 row_mask:0xf bank_mask:0xf
    v_cvt_pk_bf16_f32 v52, v{A+10}, v{A+10}
    v_mov_b32_dpp v43, v{A+11} wave_shl:1 row_mask:0xf bank_mask:0xf
    v_cndmask_b32 v38, v{A+10}, v42, vcc
    v_cvt_pk_bf16_f32 v55, v42, v42
    v_mov_b32 v53, v52
    v_cvt_pk_bf16_f32 v54, v38, v42
    v_cndmask_b32 v39, v{A+11}, v43, vcc
    """)
    store(4, 52, 2048)
    a(f"""
    v_cvt_pk_bf16_f32 v56, v{A+11}, v{A+11}
    v_cvt_pk_bf16_f32 v59, v43, v43
    v_cvt_pk_bf16_f32 v58, v39, v43
    v_mov_b32 v57, v56
    """)
    store(4, 56, 3072)

def helper_waves(a):
    w = sr(SRD_WS, 4)
    def emit(groups, fill=None, n=0, head=50):
        if fill is not None:
            h = n * head // 100
            for x in fill[:h]: a(x)
            del fill[:h]
            n -= h
        for k, g in enumerate(groups):
            for x in g: a(x)
            if fill is not None:
                m = n * (k + 1) // len(groups) - n * k // len(groups)
                for x in fill[:m]: a(x)
                del fill[:m]
    O0, O1, FV0, FU0, FV1, FU1, KA = 148, 201, 80, 112, 148, 36, 180
    k0, k1 = kgen_split(0, O0, not E("PK0")), kgen_split(1, O1, not E("PK1"))
    if E("PB"): stamp(a, 8)
    if E("XT"):
        a(f"""
        s_cmp_lg_u32 s{S_LW}, 0
        s_cbranch_scc1 L_noxt
        s_add_u32 s{T0}, s{S_C0}, 2
        s_sub_u32 s{T1}, s{T0}, 7
        s_cmp_ge_u32 s{T0}, 7
        s_cselect_b32 s{T0}, s{T1}, s{T0}
        s_lshl_b32 s{T0}, s{T0}, 7
        s_add_u32 s{T0}, s{T0}, {32*896}
        v_mul_u32_u24 v14, 896, v0
        buffer_load_dword v6, v14, {sr(SRD_X,4)}, s{T0} offen
L_noxt:
        """)
    for ins in helper_setup(): a(ins)
    a(f"""
    s_waitcnt lgkmcnt(0)
    s_lshl_b32 s{T1}, s51, 16
    s_and_b32 s51, s51, 0xffff0000
    s_lshl_b32 s{T2}, s52, 16
    s_and_b32 s52, s52, 0xffff0000
    s_cmp_ge_u32 s{S_LW}, 2
    s_cselect_b32 s51, s51, s{T1}
    s_cselect_b32 s{S_DSK}, s52, s{T2}
    v_mov_b32 v12, s51
    v_mul_f32 v12, {f32(LOG2E)}, v12
    v_exp_f32 v12, v12
    s_nop 0
    v_cvt_pk_bf16_f32 v12, v12, v12
    v_and_b32 v12, 0xffff0000, v12         ; dt
    v_add_f32 v13, v12, v12                ; 2 dt
    """)
    if E("PB"): stamp(a, 9)
    a("""
    """)
    if E("X_BURN"):
        for i in range(8):
            a(f"v_mul_u32_u24 v{100+i}, {0x9e37 + 778*i}, v79\nv_and_b32 v{100+i}, 0x3fffbfff, v{100+i}\nv_or_b32 v{100+i}, 0x3c000000, v{100+i}")
        a("s_nop 1")
        for i in range(int(E("X_BURN"))):
            a(mfma(112, 100 + 4*(i & 1), 104 - 4*((i >> 1) & 1), None if i == 0 else 112))
    a("""
    s_setprio 3
    s_barrier                              ; B0
    """)
    for i in range(3):
        a(f"ds_read_b64_tr_b16 {vr(80+4*i,2)}, v78 offset:{i*4096}")
        a(f"ds_read_b64_tr_b16 {vr(82+4*i,2)}, v78 offset:{i*4096+2048}")
    for i in range(3):
        a(f"s_waitcnt lgkmcnt({4 - 2*i})")
        a(f"buffer_store_dwordx4 {vr(80+4*i,4)}, v79, s[92:95], {['0','s54','s55'][i]} offen {ST}")
    a(f"global_load_dword v6, v7, {sr(S_DBG,2)} sc1\ns_setprio 0\ns_waitcnt vmcnt(4)")
    stamp(a, 1)
    fill = k0[0] + k1[0]
    if E("X_NOFILL"): fill = []
    HD = int(E("HD", "0"))
    SL = [int(x) for x in E("SL", "110,180,70").split(",")]
    assert not PLAN_H[0] and not set("12") & set("".join(PLAN_H))
    emit(items(PLAN_H[1], 2, 3) or [[]], fill, SL[0], HD)
    a("s_barrier")
    h = int(E("USIG", "20"))
    emit([[]], fill, h)
    a(f"""
    s_setprio 3
    s_waitcnt vmcnt({nld(PLAN_H[1])})
    v_cmp_eq_u32 vcc, 0, v6
    s_cbranch_vccnz L_hs
L_hs_ok:
    s_mov_b64 exec, 1
    global_atomic_add v92, v93, {sr(S_CNT,2)} sc1
    s_mov_b64 exec, -1
    s_setprio 0
    """)
    if E("PU"): stamp(a, 8)
    STUBS.append(f"""
L_hs:
    s_mov_b32 s{T2}, 0
L_hs1:
    s_sleep 8
    global_load_dword v6, v7, {sr(S_DBG,2)} sc1
    s_add_u32 s{T2}, s{T2}, 1
    s_waitcnt vmcnt(0)
    v_cmp_eq_u32 vcc, 0, v6
    s_cbranch_vccz L_hs_ok
    s_cmp_lt_u32 s{T2}, {SPIN_MAX}
    s_cbranch_scc1 L_hs1
    {giveup("h")}
    s_branch L_hs_ok
    """)
    emit(items(PLAN_H[2], 2, 3) or [[]], fill, SL[1] - h, HD)
    wv = wait_for(PLAN_H, 2, "34")
    if wv is not None: a(f"s_waitcnt vmcnt({wv})")
    a("s_barrier")
    hx = items(PLAN_H[3], 2, 3)
    HC = 6
    upoll = f"""
    s_mov_b64 exec, 1
    global_atomic_add v14, v{H_UTC}, v7, {sr(S_CNT,2)} sc0 sc1
    s_mov_b64 exec, -1
    """
    udma = f"""
    s_add_u32 m0, s17, {L_U + 512}
    s_mov_b32 s11, 1
    buffer_load_dwordx4 v{H_UTV}, {w}, s14 offen {LD} lds
    s_add_u32 m0, m0, 1024
    s_nop 0
    buffer_load_dwordx4 v{H_UTV}, {w}, s15 offen {LD} lds
    """
    def ucheck(tag, restore):
        a(f"s_cmp_eq_u32 s11, 0\ns_cbranch_scc1 L_uc_{tag}\nL_ub_{tag}:")
        STUBS.append(f"""
L_uc_{tag}:
        s_waitcnt vmcnt(0)
        v_readfirstlane_b32 s{T0}, v14
        s_cmp_lg_u32 s{T0}, 22
        s_cbranch_scc1 L_ua_{tag}
        {udma}
        {"s_mov_b32 m0, s18" if restore else ""}
        s_branch L_ub_{tag}
L_ua_{tag}:
        {upoll}
        s_branch L_ub_{tag}
        """)
    UP = E("UP", "b")
    a(f"s_cmp_ge_u32 s2, {0 if E('X_NOCONV') else 224}\ns_cselect_b32 s11, 1, 0")
    emit(hx, fill, SL[2], 0)
    assert UP == "b"
    a(upoll)
    wv = wait_for(PLAN_H, 3, "56")
    if wv is not None: a(f"s_waitcnt vmcnt({wv + 1})")
    a("s_barrier")
    stamp(a, 2)
    if UP == "c": a(upoll)
    emit([[]], fill, int(E("SLC", "10")), 0)
    wv = wait_for(PLAN_H, 3, "a")
    if wv is not None: a(f"s_waitcnt vmcnt({wv + 1})")
    a(f"""
    s_barrier                              ; BX1
    s_setprio 1
    """)
    emit([[]], fill, int(E("SLU", "0")))
    a("s_waitcnt vmcnt(1)")
    ucheck("1", False)
    emit([[]], fill, int(E("SLX", "50")))
    a("s_barrier")
    def frags(base):
        return [f"ds_read_b128 {vr(base + 4*ks, 4)}, v24 offset:{32*ks}" for ks in range(8)]
    ds = k0[1] + frags(FV0) + k0[2] + frags(FU0) + k1[1] + frags(FV1) + k1[2] + frags(FU1)
    emit([[]], fill, max(0, len(fill) - len(k1[0])))
    early = 0
    a(f"""
    s_mov_b32 m0, s18
    s_cmp_ge_u32 s2, {0 if E("X_NOCONV") else 224}
    s_cbranch_scc1 L_p3
    """)
    fill += [f"v_mov_b32 v{ZR+i}, 0" for i in range(4)] + [x.strip() for x in f"""v_lshl_add_u32 v6, v0, 3, s13
    ds_write_b64 v6, {vr(ZR,2)}
    v_add_u32 v6, s19, v0
    ds_write_b8 v6, v{ZR}
    s_xor_b32 s{T1}, s{S_LW}, 1
    s_mul_i32 s{T1}, s{T1}, 3072
    s_add_u32 s{T1}, s{T1}, {L_XCH}
    v_lshl_add_u32 v27, v0, 4, s{T1}""".split("\n")]
    MIX = int(E("MIX", "71"))
    nf = len(fill)
    if not MIX:
        for x in fill: a(x)
    c1 = int(E("UCHK", "20"))
    m0_at = int(E("KM0", "111"))
    mm0 = [mfma(KA, FU0 + 4*ks, FV0 + 4*ks, None if ks == 0 else KA) for ks in range(8)]
    for k, x in enumerate(ds[early:], early):
        if k == c1: ucheck("2", True); a("s_nop 0")
        if k == m0_at: a("s_waitcnt lgkmcnt(15)")
        if k >= m0_at and (k - m0_at) % 4 == 0 and mm0: a(mm0.pop(0))
        a(x)
        if k < MIX:
            for y in fill[nf * k // MIX: nf * (k + 1) // MIX]: a(y)
    for m in mm0: a(m)
    stamp(a, 3)
    for ks in range(8):
        a(f"s_waitcnt lgkmcnt({7 - ks})")
        a(mfma(KA, FU1 + 4*ks, FV1 + 4*ks, KA))
    a(f"""
    s_cmp_eq_u32 s11, 0
    s_cbranch_scc1 L_u_late
L_u_done:
    v_mov_b32 v15, 1
    v_xor_b32 v6, {4}, v255
    v_mov_b32 v36, 0
    v_and_b32 v37, 1, v0
    v_writelane_b32 v36, s{S_DSK}, 0
    v_cmp_eq_u32 vcc, 1, v37
    s_nop 3
    ds_write_b128 v25, {vr(KA,4)}
    ds_write_b128 v25, {vr(KA+4,4)} offset:1024
    ds_write_b128 v25, {vr(KA+8,4)} offset:2048
    s_waitcnt vmcnt(0)
    ds_write_b32 v255, v15
    """)
    st = Asm()
    st(f"""
L_u_late:
    s_waitcnt vmcnt(0)
    v_readfirstlane_b32 s{T0}, v14
    s_cmp_eq_u32 s{T0}, 22
    s_cbranch_scc1 L_ok_u
    """)
    poll(st, "u", H_UTC, "22", 1)
    st(udma + "s_branch L_u_done")
    STUBS.append(st.text())
    stamp(a, 4)
    a(f"""
L_xch:
    ds_read_b32 v14, v6
    ds_read_b128 v[60:63], v27
    ds_read_b128 v[64:67], v27 offset:1024
    ds_read_b128 v[68:71], v27 offset:2048
    s_waitcnt lgkmcnt(3)
    v_readfirstlane_b32 s{T0}, v14
    s_cmp_eq_u32 s{T0}, 0
    s_cbranch_scc1 L_xch
    s_mov_b64 exec, 1
    ds_add_u32 v{H_CNT}, v15 offset:4      ; done with the tables and the exchange buffers
    s_mov_b64 exec, -1
    """)
    for k in range(3):
        a(f"s_waitcnt lgkmcnt({3-k})")
        for e in (0, 2):
            a(f"v_pk_add_f32 {vr(KA+4*k+e,2)}, {vr(KA+4*k+e,2)}, {vr(60+4*k+e,2)}")
    def store(nd, reg, off):
        if nd == 2:
            a(f"ds_write_b64 v{H_K2}, {vr(reg,2)} offset:{off}")
        else:
            a(f"ds_write_b128 v{H_K4}, {vr(reg,4)} offset:{off}")
    expand2(a, store, KA)
    conv(a)
    a.label("L_p3")
    stamp(a, 7)
    outproj(a)

def fused():
    a = Asm()
    a(f"""
    s_load_dwordx4 s[4:7], s[0:1], 0
    s_load_dwordx2 s[22:23], s[0:1], 104
    s_load_dwordx4 s[96:99], s[0:1], 88
    s_load_dwordx8 s[8:15], s[0:1], 32
    s_load_dwordx4 s[16:19], s[0:1], 64
    s_load_dwordx2 s[20:21], s[0:1], 80
    s_load_dwordx2 s[100:101], s[0:1], 16
    s_cmp_ge_u32 s2, 256
    s_cbranch_scc1 L_quit0
    """)
    prof_begin(a)
    a(f"""
    v_lshrrev_b32 v1, 6, v0
    v_and_b32 v0, 63, v0
    s_nop 0
    v_readfirstlane_b32 s{S_WAVE}, v1
    s_and_b32 s{S_LW}, s{S_WAVE}, 3
    s_cmp_ge_u32 s{S_WAVE}, 4
    s_cbranch_scc1 L_h0
    s_and_b32 s{T0}, s2, 7
    s_lshr_b32 s{T1}, s2, 3
    s_mul_i32 s{T0}, s{T0}, 31
    s_add_u32 s{T0}, s{T0}, s{T1}          ; t
    s_cmp_ge_u32 s{T1}, 31
    s_cselect_b32 s{T0}, 242, s{T0}
    s_min_u32 s{T0}, s{T0}, 242
    s_mov_b32 s{T2}, 205
    s_cmp_lt_u32 s{T0}, 110
    s_cselect_b32 s{T1}, 0, 110
    s_cselect_b32 s{T2}, s{T2}, 171
    s_cselect_b32 s{T3}, 5, 6
    s_cselect_b32 s{S_CB}, 0, 5
    s_sub_u32 s{T0}, s{T0}, s{T1}
    s_mul_i32 s{S_RB}, s{T0}, s{T2}
    s_lshr_b32 s{S_RB}, s{S_RB}, 10
    s_mul_i32 s{T1}, s{S_RB}, s{T3}
    s_sub_u32 s{T0}, s{T0}, s{T1}
    s_add_u32 s{S_CB}, s{S_CB}, s{T0}
    s_add_u32 s{S_C0}, s{S_RB}, s{S_CB}
    s_mul_i32 s{T0}, s{S_C0}, 37
    s_lshr_b32 s{T0}, s{T0}, 8
    s_mul_i32 s{T0}, s{T0}, 7
    s_sub_u32 s{S_C0}, s{S_C0}, s{T0}
    {"s_and_b32 s%d, s%d, %s" % (S_C0, S_C0, E("X_ROT")) if E("X_ROT") else ""}
    s_lshl_b32 s{S_LW1K}, s{S_LW}, 10
    v_lshrrev_b32 v4, 3, v0
    s_lshl_b32 s{T1}, s{S_LW}, 3
    v_add_u32 v4, s{T1}, v4
    v_lshrrev_b32 v5, 1, v4
    v_xor_b32 v5, v5, v0
    v_and_b32 v5, 7, v5
    v_mul_u32_u24 v2, 896, v4
    v_lshl_add_u32 v2, v5, 4, v2
    s_mov_b32 s{S_CH}, s{S_C0}
    s_mul_i32 s58, s{S_RB}, {96*896}
    s_sub_u32 s{SRD_X+2}, {X_BYTES}, s58
    s_cselect_b32 s{SRD_X+2}, 0, s{SRD_X+2}
    s_mov_b32 s{SRD_X+3}, 0x20000
    s_mov_b32 s{SRD_W+3}, 0x20000
    v_lshrrev_b32 v4, 4, v0
    v_lshlrev_b32 v5, 2, v4
    v_xor_b32 v5, v5, v0
    v_and_b32 v5, 15, v5
    s_lshl_b32 s{T1}, s{S_LW}, 2
    v_add_u32 v4, s{T1}, v4
    v_mul_u32_u24 v3, 2688, v4
    v_lshl_add_u32 v3, v5, 4, v3
    s_lshl_b32 s59, s{S_CB}, 8
    s_sub_u32 s{SRD_W+2}, {W_BYTES}, s59
    s_cmp_ge_u32 s{S_RB}, 22
    s_cselect_b32 s{SRD_W+2}, 0, s{SRD_W+2}
    s_cmp_eq_u32 s2, {ZWG}
    s_waitcnt lgkmcnt(0)
    s_cbranch_scc1 L_zero
L_nozero:
    s_add_u32 s{SRD_X}, s{S_X}, s58
    s_addc_u32 s{SRD_X+1}, s{S_X+1}, 0
    s_add_u32 s{SRD_W}, s{S_W}, s59
    s_addc_u32 s{SRD_W+1}, s{S_W+1}, 0
L_first:
    """)
    for g_ in dma_chunk(0):
        for x in g_: a(x)
    a(f"""
    s_mov_b32 s{SRD_WS}, s20
    s_mov_b32 s{SRD_WS+1}, s21
    s_mov_b32 s{SRD_WS+2}, 896
    s_mov_b32 s{SRD_WS+3}, 0x20000
    s_mov_b32 m0, {L_GATE}
    v_lshlrev_b32 v4, 4, v0
    buffer_load_dwordx4 v4, {sr(SRD_WS,4)}, 0 offen lds
    """)
    a(f"""
    s_branch L_gemm0
L_h0:
    s_setprio 3
    s_lshr_b32 s{T1}, s2, 3
    s_lshl_b32 s{T2}, s{T1}, 2
    s_add_u32 s{T2}, s{T2}, s{S_LW}
    s_cmp_lt_u32 s{T2}, (L_slow-L_pc+8191)/8192
    s_cbranch_scc1 L_pf
L_nopf:
    s_and_b32 s{T0}, s2, 7
    s_mul_i32 s{T0}, s{T0}, 28
    s_min_u32 s{T1}, s{T1}, 27
    s_add_u32 s{S_P}, s{T0}, s{T1}
    s_lshl_b32 s{T2}, s{S_P}, 2
    s_lshl_b32 s{T0}, s{S_P}, 10
    s_lshl_b32 s{T1}, s{S_LW}, 8
    s_add_u32 s{T0}, s{T0}, s{T1}
    v_lshl_add_u32 v1, v0, 2, s{T0}
    v_mov_b32 v7, 0
    s_cmp_eq_u32 s2, {ZWG}
    s_waitcnt lgkmcnt(0)
    s_cbranch_scc1 L_zero
L_nozero_h:
    {"global_load_dword v94, v7, s[4:5]" if E("TOUCH") else ""}
    {"global_load_dword v95, v7, s[6:7]" if E("TOUCH") else ""}
    global_load_dword v8, v1, s[8:9]
    global_load_dword v9, v1, s[10:11]
    global_load_dword v10, v1, s[12:13]
    global_load_dword v11, v1, s[14:15]
    s_load_dword s51, s[16:17], s{T2}
    s_load_dword s52, s[18:19], s{T2}
    s_setprio 0
    s_and_b32 s{T0}, s2, 7
    s_lshr_b32 s{T1}, s2, 3
    s_mul_i32 s{T0}, s{T0}, 31
    s_add_u32 s{T0}, s{T0}, s{T1}          ; t
    s_cmp_ge_u32 s{T1}, 31
    s_cselect_b32 s{T0}, 242, s{T0}
    s_min_u32 s{T0}, s{T0}, 242
    s_mov_b32 s{T2}, 205
    s_cmp_lt_u32 s{T0}, 110
    s_cselect_b32 s{T1}, 0, 110
    s_cselect_b32 s{T2}, s{T2}, 171
    s_cselect_b32 s{T3}, 5, 6
    s_cselect_b32 s{S_CB}, 0, 5
    s_sub_u32 s{T0}, s{T0}, s{T1}
    s_mul_i32 s{S_RB}, s{T0}, s{T2}
    s_lshr_b32 s{S_RB}, s{S_RB}, 10
    s_mul_i32 s{T1}, s{S_RB}, s{T3}
    s_sub_u32 s{T0}, s{T0}, s{T1}
    s_add_u32 s{S_CB}, s{S_CB}, s{T0}
    s_add_u32 s{S_C0}, s{S_RB}, s{S_CB}
    s_mul_i32 s{T0}, s{S_C0}, 37
    s_lshr_b32 s{T0}, s{T0}, 8
    s_mul_i32 s{T0}, s{T0}, 7
    s_sub_u32 s{S_C0}, s{S_C0}, s{T0}
    {"s_and_b32 s%d, s%d, %s" % (S_C0, S_C0, E("X_ROT")) if E("X_ROT") else ""}
    s_lshl_b32 s{S_LW1K}, s{S_LW}, 10
    v_lshrrev_b32 v4, 3, v0
    s_lshl_b32 s{T1}, s{S_LW}, 3
    v_add_u32 v4, s{T1}, v4
    v_lshrrev_b32 v5, 1, v4
    v_xor_b32 v5, v5, v0
    v_and_b32 v5, 7, v5
    v_mul_u32_u24 v2, 896, v4
    v_lshl_add_u32 v2, v5, 4, v2
    s_mov_b32 s{S_CH}, s{S_C0}
    s_mul_i32 s58, s{S_RB}, {96*896}
    s_sub_u32 s{SRD_X+2}, {X_BYTES}, s58
    s_cselect_b32 s{SRD_X+2}, 0, s{SRD_X+2}
    s_mov_b32 s{SRD_X+3}, 0x20000
    s_mov_b32 s{SRD_W+3}, 0x20000
    s_add_u32 s{SRD_X}, s{S_X}, s58
    s_addc_u32 s{SRD_X+1}, s{S_X+1}, 0
    v_lshrrev_b32 v4, 4, v0
    v_lshlrev_b32 v5, 2, v4
    v_xor_b32 v5, v5, v0
    v_and_b32 v5, 15, v5
    s_lshl_b32 s{T1}, s{S_LW}, 2
    v_add_u32 v4, s{T1}, v4
    v_mul_u32_u24 v3, 2688, v4
    v_lshl_add_u32 v3, v5, 4, v3
    s_lshl_b32 s59, s{S_CB}, 8
    s_sub_u32 s{SRD_W+2}, {W_BYTES}, s59
    s_cmp_ge_u32 s{S_RB}, 22
    s_cselect_b32 s{SRD_W+2}, 0, s{SRD_W+2}
    s_add_u32 s{SRD_W}, s{S_W}, s59
    s_addc_u32 s{SRD_W+1}, s{S_W+1}, 0
    s_add_u32 s{S_CNT}, s{S_WS}, {WS_CNT}
    s_addc_u32 s{S_CNT+1}, s{S_WS+1}, 0
    s_branch L_helper
L_pf:
    s_getpc_b64 s[48:49]
L_pc:
    s_lshl_b32 s{T2}, s{T2}, 13
    v_lshl_add_u32 v2, v0, 7, s{T2}
    v_min_u32 v2, L_slow-L_pc, v2
    global_load_dword v96, v2, s[48:49]
    s_branch L_nopf
L_zero:
    s_add_u32 s{S_CNT}, s{S_WS}, {WS_CNT}
    s_addc_u32 s{S_CNT+1}, s{S_WS+1}, 0
    """)
    stamp(a, 3)
    a(f"""
    s_mul_i32 s{T0}, s{S_WAVE}, {(NLINE // 8) << CS}
    v_lshl_add_u32 v4, v0, {CS}, s{T0}
    v_mov_b32 v20, 0
    v_mov_b32 v21, 0
    v_mov_b32 v22, 0
    v_mov_b32 v23, 0
    s_bfm_b64 exec, {NLINE // 8}, 0
    global_store_dwordx4 v4, v[20:23], {sr(S_CNT,2)} sc0 sc1
    s_mov_b64 exec, -1
    s_lshl_b32 s{T0}, s{S_WAVE}, 3
    v_add_u32 v4, s{T0}, v0
    v_mul_u32_u24 v4, {TILE_B}, v4
    v_add_u32 v4, {WS_ONE}, v4
    v_mov_b32 v16, 0x3f803f80
    v_mov_b32 v17, v16
    v_mov_b32 v18, v16
    v_mov_b32 v19, v16
    s_mov_b64 exec, 0xff
    global_store_dwordx4 v4, v[16:19], {sr(S_WS,2)} sc0 sc1
    s_mov_b64 exec, -1
    v_mov_b32 v21, 1
    s_waitcnt vmcnt(0)
    s_barrier
    s_cmp_lt_u32 s{S_WAVE}, 4
    s_cbranch_scc1 L_nozero
    s_cmp_lg_u32 s{S_WAVE}, 4
    s_cbranch_scc1 L_nozero_h
    s_mov_b64 exec, 1
    global_store_dword v20, v21, {sr(S_DBG,2)} sc0 sc1
    s_mov_b64 exec, -1
    """)
    stamp(a, 4)
    a("s_waitcnt vmcnt(0)")
    stamp(a, 5)
    a(f"""
    s_branch L_nozero_h
L_helper:
    """)
    helper_waves(a)
    a(f"""
L_quit0:
    s_endpgm
L_gemm0:
    """)
    if E("PB"): stamp(a, 10)
    a(f"""
    s_setprio 2
    s_add_u32 s{S_CNT}, s{S_WS}, {WS_CNT}
    s_addc_u32 s{S_CNT+1}, s{S_WS+1}, 0
    v_mov_b32 v252, v2
    v_mov_b32 v229, v3
    v_mov_b32 v4, 0
    v_mov_b32 v5, 0
    v_lshlrev_b32 v6, 3, v0
    v_and_b32 v6, 63, v6
    v_add_u32 v6, {L_CNT}, v6
    ds_write_b64 v6, v[4:5]
    v_lshlrev_b32 v{A_L16}, 4, v0
    """)
    gemm_waves(a)
    attention(a)
    a.label("L_fin")
    store_o(a)
    a.label("L_end")
    prof_end(a, 0, S_WS, S_WAVE)
    a.label("L_quit")
    a("s_endpgm")
    n0 = len(STUBS)
    for x in STUBS: a(x)
    fallback(a)
    for x in STUBS[n0:]: a(x)
    return a

DOC = """;
;   waves 0-3: x @ wqkv (96 x 128 tile, bf16 MFMA, gate logit as an extra column tile) -> workspace, then
;              then o @ wo and the gated mix for 32 tokens x 128 channels.
"""

def build():
    ref = open("cdna_kernels/%s.s.ref" % NAME).read().split("\n")
    out = "\n".join(ref[:15]) + "\n"
    out += f"; @launch grid=(256,1,1) block=(512,1,1) lds={LDS_TOTAL}\n"
    out += DOC
    out += '.amdgcn_target "amdgcn-amd-amdhsa--gfx950"\n.text\n'
    out += kernel_head(NAME + "_kernel") + fused().text()
    out += '.section .rodata,"a"\n'
    out += kernel_desc(NAME + "_kernel", NV, 102)
    return out

if __name__ == "__main__":
    import sys
    dst = sys.argv[1] if len(sys.argv) > 1 else "cdna_kernels/%s.s" % NAME
    open(dst, "w").write(build())
```

```python
from common import *
from k1 import kgen_split, kgen_expand
E = os.environ.get

WS_CNT = 0x1100000
WS_ONE = WS_KC
WS_SIZE = 0x1200000
QL = int(E('QL', '6'))
CS = int(E('CS', '8'))
B_O, B_BP, B_U, B_Q = 4, 8, (12 if QL == 6 else 64 << CS), ((64 if QL == 6 else 96) << CS)
KVR = int(E('KVR', '1'))
REPM = sum(1 << (4 * i) for i in range(KVR))
B_R = B_Q + ((1 << QL) << CS) - (64 << CS)
assert KVR == 1
B_L = 16
NLINE = (B_Q >> CS) + (1 << QL)
SPIN_MAX = 65536
ZWG = 248

TAB_B = 32 * 272
L_XCH = 4 * TAB_B
PL_B = 8224
L_KC = 8 * PL_B
KC_B = 4160
L_U = L_KC + 2 * KC_B
U_B = 4608
L_RED = L_U + 2 * U_B
L_X2 = L_RED + 49152
L_X1 = L_X2 - 24576
L_GATE = L_X2 + 24576
L_CNT = L_GATE + 1024
LDS_TOTAL = L_CNT + 64
assert LDS_TOTAL <= 163840
SLOT_AT = [L_X2 - 28672, L_X2] + [L_X2 - 28672 - 20480 * i for i in range(1, 6)]
assert SLOT_AT[6] >= 0 and L_X1 >= SLOT_AT[0]

S_X, S_W = 4, 6
S_WS = 22
S_WAVE, S_RB, S_CB, S_P = 24, 25, 26, 27
SRD_X, SRD_W, SRD_WS = 28, 32, 36
T0, T1, T2, T3 = 40, 41, 42, 43
S_DSK = 44
S_LW1K = 45
S_C0 = 46
S_LW = 50
S_CT = 53
S_CH = 57
S_CNT = 60
S_H, S_QB = 62, 63
S_OUT, S_DBG, S_WO = 96, 98, 100
ST = E("ST", "sc1")
LD = "sc1"
NV = 256

STUBS = []
def giveup(tag):
    if not E("DIAG"): return ""
    k = 8 + 2 * "auobsh".index(tag)
    return f"""
    v_mov_b32 v15, {4*k}
    global_store_dword v15, v14, {sr(S_DBG,2)} offset:4 sc0 sc1
    v_mov_b32 v14, s2
    v_add_u32 v14, 1000, v14
    global_store_dword v15, v14, {sr(S_DBG,2)} sc0 sc1
    s_waitcnt vmcnt(0)
    """

def poll(a, tag, vaddr, vexp, lanes, sleep=0, limit=SPIN_MAX):
    first = f"s_branch L_poll1_{tag}" if sleep else ""
    a(f"""
    s_mov_b64 exec, {lanes}
    v_mov_b32 v15, 0
    s_mov_b32 s{T0}, 0
    {first}
L_poll_{tag}:
    {"s_sleep %d" % sleep if sleep else ""}
L_poll1_{tag}:
    global_atomic_add v14, v{vaddr}, v15, {sr(S_CNT,2)} sc0 sc1
    s_add_u32 s{T0}, s{T0}, 1
    s_cmp_ge_u32 s{T0}, {limit}
    s_cbranch_scc1 L_give_{tag}
    s_waitcnt vmcnt(0)
    v_cmp_ne_u32 vcc, {vexp}, v14
    s_cbranch_vccnz L_poll_{tag}
L_ok_{tag}:
    s_mov_b64 exec, -1
    """)
    STUBS.append(f"""
L_give_{tag}:
    s_waitcnt vmcnt(0)
    {giveup(tag)}
    s_branch L_ok_{tag}
    """)

def poll2(a, tag, vaddr, vexp, lanes, gap):
    at = lambda d: f"global_atomic_add v{d}, v{vaddr}, v15, {sr(S_CNT,2)} sc0 sc1"
    a(f"""
    s_mov_b64 exec, {lanes}
    v_mov_b32 v15, 0
    s_mov_b32 s{T0}, 0
    {at(14)}
L_poll_{tag}:
    s_sleep {gap}
    {at(13)}
    s_waitcnt vmcnt(1)
    v_cmp_ne_u32 vcc, {vexp}, v14
    s_cbranch_vccz L_ok_{tag}
    s_sleep {gap}
    {at(14)}
    s_add_u32 s{T0}, s{T0}, 1
    s_waitcnt vmcnt(1)
    v_cmp_ne_u32 vcc, {vexp}, v13
    s_cbranch_vccz L_ok_{tag}
    s_cmp_lt_u32 s{T0}, {SPIN_MAX}
    s_cbranch_scc1 L_poll_{tag}
L_ok_{tag}:
    s_mov_b64 exec, -1
    """)

def lds_sync(a, idx, tag, vm=True):
    a(f"""
    v_mov_b32 v15, 1
    s_waitcnt {"vmcnt(0) " if vm else ""}lgkmcnt(0)
    s_mov_b64 exec, 1
    ds_add_u32 v23, v15 offset:{4*idx}
    s_mov_b64 exec, -1
    s_branch L_spin1_{tag}
L_spin_{tag}:
    s_sleep {E("SPS", "0")}
L_spin1_{tag}:
    ds_read_b32 v15, v23 offset:{4*idx}
    s_waitcnt lgkmcnt(0)
    v_readfirstlane_b32 s{T0}, v15
    s_cmp_lt_u32 s{T0}, 4
    s_cbranch_scc1 L_spin_{tag}
    """ if E("SPS") else f"""
    v_mov_b32 v15, 1
    s_waitcnt {"vmcnt(0) " if vm else ""}lgkmcnt(0)
    s_mov_b64 exec, 1
    ds_add_u32 v23, v15 offset:{4*idx}
    s_mov_b64 exec, -1
L_spin_{tag}:
    ds_read_b32 v15, v23 offset:{4*idx}
    s_waitcnt lgkmcnt(0)
    v_readfirstlane_b32 s{T0}, v15
    s_cmp_lt_u32 s{T0}, 4
    s_cbranch_scc1 L_spin_{tag}
    """)

XA, XB, WA = 3, 10, 8
XAR = [3, 4, 5, 15]
WF, ACC, XF, PK = 16, 128, 176, 240
RING = 12
NX = 6
XE = not E('XLATE')
DEF = int(E('DEF', '3'))
NG = int(E('NG', '4'))
SRD_R, SRD_T = 4, 92
ONES = [160 + 16*b + 8 + i for b in (3, 2, 1, 0) for i in range(8)]

def gemm_body(a, kind, tag):
    nw = 1 if kind == "gate" else 2
    GROUPS = [[0], [1, 2], [3, 4], [5, 6]]
    def soff(it):
        grp = [g_ for g_ in GROUPS if it in g_][0]
        return SLOT_AT[it] - SLOT_AT[grp[-1]]
    def rd_w(g):
        it, ks = divmod(g, 4)
        if kind == "gate":
            return [f"ds_read_b128 {vr(WF+4*g,4)}, v8 offset:{32*ks}"]
        return [f"ds_read_b64_tr_b16 {vr(WF+4*g,2)}, v8 offset:{soff(it) + ks*4096}",
                f"ds_read_b64_tr_b16 {vr(WF+4*g+2,2)}, v8 offset:{soff(it) + ks*4096+1024}"]
    def mm(g, i, x):
        w, d = WF + 4*g, ACC + 16*i
        c = None if g == 0 else d
        return mfma(d, x, w, c) if kind == "v" else mfma(d, w, x, c)
    def epi(i):
        r = []
        base = ACC + 16*i
        if kind == "gate":
            return [f"v_cvt_pk_bf16_f32 v{base}, v{base}, v{base}",
                    f"v_and_b32 v{base}, 0xffff0000, v{base}",
                    f"v_mul_f32 v{base}, {f32(-LOG2E)}, v{base}",
                    f"v_exp_f32 v{base}, v{base}", "s_nop 0",
                    f"v_add_f32 v{base}, 1.0, v{base}",
                    f"v_rcp_f32 v{base}, v{base}", "s_nop 0",
                    f"v_cvt_pk_bf16_f32 v{base}, v{base}, v{base}",
                    f"v_and_b32 v{base}, 0xffff0000, v{base}",
                    f"buffer_store_dword v{base}, v6, {sr(SRD_R,4)}, 0 offen offset:{128*i} {ST}"]
        so = ["s92", "s93", "s94"][i]
        for h in range(2):
            if kind == "qk" and i == 2 and E("PKE"):
                r += [f"v_pk_mul_f32 {vr(base+8*h+j,2)}, {vr(base+8*h+j,2)}, s[46:47] op_sel:[0,1] op_sel_hi:[1,1]" for j in range(0, 8, 2)]
            elif kind == "qk":
                r += [f"v_mul_f32 v{base+8*h+j}, s47, v{base+8*h+j}" for j in range(8)]
            r += [f"v_cvt_pk_bf16_f32 v{PK+4*h+j}, v{base+8*h+2*j}, v{base+8*h+2*j+1}" for j in range(4)]
            if not (kind == "v" and i == 2):
                r.append(f"buffer_store_dwordx4 {vr(PK+4*h,4)}, v{6+h}, {sr(SRD_R,4)}, {so} offen {ST}")
        return r
    VX, VW = 252, 229
    assert PLAN_G[0] == '12'
    loads = [items(PLAN_G[k], VX, VW) for k in (1, 2, 3)] + [[]]
    waits = [nld(PLAN_G[0]), wait_for(PLAN_G, 1, "12"), wait_for(PLAN_G, 2, "34"), wait_for(PLAN_G, 3, "56")]
    assert "b" not in "".join(PLAN_G)
    xslot = 0
    for gi, grp in enumerate(GROUPS):
        if waits[gi] is not None: a(f"s_waitcnt vmcnt({waits[gi]})" + (" lgkmcnt(0)" if gi == 0 else ""))
        a("s_barrier")
        if gi in (0, 3): stamp(a, 1 + gi // 3)
        if E('PA') and not E('PB') and gi in (1, 2): stamp(a, 7 + gi)
        ld = loads[gi]
        queue, steps = [], []
        nread = 0
        order = [grp[1], grp[2], grp[0]] if False else grp
        for it in order:
            nt = 3 if it == 0 else 1
            for ks in range(4):
                g = 4*it + ks
                for r in rd_w(g): queue.append((r, None)); nread += 1
                ms = []
                for i in range(nt):
                    reg = XF + 4 * (xslot % RING)
                    queue.append((f"ds_read_b128 {vr(reg,4)}, v{XAR[ks]} offset:{soff(it) + i*4096}", xslot)); nread += 1
                    ms.append((mm(g, i, reg), xslot))
                    xslot += 1
                steps.append((nread, ms))
            if kind == "gate" and it < 6:
                queue[-1] = (queue[-1][0] + f"""
                s_add_u32 s{S_C0}, s{S_C0}, 1
                s_cmp_eq_u32 s{S_C0}, 7
                s_cselect_b32 s{S_C0}, 0, s{S_C0}
                s_lshl_b32 s47, s{S_C0}, 7
                v_add_u32 v8, s47, v9""", queue[-1][1])
        if gi < 3:
            upd = "".join(f"\nv_subrev_u32 v{r}, {SLOT_AT[grp[-1]] - SLOT_AT[GROUPS[gi+1][-1]]}, v{r}" for r in XAR + ([] if kind == "gate" else [8]))
            queue[-1] = (queue[-1][0] + upd, queue[-1][1])
        issued, freed = 0, steps[0][1][0][1]
        def issue(upto):
            nonlocal issued
            while issued < min(upto, len(queue)) and (queue[issued][1] is None or queue[issued][1] < freed + RING):
                a(queue[issued][0]); issued += 1
        prev = 0
        for si, (need, ms) in enumerate(steps):
            issue(max(need, prev + 15))
            assert issued >= need
            if si == 0:
                for g_ in ld[:2]:
                    for x in g_: a(x)
                ld = ld[2:]
            a(f"s_waitcnt lgkmcnt({issued - need})")
            prev = need
            if gi == 3 and si == len(steps) - DEF:
                last = [st_[1][0][0] for st_ in steps[si:]]
                a("s_waitcnt lgkmcnt(0)")
                break
            for m, xs in ms:
                a(m)
                freed = xs + 1
                issue(min(issued + 3, need + 15))
                k = 1 if gi == 0 else 2
                for g_ in ld[:k]:
                    for x in g_: a(x)
                ld = ld[k:]
        for g_ in ld:
            for x in g_: a(x)
        assert issued == len(queue)
    X0 = xslot % RING
    def rd_x(n):
        i, g = 1 + n // 24, 4 + n % 24
        return f"ds_read_b128 {vr(XF+4*((n+X0)%RING),4)}, v{XB + g%4} offset:{(i-1)*24576 + (g//4-1)*4096}"
    a("s_waitcnt vmcnt(0)")
    a("s_barrier")
    stamp(a, 3)
    AHEAD = 8
    assert AHEAD + DEF <= RING
    per = AHEAD // DEF
    for k in range(DEF):
        if k: a(last[k - 1])
        for n in range(k * per, AHEAD if k == DEF - 1 else (k + 1) * per): a(rd_x(n))
    a(last[-1])
    issued = AHEAD
    fill = []
    BX2 = int(E("BX2", "18"))
    for n in range(48):
        if n == BX2:
            if NX == 12: a(f"s_waitcnt vmcnt({1 if kind == 'gate' else 2})")
            a(f"s_waitcnt lgkmcnt(0)\ns_barrier")
            if not E('PB'): stamp(a, 10)
            while issued < n + AHEAD + 3:
                a(rd_x(issued)); issued += 1
        a(f"s_waitcnt lgkmcnt({issued - n - 1})")
        a(mm(4 + n % 24, 1 + n // 24, XF + 4*((n+X0) % RING)))
        lim = 24 if n < BX2 else 48
        if issued < min(lim, n + 1 + (AHEAD if n < BX2 else AHEAD + 3)):
            a(rd_x(issued)); issued += 1
        if n == 3: fill = epi(0)
        if n == 27: fill = epi(1)
        for x in fill[:4]: a(x)
        fill = fill[4:]
    assert issued == 48
    a("s_nop 11")
    for x in epi(2): a(x)

def gemm_setup(a):
    a(f"""
    s_lshl_b32 s{S_CT}, s{S_CB}, 2
    s_add_u32 s{S_CT}, s{S_CT}, s{S_WAVE}
    v_and_b32 v1, 31, v0
    v_lshrrev_b32 v2, 5, v0                ; hi
    v_lshrrev_b32 v3, 1, v0
    v_and_b32 v3, 7, v3
    v_xor_b32 v3, v3, v2
    v_lshlrev_b32 v10, 7, v1
    v_lshl_add_u32 v10, v3, 4, v10
    v_xor_b32 v11, 32, v10
    v_xor_b32 v12, 64, v10
    v_xor_b32 v13, 96, v10
    v_mov_b32 v239, 1
    s_mul_i32 s{T2}, s{S_CT}, 37
    s_lshr_b32 s{T2}, s{T2}, 9
    s_mul_i32 s{T1}, s{T2}, 14
    s_sub_u32 s52, s{S_CT}, s{T1}          ; ct'
    s_lshl_b32 s{T2}, s{T2}, 21
    s_add_u32 s{SRD_R}, s{S_WS}, s{T2}
    s_addc_u32 s{SRD_R+1}, s{S_WS+1}, 0
    s_mov_b32 s{SRD_R+2}, {64*TILE_B}
    s_mov_b32 s{SRD_R+3}, 0x20000
    v_bfe_u32 v16, v0, 4, 1                ; ih
    v_bfe_u32 v4, v0, 2, 2                 ; r
    v_lshl_add_u32 v17, v2, 3, v4          ; 8 hi + r
    v_lshlrev_b32 v8, 8, v17
    v_xor_b32 v17, s{S_WAVE}, v4
    v_lshl_add_u32 v8, v17, 6, v8
    v_lshl_add_u32 v8, v16, 5, v8
    v_add_u32 v8, {SLOT_AT[0]}, v8
    v_and_b32 v17, 3, v0                   ; c
    v_add_u32 v3, {SLOT_AT[0] + 16384}, v10
    v_add_u32 v4, {SLOT_AT[0] + 16384}, v11
    v_add_u32 v5, {SLOT_AT[0] + 16384}, v12
    v_add_u32 v15, {SLOT_AT[0] + 16384}, v13
    v_add_u32 v10, {L_X1}, v10
    v_add_u32 v11, {L_X1}, v11
    v_add_u32 v12, {L_X1}, v12
    v_add_u32 v13, {L_X1}, v13
    """)
    for g_ in dma_chunk(1, 252, 229):
        for x in g_: a(x)
    a(f"""
    s_mul_i32 s56, s{S_RB}, 205
    s_lshr_b32 s56, s56, 10
    s_mul_i32 s{T0}, s56, 5
    s_sub_u32 s{T0}, s{S_RB}, s{T0}
    s_lshl_b32 s{T1}, s56, 4
    s_add_u32 s{T1}, s{T1}, s{T0}
    s_add_u32 s92, s{T1}, s{T0}
    s_add_u32 s93, s92, 1
    s_add_u32 s95, s{T1}, 10
    s_cmp_eq_u32 s{S_RB}, 20
    s_cselect_b32 s92, 15, s92
    s_cselect_b32 s93, 31, s93
    s_cselect_b32 s95, 47, s95
    s_cmp_eq_u32 s{S_RB}, 21
    s_cselect_b32 s92, 63, s92
    s_mul_i32 s{T0}, s{S_RB}, 3
    s_add_u32 s{T1}, s{T0}, 1
    s_add_u32 s94, s{T0}, 2
    s_sub_u32 s{T2}, s{S_CT}, 14
    s_cmp_lt_u32 s{T2}, 28                 ; K or V
    s_cselect_b32 s92, s92, s{T0}
    s_cselect_b32 s93, s93, s{T1}
    s_cselect_b32 s94, 64, s94
    s_cselect_b32 s95, s95, 64
    s_mul_i32 s92, s92, {TILE_B}
    s_mul_i32 s93, s93, {TILE_B}
    s_mul_i32 s94, s94, {TILE_B}
    s_mul_i32 s95, s95, {TILE_B}
    s_mul_i32 s{T0}, s{S_RB}, 3
    s_add_u32 s{T1}, s{T0}, 2
    s_min_u32 s{T1}, s{T1}, 63
    s_cmp_lt_u32 s{S_CT}, 14
    s_cselect_b32 s{T2}, 2, 4
    s_lshr_b32 s{T0}, s{T0}, s{T2}
    s_lshr_b32 s{T1}, s{T1}, s{T2}
    s_cmp_eq_u32 s{T0}, s{T1}
    s_cselect_b32 s54, 3, 15
    s_mov_b32 s55, 0
    s_mov_b32 s49, 0
    s_mul_i32 s51, s{T0}, 14               ; gate wave: first counter
    s_mul_i32 s{T1}, s52, {8*147}
    s_lshr_b32 s{T1}, s{T1}, 10            ; (8 ct') / 7
    v_and_b32 v18, 1, v0
    v_add_u32 v18, s{T1}, v18                ; head
    v_bfe_u32 v19, v0, 1, 2
    s_cmp_eq_u32 s{S_RB}, 20
    s_cselect_b32 s48, 63, 3
    s_cselect_b32 s{T2}, 0, s56
    s_min_u32 s{T2}, s{T2}, 3
    v_lshl_add_u32 v20, v18, 2, s{T2}
    v_add_u32 v20, v20, v19
    v_lshlrev_b32 v20, {CS}, v20
    v_add_u32 v238, {B_L}, v20
    s_sub_u32 s{T2}, s{S_CT}, 14
    s_cmp_lt_u32 s{T2}, 28
    s_cselect_b32 s{T3}, 1, 0
    s_cmp_lt_u32 s{S_RB}, 22
    s_cselect_b32 s{T3}, s{T3}, 0
    s_cselect_b32 s54, s54, 0
    v_mov_b32 v253, s{T3}
    s_cmp_lt_u32 s{T2}, 28
    s_cbranch_scc0 L_cnt_q
    v_mov_b32 v254, v20
    s_cmp_lt_u32 s{S_RB}, 20
    s_cselect_b32 s54, 3, 0
    s_branch L_cnt_done
L_cnt_q:
    s_mov_b32 s48, 1
    v_lshlrev_b32 v18, 4, v18
    v_add3_u32 v18, v18, v19, s{T0}
    v_and_b32 v19, {(1 << QL) - 1}, v18
    v_lshrrev_b32 v18, {QL}, v18
    v_lshlrev_b32 v19, {CS}, v19
    v_add_u32 v19, {B_Q}, v19
    v_lshl_add_u32 v254, v18, 2, v19
    s_cmp_lt_u32 s{S_CT}, 42
    s_cbranch_scc1 L_cnt_done
    v_add_u32 v20, s51, v0
    v_lshl_add_u32 v254, v20, {CS}, {B_BP}
    s_mov_b32 s{T0}, 0x3fff
    s_cmp_eq_u32 s54, 3
    s_cselect_b32 s54, s{T0}, 0xfffffff
    s_cmp_eq_u32 s{S_CT}, 42
    s_cselect_b32 s54, s54, 0
L_cnt_done:
    """)
    if not E("NOMALL"):
        a("s_cmp_ge_u32 s2, 248\ns_cbranch_scc1 L_womall\nL_womall_back:")
        STUBS.append(f"""
L_womall:
        s_and_b32 s{T0}, s2, 7
        s_lshl_b32 s{T0}, s{T0}, 2
        s_add_u32 s{T0}, s{T0}, s{S_LW}
        s_mul_i32 s{T0}, s{T0}, {98*128}
        v_min_u32 v18, 48, v0
        v_lshl_add_u32 v18, v18, 7, s{T0}
        v_add_u32 v19, {49*128}, v18
        global_load_dword v20, v18, {sr(S_WO,2)}
        global_load_dword v21, v19, {sr(S_WO,2)}
        s_waitcnt vmcnt(0)
        s_branch L_womall_back
        """)
    if E("ASET") == "p": attn_setup(a)
    if E("PB"): stamp(a, 8)
    for g_ in dma_chunk(2, 252, 229):
        for x in g_: a(x)
    if E("PB"): stamp(a, 9)
    a(f"""
    s_cmp_ge_u32 s{S_CT}, 42
    s_cbranch_scc1 L_gate
    s_cmp_ge_u32 s{S_CT}, 28
    s_cbranch_scc1 L_v
    s_branch L_qk
    """)

def gemm_waves(a):
    a(f"""
L_qk:
    v_and_b32 v16, 1, v17
    v_lshrrev_b32 v17, 1, v17
    v_lshl_add_u32 v17, v16, 1, v17
    """)
    assert WS_Q == 0 and WS_K == 1 << 21 and WS_V == 2 << 21
    wa = "v_lshl_add_u32 v8, v17, 3, v8"
    a(wa)
    a(f"""
    s_cmp_ge_u32 s{S_CT}, 14
    s_cselect_b32 s47, 1.0, {f32(QSCALE)}
    s_lshl_b32 s{T0}, s52, 11
    v_add_u32 v6, s{T0}, v{A_L16}
    v_add_u32 v7, 1024, v6
    """)
    gemm_body(a, "qk", "qk")
    a("s_branch L_signal")
    a.label("L_gate")
    a(f"""
    v_lshlrev_b32 v9, 4, v2
    v_add_u32 v9, {L_GATE}, v9
    s_lshl_b32 s47, s{S_C0}, 7
    v_add_u32 v8, s47, v9
    s_add_u32 s{SRD_R}, s{S_WS}, {WS_GT}
    s_addc_u32 s{SRD_R+1}, s{S_WS+1}, 0
    s_cmp_eq_u32 s{S_CT}, 42
    s_cselect_b32 s{SRD_R+2}, 8192, 0
    s_mul_i32 s{T0}, s{S_RB}, {96*4}
    v_lshl_add_u32 v6, v1, 2, s{T0}
    v_mov_b32 v7, v6
    """)
    gemm_body(a, "gate", "g")
    a("s_branch L_signal")
    a.label("L_v")
    a(wa)
    a(f"""
    s_lshl_b32 s{T0}, s52, 9
    v_mul_u32_u24 v6, 7168, v2
    v_lshl_add_u32 v6, v1, 4, v6
    v_add_u32 v6, s{T0}, v6
    v_add_u32 v7, 14336, v6
    """)
    gemm_body(a, "v", "v")
    a.label("L_signal")
    stamp(a, 4)
    a(f"""
    """)
    if E("ASET", "a") == "b": attn_setup(a)
    a(f"""
    s_setprio {E("PRP", "3")}
    s_waitcnt vmcnt(0)
    s_mov_b64 exec, s[54:55]
    s_cbranch_execz L_nosig
    global_atomic_add v254, v239, {sr(S_CNT,2)} sc1
L_nosig:
    s_mov_b64 exec, -1
    """)
    if E("ASET", "a") == "a": attn_setup(a)

Q, O, S, P, KV = 16, 48, 112, 144, 160
A_K, A_V0, A_V1, A_RED_, A_Q, A_L16, A_M0, A_M1, A_PA, A_PE, A_RR, A_OC, A_LC = 224, 225, 226, 227, 230, 231, 232, 233, 234, 235, 236, 237, 255
S_OFF = 9
S_KB = 96
A_RED = 248
S_EXV = 20

def kv_loads(b):
    r = KV + 16 * b
    w = sr(SRD_WS, 4)
    kb = sr(S_KB, 2)
    return [f"global_load_dwordx4 {vr(r,4)}, v{A_K}, {kb} {LD}",
            f"global_load_dwordx4 {vr(r+4,4)}, v{A_K}, {kb} offset:1024 {LD}",
            f"global_load_dwordx4 {vr(r+8,4)}, v{A_V0}, {kb} {LD}",
            f"global_load_dwordx4 {vr(r+12,4)}, v{A_V1}, {kb} {LD}",
            f"s_add_u32 s{S_KB}, s{S_KB}, {TILE_B}\ns_addc_u32 s{S_KB+1}, s{S_KB+1}, 0"]

def slot(a, n, qk, pv, post=None, first=False, mid=None, tight=False, tail=None):
    sc, sn = S + 16 * (n & 1), S + 16 * ((n + 1) & 1)
    pc, pp = P + 8 * (n & 1), P + 8 * ((n + 1) & 1)
    ms = [None] * 4
    if qk is not None:
        k, q = KV + 16 * qk[0], Q + 8 * qk[1]
        ms[0] = mfma(sn, k, q, None)
        ms[1] = mfma(sn, k + 4, q + 4, sn)
    if pv is not None:
        v, o = KV + 16 * pv[0] + 8, O + 16 * pv[1]
        ms[2] = mfma(o, v, pp, None if first else o)
        ms[3] = mfma(o, v + 4, pp + 4, o)
    if tail:
        ms = [ms[2], ms[3], None, tail]
    valu = []
    for g in range(4):
        for j in range(4):
            valu.append(f"v_exp_f32 v{sc+4*g+j}, v{sc+4*g+j}")
            if g > 0 and j == 0:
                valu.append(f"v_cvt_pk_bf16_f32 v{pc+2*g-2}, v{sc+4*g-4}, v{sc+4*g-3}")
                valu.append(f"v_cvt_pk_bf16_f32 v{pc+2*g-1}, v{sc+4*g-2}, v{sc+4*g-1}")
    valu.append(f"v_cvt_pk_bf16_f32 v{pc+6}, v{sc+12}, v{sc+13}")
    valu.append(f"v_cvt_pk_bf16_f32 v{pc+7}, v{sc+14}, v{sc+15}")
    cuts = [0, 3, 7, 10, 24] if tight else [0, 4, 10, 16, 24]
    for g in range(4):
        if g == 2 and mid:
            for e in mid: a(e)
        if ms[g]: a(ms[g])
        if post and post[g]: a(post[g])
        for x in valu[cuts[g]:cuts[g+1]]: a(x)

def red_writes(j):
    return [f"ds_write_b128 v{A_RED+j}, {vr(O+16*j+4*i,4)} offset:{1024*i}" for i in range(4)]

def attn_setup(a):
    a(f"""
    s_and_b32 s{S_H}, s2, 7
    s_lshl_b32 s{S_H}, s{S_H}, 1
    s_bfe_u32 s{T0}, s2, 0x10003
    s_add_u32 s{S_H}, s{S_H}, s{T0}
    s_lshr_b32 s{S_QB}, s2, 4
    s_mov_b32 s{SRD_WS}, s{S_WS}
    s_mov_b32 s{SRD_WS+1}, s{S_WS+1}
    s_mov_b32 s{SRD_WS+2}, {WS_SIZE}
    s_mov_b32 s{SRD_WS+3}, 0x20000
    s_mul_i32 s{T0}, s{S_H}, 7
    s_lshr_b32 s8, s{T0}, 1                ; u0
    s_mul_i32 s{S_OFF}, s{S_WAVE}, {16*TILE_B}
    s_add_u32 s{S_KB}, s{S_WS}, s{S_OFF}
    s_addc_u32 s{S_KB+1}, s{S_WS+1}, 0
    s_lshl_b32 s{T2}, s8, 9
    v_add_u32 v{A_Q}, s{T2}, v{A_L16}
    v_add_u32 v{A_K}, {WS_K}, v{A_Q}
    v_bfe_u32 v20, v0, 2, 1
    v_bfe_u32 v21, v0, 3, 1
    v_and_b32 v22, 19, v0
    v_lshl_add_u32 v22, v20, 3, v22
    v_lshl_add_u32 v22, v21, 2, v22
    v_lshrrev_b32 v18, 5, v0                ; hi
    v_mul_u32_u24 v19, 7168, v18
    v_lshl_add_u32 v19, v22, 4, v19
    s_lshl_b32 s{T3}, s8, 7
    s_add_u32 s{T3}, s{T3}, {WS_V}
    v_add_u32 v{A_V0}, s{T3}, v19
    v_add_u32 v{A_V1}, 14336, v{A_V0}
    s_bitcmp1_b32 s{S_H}, 0
    s_mov_b32 s{S_EXV}, 0x0fffffff
    s_cselect_b32 s{S_EXV}, 0xfffffff0, s{S_EXV}
    s_cselect_b64 s[18:19], -1, 0
    s_mov_b32 s{S_EXV+1}, s{S_EXV}
    v_mov_b32 v20, {WS_ONE}
    v_cndmask_b32 v{A_V0}, v20, v{A_V0}, {sr(S_EXV,2)}
    v_cndmask_b32 v{A_V1}, v20, v{A_V1}, {sr(S_EXV,2)}
    """)
    for j in range(4):
        a(f"""
        s_add_u32 s{T3}, s{S_WAVE}, {j+1}
        s_and_b32 s{T3}, s{T3}, 3
        s_lshl_b32 s{T0}, s{S_QB}, 2
        s_add_u32 s{T0}, s{T0}, s{T3}
        s_mul_i32 s{10+j}, s{T0}, {TILE_B}
        s_mul_i32 s{T3}, s{T3}, 12288
        s_add_u32 s{T3}, s{T3}, {L_RED + (4096*j if j < 3 else 0)}
        v_add_u32 v{A_RED+j if j < 3 else A_RR}, s{T3}, v{A_L16}
        """)
    a(f"""
    s_lshl_b32 s3, s{T0}, 4
    s_add_u32 s3, s3, s{S_H}
    s_lshl_b32 s3, s3, 11
    s_add_u32 s3, s3, {WS_O}
    s_lshl_b32 s{T0}, s{T0}, {CS}
    s_add_u32 s{T0}, s{T0}, {B_O}
    v_mov_b32 v{A_OC}, s{T0}
    v_mov_b32 v{A_LC}, {L_CNT}
    s_mov_b32 s14, {f32(2.0**60 if E("SLOW") else 2.0**-60)}
    s_mov_b32 s15, {f32(2.0**60)}
    """)
    a(f"""
    s_and_b32 s{T0}, s{S_H}, 1
    v_cmp_lt_u32 vcc, v18, s{T0}
    v_cmp_gt_u32 s[100:101], v18, s{T0}
    s_add_u32 s{T0}, s{S_H}, 1
    s_and_b32 s{T0}, s{T0}, 6
    v_cndmask_b32 v{A_M0}, -1, 0, vcc
    v_cndmask_b32 v{A_M1}, -1, 0, s[100:101]
    s_mov_b64 s[100:101], 0
    s_cmp_eq_u32 s{T0}, 0
    s_cselect_b32 s{T0}, 10, 20
    s_cselect_b32 s{T1}, 2, 4
    s_cselect_b32 s9, 12, 24
    v_mov_b32 v{A_PE}, s{T0}
    v_writelane_b32 v{A_PE}, s{T1}, {4 if E("AP1") else 1}
    s_lshl_b32 s{T0}, s{S_H}, 2
    s_add_u32 s{T0}, s{T0}, s{S_WAVE}
    s_lshl_b32 s{T0}, s{T0}, {CS}
    s_add_u32 s{T1}, s{T0}, {B_L}
    v_mov_b32 v228, s{T1}
    s_and_b32 s{T1}, s{S_H}, {(1 << (QL - 4)) - 1}
    s_lshl_b32 s{T1}, s{T1}, 4
    s_add_u32 s{T1}, s{T1}, s{S_QB}
    s_lshl_b32 s{T1}, s{T1}, {CS}
    s_lshr_b32 s{T2}, s{S_H}, {QL - 4}
    s_lshl_b32 s{T2}, s{T2}, 2
    s_add_u32 s{T1}, s{T1}, s{T2}
    s_add_u32 s{T1}, s{T1}, {B_Q}
    {"v_lshl_add_u32 v%d, v0, %d, s%d" % (A_PA, CS, T0) if E("AP1") else "v_mov_b32 v%d, s%d" % (A_PA, T0)}
    v_writelane_b32 v{A_PA}, s{T1}, {4 if E("AP1") else 1}
    """)

def qmask(j):
    return [f"v_and_b32 v{Q+8*j}, v{A_M0}, v{Q+8*j}", f"v_and_b32 v{Q+8*j+1}, v{A_M0}, v{Q+8*j+1}",
            f"v_and_b32 v{Q+8*j+6}, v{A_M1}, v{Q+8*j+6}", f"v_and_b32 v{Q+8*j+7}, v{A_M1}, v{Q+8*j+7}"]

def attention(a):
    w = sr(SRD_WS, 4)
    stamp(a, 5)
    if E("X_DELAY"): a("s_sleep 64")
    if E("AP1"):
        a(f"""
        s_mov_b64 exec, -1
        s_cmp_eq_u32 s{S_WAVE}, 0
        s_cbranch_scc1 L_pa0
L_paw:
        ds_read_b32 v15, v{A_LC} offset:24
        s_waitcnt lgkmcnt(0)
        v_readfirstlane_b32 s{T0}, v15
        s_cmp_eq_u32 s{T0}, 0
        s_cbranch_scc1 L_paw
        s_branch L_pa1
L_pa0:
        """)
        if E("GAPA"): poll2(a, "a", A_PA, f"v{A_PE}", 31, int(E("GAPA")))
        else: poll(a, "a", A_PA, f"v{A_PE}", 31)
        a(f"ds_write_b32 v{A_LC}, v239 offset:24\nL_pa1:")
    elif E("GAPA"): poll2(a, "a", A_PA, f"v{A_PE}", 3, int(E("GAPA")))
    else: poll(a, "a", A_PA, f"v{A_PE}", 3)
    stamp(a, 6)
    if PROF and E("PCNT"): a(f"s_mov_b32 s84, s{T0}")
    def ldq(j):
        a(f"buffer_load_dwordx4 {vr(Q+8*j,4)}, v{A_Q}, {w}, s{10+j} offen {LD}")
        a(f"buffer_load_dwordx4 {vr(Q+8*j+4,4)}, v{A_Q}, {w}, s{10+j} offen offset:1024 {LD}")
    l0 = kv_loads(0)
    a(l0[0]); a(l0[1])
    ldq(0); ldq(1); ldq(2)
    for x in l0[2:]: a(x)
    ldq(3)
    a("s_waitcnt vmcnt(8)")
    for x in qmask(0): a(x)
    a("s_nop 1")
    a(mfma(S, KV, Q, None))
    l1 = kv_loads(1)
    a(l1[0])
    a(mfma(S, KV + 4, Q + 4, S))
    a(l1[1])
    a("s_waitcnt vmcnt(8)")
    for x in qmask(1): a(x)
    a("s_setprio 0\ns_nop 3")
    stamp(a, 7)
    seq = [(t, q) for t in range(12) for q in range(4)]
    seq += [(12,0),(12,1),(12,2),(13,0),(13,1),(13,2),(14,0),(15,0),(14,1),(15,1),(14,2),(15,2),(12,3),(13,3),(14,3),(15,3)]
    rseq = [(j, i) for i in (0, 3, 1, 2) for j in range(3)]
    rd = [f"ds_read_b128 {vr(O+16*j+4*i,4)}, v{A_RR} offset:{4096*j + 1024*i}" for j, i in rseq]
    for n, (t, q) in enumerate(seq):
        qk = (seq[n+1][0] & 3, seq[n+1][1]) if n < 63 else None
        pv = (seq[n-1][0] & 3, seq[n-1][1]) if n > 0 else None
        post, mid = [None] * 4, None
        if n < 51:
            ld = kv_loads((t + 3) & 3)
            if q == 0: post[0] = ld[0]
            if q == 1: post[0], post[2] = ld[1], ld[2]
            if q == 2:
                post[0], post[1], post[2] = [ld[3]] + ld[4].split('\n')
                if t < 12: post[3] = f"s_waitcnt vmcnt({ {1: 10, 3: 9, 4: 9, 6: 9}.get(t, 8) })"
            if (t, q) == (12, 1): post[3] = "s_waitcnt vmcnt(7)"
        if (t, q) == (13, 1): post[3] = "s_waitcnt vmcnt(4)"
        if (t, q) == (13, 2): post[3] = "s_waitcnt vmcnt(0)"
        first = 1 <= n <= 4
        if t == 0:
            l2 = kv_loads(2)
            if q == 0:
                post = [l1[2], l1[3] + "\n" + l1[4], None, None]
                mid = ["s_waitcnt vmcnt(8)"] + qmask(2)
            if q == 1:
                post = [l2[0], l2[1], l2[2], l2[3] + "\n" + l2[4]]
                mid = ["s_waitcnt vmcnt(6)"] + qmask(3)
            if q == 2:
                post = [ld[0], ld[1], ld[2], ld[3] + "\n" + ld[4] + "\ns_waitcnt vmcnt(10)"]
            if q == 3:
                post[0], post[1] = [f"buffer_store_dwordx4 {vr(PK+4*h,4)}, v{6+h}, {sr(SRD_R,4)}, s95 offen {ST}" for h in range(2)]
                post[3] = "s_waitcnt vmcnt(10)"
        if t == int(E("TGO", "2")) and q == 3:
            post[0] = f"ds_write_b32 v{A_LC}, v239 offset:20"
        if (t, q) == (2, 3):
            post[1] = f"s_mov_b64 exec, s[48:49]\nglobal_atomic_add v238, v253, {sr(S_CNT,2)} sc1\ns_mov_b64 exec, -1"
        if (t, q) == (5, 3):
            post[0] = f"s_mov_b64 exec, 1\nglobal_atomic_add v14, v228, v15, {sr(S_CNT,2)} sc0 sc1\ns_mov_b64 exec, -1"
        if (t, q) == (6, 3):
            post[1] = f"s_waitcnt vmcnt(4)\nv_readfirstlane_b32 s{T1}, v14"
            post[2] = f"s_cmp_lg_u32 s{T1}, s9"
            post[3] = "s_cbranch_scc1 L_late\nL_late_ok:"
            st = Asm(); st("L_late:"); poll(st, "s", 228, "s9", 1); st("s_branch L_late_ok")
            STUBS.append(st.text())
        if (t, q) == (15, 1): post = [None] + red_writes(0)[:3]
        if (t, q) == (14, 2): post[0] = red_writes(0)[3]
        if (t, q) == (15, 2): post = [None] + red_writes(1)[:3]
        if (t, q) == (12, 3): post[0] = red_writes(1)[3]
        if (t, q) == (13, 3):
            r2 = red_writes(2)
            post = [None, r2[0] + "\n" + r2[1], r2[2], r2[3]]
        if (t, q) == (14, 3):
            post = ["s_waitcnt lgkmcnt(0)", "s_barrier", "\n".join(rd[0:3]), "\n".join(rd[3:6])]
        if (t, q) == (15, 3):
            post = ["\n".join(rd[6:9]), "\n".join(rd[9:12]), None, None]
        o = O + 48
        if E("ATS") and n == int(E("ATS")): stamp(a, 2)
        slot(a, n, qk, pv, post, first, mid, tight=t < int(E('TIGHT', '6')),
             tail=mfma(o, KV + 48 + 8, P + 8, o) if n == 63 else None)
    a("s_waitcnt lgkmcnt(0)")
    a(f"v_add_f32 v{O}, v{O}, v{O+16}")
    a(mfma(o, KV + 48 + 12, P + 12, o))
    for i in range(1, 16): a(f"v_add_f32 v{O+i}, v{O+i}, v{O+16+i}")
    if not E('PA'): stamp(a, 8)
    for i in (0, 12, 2, 14, 4, 6, 8, 10):
        a(f"v_pk_add_f32 {vr(O+i,2)}, {vr(O+i,2)}, {vr(O+32+i,2)}")
    for i in (0, 12):
        a(f"v_pk_add_f32 {vr(o+i,2)}, {vr(o+i,2)}, {vr(O+i,2)}")
    rest = [f"v_pk_add_f32 {vr(o+i,2)}, {vr(o+i,2)}, {vr(O+i,2)}" for i in (2, 14, 4, 6, 8, 10)]
    row_sum(a, rest)

def row_sum(a, fill):
    o = O + 48
    a(f"""
    v_cndmask_b32 v10, v{o+12}, v{o}, s[18:19]
    v_cndmask_b32 v13, v{o+12}, v{o}, s[18:19]
    {fill[0]}
    {fill[1]}
    v_permlane32_swap_b32 v10, v13
    {fill[2]}
    v_cndmask_b32 v13, v13, v10, s[18:19]
    {fill[3]}
    v_rcp_f32 v10, v13
    {fill[4]}
    {fill[5]}
    """)

def store_o(a):
    o = O + 48
    w = sr(SRD_WS, 4)
    for h in range(2):
        for i in range(4*h, 4*h + 4):
            a(f"v_pk_mul_f32 {vr(o+2*i,2)}, {vr(o+2*i,2)}, v[10:11] op_sel_hi:[1,0]")
        for i in range(4*h, 4*h + 4):
            a(f"v_cvt_pk_bf16_f32 v{16+i}, v{o+2*i}, v{o+2*i+1}")
        a(f"buffer_store_dwordx4 {vr(16+4*h,4)}, v{A_L16}, {w}, s3 offen offset:{1024*h} {ST}")
    if not E('PA'): stamp(a, 9)
    a(f"v_pk_mul_f32 v[8:9], {vr(o,2)}, 0 op_sel_hi:[1,0]")
    for i in range(2, 16, 2):
        a(f"v_pk_fma_f32 v[8:9], {vr(o+i,2)}, 0, v[8:9] op_sel_hi:[1,0,1]")
    a(f"""
    v_cmp_le_f32 vcc, s14, v13
    v_cmp_ge_f32 s[16:17], s15, v13
    s_and_b64 s[16:17], s[16:17], vcc
    v_cmp_o_f32 vcc, v8, v9
    s_and_b64 s[16:17], s[16:17], vcc
    s_or_b64 s[16:17], s[16:17], s[100:101]
    s_cmp_lg_u64 s[16:17], -1
    s_cbranch_scc1 L_slow
    """)
    a("s_mov_b64 exec, 1")
    a(f"""
    s_waitcnt vmcnt(0)
    global_atomic_add v{A_OC}, v239, {sr(S_CNT,2)} sc1
    """)

def fallback(a):
    M, q, o = 208, Q + 24, O + 48
    l0 = kv_loads(0)
    a(f"""
L_slow:
    s_mov_b64 s[100:101], -1
    s_waitcnt vmcnt(0)
    v_mov_b32 v{M}, 0xff800000
    s_mov_b64 {sr(S_KB,2)}, {sr(S_WS,2)}
    s_mov_b32 s16, 0
L_s1:
    """)
    for x in (l0[0], l0[1], l0[4]): a(x)
    a("s_waitcnt vmcnt(0)")
    a(mfma(S, KV, q, None))
    a(mfma(S, KV + 4, q + 4, S))
    a("s_nop 15")
    for i in range(8):
        a(f"v_max3_f32 v{M}, v{M}, v{S+2*i}, v{S+2*i+1}")
    a(f"""
    s_add_u32 s16, s16, 1
    s_cmp_lt_u32 s16, 64
    s_cbranch_scc1 L_s1
    v_mov_b32 v{M+1}, v{M}
    s_nop 1
    v_permlane32_swap_b32 v{M}, v{M+1}
    s_nop 1
    v_max_f32 v{M}, v{M}, v{M+1}
    """)
    for i in range(16):
        a(f"v_mov_b32 v{o+i}, 0")
    a(f"""
    s_mov_b64 {sr(S_KB,2)}, {sr(S_WS,2)}
    s_mov_b32 s16, 0
L_s2:
    """)
    for x in l0: a(x)
    a("s_waitcnt vmcnt(0)")
    a(mfma(S, KV, q, None))
    a(mfma(S, KV + 4, q + 4, S))
    a("s_nop 15")
    for i in range(16):
        a(f"v_sub_f32 v{S+i}, v{S+i}, v{M}")
    for i in range(16):
        a(f"v_exp_f32 v{S+i}, v{S+i}")
    a("s_nop 0")
    for i in range(8):
        a(f"v_cvt_pk_bf16_f32 v{P+i}, v{S+2*i}, v{S+2*i+1}")
    a("s_nop 1")
    a(mfma(o, KV + 8, P, o))
    a(mfma(o, KV + 12, P + 4, o))
    a(f"""
    s_add_u32 s16, s16, 1
    s_cmp_lt_u32 s16, 64
    s_cbranch_scc1 L_s2
    s_nop 15
    """)
    row_sum(a, ["s_nop 0"] * 6)
    a("s_branch L_fin")

CA, ZR = 192, 28
H_T, H_UB, H_US, H_UTV, H_UTC, H_PL, H_BPC, H_CNT, H_K4, H_K2 = 16, 17, 18, 19, 20, 21, 22, 23, 18, 254

def chunk_of(it):
    if it == 0: return [f"s_mov_b32 s59, s{S_CH}"]
    return [f"s_add_u32 s59, s{S_CH}, {it}", "s_sub_u32 s58, s59, 7", "s_min_u32 s59, s59, s58"]

def dma_chunk(it, vx=2, vw=3):
    slot = SLOT_AT[it]
    g = []
    for j in range(4):
        x = chunk_of(it) + [f"s_mul_i32 s58, s59, {64*2688}", "s_lshl_b32 s59, s59, 7"] if j == 0 else []
        g.append(x + [f"s_add_u32 m0, s{S_LW1K}, {slot + j*4096}",
                      f"s_add_u32 s{T0}, s58, {16*j*2688}",
                      f"buffer_load_dwordx4 v{vw}, {sr(SRD_W,4)}, s{T0} offen lds"])
        if j < (3 if it == 0 else 1):
            g.append([f"s_add_u32 m0, s{S_LW1K}, {slot + 16384 + j*4096}",
                      f"s_add_u32 s{T1}, s59, {j*32*896}",
                      f"buffer_load_dwordx4 v{vx}, {sr(SRD_X,4)}, s{T1} offen lds"])
    return g

def dma_x(i, vx=2):
    g = []
    for it in range(1, 7):
        g.append(chunk_of(it) + ["s_lshl_b32 s59, s59, 7",
                                 f"s_add_u32 m0, s{S_LW1K}, {L_X1 + (i-1)*24576 + (it-1)*4096}",
                                 f"s_add_u32 s{T1}, s59, {i*32*896}",
                                 f"buffer_load_dwordx4 v{vx}, {sr(SRD_X,4)}, s{T1} offen lds"])
    return g

PLAN_G = E("PG", "12,34,56a,").split(",")
PLAN_H = E("PH", ",,,b").split(",")
def items(st, vx, vw):
    g = []
    for c in st:
        g += dma_x(1 + "ab".index(c), vx) if c in "ab" else dma_chunk(int(c), vx, vw)
    return g
def nld(st): return sum(6 if c in "ab" else 5 for c in st)
def wait_for(plan, upto, need, extra=None):
    seq = "".join(plan[:upto + 1])
    pos = max([seq.index(c) for c in need if c in seq], default=-1)
    return None if pos < 0 else nld(seq[pos + 1:])

def helper_setup():
    t = f"""
    s_mov_b32 s{SRD_WS}, s{S_WS}
    s_mov_b32 s{SRD_WS+1}, s{S_WS+1}
    s_mov_b32 s{SRD_WS+2}, {WS_SIZE}
    s_mov_b32 s{SRD_WS+3}, 0x20000
    s_mul_i32 s18, s{S_LW}, {TAB_B}
    v_and_b32 v4, 31, v0
    v_lshrrev_b32 v5, 5, v0
    v_mul_u32_u24 v24, 272, v4
    v_lshl_add_u32 v24, v5, 4, v24
    v_add_u32 v24, s18, v24
    s_lshr_b32 s47, s{S_LW}, 1
    s_mul_i32 s{T0}, s{S_LW}, 3072
    s_add_u32 s{T0}, s{T0}, {L_XCH}
    v_lshl_add_u32 v25, v0, 4, s{T0}
    s_lshl_b32 s{T0}, s{S_LW}, 2
    s_add_u32 s{T0}, s{T0}, {L_CNT + 48}
    v_mov_b32 v255, s{T0}
    v_mov_b32 v{H_CNT}, {L_CNT}
    v_and_b32 v14, 15, v0
    v_lshrrev_b32 v15, 5, v0
    s_lshl_b32 s{T0}, s{S_LW}, 1
    v_add_u32 v15, s{T0}, v15
    v_lshrrev_b32 v78, 1, v14
    v_xor_b32 v15, v15, v78
    v_lshlrev_b32 v78, 7, v14
    v_lshl_add_u32 v78, v15, 4, v78
    v_bfe_u32 v15, v0, 4, 1
    v_lshl_add_u32 v78, v15, 3, v78
    v_add_u32 v78, {SLOT_AT[0] + 16384}, v78
    s_mul_i32 s{T0}, s{S_RB}, {3*TILE_B}
    s_lshl_b32 s{T1}, s{S_C0}, 12
    s_add_u32 s{T1}, s{T1}, s{S_LW1K}
    s_add_u32 s{T1}, s{T1}, s{T0}
    v_lshl_add_u32 v79, v0, 4, s{T1}
    s_add_u32 s92, s{S_WS}, {WS_UT}
    s_addc_u32 s93, s{S_WS+1}, 0
    s_sub_u32 s{T0}, s{S_CB}, {E('UCB', '2')}
    s_cmp_lt_u32 s{T0}, 7
    s_cselect_b32 s94, {64*TILE_B}, 0
    s_mov_b32 s95, 0x20000
    s_cselect_b32 s48, 1, 0
    s_cmp_ge_u32 s{S_RB}, 22
    s_cselect_b32 s48, 0, s48
    s_mov_b32 s54, {TILE_B}
    s_mov_b32 s55, {2*TILE_B}
    s_lshl_b32 s{T0}, s{S_C0}, 2
    s_add_u32 s{T0}, s{T0}, s{S_LW}
    s_lshl_b32 s{T0}, s{T0}, {CS}
    s_add_u32 s{T0}, s{T0}, {B_U}
    v_mov_b32 v92, s{T0}
    v_mov_b32 v93, s48
    s_lshr_b32 s{T0}, s{S_P}, 3
    s_lshl_b32 s{T0}, s{T0}, {CS}
    s_add_u32 s{T0}, s{T0}, {B_U}
    v_mov_b32 v{H_UTC}, s{T0}
    v_lshrrev_b32 v14, 2, v0
    v_mul_u32_u24 v14, {TILE_B}, v14
    v_and_b32 v15, 3, v0
    v_lshl_add_u32 v{H_UTV}, v15, 6, v14
    s_lshr_b32 s14, s{S_P}, 1
    s_lshl_b32 s14, s14, 8
    s_and_b32 s15, s{S_P}, 1
    s_lshl_b32 s15, s15, 1
    s_add_u32 s15, s15, s47
    s_lshl_b32 s15, s15, 4
    s_add_u32 s14, s14, s15
    s_and_b32 s16, s{S_LW}, 1
    s_mul_i32 s15, s16, {32*TILE_B}
    s_add_u32 s14, s14, s15
    s_add_u32 s14, s14, {WS_UT}
    s_add_u32 s15, s14, {16*TILE_B}
    s_mul_i32 s17, s47, {U_B}
    s_add_u32 s13, s17, {L_U}
    s_lshl_b32 s16, s16, 11
    s_add_u32 s17, s17, s16
    s_mul_i32 s19, s47, {KC_B}
    s_add_u32 s19, s19, {L_KC}
    s_add_u32 s{T0}, s19, 64
    v_lshl_add_u32 v{H_K4}, v0, 4, s{T0}
    v_lshl_add_u32 v{H_K2}, v4, 4, s{T0}
    v_lshl_add_u32 v{H_K2}, v5, 3, v{H_K2}
    v_bfe_u32 v14, v0, 4, 2
    v_lshlrev_b32 v{H_T}, 5, v14
    v_lshl_add_u32 v{H_T}, v15, 3, v{H_T}
    v_bfe_u32 v14, v0, 2, 2
    v_lshlrev_b32 v14, 3, v14
    v_sub_u32 v{H_T}, v{H_T}, v14
    s_add_u32 s{T0}, s19, {64 - 32}
    v_add_u32 v{H_T}, s{T0}, v{H_T}
    ; U address: L_U + 512 + 16*(l&31) - 64 hi + 128*beta
    v_lshlrev_b32 v14, 4, v4
    v_lshlrev_b32 v15, 6, v5
    v_sub_u32 v14, v14, v15
    s_add_u32 s{T0}, s13, {512 - 384}
    v_add_u32 v{H_UB}, s{T0}, v14
    s_lshl_b32 s{T0}, s{S_LW}, 11
    v_lshl_add_u32 v{H_PL}, v0, 4, s{T0}
    s_lshl_b32 s12, s{S_P}, 13
    s_add_u32 s12, s12, {WS_BP}
    s_lshr_b32 s{T1}, s{S_P}, 4
    s_mul_i32 s{T0}, s{S_LW}, 14
    s_add_u32 s{T0}, s{T0}, s{T1}
    s_lshl_b32 s{T0}, s{T0}, {CS}
    s_add_u32 s{T0}, s{T0}, {B_BP}
    v_mov_b32 v{H_BPC}, s{T0}
    """
    return [l.strip() for l in t.split("\n") if l.strip() and not l.strip().startswith(";")]

def conv(a):
    w = sr(SRD_WS, 4)
    stamp(a, 5)
    UFR, TR, NT = 64, 32, 8
    def variant(tiles, tag):
        top = min(4 * max(tiles) + 3, int(E('X_TOP', '99')))
        def rd_t(ph):
            t = TR + 4 * (ph % NT)
            return [f"ds_read_b64_tr_b16 {vr(t,2)}, v{H_T} offset:{128*ph + 32}",
                    f"ds_read_b64_tr_b16 {vr(t+2,2)}, v{H_T} offset:{128*ph}"]
        have = set()
        need = []
        for ph in range(top + 1):
            r = rd_t(ph)
            for tau in tiles:
                b = 4 * tau - ph
                if b >= -3 and b not in have:
                    have.add(b)
                    r.append(f"ds_read_b128 {vr(UFR + 4*(b+3), 4)}, v{H_UB} offset:{128*(b+3)}")
            need.append(r)
        queue = [(ph, x) for ph in range(top + 1) for x in need[ph]]
        issued = 0
        def issue(k, maxph):
            nonlocal issued
            while k > 0 and issued < len(queue) and queue[issued][0] <= maxph:
                a(queue[issued][1]); issued += 1; k -= 1
        issue(12, 1)
        a(f"s_setprio {E('PRC', '0')}")
        done = 0
        for ph in range(top + 1):
            done += len(need[ph])
            issue(max(0, done - issued), ph)
            a(f"s_waitcnt lgkmcnt({min(15, issued - done)})")
            act = [k for k, tau in enumerate(tiles) if 4 * tau - ph >= -3]
            for k in act:
                b = 4 * tiles[k] - ph
                a(mfma(CA + 16*k, UFR + 4*(b+3), TR + 4*(ph % NT), None if ph == 0 else CA + 16*k))
                issue(min(2, 12 - (issued - done)), ph + NT - 1)
        assert issued == len(queue)
        a(f"s_setprio {E('PRE_', '1')}")
        stamp(a, 6)
        a(f"""
L_tab_{tag}:
        ds_read_b32 v15, v{H_CNT} offset:4
        s_waitcnt lgkmcnt(0)
        v_readfirstlane_b32 s{T0}, v15
        s_cmp_lt_u32 s{T0}, 4
        s_cbranch_scc1 L_tab_{tag}
        """)
        if 0 in tiles:
            a(f"""
            v_and_b32 v14, 3, v0
            v_mul_u32_u24 v14, {2*PL_B}, v14
            v_add_u32 v14, m0, v14
            ds_write_b128 v14, {vr(ZR,4)}
            """)
        order = sorted(range(4), key=lambda k: tiles[k])
        for k in ([] if E("X_NOPL") else order):
            for r in range(16):
                a(f"ds_write_addtid_b32 v{CA+16*k+r} offset:{(r&3)*2*PL_B + 1024*tiles[k] + 256*(r>>2) + 4*(r&3)}")
    a(f"""
    s_mul_i32 m0, s47, {PL_B}
    s_bitcmp1_b32 s{S_LW}, 0
    s_cbranch_scc1 L_cB
    """)
    variant([7, 4, 3, 0], "A")
    a("s_branch L_cC\nL_cB:")
    variant([6, 5, 2, 1], "B")
    a("L_cC:")
    lds_sync(a, 2, "c", vm=False)
    for hf in range(2):
        for pl in range(8):
            a(f"ds_read_b128 {vr(CA+32*hf+4*pl,4)}, v{H_PL} offset:{pl*PL_B + 1024*hf}")
    for hf in range(2):
        b = CA + 32*hf
        a(f"s_waitcnt lgkmcnt({8 - 8*hf})")
        for i in range(0 if E("X_NOADD") else 8):
            a(f"v_add_f32 v{b+i}, v{b+i}, v{b+8+i}")
            a(f"v_add_f32 v{b+16+i}, v{b+16+i}, v{b+24+i}")
        for i in range(0 if E("X_NOADD") else 8):
            a(f"v_add_f32 v{b+i}, v{b+i}, v{b+16+i}")
        for i in range(4):
            a(f"v_cvt_pk_bf16_f32 v{b+i}, v{b+i}, v{b+4+i}")
        if E("NOBGATE"):
            a(f"buffer_store_dwordx4 {vr(b,4)}, v{H_PL}, {w}, s12 offen offset:{1024*hf} {ST}")
    if not E("NOBGATE"):
        a(f"""
L_wait_b:
        ds_read_b32 v15, v{H_CNT} offset:20
        s_waitcnt lgkmcnt(0)
        v_readfirstlane_b32 s{T0}, v15
        s_cmp_lg_u32 s{T0}, 0
        s_cbranch_scc1 L_go_b
        s_sleep 4
        s_branch L_wait_b
L_go_b:
        """)
        for hf in range(2):
            a(f"buffer_store_dwordx4 {vr(CA+32*hf,4)}, v{H_PL}, {w}, s12 offen offset:{1024*hf} {ST}")
    if E("WARM"):
        a(f"""
        s_lshr_b32 s{T0}, s2, 3
        s_lshl_b32 s{T0}, s{T0}, 2
        s_add_u32 s{T0}, s{T0}, s{S_LW}
        s_mul_i32 s{T0}, s{T0}, {28*128}
        v_min_u32 v14, 27, v0
        v_lshl_add_u32 v14, v14, 7, s{T0}
        global_load_dword v26, v14, {sr(S_WO,2)}
        """)
    lds_sync(a, 3, "d", vm=False)

def outproj(a):
    WOF, ACC3, BR, OF, BB = 32, 224, 208, 160, 192
    KS = []
    for pp in range(0, 8, 2):
        for p_ in (pp, pp + 1):
            KS += [(p_, 4096*p_, 56*p_, 0), (p_, 4096*p_ + 1024, 56*p_ + 16, 1), (p_, 4096*p_ + 3072, 56*p_ + 40, 0)]
        KS.append((pp + 1, 4096*pp, 56*pp + 24, 2))
    w = sr(SRD_WS, 4)
    a(f"""
    s_and_b32 s8, s2, 7
    s_lshl_b32 s8, s8, 3
    s_lshr_b32 s{T0}, s2, 5
    s_add_u32 s8, s8, s{T0}
    s_bfe_u32 s9, s2, 0x20003
    s_lshl_b32 s10, s9, 2
    s_add_u32 s10, s10, s{S_LW}
    v_lshrrev_b32 v6, 4, v0
    v_lshlrev_b32 v7, 2, v6
    v_xor_b32 v7, v7, v0
    v_and_b32 v7, 15, v7
    s_lshl_b32 s{T0}, s{S_LW}, 2
    v_add_u32 v6, s{T0}, v6
    v_mul_u32_u24 v3, 896, v6
    v_lshl_add_u32 v3, v7, 4, v3
    s_cmp_eq_u32 s9, 3
    s_cselect_b32 s{T0}, 8, 16
    v_cmp_le_u32 vcc, s{T0}, v7
    s_lshl_b32 s{T0}, s9, 8
    s_add_u32 s{SRD_X}, s{S_WO}, s{T0}
    s_addc_u32 s{SRD_X+1}, s{S_WO+1}, 0
    s_sub_u32 s{SRD_X+2}, {WO_BYTES}, s{T0}
    v_mov_b32 v7, 0x1000000
    v_cndmask_b32 v3, v3, v7, vcc
    v_bfe_u32 v7, v0, 2, 2
    v_lshl_add_u32 v6, v5, 3, v7
    v_lshlrev_b32 v6, 8, v6
    v_xor_b32 v7, s{S_LW}, v7
    v_lshl_add_u32 v6, v7, 6, v6
    v_bfe_u32 v7, v0, 4, 1
    v_lshl_add_u32 v6, v7, 5, v6
    v_and_b32 v7, 1, v0
    v_lshl_add_u32 v6, v7, 4, v6
    v_bfe_u32 v7, v0, 1, 1
    v_lshl_add_u32 v6, v7, 3, v6
    v_lshl_add_u32 v24, v5, 11, v6
    v_mul_u32_u24 v7, {48*256}, v5
    v_add_u32 v25, v7, v6
    s_mov_b32 s12, 0
    s_cmp_lt_u32 s2, 224
    s_cselect_b32 s{T0}, 1, 0
    v_mov_b32 v27, s{T0}
L_wait_at:
    ds_read_b32 v15, v{H_CNT} offset:20
    s_waitcnt lgkmcnt(0)
    v_readfirstlane_b32 s{T0}, v15
    s_cmp_lg_u32 s{T0}, 0
    s_cbranch_scc1 L_go_at
    s_sleep 8
    s_branch L_wait_at
L_go_at:
    """)
    for rnd in range(0 if E("X_NOWO") else 2):
        a(f"s_mov_b32 m0, s{S_LW1K}\ns_nop 0")
        for i in range(14):
            a(f"buffer_load_dwordx4 v3, {sr(SRD_X,4)}, s12 offen lds")
            a(f"s_add_u32 s12, s12, {16*896}")
            if i < 13:
                a(f"s_add_u32 m0, m0, 4096\ns_waitcnt vmcnt({E('PACE', '2')})")
            if rnd == 0 and i == int(E('PACE', '2')):
                a(f"""
                s_mov_b64 exec, 1
                global_atomic_add v{H_BPC}, v27, {sr(S_CNT,2)} sc1
                s_mov_b64 exec, -1
                """)
        lds_sync(a, 8 + 2*rnd, f"w{rnd}")
        for k in range(14):
            _, _, row, kind = KS[k]
            va = (6, 24, 25)[kind]
            a(f"ds_read_b64_tr_b16 {vr(WOF+56*rnd+4*k,2)}, v{va} offset:{256*row}")
            a(f"ds_read_b64_tr_b16 {vr(WOF+56*rnd+4*k+2,2)}, v{va} offset:{256*row+1024}")
        if rnd == 0: lds_sync(a, 9, "wx", vm=False)
    a(f"""
    s_cmp_ge_u32 s10, 14
    s_cbranch_scc1 L_nowo
    s_lshr_b32 s{T0}, s8, 4                ; quarter
    s_mul_i32 s{T1}, s{T0}, 14
    s_add_u32 s{T1}, s{T1}, s10
    s_lshl_b32 s{T1}, s{T1}, {CS}
    s_add_u32 s{T1}, s{T1}, {B_BP}
    v_mov_b32 v8, s{T1}
    """)
    if not E('PSTART'): stamp(a, 8)
    poll(a, "b", 8, "22", 1, sleep=16, limit=2 if E("X_NOCONV") else SPIN_MAX)
    a(f"""
    v_lshlrev_b32 v6, 2, v4
    v_lshl_add_u32 v7, v5, 15, v6
    s_lshl_b32 s{T0}, s10, 17
    s_lshl_b32 s{T1}, s8, 7
    s_add_u32 s{T0}, s{T0}, s{T1}
    s_add_u32 s{T0}, s{T0}, {WS_BP}
    s_add_u32 s{T1}, s{T1}, {WS_GT}
    buffer_load_dword v{BR+8}, v6, {w}, s{T1} offen {LD}
    """)
    for i in range(8):
        off = (8 * (i >> 2) + (i & 3)) * 8192
        a(f"s_add_u32 s{T2}, s{T0}, {off}")
        a(f"buffer_load_dword v{BR+i}, v7, {w}, s{T2} offen {LD}")
    a(f"""
    """)
    if (not E("NOHALF")):
        a(f"""
        s_lshl_b32 s{T3}, s{S_LW}, 11
        s_add_u32 s{T3}, s{T3}, 32768
        v_bfe_u32 v10, v0, 1, 2
        v_xor_b32 v9, v5, v10
        v_lshl_add_u32 v13, v4, 6, s{T3}
        v_lshl_add_u32 v9, v9, 4, v13
        v_xor_b32 v3, 32, v9
        v_lshrrev_b32 v13, 2, v0               ; row
        v_and_b32 v10, 3, v0
        v_mul_u32_u24 v12, 896, v13
        v_lshl_add_u32 v12, v10, 4, v12
        v_bfe_u32 v11, v0, 3, 2
        v_xor_b32 v10, v10, v11
        v_lshl_add_u32 v13, v13, 6, s{T3}
        v_lshl_add_u32 v10, v10, 4, v13
        v_add_u32 v13, {16*896}, v12
        s_mul_i32 s{T0}, s8, {32*896}
        s_lshl_b32 s{T1}, s10, 6
        """)
    elif not E("NOFULL"):
        a(f"""
        ; the two waves of a pair exchange through LDS so that every store covers whole 128-B lines
        s_and_b32 s{T2}, s{S_LW}, 1
        s_lshr_b32 s{T3}, s{S_LW}, 1
        s_lshl_b32 s{T3}, s{T3}, 12
        s_add_u32 s{T3}, s{T3}, 32768
        s_lshl_b32 s{T0}, s{T2}, 2
        v_add_u32 v9, s{T0}, v5
        v_and_b32 v10, 7, v0
        v_xor_b32 v9, v9, v10
        v_lshl_add_u32 v13, v4, 7, s{T3}
        v_lshl_add_u32 v9, v9, 4, v13
        v_xor_b32 v3, 32, v9
        v_lshrrev_b32 v13, 3, v0
        v_mul_u32_u24 v12, 896, v13
        v_lshl_add_u32 v12, v10, 4, v12
        v_xor_b32 v10, v10, v13
        v_lshlrev_b32 v13, 7, v13
        v_lshl_add_u32 v10, v10, 4, v13
        s_lshl_b32 s{T0}, s{T2}, 11
        s_add_u32 s{T3}, s{T3}, s{T0}
        v_add_u32 v10, s{T3}, v10
        v_add_u32 v13, {8*896}, v12
        s_mul_i32 s{T0}, s8, {32*896}
        s_lshr_b32 s{T1}, s10, 1
        s_lshl_b32 s{T1}, s{T1}, 7
        s_add_u32 s{T0}, s{T0}, s{T1}
        s_mul_i32 s{T1}, s{T2}, {16*896}
        """)
    else:
        a(f"""
        v_mul_u32_u24 v12, 896, v4
        v_lshl_add_u32 v12, v5, 4, v12
        s_mul_i32 s{T0}, s8, {32*896}
        s_lshl_b32 s{T1}, s10, 6
        """)
    a(f"""
    s_add_u32 s{T0}, s{T0}, s{T1}
    s_add_u32 s{S_OUT}, s{S_OUT}, s{T0}
    s_addc_u32 s{S_OUT+1}, s{S_OUT+1}, 0
L_nowo:
    v_lshlrev_b32 v2, 4, v0
    v_lshl_add_u32 v16, v5, 10, v2
    v_mul_u32_u24 v17, 3584, v5
    v_add_u32 v17, v17, v2
    s_lshl_b32 s{T0}, s8, {CS}
    s_add_u32 s{T0}, s{T0}, {B_O}
    v_mov_b32 v8, s{T0}
    s_lshl_b32 s12, s8, 15
    s_add_u32 s12, s12, {WS_O}
    s_add_u32 s12, s12, s{S_LW1K}
    s_mov_b32 m0, s{S_LW1K}
    s_waitcnt vmcnt(0) lgkmcnt(0)
    """)
    if not E('PSTART'): stamp(a, 9)
    a(f"""
    s_barrier
    s_setprio 0
    v_sub_f32 v{BR+9}, 1.0, v{BR+8}
    v_cvt_pk_bf16_f32 v{BR+9}, v{BR+9}, v{BR+9}
    v_and_b32 v{BR+9}, 0xffff0000, v{BR+9}
    """)
    for i in range(8):
        a(f"v_lshlrev_b32 v{BB+2*i}, 16, v{BR+i}")
        a(f"v_and_b32 v{BB+2*i+1}, 0xffff0000, v{BR+i}")
    for i in range(16):
        a(f"v_mul_f32 v{BB+i}, v{BB+i}, v{BR+9}")
    a(f"""
    {"s_barrier" if E("WAITB") else ""}
    """)
    if not E("OP4"):
        a(f"s_cmp_lg_u32 s{S_LW}, 0\ns_cbranch_scc1 L_ok_o")
        if E("GAPO"): poll2(a, "o", 8, "16", 1, int(E("GAPO")))
        else: poll(a, "o", 8, "16", 1)
        a("s_barrier")
    else: poll(a, "o", 8, "16", 1)
    stamp(a, 10)
    for i in range(8):
        a(f"buffer_load_dwordx4 v2, {w}, s12 offen {LD} lds")
        if i < 7: a("s_add_u32 m0, m0, 4096\ns_add_u32 s12, s12, 4096")
    bars = {0: 6, 7: 4, 14: 0}
    cnt = [2 if x[3] == 2 else 1 for x in KS]
    def rd(k):
        if k in bars:
            a(f"s_waitcnt vmcnt({bars[k]})\ns_barrier")
            if k == 0: a("s_cmp_ge_u32 s10, 14\ns_cbranch_scc1 L_idle3")
        _, off, _, kind = KS[k]
        r = OF + 4*(k % 8)
        if kind == 2:
            a(f"ds_read_b64 {vr(r,2)}, v17 offset:{off + 1536}")
            a(f"ds_read_b64 {vr(r+2,2)}, v17 offset:{off + 2048 + 8}")
        else:
            a(f"ds_read_b128 {vr(r,4)}, v{(2, 16)[kind]} offset:{off}")
    issued = 0
    for k in range(28):
        want = min(28, k + 6)
        if k < 2: want = 5 + k
        while issued < want:
            rd(issued); issued += 1
        a(f"s_waitcnt lgkmcnt({sum(cnt[k+1:issued])})")
        a(mfma(ACC3, WOF + 4*k, OF + 4*(k%8), None if k == 0 else ACC3))
    a("s_nop 11")
    for h in range(2):
        for i in range(8*h, 8*h + 8, 2):
            a(f"v_pk_fma_f32 {vr(BB+i,2)}, {vr(ACC3+i,2)}, {vr(BR+8,2)}, {vr(BB+i,2)} op_sel_hi:[1,0,1]")
        for i in range(4*h, 4*h + 4):
            a(f"v_cvt_pk_bf16_f32 v{OF+i}, v{BB+2*i}, v{BB+2*i+1}")
        if not E("NOFULL"):
            a(f"ds_write_b128 v{(9, 3)[h]}, {vr(OF+4*h,4)}")
        else:
            a(f"global_store_dwordx4 v12, {vr(OF+4*h,4)}, {sr(S_OUT,2)} offset:{32*h} {E('STO', 'sc1')}")
    if not E("NOFULL"):
        a(f"""
        {"" if (not E("NOHALF")) else "s_waitcnt lgkmcnt(0)"}
        {"" if (not E("NOHALF")) else "s_barrier"}
        ds_read_b128 {vr(OF+8,4)}, v10
        ds_read_b128 {vr(OF+12,4)}, v10 offset:1024
        s_waitcnt lgkmcnt(1)
        global_store_dwordx4 v12, {vr(OF+8,4)}, {sr(S_OUT,2)} {E('STO', 'sc1')}
        s_waitcnt lgkmcnt(0)
        global_store_dwordx4 v13, {vr(OF+12,4)}, {sr(S_OUT,2)} {E('STO', 'sc1')}
        """)
    if PROF and E("PEND"): stamp(a, 9); a("s_waitcnt vmcnt(0)")
    a(endp("L_end"))
    a("L_idle3:\ns_waitcnt vmcnt(0)")
    a(endp("L_end"))


def expand2(a, store, A):
    a(f"""
    v_add_f32 v{A}, v{A}, v36
    v_cvt_pk_bf16_f32 v45, v{A+2}, v{A+3}
    v_cvt_pk_bf16_f32 v44, v{A}, v{A+1}
    v_mov_b32_dpp v40, v{A+8} wave_rol:1 row_mask:0xf bank_mask:0xf
    """)
    store(2, 44, 0)
    a(f"""
    v_mov_b32_dpp v41, v{A+10} wave_rol:1 row_mask:0xf bank_mask:0xf
    v_mov_b32_dpp v40, v{A+6} wave_shl:1 row_mask:0xc bank_mask:0xf
    v_cvt_pk_bf16_f32 v46, v{A+4}, v{A+4}
    v_mov_b32_dpp v41, v{A+8} wave_shl:1 row_mask:0xf bank_mask:0xf
    v_mov_b32_dpp v40, v{A+6} quad_perm:[0,1,2,3] row_mask:0x3 bank_mask:0xf
    v_cvt_pk_bf16_f32 v48, v{A+8}, v{A+8}
    v_cvt_pk_bf16_f32 v47, v{A+5}, v40
    v_cvt_pk_bf16_f32 v49, v{A+8}, v{A+9}
    """)
    store(2, 46, 512)
    a(f"""
    v_cvt_pk_bf16_f32 v50, v{A+9}, v{A+9}
    v_cvt_pk_bf16_f32 v51, v41, v41
    v_mov_b32_dpp v42, v{A+11} wave_rol:1 row_mask:0xf bank_mask:0xf
    """)
    store(4, 48, 1024)
    a(f"""
    v_mov_b32_dpp v43, v{A+7} wave_rol:1 row_mask:0xf bank_mask:0xf
    v_mov_b32_dpp v42, v{A+10} wave_shl:1 row_mask:0xf bank_mask:0xf
    v_cvt_pk_bf16_f32 v52, v{A+10}, v{A+10}
    v_mov_b32_dpp v43, v{A+11} wave_shl:1 row_mask:0xf bank_mask:0xf
    v_cndmask_b32 v38, v{A+10}, v42, vcc
    v_cvt_pk_bf16_f32 v55, v42, v42
    v_mov_b32 v53, v52
    v_cvt_pk_bf16_f32 v54, v38, v42
    v_cndmask_b32 v39, v{A+11}, v43, vcc
    """)
    store(4, 52, 2048)
    a(f"""
    v_cvt_pk_bf16_f32 v56, v{A+11}, v{A+11}
    v_cvt_pk_bf16_f32 v59, v43, v43
    v_cvt_pk_bf16_f32 v58, v39, v43
    v_mov_b32 v57, v56
    """)
    store(4, 56, 3072)

def helper_waves(a):
    w = sr(SRD_WS, 4)
    def emit(groups, fill=None, n=0, head=50):
        if fill is not None:
            h = n * head // 100
            for x in fill[:h]: a(x)
            del fill[:h]
            n -= h
        for k, g in enumerate(groups):
            for x in g: a(x)
            if fill is not None:
                m = n * (k + 1) // len(groups) - n * k // len(groups)
                for x in fill[:m]: a(x)
                del fill[:m]
    O0, O1, FV0, FU0, FV1, FU1, KA = 148, 201, 80, 112, 148, 36, 180
    k0, k1 = kgen_split(0, O0, bool(E("PL0"))), kgen_split(1, O1, not E("PK1"))
    if E("PB"): stamp(a, 8)
    if E("XT"):
        a(f"""
        s_cmp_lg_u32 s{S_LW}, 0
        s_cbranch_scc1 L_noxt
        s_add_u32 s{T0}, s{S_C0}, 2
        s_sub_u32 s{T1}, s{T0}, 7
        s_cmp_ge_u32 s{T0}, 7
        s_cselect_b32 s{T0}, s{T1}, s{T0}
        s_lshl_b32 s{T0}, s{T0}, 7
        s_add_u32 s{T0}, s{T0}, {32*896}
        v_mul_u32_u24 v14, 896, v0
        buffer_load_dword v6, v14, {sr(SRD_X,4)}, s{T0} offen
L_noxt:
        """)
    hs_all = helper_setup()
    cut = [i for i, x in enumerate(hs_all) if x.startswith("v_mov_b32 v93")][0] + 1
    LATE = hs_all[cut:] if E("HSL") else []
    for ins in (hs_all[:cut] if E("HSL") else hs_all): a(ins)
    a(f"""
    s_waitcnt lgkmcnt(0)
    s_lshl_b32 s{T1}, s51, 16
    s_and_b32 s51, s51, 0xffff0000
    s_lshl_b32 s{T2}, s52, 16
    s_and_b32 s52, s52, 0xffff0000
    s_cmp_ge_u32 s{S_LW}, 2
    s_cselect_b32 s51, s51, s{T1}
    s_cselect_b32 s{S_DSK}, s52, s{T2}
    v_mov_b32 v12, s51
    v_mul_f32 v12, {f32(LOG2E)}, v12
    v_exp_f32 v12, v12
    s_nop 0
    v_cvt_pk_bf16_f32 v12, v12, v12
    v_and_b32 v12, 0xffff0000, v12         ; dt
    v_add_f32 v13, v12, v12                ; 2 dt
    """)
    if E("PB"): stamp(a, 9)
    a("""
    """)
    fill = k0[0] + k1[0]
    if E("X_NOFILL"): fill = []
    a("s_waitcnt vmcnt(0)")
    if E("PB"): stamp(a, 8)
    emit([[]], fill, int(E("SLP", "231")))
    if E("X_BURN"):
        for i in range(8):
            a(f"v_mul_u32_u24 v{100+i}, {0x9e37 + 778*i}, v79\nv_and_b32 v{100+i}, 0x3fffbfff, v{100+i}\nv_or_b32 v{100+i}, 0x3c000000, v{100+i}")
        a("s_nop 1")
        for i in range(int(E("X_BURN"))):
            a(mfma(112, 100 + 4*(i & 1), 104 - 4*((i >> 1) & 1), None if i == 0 else 112))
    a("""
    s_setprio 3
    s_barrier                              ; B0
    """)
    for i in range(3):
        a(f"ds_read_b64_tr_b16 {vr(80+4*i,2)}, v78 offset:{i*4096}")
        a(f"ds_read_b64_tr_b16 {vr(82+4*i,2)}, v78 offset:{i*4096+2048}")
    for i in range(3):
        a(f"s_waitcnt lgkmcnt({4 - 2*i})")
        a(f"buffer_store_dwordx4 {vr(80+4*i,4)}, v79, s[92:95], {['0','s54','s55'][i]} offen {ST}")
    DBL = int(E("DBL", "60"))
    dbl = f"s_setprio 3\nglobal_load_dword v6, v7, {sr(S_DBG,2)} sc1\ns_setprio 0"
    a("s_setprio 0\ns_waitcnt vmcnt(3)" if DBL else dbl + "\ns_waitcnt vmcnt(4)")
    stamp(a, 1)
    HD = int(E("HD", "0"))
    SL = [int(x) for x in E("SL", "110,180,70").split(",")]
    assert not PLAN_H[0] and not set("12") & set("".join(PLAN_H))
    if DBL:
        emit([[]], fill, DBL); a(dbl); SL[0] -= DBL
    emit(items(PLAN_H[1], 2, 3) or [[]], fill, SL[0], HD)
    a("s_barrier")
    h = int(E("USIG", "20"))
    emit([[]], fill, h)
    a(f"""
    s_setprio 3
    s_waitcnt vmcnt({nld(PLAN_H[1])})
    v_cmp_eq_u32 vcc, 0, v6
    s_cbranch_vccnz L_hs
L_hs_ok:
    s_mov_b64 exec, 1
    global_atomic_add v92, v93, {sr(S_CNT,2)} sc1
    s_mov_b64 exec, -1
    s_setprio 0
    """)
    if E("PU"): stamp(a, 8)
    STUBS.append(f"""
L_hs:
    s_mov_b32 s{T2}, 0
L_hs1:
    s_sleep 8
    global_load_dword v6, v7, {sr(S_DBG,2)} sc1
    s_add_u32 s{T2}, s{T2}, 1
    s_waitcnt vmcnt(0)
    v_cmp_eq_u32 vcc, 0, v6
    s_cbranch_vccz L_hs_ok
    s_cmp_lt_u32 s{T2}, {SPIN_MAX}
    s_cbranch_scc1 L_hs1
    {giveup("h")}
    s_branch L_hs_ok
    """)
    emit(items(PLAN_H[2], 2, 3) or [[]], fill, SL[1] - h, HD)
    wv = wait_for(PLAN_H, 2, "34")
    if wv is not None: a(f"s_waitcnt vmcnt({wv})")
    for ins in LATE: a(ins)
    a("s_barrier")
    hx = items(PLAN_H[3], 2, 3)
    HC = 6
    upoll = f"""
    s_mov_b64 exec, 1
    global_atomic_add v14, v{H_UTC}, v7, {sr(S_CNT,2)} sc0 sc1
    s_mov_b64 exec, -1
    """
    udma = f"""
    s_add_u32 m0, s17, {L_U + 512}
    s_mov_b32 s11, 1
    buffer_load_dwordx4 v{H_UTV}, {w}, s14 offen {LD} lds
    s_add_u32 m0, m0, 1024
    s_nop 0
    buffer_load_dwordx4 v{H_UTV}, {w}, s15 offen {LD} lds
    """
    def ucheck(tag, restore):
        a(f"s_cmp_eq_u32 s11, 0\ns_cbranch_scc1 L_uc_{tag}\nL_ub_{tag}:")
        STUBS.append(f"""
L_uc_{tag}:
        s_waitcnt vmcnt(0)
        v_readfirstlane_b32 s{T0}, v14
        s_cmp_lg_u32 s{T0}, 22
        s_cbranch_scc1 L_ua_{tag}
        {udma}
        {"s_mov_b32 m0, s18" if restore else ""}
        s_branch L_ub_{tag}
L_ua_{tag}:
        {upoll}
        s_branch L_ub_{tag}
        """)
    UP = E("UP", "b")
    a(f"s_cmp_ge_u32 s2, {0 if E('X_NOCONV') else 224}\ns_cselect_b32 s11, 1, 0")
    emit(hx, fill, SL[2], 0)
    assert UP == "b"
    a(upoll)
    wv = wait_for(PLAN_H, 3, "56")
    if wv is not None: a(f"s_waitcnt vmcnt({wv + 1})")
    a("s_barrier")
    stamp(a, 2)
    if UP == "c": a(upoll)
    emit([[]], fill, int(E("SLC", "10")), 0)
    wv = wait_for(PLAN_H, 3, "a")
    if wv is not None: a(f"s_waitcnt vmcnt({wv + 1})")
    a(f"""
    s_barrier                              ; BX1
    s_setprio 1
    """)
    emit([[]], fill, int(E("SLU", "0")))
    a("s_waitcnt vmcnt(1)")
    ucheck("1", False)
    emit([[]], fill, int(E("SLX", "50")))
    def frags(base):
        return [f"ds_read_b128 {vr(base + 4*ks, 4)}, v24 offset:{32*ks}" for ks in range(8)]
    ds = k0[1] + frags(FV0) + k0[2] + frags(FU0) + k1[1] + frags(FV1) + k1[2] + frags(FU1)
    emit([[]], fill, max(0, len(fill) - len(k1[0])))
    early = int(E("DSE", "0"))
    assert early <= 71
    a("s_mov_b32 m0, s18\ns_nop 0")
    for x in ds[:early]: a(x)
    a(f"""
    s_barrier                              ; BX2
    s_cmp_ge_u32 s2, {0 if E("X_NOCONV") else 224}
    s_cbranch_scc1 L_p3
    """)
    fill += [f"v_mov_b32 v{ZR+i}, 0" for i in range(4)] + [x.strip() for x in f"""v_lshl_add_u32 v6, v0, 3, s13
    ds_write_b64 v6, {vr(ZR,2)}
    v_add_u32 v6, s19, v0
    ds_write_b8 v6, v{ZR}
    s_xor_b32 s{T1}, s{S_LW}, 1
    s_mul_i32 s{T1}, s{T1}, 3072
    s_add_u32 s{T1}, s{T1}, {L_XCH}
    v_lshl_add_u32 v27, v0, 4, s{T1}""".split("\n")]
    MIX = 0 if early else int(E("MIX", "71"))
    nf = len(fill)
    if not MIX:
        for x in fill: a(x)
    c1 = max(early, int(E("UCHK", "60")))
    m0_at = int(E("KM0", "111"))
    mm0 = [mfma(KA, FU0 + 4*ks, FV0 + 4*ks, None if ks == 0 else KA) for ks in range(8)]
    for k, x in enumerate(ds[early:], early):
        if k == c1: ucheck("2", True); a("s_nop 0")
        if k == m0_at: a("s_waitcnt lgkmcnt(15)")
        if k >= m0_at and (k - m0_at) % 4 == 0 and mm0: a(mm0.pop(0))
        a(x)
        if k < MIX:
            for y in fill[nf * k // MIX: nf * (k + 1) // MIX]: a(y)
    for m in mm0: a(m)
    stamp(a, 3)
    for ks in range(8):
        a(f"s_waitcnt lgkmcnt({7 - ks})")
        a(mfma(KA, FU1 + 4*ks, FV1 + 4*ks, KA))
    a(f"""
    s_cmp_eq_u32 s11, 0
    s_cbranch_scc1 L_u_late
L_u_done:
    v_mov_b32 v15, 1
    v_xor_b32 v6, {4}, v255
    v_mov_b32 v36, 0
    v_and_b32 v37, 1, v0
    v_writelane_b32 v36, s{S_DSK}, 0
    v_cmp_eq_u32 vcc, 1, v37
    s_nop 3
    ds_write_b128 v25, {vr(KA,4)}
    ds_write_b128 v25, {vr(KA+4,4)} offset:1024
    ds_write_b128 v25, {vr(KA+8,4)} offset:2048
    s_waitcnt vmcnt(0)
    ds_write_b32 v255, v15
    """)
    st = Asm()
    st(f"""
L_u_late:
    s_waitcnt vmcnt(0)
    v_readfirstlane_b32 s{T0}, v14
    s_cmp_eq_u32 s{T0}, 22
    s_cbranch_scc1 L_ok_u
    """)
    poll(st, "u", H_UTC, "22", 1)
    st(udma + "s_branch L_u_done")
    STUBS.append(st.text())
    stamp(a, 4)
    a(f"""
L_xch:
    ds_read_b32 v14, v6
    ds_read_b128 v[60:63], v27
    ds_read_b128 v[64:67], v27 offset:1024
    ds_read_b128 v[68:71], v27 offset:2048
    s_waitcnt lgkmcnt(3)
    v_readfirstlane_b32 s{T0}, v14
    s_cmp_eq_u32 s{T0}, 0
    s_cbranch_scc1 L_xch
    s_mov_b64 exec, 1
    ds_add_u32 v{H_CNT}, v15 offset:4      ; done with the tables and the exchange buffers
    s_mov_b64 exec, -1
    """)
    for k in range(3):
        a(f"s_waitcnt lgkmcnt({3-k})")
        for e in (0, 2):
            a(f"v_pk_add_f32 {vr(KA+4*k+e,2)}, {vr(KA+4*k+e,2)}, {vr(60+4*k+e,2)}")
    def store(nd, reg, off):
        if nd == 2:
            a(f"ds_write_b64 v{H_K2}, {vr(reg,2)} offset:{off}")
        else:
            a(f"ds_write_b128 v{H_K4}, {vr(reg,4)} offset:{off}")
    expand2(a, store, KA)
    conv(a)
    a.label("L_p3")
    stamp(a, 7)
    outproj(a)

def fused():
    a = Asm()
    a(f"""
    s_load_dwordx4 s[4:7], s[0:1], 0
    s_load_dwordx2 s[22:23], s[0:1], 104
    s_load_dwordx4 s[96:99], s[0:1], 88
    s_load_dwordx8 s[8:15], s[0:1], 32
    s_load_dwordx4 s[16:19], s[0:1], 64
    s_load_dwordx2 s[20:21], s[0:1], 80
    s_load_dwordx2 s[100:101], s[0:1], 16
    s_cmp_ge_u32 s2, 256
    s_cbranch_scc1 L_quit0
    """)
    prof_begin(a)
    a(f"""
    s_getpc_b64 s[48:49]
L_pc:
    s_lshr_b32 s{T1}, s2, 3
    v_lshrrev_b32 v1, 5, v0
    v_lshl_add_u32 v1, s{T1}, 4, v1
    v_lshlrev_b32 v1, 7, v1
    v_cmp_gt_u32 vcc, L_slow-L_pc, v1
    s_mov_b64 exec, vcc
    global_load_dword v251, v1, s[48:49]
    s_mov_b64 exec, -1
    v_lshrrev_b32 v1, 6, v0
    v_and_b32 v0, 63, v0
    s_nop 0
    v_readfirstlane_b32 s{S_WAVE}, v1
    s_and_b32 s{S_LW}, s{S_WAVE}, 3
    s_cmp_ge_u32 s{S_WAVE}, 4
    s_cbranch_scc0 L_g0
    s_setprio 3
    s_and_b32 s{T0}, s2, 7
    s_mul_i32 s{T0}, s{T0}, 28
    s_min_u32 s{T1}, s{T1}, 27
    s_add_u32 s{S_P}, s{T0}, s{T1}
    s_lshl_b32 s{T2}, s{S_P}, 2
    s_lshl_b32 s{T0}, s{S_P}, 10
    s_lshl_b32 s{T1}, s{S_LW}, 8
    s_add_u32 s{T0}, s{T0}, s{T1}
    v_lshl_add_u32 v1, v0, 2, s{T0}
    v_mov_b32 v7, 0
    s_cmp_eq_u32 s2, {ZWG}
    s_waitcnt lgkmcnt(0)
    s_cbranch_scc1 L_zero
L_nozero_h:
    {"global_load_dword v94, v7, s[4:5]" if E("TOUCH") else ""}
    {"global_load_dword v95, v7, s[6:7]" if E("TOUCH") else ""}
    global_load_dword v8, v1, s[8:9]
    global_load_dword v9, v1, s[10:11]
    global_load_dword v10, v1, s[12:13]
    global_load_dword v11, v1, s[14:15]
    s_load_dword s51, s[16:17], s{T2}
    s_load_dword s52, s[18:19], s{T2}
    s_setprio 0
    s_branch L_h1
L_g0:
    s_and_b32 s{T0}, s2, 7
    s_lshr_b32 s{T1}, s2, 3
    s_mul_i32 s{T0}, s{T0}, 31
    s_add_u32 s{T0}, s{T0}, s{T1}          ; t
    s_cmp_ge_u32 s{T1}, 31
    s_cselect_b32 s{T0}, 242, s{T0}
    s_min_u32 s{T0}, s{T0}, 242
    s_mov_b32 s{T2}, 205
    s_cmp_lt_u32 s{T0}, 110
    s_cselect_b32 s{T1}, 0, 110
    s_cselect_b32 s{T2}, s{T2}, 171
    s_cselect_b32 s{T3}, 5, 6
    s_cselect_b32 s{S_CB}, 0, 5
    s_sub_u32 s{T0}, s{T0}, s{T1}
    s_mul_i32 s{S_RB}, s{T0}, s{T2}
    s_lshr_b32 s{S_RB}, s{S_RB}, 10
    s_mul_i32 s{T1}, s{S_RB}, s{T3}
    s_sub_u32 s{T0}, s{T0}, s{T1}
    s_add_u32 s{S_CB}, s{S_CB}, s{T0}
    s_add_u32 s{S_C0}, s{S_RB}, s{S_CB}
    s_mul_i32 s{T0}, s{S_C0}, 37
    s_lshr_b32 s{T0}, s{T0}, 8
    s_mul_i32 s{T0}, s{T0}, 7
    s_sub_u32 s{S_C0}, s{S_C0}, s{T0}
    {"s_and_b32 s%d, s%d, %s" % (S_C0, S_C0, E("X_ROT")) if E("X_ROT") else ""}
    s_lshl_b32 s{S_LW1K}, s{S_LW}, 10
    v_lshrrev_b32 v4, 3, v0
    s_lshl_b32 s{T1}, s{S_LW}, 3
    v_add_u32 v4, s{T1}, v4
    v_lshrrev_b32 v5, 1, v4
    v_xor_b32 v5, v5, v0
    v_and_b32 v5, 7, v5
    v_mul_u32_u24 v2, 896, v4
    v_lshl_add_u32 v2, v5, 4, v2
    s_mov_b32 s{S_CH}, s{S_C0}
    s_mul_i32 s58, s{S_RB}, {96*896}
    s_sub_u32 s{SRD_X+2}, {X_BYTES}, s58
    s_cselect_b32 s{SRD_X+2}, 0, s{SRD_X+2}
    s_mov_b32 s{SRD_X+3}, 0x20000
    s_mov_b32 s{SRD_W+3}, 0x20000
    v_lshrrev_b32 v4, 4, v0
    v_lshlrev_b32 v5, 2, v4
    v_xor_b32 v5, v5, v0
    v_and_b32 v5, 15, v5
    s_lshl_b32 s{T1}, s{S_LW}, 2
    v_add_u32 v4, s{T1}, v4
    v_mul_u32_u24 v3, 2688, v4
    v_lshl_add_u32 v3, v5, 4, v3
    s_lshl_b32 s59, s{S_CB}, 8
    s_sub_u32 s{SRD_W+2}, {W_BYTES}, s59
    s_cmp_ge_u32 s{S_RB}, 22
    s_cselect_b32 s{SRD_W+2}, 0, s{SRD_W+2}
    s_cmp_eq_u32 s2, {ZWG}
    s_waitcnt lgkmcnt(0)
    s_cbranch_scc1 L_zero
L_nozero:
    s_add_u32 s{SRD_X}, s{S_X}, s58
    s_addc_u32 s{SRD_X+1}, s{S_X+1}, 0
    s_add_u32 s{SRD_W}, s{S_W}, s59
    s_addc_u32 s{SRD_W+1}, s{S_W+1}, 0
L_first:
    """)
    for g_ in dma_chunk(0):
        for x in g_: a(x)
    a(f"""
    s_mov_b32 s{SRD_WS}, s20
    s_mov_b32 s{SRD_WS+1}, s21
    s_mov_b32 s{SRD_WS+2}, 896
    s_mov_b32 s{SRD_WS+3}, 0x20000
    s_mov_b32 m0, {L_GATE}
    v_lshlrev_b32 v4, 4, v0
    buffer_load_dwordx4 v4, {sr(SRD_WS,4)}, 0 offen lds
    s_branch L_g1
L_zero:
    s_add_u32 s{S_CNT}, s{S_WS}, {WS_CNT}
    s_addc_u32 s{S_CNT+1}, s{S_WS+1}, 0
    """)
    stamp(a, 3)
    a(f"""
    s_mul_i32 s{T0}, s{S_WAVE}, {(NLINE // 8) << CS}
    v_lshrrev_b32 v4, 1, v0
    v_lshl_add_u32 v4, v4, {CS}, s{T0}
    v_and_b32 v5, 1, v0
    v_lshl_add_u32 v4, v5, 4, v4
    v_mov_b32 v20, 0
    v_mov_b32 v21, 0
    v_mov_b32 v22, 0
    v_mov_b32 v23, 0
    s_bfm_b64 exec, {NLINE // 4}, 0
    global_store_dwordx4 v4, v[20:23], {sr(S_CNT,2)} sc0 sc1
    s_mov_b64 exec, -1
    s_lshl_b32 s{T0}, s{S_WAVE}, 3
    v_add_u32 v4, s{T0}, v0
    v_mul_u32_u24 v4, {TILE_B}, v4
    v_add_u32 v4, {WS_ONE}, v4
    v_mov_b32 v16, 0x3f803f80
    v_mov_b32 v17, v16
    v_mov_b32 v18, v16
    v_mov_b32 v19, v16
    s_mov_b64 exec, 0xff
    global_store_dwordx4 v4, v[16:19], {sr(S_WS,2)} sc0 sc1
    s_mov_b64 exec, -1
    v_mov_b32 v21, 1
    s_waitcnt vmcnt(0)
    s_barrier
    s_cmp_lt_u32 s{S_WAVE}, 4
    s_cbranch_scc1 L_nozero
    s_cmp_lg_u32 s{S_WAVE}, 4
    s_cbranch_scc1 L_nozero_h
    s_mov_b64 exec, 1
    global_store_dword v20, v21, {sr(S_DBG,2)} sc0 sc1
    s_mov_b64 exec, -1
    """)
    stamp(a, 4)
    a("s_waitcnt vmcnt(0)")
    stamp(a, 5)
    a(f"""
    s_branch L_nozero_h
L_g1:
    """)
    if E("PB"): stamp(a, 10)
    a(f"""
    s_setprio 2
    s_add_u32 s{S_CNT}, s{S_WS}, {WS_CNT}
    s_addc_u32 s{S_CNT+1}, s{S_WS+1}, 0
    v_mov_b32 v252, v2
    v_mov_b32 v229, v3
    v_mov_b32 v4, 0
    v_mov_b32 v5, 0
    v_lshlrev_b32 v6, 3, v0
    v_and_b32 v6, 63, v6
    v_add_u32 v6, {L_CNT}, v6
    ds_write_b64 v6, v[4:5]
    v_lshlrev_b32 v{A_L16}, 4, v0
    """)
    gemm_setup(a)
    a(f"""
L_h1:
    s_and_b32 s{T0}, s2, 7
    s_lshr_b32 s{T1}, s2, 3
    s_mul_i32 s{T0}, s{T0}, 31
    s_add_u32 s{T0}, s{T0}, s{T1}          ; t
    s_cmp_ge_u32 s{T1}, 31
    s_cselect_b32 s{T0}, 242, s{T0}
    s_min_u32 s{T0}, s{T0}, 242
    s_mov_b32 s{T2}, 205
    s_cmp_lt_u32 s{T0}, 110
    s_cselect_b32 s{T1}, 0, 110
    s_cselect_b32 s{T2}, s{T2}, 171
    s_cselect_b32 s{T3}, 5, 6
    s_cselect_b32 s{S_CB}, 0, 5
    s_sub_u32 s{T0}, s{T0}, s{T1}
    s_mul_i32 s{S_RB}, s{T0}, s{T2}
    s_lshr_b32 s{S_RB}, s{S_RB}, 10
    s_mul_i32 s{T1}, s{S_RB}, s{T3}
    s_sub_u32 s{T0}, s{T0}, s{T1}
    s_add_u32 s{S_CB}, s{S_CB}, s{T0}
    s_add_u32 s{S_C0}, s{S_RB}, s{S_CB}
    s_mul_i32 s{T0}, s{S_C0}, 37
    s_lshr_b32 s{T0}, s{T0}, 8
    s_mul_i32 s{T0}, s{T0}, 7
    s_sub_u32 s{S_C0}, s{S_C0}, s{T0}
    {"s_and_b32 s%d, s%d, %s" % (S_C0, S_C0, E("X_ROT")) if E("X_ROT") else ""}
    s_lshl_b32 s{S_LW1K}, s{S_LW}, 10
    v_lshrrev_b32 v4, 3, v0
    s_lshl_b32 s{T1}, s{S_LW}, 3
    v_add_u32 v4, s{T1}, v4
    v_lshrrev_b32 v5, 1, v4
    v_xor_b32 v5, v5, v0
    v_and_b32 v5, 7, v5
    v_mul_u32_u24 v2, 896, v4
    v_lshl_add_u32 v2, v5, 4, v2
    s_mov_b32 s{S_CH}, s{S_C0}
    s_mul_i32 s58, s{S_RB}, {96*896}
    s_sub_u32 s{SRD_X+2}, {X_BYTES}, s58
    s_cselect_b32 s{SRD_X+2}, 0, s{SRD_X+2}
    s_mov_b32 s{SRD_X+3}, 0x20000
    s_mov_b32 s{SRD_W+3}, 0x20000
    s_add_u32 s{SRD_X}, s{S_X}, s58
    s_addc_u32 s{SRD_X+1}, s{S_X+1}, 0
    v_lshrrev_b32 v4, 4, v0
    v_lshlrev_b32 v5, 2, v4
    v_xor_b32 v5, v5, v0
    v_and_b32 v5, 15, v5
    s_lshl_b32 s{T1}, s{S_LW}, 2
    v_add_u32 v4, s{T1}, v4
    v_mul_u32_u24 v3, 2688, v4
    v_lshl_add_u32 v3, v5, 4, v3
    s_lshl_b32 s59, s{S_CB}, 8
    s_sub_u32 s{SRD_W+2}, {W_BYTES}, s59
    s_cmp_ge_u32 s{S_RB}, 22
    s_cselect_b32 s{SRD_W+2}, 0, s{SRD_W+2}
    s_add_u32 s{SRD_W}, s{S_W}, s59
    s_addc_u32 s{SRD_W+1}, s{S_W+1}, 0
    s_add_u32 s{S_CNT}, s{S_WS}, {WS_CNT}
    s_addc_u32 s{S_CNT+1}, s{S_WS+1}, 0
L_helper:
    """)
    helper_waves(a)
    a(f"""
L_quit0:
    s_endpgm
    """)
    gemm_waves(a)
    attention(a)
    a.label("L_fin")
    store_o(a)
    a.label("L_end")
    prof_end(a, 0, S_WS, S_WAVE)
    a.label("L_quit")
    a("s_endpgm")
    n0 = len(STUBS)
    for x in STUBS: a(x)
    fallback(a)
    for x in STUBS[n0:]: a(x)
    return a

DOC = """;
;   waves 0-3: x @ wqkv (96 x 128 tile, bf16 MFMA, gate logit as an extra column tile) -> workspace, then
;              attention of (head, 128 queries), each wave one quarter of the keys. exp2 runs without a shift;
;              [21 x 512] x [512 x 32] product, D_skip folded into tap 0), causal convolution as Toeplitz MFMA,
;              then o @ wo and the gated mix for 32 tokens x 128 channels.
"""

def build():
    ref = open("cdna_kernels/%s.s.ref" % NAME).read().split("\n")
    out = "\n".join(ref[:15]) + "\n"
    out += f"; @launch grid=(256,1,1) block=(512,1,1) lds={LDS_TOTAL}\n"
    out += DOC
    out += '.amdgcn_target "amdgcn-amd-amdhsa--gfx950"\n.text\n'
    out += kernel_head(NAME + "_kernel") + fused().text()
    out += '.section .rodata,"a"\n'
    out += kernel_desc(NAME + "_kernel", NV, 102)
    return out

if __name__ == "__main__":
    import sys
    dst = sys.argv[1] if len(sys.argv) > 1 else "cdna_kernels/%s.s" % NAME
    open(dst, "w").write(build())
```

```python
import math, struct

NAME = "gated_mix__mha_block__ssm_conv_s4d__prompt"

TILE_B = 28672
WS_Q  = 0x000000
WS_K  = 0x200000
WS_V  = 0x400000
WS_UT = 0x600000
WS_KC = 0x800000
WS_GT = 0xA00000
WS_O  = 0xC00000
WS_BP = 0xE00000

X_BYTES = 2048 * 896
W_BYTES = 448 * 2688
WO_BYTES = 448 * 896

def f32(x):
    return "0x%08x" % struct.unpack("<I", struct.pack("<f", x))[0]

LOG2E = math.log2(math.e)
QSCALE = (28 ** -0.5) * LOG2E

class Asm:
    def __init__(self):
        self.lines = []
    def __call__(self, s):
        for l in s.split("\n"):
            l = l.strip()
            if l:
                self.lines.append(l if l.endswith(":") else "    " + l)
    def label(self, n):
        self.lines.append(n + ":")
    def extend(self, other):
        self.lines.extend(other.lines if isinstance(other, Asm) else other)
    def text(self):
        return "\n".join(self.lines) + "\n"

def vr(b, n=1):
    return f"v{b}" if n == 1 else f"v[{b}:{b+n-1}]"
def sr(b, n=1):
    return f"s{b}" if n == 1 else f"s[{b}:{b+n-1}]"

def mfma(d, a, b, c=None):
    cs = "0" if c is None else vr(c, 16)
    return f"v_mfma_f32_32x32x16_bf16 {vr(d,16)}, {vr(a,4)}, {vr(b,4)}, {cs}"

def kernel_head(label):
    return f""".globl {label}
.p2align 8
.type {label},@function
{label}:
"""

def kernel_desc(label, nv, ns=96):
    nv4 = (nv + 3) // 4 * 4
    return f""".p2align 6
.amdhsa_kernel {label}
  .amdhsa_next_free_vgpr {nv}
  .amdhsa_next_free_sgpr {ns}
  .amdhsa_accum_offset {nv4}
  .amdhsa_group_segment_fixed_size 0
  .amdhsa_kernarg_size 112
  .amdhsa_user_sgpr_count 2
  .amdhsa_user_sgpr_kernarg_segment_ptr 1
  .amdhsa_system_sgpr_workgroup_id_x 1
.end_amdhsa_kernel
"""

import os
PROF = os.environ.get('PROF') == '1'
WS_PROF = 0x1000000
def stamp(a, i):
    only = os.environ.get("AMP", ",").split(",")[1]
    if PROF and not os.environ.get("MIN") and (not only or only == str(i)):
        a(f"{'s_memtime' if os.environ.get('CYC') else 's_memrealtime'} s[{64+2*i}:{65+2*i}]\ns_waitcnt lgkmcnt(0)")
def prof_begin(a):
    if PROF:
        a("s_memrealtime s[88:89]\ns_memtime s[64:65]")
        for i in range(1, 12):
            a(f"s_mov_b32 s{64+2*i}, 0")
def prof_end(a, kern, s_ws, s_wave):
    if PROF and os.environ.get("MIN"):
        a(f"""
        s_cmp_lg_u32 s{s_wave}, 0
        s_cbranch_scc1 L_quit
        s_mov_b64 exec, 1
        s_lshl_b32 s92, s2, 9
        s_add_u32 s92, s92, {WS_PROF + 48}
        v_mov_b32 v60, s92
        v_mov_b32 v61, s88
        global_store_dword v60, v61, s[{s_ws}:{s_ws+1}] sc0 sc1
        """)
        return
    if PROF and os.environ.get("XCHK"):
        a(f"""
        s_getreg_b32 s92, hwreg(HW_REG_XCC_ID)
        s_and_b32 s92, s92, 15
        s_lshl_b32 s93, s{s_wave}, 8
        s_or_b32 s93, s93, s2
        s_mov_b64 exec, 1
        v_mov_b32 v60, {WS_PROF}
        v_mov_b32 v61, s92
        s_cmp_lg_u32 s93, 96
        s_cbranch_scc1 L_x1
        global_store_dword v60, v61, s[{s_ws}:{s_ws+1}] sc0 sc1
        s_branch L_quit
L_x1:
        s_cmp_lg_u32 s93, {4*256 + int(os.environ["XCHK"])}
        s_cbranch_scc1 L_quit
        s_sleep 64
        global_load_dword v62, v60, s[{s_ws}:{s_ws+1}] sc0 sc1
        s_waitcnt vmcnt(0)
        v_readfirstlane_b32 s93, v62
        s_cmp_eq_u32 s93, s92
        s_cbranch_scc1 L_quit
        s_mov_b32 s92, 30
L_x2:
        s_sleep 127
        s_sub_u32 s92, s92, 1
        s_cmp_lg_u32 s92, 0
        s_cbranch_scc1 L_x2
        """)
        return
    if PROF and os.environ.get("AMP"):
        wv, st = os.environ["AMP"].split(",")
        reg = 90 if st == "e" else 64 + 2 * int(st)
        a(f"""
        s_memrealtime s[90:91]
        s_waitcnt lgkmcnt(0)
        s_cmp_lg_u32 s2, {os.environ.get("AMPWG", "100")}
        s_cbranch_scc1 L_quit
        s_cmp_lg_u32 s{s_wave}, {wv}
        s_cbranch_scc1 L_quit
        s_sub_u32 s92, s{reg}, s88
        s_mul_i32 s92, s92, 10
        s_add_u32 s92, s92, s90
L_amp:
        s_sleep 8
        s_memrealtime s[90:91]
        s_waitcnt lgkmcnt(0)
        s_sub_u32 s93, s90, s92
        s_cmp_lt_i32 s93, 0
        s_cbranch_scc1 L_amp
        """)
        return
    if PROF:
        a(f"""
        s_memtime s[86:87]
        s_memrealtime s[90:91]
        s_waitcnt lgkmcnt(0)
        s_mov_b64 exec, 1
        """)
        if os.environ.get("DBGPROF"):
            a(f"s_cmp_ge_u32 s{s_wave}, 4\ns_cselect_b32 s92, 64, 0\nv_mov_b32 v60, s92\ns_not_b32 s92, s88\nv_mov_b32 v61, s92\nglobal_atomic_umax v60, v61, s[98:99] offset:8")
            a("v_mov_b32 v61, s88\nglobal_atomic_umax v60, v61, s[98:99] offset:12")
            for k, i in enumerate([1, 3, 5, 6, 7, 8, 9]):
                a(f"v_mov_b32 v61, s{64+2*i}\nglobal_atomic_umax v60, v61, s[98:99] offset:{16+4*k}")
            a("v_mov_b32 v60, 0\nv_mov_b32 v61, s90\nglobal_atomic_umax v60, v61, s[98:99] offset:44")
        a(f"""
        s_mov_b64 exec, 0xffff
        s_lshl_b32 s92, s2, 3
        s_add_u32 s92, s92, s{s_wave}
        s_lshl_b32 s92, s92, 6
        s_add_u32 s92, s92, {WS_PROF + kern * 256 * 8 * 64}
        v_lshl_add_u32 v60, v0, 2, s92
        """)
        for i in range(12):
            a(f"v_writelane_b32 v61, s{64+2*i}, {i}")
        a("v_writelane_b32 v61, s88, 12\nv_writelane_b32 v61, s90, 13")
        a("s_getreg_b32 s92, hwreg(HW_REG_HW_ID)\nv_writelane_b32 v61, s92, 14")
        a("s_getreg_b32 s92, hwreg(HW_REG_XCC_ID)\nv_writelane_b32 v61, s92, 15")
        a(f"global_store_dword v60, v61, s[{s_ws}:{s_ws+1}]")

def endp(lbl):
    return f"s_branch {lbl}" if PROF else "s_endpgm"
```

```python
import math, struct

NAME = "gated_mix__mha_block__ssm_conv_s4d__prompt"

TILE_B = 28672
WS_Q  = 0x000000
WS_K  = 0x200000
WS_V  = 0x400000
WS_UT = 0x600000
WS_KC = 0x800000
WS_GT = 0xA00000
WS_O  = 0xC00000
WS_BP = 0xE00000

X_BYTES = 2048 * 896
W_BYTES = 448 * 2688
WO_BYTES = 448 * 896

def f32(x):
    return "0x%08x" % struct.unpack("<I", struct.pack("<f", x))[0]

LOG2E = math.log2(math.e)
QSCALE = (28 ** -0.5) * LOG2E

class Asm:
    def __init__(self):
        self.lines = []
    def __call__(self, s):
        for l in s.split("\n"):
            l = l.strip()
            if l:
                self.lines.append(l if l.endswith(":") else "    " + l)
    def label(self, n):
        self.lines.append(n + ":")
    def extend(self, other):
        self.lines.extend(other.lines if isinstance(other, Asm) else other)
    def text(self):
        return "\n".join(self.lines) + "\n"

def vr(b, n=1):
    return f"v{b}" if n == 1 else f"v[{b}:{b+n-1}]"
def sr(b, n=1):
    return f"s{b}" if n == 1 else f"s[{b}:{b+n-1}]"

def mfma(d, a, b, c=None):
    cs = "0" if c is None else vr(c, 16)
    return f"v_mfma_f32_32x32x16_bf16 {vr(d,16)}, {vr(a,4)}, {vr(b,4)}, {cs}"

def kernel_head(label):
    return f""".globl {label}
.p2align 8
.type {label},@function
{label}:
"""

def kernel_desc(label, nv, ns=96):
    nv4 = (nv + 3) // 4 * 4
    return f""".p2align 6
.amdhsa_kernel {label}
  .amdhsa_next_free_vgpr {nv}
  .amdhsa_next_free_sgpr {ns}
  .amdhsa_accum_offset {nv4}
  .amdhsa_group_segment_fixed_size 0
  .amdhsa_kernarg_size 112
  .amdhsa_user_sgpr_count 2
  .amdhsa_user_sgpr_kernarg_segment_ptr 1
  .amdhsa_system_sgpr_workgroup_id_x 1
.end_amdhsa_kernel
"""

import os
PROF = os.environ.get('PROF') == '1'
WS_PROF = 0x1000000
def stamp(a, i):
    only = os.environ.get("AMP", ",").split(",")[1]
    if PROF and not os.environ.get("MIN") and (not only or str(i) in only.split("-")):
        a(f"{'s_memtime' if os.environ.get('CYC') else 's_memrealtime'} s[{64+2*i}:{65+2*i}]\ns_waitcnt lgkmcnt(0)")
def prof_begin(a):
    if PROF and os.environ.get("AMP"):
        a("s_memrealtime s[88:89]")
    elif PROF:
        a("s_memrealtime s[88:89]\ns_memtime s[64:65]")
        for i in range(1, 12):
            a(f"s_mov_b32 s{64+2*i}, 0")
def prof_end(a, kern, s_ws, s_wave):
    if PROF and os.environ.get("MIN"):
        a(f"""
        s_cmp_lg_u32 s{s_wave}, 0
        s_cbranch_scc1 L_quit
        s_mov_b64 exec, 1
        s_lshl_b32 s92, s2, 9
        s_add_u32 s92, s92, {WS_PROF + 48}
        v_mov_b32 v60, s92
        v_mov_b32 v61, s88
        global_store_dword v60, v61, s[{s_ws}:{s_ws+1}] sc0 sc1
        """)
        return
    if PROF and os.environ.get("XCHK"):
        a(f"""
        s_getreg_b32 s92, hwreg(HW_REG_XCC_ID)
        s_and_b32 s92, s92, 15
        s_lshl_b32 s93, s{s_wave}, 8
        s_or_b32 s93, s93, s2
        s_mov_b64 exec, 1
        v_mov_b32 v60, {WS_PROF}
        v_mov_b32 v61, s92
        s_cmp_lg_u32 s93, 96
        s_cbranch_scc1 L_x1
        global_store_dword v60, v61, s[{s_ws}:{s_ws+1}] sc0 sc1
        s_branch L_quit
L_x1:
        s_cmp_lg_u32 s93, {4*256 + int(os.environ["XCHK"])}
        s_cbranch_scc1 L_quit
        s_sleep 64
        global_load_dword v62, v60, s[{s_ws}:{s_ws+1}] sc0 sc1
        s_waitcnt vmcnt(0)
        v_readfirstlane_b32 s93, v62
        s_cmp_eq_u32 s93, s92
        s_cbranch_scc1 L_quit
        s_mov_b32 s92, 30
L_x2:
        s_sleep 127
        s_sub_u32 s92, s92, 1
        s_cmp_lg_u32 s92, 0
        s_cbranch_scc1 L_x2
        """)
        return
    if PROF and os.environ.get("AMP"):
        wv, st = os.environ["AMP"].split(",")
        base, mul = 88, 10
        if "-" in st:
            b_, st = st.split("-"); base = 64 + 2 * int(b_); mul = 1 if os.environ.get("CYC") else 10
        reg = 90 if st == "e" else 64 + 2 * int(st)
        a(f"""
        s_memrealtime s[90:91]
        s_waitcnt lgkmcnt(0)
        s_cmp_lg_u32 s2, {os.environ.get("AMPWG", "100")}
        s_cbranch_scc1 L_quit
        s_cmp_lg_u32 s{s_wave}, {wv}
        s_cbranch_scc1 L_quit
        s_sub_u32 s92, s{reg}, s{base}
        s_mul_i32 s92, s92, {mul}
        s_add_u32 s92, s92, s90
L_amp:
        s_sleep 8
        s_memrealtime s[90:91]
        s_waitcnt lgkmcnt(0)
        s_sub_u32 s93, s90, s92
        s_cmp_lt_i32 s93, 0
        s_cbranch_scc1 L_amp
        """)
        return
    if PROF:
        a(f"""
        s_memtime s[86:87]
        s_memrealtime s[90:91]
        s_waitcnt lgkmcnt(0)
        s_mov_b64 exec, 1
        """)
        if os.environ.get("DBGPROF"):
            a(f"s_cmp_ge_u32 s{s_wave}, 4\ns_cselect_b32 s92, 64, 0\nv_mov_b32 v60, s92\ns_not_b32 s92, s88\nv_mov_b32 v61, s92\nglobal_atomic_umax v60, v61, s[98:99] offset:8")
            a("v_mov_b32 v61, s88\nglobal_atomic_umax v60, v61, s[98:99] offset:12")
            for k, i in enumerate([1, 3, 5, 6, 7, 8, 9]):
                a(f"v_mov_b32 v61, s{64+2*i}\nglobal_atomic_umax v60, v61, s[98:99] offset:{16+4*k}")
            a("v_mov_b32 v60, 0\nv_mov_b32 v61, s90\nglobal_atomic_umax v60, v61, s[98:99] offset:44")
        a(f"""
        s_mov_b64 exec, 0xffff
        s_lshl_b32 s92, s2, 3
        s_add_u32 s92, s92, s{s_wave}
        s_lshl_b32 s92, s92, 6
        s_add_u32 s92, s92, {WS_PROF + kern * 256 * 8 * 64}
        v_lshl_add_u32 v60, v0, 2, s92
        """)
        for i in range(12):
            a(f"v_writelane_b32 v61, s{64+2*i}, {i}")
        a("v_writelane_b32 v61, s88, 12\nv_writelane_b32 v61, s90, 13")
        a("s_getreg_b32 s92, hwreg(HW_REG_HW_ID)\nv_writelane_b32 v61, s92, 14")
        a("s_getreg_b32 s92, hwreg(HW_REG_XCC_ID)\nv_writelane_b32 v61, s92, 15")
        a(f"global_store_dword v60, v61, s[{s_ws}:{s_ws+1}]")

def endp(lbl):
    return f"s_branch {lbl}" if PROF else "s_endpgm"
```

```python
from common import *
from k1 import kgen_split, kgen_expand
E = os.environ.get

WS_CNT = 0x1100000
WS_ONE = WS_KC
WS_SIZE = 0x1200000
QL = int(E('QL', '6'))
CS = int(E('CS', '8'))
B_O, B_BP, B_U, B_Q = 4, 8, (12 if QL == 6 else 64 << CS), ((64 if QL == 6 else 96) << CS)
KVR = int(E('KVR', '1'))
REPM = sum(1 << (4 * i) for i in range(KVR))
B_R = B_Q + ((1 << QL) << CS) - (64 << CS)
assert KVR == 1
B_L = 16
NLINE = (B_Q >> CS) + (1 << QL)
assert NLINE == 128
SPIN_MAX = 65536
ZWG = 248

TAB_B = 32 * 272
L_XCH = 4 * TAB_B
PL_B = 8224
L_KC = 8 * PL_B
KC_B = 4160
L_U = L_KC + 2 * KC_B
U_B = 4608
L_RED = L_U + 2 * U_B
L_X2 = L_RED + 49152
L_X1 = L_X2 - 24576
L_GATE = L_X2 + 24576
L_CNT = L_GATE + 1024
LDS_TOTAL = L_CNT + 64
assert LDS_TOTAL <= 163840
SLOT_AT = [L_X2 - 28672, L_X2] + [L_X2 - 28672 - 20480 * i for i in range(1, 6)]
assert SLOT_AT[6] >= 0 and L_X1 >= SLOT_AT[0]

S_X, S_W = 4, 6
S_WS = 22
S_WAVE, S_RB, S_CB, S_P = 24, 25, 26, 27
SRD_X, SRD_W, SRD_WS = 28, 32, 36
T0, T1, T2, T3 = 40, 41, 42, 43
S_DSK = 44
S_LW1K = 45
S_C0 = 46
S_LW = 50
S_CT = 53
S_CH = 57
S_CNT = 60
S_H, S_QB = 62, 63
S_OUT, S_DBG, S_WO = 96, 98, 100
ST = E("ST", "sc1")
LD = "sc1"
NV = 256

STUBS = []
def giveup(tag):
    if not E("DIAG"): return ""
    k = 8 + 2 * "auobsh".index(tag)
    return f"""
    v_mov_b32 v15, {4*k}
    global_store_dword v15, v14, {sr(S_DBG,2)} offset:4 sc0 sc1
    v_mov_b32 v14, s2
    v_add_u32 v14, 1000, v14
    global_store_dword v15, v14, {sr(S_DBG,2)} sc0 sc1
    s_waitcnt vmcnt(0)
    """

def poll(a, tag, vaddr, vexp, lanes, sleep=0, limit=SPIN_MAX):
    first = f"s_branch L_poll1_{tag}" if sleep else ""
    a(f"""
    s_mov_b64 exec, {lanes}
    v_mov_b32 v15, 0
    s_mov_b32 s{T0}, 0
    {first}
L_poll_{tag}:
    {"s_sleep %d" % sleep if sleep else ""}
L_poll1_{tag}:
    global_atomic_add v14, v{vaddr}, v15, {sr(S_CNT,2)} sc0 sc1
    s_add_u32 s{T0}, s{T0}, 1
    s_cmp_ge_u32 s{T0}, {limit}
    s_cbranch_scc1 L_give_{tag}
    s_waitcnt vmcnt(0)
    v_cmp_ne_u32 vcc, {vexp}, v14
    s_cbranch_vccnz L_poll_{tag}
L_ok_{tag}:
    s_mov_b64 exec, -1
    """)
    STUBS.append(f"""
L_give_{tag}:
    s_waitcnt vmcnt(0)
    {giveup(tag)}
    s_branch L_ok_{tag}
    """)

def poll2(a, tag, vaddr, vexp, lanes, gap):
    at = lambda d: f"global_atomic_add v{d}, v{vaddr}, v15, {sr(S_CNT,2)} sc0 sc1"
    a(f"""
    s_mov_b64 exec, {lanes}
    v_mov_b32 v15, 0
    s_mov_b32 s{T0}, 0
    {at(14)}
L_poll_{tag}:
    s_sleep {gap}
    {at(13)}
    s_waitcnt vmcnt(1)
    v_cmp_ne_u32 vcc, {vexp}, v14
    s_cbranch_vccz L_ok_{tag}
    s_sleep {gap}
    {at(14)}
    s_add_u32 s{T0}, s{T0}, 1
    s_waitcnt vmcnt(1)
    v_cmp_ne_u32 vcc, {vexp}, v13
    s_cbranch_vccz L_ok_{tag}
    s_cmp_lt_u32 s{T0}, {SPIN_MAX}
    s_cbranch_scc1 L_poll_{tag}
L_ok_{tag}:
    s_mov_b64 exec, -1
    """)

def lds_sync(a, idx, tag, vm=True):
    a(f"""
    v_mov_b32 v15, 1
    s_waitcnt {"vmcnt(0) " if vm else ""}lgkmcnt(0)
    s_mov_b64 exec, 1
    ds_add_u32 v23, v15 offset:{4*idx}
    s_mov_b64 exec, -1
    s_branch L_spin1_{tag}
L_spin_{tag}:
    s_sleep {E("SPS", "0")}
L_spin1_{tag}:
    ds_read_b32 v15, v23 offset:{4*idx}
    s_waitcnt lgkmcnt(0)
    v_readfirstlane_b32 s{T0}, v15
    s_cmp_lt_u32 s{T0}, 4
    s_cbranch_scc1 L_spin_{tag}
    """ if E("SPS") else f"""
    v_mov_b32 v15, 1
    s_waitcnt {"vmcnt(0) " if vm else ""}lgkmcnt(0)
    s_mov_b64 exec, 1
    ds_add_u32 v23, v15 offset:{4*idx}
    s_mov_b64 exec, -1
L_spin_{tag}:
    ds_read_b32 v15, v23 offset:{4*idx}
    s_waitcnt lgkmcnt(0)
    v_readfirstlane_b32 s{T0}, v15
    s_cmp_lt_u32 s{T0}, 4
    s_cbranch_scc1 L_spin_{tag}
    """)

XA, XB, WA = 3, 10, 8
XAR = [3, 4, 5, 15]
WF, ACC, XF, PK = 16, 128, 176, 240
RING = 12
NX = 6
XE = not E('XLATE')
DEF = int(E('DEF', '3'))
NG = int(E('NG', '4'))
SRD_R, SRD_T = 4, 92
ONES = [160 + 16*b + 8 + i for b in (3, 2, 1, 0) for i in range(8)]

def gemm_body(a, kind, tag):
    nw = 1 if kind == "gate" else 2
    GROUPS = [[0], [1, 2], [3, 4], [5, 6]]
    def soff(it):
        grp = [g_ for g_ in GROUPS if it in g_][0]
        return SLOT_AT[it] - SLOT_AT[grp[-1]]
    def rd_w(g):
        it, ks = divmod(g, 4)
        if kind == "gate":
            return [f"ds_read_b128 {vr(WF+4*g,4)}, v8 offset:{32*ks}"]
        return [f"ds_read_b64_tr_b16 {vr(WF+4*g,2)}, v8 offset:{soff(it) + ks*4096}",
                f"ds_read_b64_tr_b16 {vr(WF+4*g+2,2)}, v8 offset:{soff(it) + ks*4096+1024}"]
    def mm(g, i, x):
        w, d = WF + 4*g, ACC + 16*i
        c = None if g == 0 else d
        return mfma(d, x, w, c) if kind == "v" else mfma(d, w, x, c)
    def epi(i):
        r = []
        base = ACC + 16*i
        if kind == "gate":
            return [f"v_cvt_pk_bf16_f32 v{base}, v{base}, v{base}",
                    f"v_and_b32 v{base}, 0xffff0000, v{base}",
                    f"v_mul_f32 v{base}, {f32(-LOG2E)}, v{base}",
                    f"v_exp_f32 v{base}, v{base}", "s_nop 0",
                    f"v_add_f32 v{base}, 1.0, v{base}",
                    f"v_rcp_f32 v{base}, v{base}", "s_nop 0",
                    f"v_cvt_pk_bf16_f32 v{base}, v{base}, v{base}",
                    f"v_and_b32 v{base}, 0xffff0000, v{base}",
                    f"buffer_store_dword v{base}, v6, {sr(SRD_R,4)}, 0 offen offset:{128*i} {ST}"]
        so = ["s92", "s93", "s94"][i]
        for h in range(2):
            if kind == "qk" and i < 2:
                r += [f"v_mul_f32 v{base+8*h+j}, s47, v{base+8*h+j}" for j in range(8)]
            r += [f"v_cvt_pk_bf16_f32 v{PK+4*h+j}, v{base+8*h+2*j}, v{base+8*h+2*j+1}" for j in range(4)]
            if not (kind == "v" and i == 2):
                r.append(f"buffer_store_dwordx4 {vr(PK+4*h,4)}, v{6+h}, {sr(SRD_R,4)}, {so} offen {ST}")
        return r
    VX, VW = 252, 229
    assert PLAN_G[0] == '12'
    loads = [items(PLAN_G[k], VX, VW) for k in (1, 2, 3)] + [[]]
    waits = [nld(PLAN_G[0]), wait_for(PLAN_G, 1, "12"), wait_for(PLAN_G, 2, "34"), wait_for(PLAN_G, 3, "56")]
    assert "b" not in "".join(PLAN_G)
    xslot = 0
    for gi, grp in enumerate(GROUPS):
        if waits[gi] is not None: a(f"s_waitcnt vmcnt({waits[gi]})" + (" lgkmcnt(0)" if gi == 0 else ""))
        a("s_barrier")
        if gi in (0, 3): stamp(a, 1 + gi // 3)
        if E('PA') and not E('PB') and gi in (1, 2): stamp(a, 7 + gi)
        ld = loads[gi]
        queue, steps = [], []
        nread = 0
        order = [grp[1], grp[2], grp[0]] if False else grp
        for it in order:
            nt = 3 if it == 0 else 1
            for ks in range(4):
                g = 4*it + ks
                for r in rd_w(g): queue.append((r, None)); nread += 1
                ms = []
                for i in range(nt):
                    reg = XF + 4 * (xslot % RING)
                    queue.append((f"ds_read_b128 {vr(reg,4)}, v{XAR[ks]} offset:{soff(it) + i*4096}", xslot)); nread += 1
                    ms.append((mm(g, i, reg), xslot))
                    xslot += 1
                steps.append((nread, ms))
            if kind == "gate" and it < 6:
                queue[-1] = (queue[-1][0] + f"""
                s_add_u32 s{S_C0}, s{S_C0}, 1
                s_cmp_eq_u32 s{S_C0}, 7
                s_cselect_b32 s{S_C0}, 0, s{S_C0}
                s_lshl_b32 s47, s{S_C0}, 7
                v_add_u32 v8, s47, v9""", queue[-1][1])
        if gi < 3:
            upd = "".join(f"\nv_subrev_u32 v{r}, {SLOT_AT[grp[-1]] - SLOT_AT[GROUPS[gi+1][-1]]}, v{r}" for r in XAR + ([] if kind == "gate" else [8]))
            queue[-1] = (queue[-1][0] + upd, queue[-1][1])
        issued, freed = 0, steps[0][1][0][1]
        def issue(upto):
            nonlocal issued
            while issued < min(upto, len(queue)) and (queue[issued][1] is None or queue[issued][1] < freed + RING):
                a(queue[issued][0]); issued += 1
        prev = 0
        for si, (need, ms) in enumerate(steps):
            issue(max(need, prev + 15))
            assert issued >= need
            if si == 0:
                for g_ in ld[:2]:
                    for x in g_: a(x)
                ld = ld[2:]
            a(f"s_waitcnt lgkmcnt({issued - need})")
            prev = need
            if gi == 3 and si == len(steps) - DEF:
                last = [st_[1][0][0] for st_ in steps[si:]]
                a("s_waitcnt lgkmcnt(0)")
                break
            for m, xs in ms:
                a(m)
                freed = xs + 1
                issue(min(issued + 3, need + 15))
                k = 1 if gi == 0 else 2
                for g_ in ld[:k]:
                    for x in g_: a(x)
                ld = ld[k:]
        for g_ in ld:
            for x in g_: a(x)
        assert issued == len(queue)
    X0 = xslot % RING
    def rd_x(n):
        i, g = 1 + n // 24, 4 + n % 24
        return f"ds_read_b128 {vr(XF+4*((n+X0)%RING),4)}, v{XB + g%4} offset:{(i-1)*24576 + (g//4-1)*4096}"
    a("s_waitcnt vmcnt(0)")
    a("s_barrier")
    stamp(a, 3)
    AHEAD = 8
    assert AHEAD + DEF <= RING
    per = AHEAD // DEF
    for k in range(DEF):
        if k: a(last[k - 1])
        for n in range(k * per, AHEAD if k == DEF - 1 else (k + 1) * per): a(rd_x(n))
    a(last[-1])
    issued = AHEAD
    fill = []
    BX2 = int(E("BX2", "18"))
    for n in range(48):
        if n == BX2:
            if NX == 12: a(f"s_waitcnt vmcnt({1 if kind == 'gate' else 2})")
            a(f"s_waitcnt lgkmcnt(0)\ns_barrier")
            if not E('PB'): stamp(a, 10)
            while issued < n + AHEAD + 3:
                a(rd_x(issued)); issued += 1
        a(f"s_waitcnt lgkmcnt({issued - n - 1})")
        a(mm(4 + n % 24, 1 + n // 24, XF + 4*((n+X0) % RING)))
        lim = 24 if n < BX2 else 48
        if issued < min(lim, n + 1 + (AHEAD if n < BX2 else AHEAD + 3)):
            a(rd_x(issued)); issued += 1
        if n == 3: fill = epi(0)
        if n == 27: fill = epi(1)
        for x in fill[:4]: a(x)
        fill = fill[4:]
    assert issued == 48
    if kind == "qk":
        a(f"s_cmp_ge_u32 s{S_CT}, 14\ns_nop 9\ns_cbranch_scc1 L_kscale\nL_kscaled:")
        STUBS.append("L_kscale:\n" + "\n".join(f"v_mul_f32 v{ACC+32+j}, s47, v{ACC+32+j}" for j in range(16)) + "\ns_branch L_kscaled")
    else:
        a("s_nop 11")
    for x in epi(2): a(x)

def gemm_setup(a):
    a(f"""
    s_lshl_b32 s{S_CT}, s{S_CB}, 2
    s_add_u32 s{S_CT}, s{S_CT}, s{S_WAVE}
    v_and_b32 v1, 31, v0
    v_lshrrev_b32 v2, 5, v0                ; hi
    v_lshrrev_b32 v3, 1, v0
    v_and_b32 v3, 7, v3
    v_xor_b32 v3, v3, v2
    v_lshlrev_b32 v10, 7, v1
    v_lshl_add_u32 v10, v3, 4, v10
    v_xor_b32 v11, 32, v10
    v_xor_b32 v12, 64, v10
    v_xor_b32 v13, 96, v10
    v_mov_b32 v239, 1
    s_mul_i32 s{T2}, s{S_CT}, 37
    s_lshr_b32 s{T2}, s{T2}, 9
    s_mul_i32 s{T1}, s{T2}, 14
    s_sub_u32 s52, s{S_CT}, s{T1}          ; ct'
    s_lshl_b32 s{T2}, s{T2}, 21
    s_add_u32 s{SRD_R}, s{S_WS}, s{T2}
    s_addc_u32 s{SRD_R+1}, s{S_WS+1}, 0
    s_mov_b32 s{SRD_R+2}, {64*TILE_B}
    s_mov_b32 s{SRD_R+3}, 0x20000
    v_bfe_u32 v16, v0, 4, 1                ; ih
    v_bfe_u32 v4, v0, 2, 2                 ; r
    v_lshl_add_u32 v17, v2, 3, v4          ; 8 hi + r
    v_lshlrev_b32 v8, 8, v17
    v_xor_b32 v17, s{S_WAVE}, v4
    v_lshl_add_u32 v8, v17, 6, v8
    v_lshl_add_u32 v8, v16, 5, v8
    v_add_u32 v8, {SLOT_AT[0]}, v8
    v_and_b32 v17, 3, v0                   ; c
    v_add_u32 v3, {SLOT_AT[0] + 16384}, v10
    v_add_u32 v4, {SLOT_AT[0] + 16384}, v11
    v_add_u32 v5, {SLOT_AT[0] + 16384}, v12
    v_add_u32 v15, {SLOT_AT[0] + 16384}, v13
    v_add_u32 v10, {L_X1}, v10
    v_add_u32 v11, {L_X1}, v11
    v_add_u32 v12, {L_X1}, v12
    v_add_u32 v13, {L_X1}, v13
    """)
    for g_ in dma_chunk(1, 252, 229):
        for x in g_: a(x)
    a(f"""
    s_mul_i32 s56, s{S_RB}, 205
    s_lshr_b32 s56, s56, 10
    s_mul_i32 s{T0}, s56, 5
    s_sub_u32 s{T0}, s{S_RB}, s{T0}
    s_lshl_b32 s{T1}, s56, 4
    s_add_u32 s{T1}, s{T1}, s{T0}
    s_add_u32 s92, s{T1}, s{T0}
    s_add_u32 s93, s92, 1
    s_add_u32 s95, s{T1}, 10
    s_cmp_eq_u32 s{S_RB}, 20
    s_cselect_b32 s92, 15, s92
    s_cselect_b32 s93, 31, s93
    s_cselect_b32 s95, 47, s95
    s_cmp_eq_u32 s{S_RB}, 21
    s_cselect_b32 s92, 63, s92
    s_mul_i32 s{T0}, s{S_RB}, 3
    s_add_u32 s{T1}, s{T0}, 1
    s_add_u32 s94, s{T0}, 2
    s_sub_u32 s{T2}, s{S_CT}, 14
    s_cmp_lt_u32 s{T2}, 28                 ; K or V
    s_cselect_b32 s92, s92, s{T0}
    s_cselect_b32 s93, s93, s{T1}
    s_cselect_b32 s94, 64, s94
    s_cselect_b32 s95, s95, 64
    s_mul_i32 s92, s92, {TILE_B}
    s_mul_i32 s93, s93, {TILE_B}
    s_mul_i32 s94, s94, {TILE_B}
    s_mul_i32 s95, s95, {TILE_B}
    s_mul_i32 s{T0}, s{S_RB}, 3
    s_add_u32 s{T1}, s{T0}, 2
    s_min_u32 s{T1}, s{T1}, 63
    s_cmp_lt_u32 s{S_CT}, 14
    s_cselect_b32 s{T2}, 2, 4
    s_lshr_b32 s{T0}, s{T0}, s{T2}
    s_lshr_b32 s{T1}, s{T1}, s{T2}
    s_cmp_eq_u32 s{T0}, s{T1}
    s_cselect_b32 s54, 3, 15
    s_mov_b32 s55, 0
    s_mov_b32 s49, 0
    s_mul_i32 s51, s{T0}, 14               ; gate wave: first counter
    s_mul_i32 s{T1}, s52, {8*147}
    s_lshr_b32 s{T1}, s{T1}, 10            ; (8 ct') / 7
    v_and_b32 v18, 1, v0
    v_add_u32 v18, s{T1}, v18                ; head
    v_bfe_u32 v19, v0, 1, 2
    s_cmp_eq_u32 s{S_RB}, 20
    s_cselect_b32 s48, 63, 3
    s_cselect_b32 s{T2}, 0, s56
    s_min_u32 s{T2}, s{T2}, 3
    v_lshl_add_u32 v20, v18, 2, s{T2}
    v_add_u32 v20, v20, v19
    v_lshlrev_b32 v20, {CS}, v20
    v_add_u32 v238, {B_L}, v20
    s_sub_u32 s{T2}, s{S_CT}, 14
    s_cmp_lt_u32 s{T2}, 28
    s_cselect_b32 s{T3}, 1, 0
    s_cmp_lt_u32 s{S_RB}, 22
    s_cselect_b32 s{T3}, s{T3}, 0
    s_cselect_b32 s54, s54, 0
    v_mov_b32 v253, s{T3}
    s_cmp_lt_u32 s{T2}, 28
    s_cbranch_scc0 L_cnt_q
    v_mov_b32 v254, v20
    s_cmp_lt_u32 s{S_RB}, 20
    s_cselect_b32 s54, 3, 0
    s_branch L_cnt_done
L_cnt_q:
    s_mov_b32 s48, 1
    v_lshlrev_b32 v18, 4, v18
    v_add3_u32 v18, v18, v19, s{T0}
    v_and_b32 v19, {(1 << QL) - 1}, v18
    v_lshrrev_b32 v18, {QL}, v18
    v_lshlrev_b32 v19, {CS}, v19
    v_add_u32 v19, {B_Q}, v19
    v_lshl_add_u32 v254, v18, 2, v19
    s_cmp_lt_u32 s{S_CT}, 42
    s_cbranch_scc1 L_cnt_done
    v_add_u32 v20, s51, v0
    v_lshl_add_u32 v254, v20, {CS}, {B_BP}
    s_mov_b32 s{T0}, 0x3fff
    s_cmp_eq_u32 s54, 3
    s_cselect_b32 s54, s{T0}, 0xfffffff
    s_cmp_eq_u32 s{S_CT}, 42
    s_cselect_b32 s54, s54, 0
L_cnt_done:
    """)
    if E("PRE"):
        a(f"""
        v_min_u32 v18, 8, v0
        v_lshlrev_b32 v18, 21, v18
        v_add_u32 v18, 0x1f8000, v18
        v_mov_b32 v19, 0
        s_cmp_eq_u32 s{S_LW}, 3
        s_cselect_b64 exec, -1, 0
        global_load_dword v250, v18, {sr(S_WS,2)}
        {"global_load_dword v249, v19, %s" % sr(S_OUT,2) if E("PRE") == "2" else ""}
        {"global_load_dword v248, v19, %s" % sr(S_WO,2) if E("PRE") == "2" else ""}
        s_mov_b64 exec, -1
        """)
    if not E("NOMALL"):
        a("s_cmp_ge_u32 s2, 248\ns_cbranch_scc1 L_womall\nL_womall_back:")
        STUBS.append(f"""
L_womall:
        s_and_b32 s{T0}, s2, 7
        s_lshl_b32 s{T0}, s{T0}, 2
        s_add_u32 s{T0}, s{T0}, s{S_LW}
        s_mul_i32 s{T0}, s{T0}, {98*128}
        v_min_u32 v18, 48, v0
        v_lshl_add_u32 v18, v18, 7, s{T0}
        v_add_u32 v19, {49*128}, v18
        global_load_dword v20, v18, {sr(S_WO,2)}
        global_load_dword v21, v19, {sr(S_WO,2)}
        s_waitcnt vmcnt(0)
        s_branch L_womall_back
        """)
    if E("ASET") == "p": attn_setup(a)
    if E("PB"): stamp(a, 8)
    for g_ in dma_chunk(2, 252, 229):
        for x in g_: a(x)
    if E("PB"): stamp(a, 9)
    a(f"""
    s_cmp_ge_u32 s{S_CT}, 42
    s_cbranch_scc1 L_gate
    s_cmp_ge_u32 s{S_CT}, 28
    s_cbranch_scc1 L_v
    s_branch L_qk
    """)

def gemm_waves(a):
    a(f"""
L_qk:
    v_and_b32 v16, 1, v17
    v_lshrrev_b32 v17, 1, v17
    v_lshl_add_u32 v17, v16, 1, v17
    """)
    assert WS_Q == 0 and WS_K == 1 << 21 and WS_V == 2 << 21
    wa = "v_lshl_add_u32 v8, v17, 3, v8"
    a(wa)
    a(f"""
    s_cmp_ge_u32 s{S_CT}, 14
    s_cselect_b32 s47, {f32(QSCALE)}, 1.0
    s_lshl_b32 s{T0}, s52, 11
    v_add_u32 v6, s{T0}, v{A_L16}
    v_add_u32 v7, 1024, v6
    """)
    gemm_body(a, "qk", "qk")
    a("s_branch L_signal")
    a.label("L_gate")
    a(f"""
    v_lshlrev_b32 v9, 4, v2
    v_add_u32 v9, {L_GATE}, v9
    s_lshl_b32 s47, s{S_C0}, 7
    v_add_u32 v8, s47, v9
    s_add_u32 s{SRD_R}, s{S_WS}, {WS_GT}
    s_addc_u32 s{SRD_R+1}, s{S_WS+1}, 0
    s_cmp_eq_u32 s{S_CT}, 42
    s_cselect_b32 s{SRD_R+2}, 8192, 0
    s_mul_i32 s{T0}, s{S_RB}, {96*4}
    v_lshl_add_u32 v6, v1, 2, s{T0}
    v_mov_b32 v7, v6
    """)
    gemm_body(a, "gate", "g")
    a("s_branch L_signal")
    a.label("L_v")
    a(wa)
    a(f"""
    s_lshl_b32 s{T0}, s52, 9
    v_mul_u32_u24 v6, 7168, v2
    v_lshl_add_u32 v6, v1, 4, v6
    v_add_u32 v6, s{T0}, v6
    v_add_u32 v7, 14336, v6
    """)
    gemm_body(a, "v", "v")
    a.label("L_signal")
    stamp(a, 4)
    a(f"""
    """)
    if E("ASET", "a") == "b": attn_setup(a)
    a(f"""
    s_setprio {E("PRP", "3")}
    s_waitcnt vmcnt(0)
    s_mov_b64 exec, s[54:55]
    s_cbranch_execz L_nosig
    global_atomic_add v254, v239, {sr(S_CNT,2)} sc1
L_nosig:
    s_mov_b64 exec, -1
    """)
    if E("ASET", "a") == "a": attn_setup(a)

Q, O, S, P, KV = 16, 48, 112, 144, 160
A_K, A_V0, A_V1, A_RED_, A_Q, A_L16, A_M0, A_M1, A_PA, A_PE, A_RR, A_OC, A_LC = 224, 225, 226, 227, 230, 231, 232, 233, 234, 235, 236, 237, 255
S_OFF = 9
S_KB = 96
A_RED = 248
S_EXV = 20

def kv_loads(b):
    r = KV + 16 * b
    w = sr(SRD_WS, 4)
    kb = sr(S_KB, 2)
    return [f"global_load_dwordx4 {vr(r,4)}, v{A_K}, {kb} {LD}",
            f"global_load_dwordx4 {vr(r+4,4)}, v{A_K}, {kb} offset:1024 {LD}",
            f"global_load_dwordx4 {vr(r+8,4)}, v{A_V0}, {kb} {LD}",
            f"global_load_dwordx4 {vr(r+12,4)}, v{A_V1}, {kb} {LD}",
            f"s_add_u32 s{S_KB}, s{S_KB}, {TILE_B}\ns_addc_u32 s{S_KB+1}, s{S_KB+1}, 0"]

def slot(a, n, qk, pv, post=None, first=False, mid=None, tight=False, tail=None):
    sc, sn = S + 16 * (n & 1), S + 16 * ((n + 1) & 1)
    pc, pp = P + 8 * (n & 1), P + 8 * ((n + 1) & 1)
    ms = [None] * 4
    if qk is not None:
        k, q = KV + 16 * qk[0], Q + 8 * qk[1]
        ms[0] = mfma(sn, k, q, None)
        ms[1] = mfma(sn, k + 4, q + 4, sn)
    if pv is not None:
        v, o = KV + 16 * pv[0] + 8, O + 16 * pv[1]
        ms[2] = mfma(o, v, pp, None if first else o)
        ms[3] = mfma(o, v + 4, pp + 4, o)
    if tail:
        ms = [ms[2], ms[3], None, tail]
    valu = []
    for g in range(4):
        for j in range(4):
            valu.append(f"v_exp_f32 v{sc+4*g+j}, v{sc+4*g+j}")
            if g > 0 and j == 0:
                valu.append(f"v_cvt_pk_bf16_f32 v{pc+2*g-2}, v{sc+4*g-4}, v{sc+4*g-3}")
                valu.append(f"v_cvt_pk_bf16_f32 v{pc+2*g-1}, v{sc+4*g-2}, v{sc+4*g-1}")
    valu.append(f"v_cvt_pk_bf16_f32 v{pc+6}, v{sc+12}, v{sc+13}")
    valu.append(f"v_cvt_pk_bf16_f32 v{pc+7}, v{sc+14}, v{sc+15}")
    cuts = eval(E("CUTS", "[0, 3, 7, 10, 24]")) if tight else [0, 4, 10, 16, 24]
    for g in range(4):
        if g == 2 and mid:
            for e in mid: a(e)
        if ms[g]: a(ms[g])
        if post and post[g]: a(post[g])
        for x in valu[cuts[g]:cuts[g+1]]: a(x)

def red_writes(j):
    return [f"ds_write_b128 v{A_RED+j}, {vr(O+16*j+4*i,4)} offset:{1024*i}" for i in range(4)]

def attn_setup(a):
    a(f"""
    s_and_b32 s{S_H}, s2, 7
    s_lshl_b32 s{S_H}, s{S_H}, 1
    s_bfe_u32 s{T0}, s2, 0x10003
    s_add_u32 s{S_H}, s{S_H}, s{T0}
    s_lshr_b32 s{S_QB}, s2, 4
    s_mov_b32 s{SRD_WS}, s{S_WS}
    s_mov_b32 s{SRD_WS+1}, s{S_WS+1}
    s_mov_b32 s{SRD_WS+2}, {WS_SIZE}
    s_mov_b32 s{SRD_WS+3}, 0x20000
    s_mul_i32 s{T0}, s{S_H}, 7
    s_lshr_b32 s8, s{T0}, 1                ; u0
    s_mul_i32 s{S_OFF}, s{S_WAVE}, {16*TILE_B}
    s_add_u32 s{S_KB}, s{S_WS}, s{S_OFF}
    s_addc_u32 s{S_KB+1}, s{S_WS+1}, 0
    s_lshl_b32 s{T2}, s8, 9
    v_add_u32 v{A_Q}, s{T2}, v{A_L16}
    v_add_u32 v{A_K}, {WS_K}, v{A_Q}
    v_bfe_u32 v20, v0, 2, 1
    v_bfe_u32 v21, v0, 3, 1
    v_and_b32 v22, 19, v0
    v_lshl_add_u32 v22, v20, 3, v22
    v_lshl_add_u32 v22, v21, 2, v22
    v_lshrrev_b32 v18, 5, v0                ; hi
    v_mul_u32_u24 v19, 7168, v18
    v_lshl_add_u32 v19, v22, 4, v19
    s_lshl_b32 s{T3}, s8, 7
    s_add_u32 s{T3}, s{T3}, {WS_V}
    v_add_u32 v{A_V0}, s{T3}, v19
    v_add_u32 v{A_V1}, 14336, v{A_V0}
    s_bitcmp1_b32 s{S_H}, 0
    s_mov_b32 s{S_EXV}, 0x0fffffff
    s_cselect_b32 s{S_EXV}, 0xfffffff0, s{S_EXV}
    s_cselect_b64 s[18:19], -1, 0
    s_mov_b32 s{S_EXV+1}, s{S_EXV}
    v_mov_b32 v20, {WS_ONE}
    v_cndmask_b32 v{A_V0}, v20, v{A_V0}, {sr(S_EXV,2)}
    v_cndmask_b32 v{A_V1}, v20, v{A_V1}, {sr(S_EXV,2)}
    """)
    for j in range(4):
        a(f"""
        s_add_u32 s{T3}, s{S_WAVE}, {j+1}
        s_and_b32 s{T3}, s{T3}, 3
        s_lshl_b32 s{T0}, s{S_QB}, 2
        s_add_u32 s{T0}, s{T0}, s{T3}
        s_mul_i32 s{10+j}, s{T0}, {TILE_B}
        s_mul_i32 s{T3}, s{T3}, 12288
        s_add_u32 s{T3}, s{T3}, {L_RED + (4096*j if j < 3 else 0)}
        v_add_u32 v{A_RED+j if j < 3 else A_RR}, s{T3}, v{A_L16}
        """)
    a(f"""
    s_lshl_b32 s3, s{T0}, 4
    s_add_u32 s3, s3, s{S_H}
    s_lshl_b32 s3, s3, 11
    s_add_u32 s3, s3, {WS_O}
    s_lshl_b32 s{T0}, s{T0}, {CS}
    s_add_u32 s{T0}, s{T0}, {B_O}
    v_mov_b32 v{A_OC}, s{T0}
    v_mov_b32 v{A_LC}, {L_CNT}
    s_mov_b32 s14, {f32(2.0**60 if E("SLOW") else 2.0**-60)}
    s_mov_b32 s15, {f32(2.0**60)}
    """)
    a(f"""
    s_and_b32 s{T0}, s{S_H}, 1
    v_cmp_lt_u32 vcc, v18, s{T0}
    v_cmp_gt_u32 s[100:101], v18, s{T0}
    s_add_u32 s{T0}, s{S_H}, 1
    s_and_b32 s{T0}, s{T0}, 6
    v_cndmask_b32 v{A_M0}, -1, 0, vcc
    v_cndmask_b32 v{A_M1}, -1, 0, s[100:101]
    s_mov_b64 s[100:101], 0
    s_cmp_eq_u32 s{T0}, 0
    s_cselect_b32 s{T0}, 10, 20
    s_cselect_b32 s{T1}, 2, 4
    s_cselect_b32 s9, 12, 24
    v_mov_b32 v{A_PE}, s{T0}
    v_writelane_b32 v{A_PE}, s{T1}, {4 if E("AP1") else 1}
    s_lshl_b32 s{T0}, s{S_H}, 2
    s_add_u32 s{T0}, s{T0}, s{S_WAVE}
    s_lshl_b32 s{T0}, s{T0}, {CS}
    s_add_u32 s{T1}, s{T0}, {B_L}
    v_mov_b32 v228, s{T1}
    s_and_b32 s{T1}, s{S_H}, {(1 << (QL - 4)) - 1}
    s_lshl_b32 s{T1}, s{T1}, 4
    s_add_u32 s{T1}, s{T1}, s{S_QB}
    s_lshl_b32 s{T1}, s{T1}, {CS}
    s_lshr_b32 s{T2}, s{S_H}, {QL - 4}
    s_lshl_b32 s{T2}, s{T2}, 2
    s_add_u32 s{T1}, s{T1}, s{T2}
    s_add_u32 s{T1}, s{T1}, {B_Q}
    {"v_lshl_add_u32 v%d, v0, %d, s%d" % (A_PA, CS, T0) if E("AP1") else "v_mov_b32 v%d, s%d" % (A_PA, T0)}
    v_writelane_b32 v{A_PA}, s{T1}, {4 if E("AP1") else 1}
    """)

def qmask(j):
    return [f"v_and_b32 v{Q+8*j}, v{A_M0}, v{Q+8*j}", f"v_and_b32 v{Q+8*j+1}, v{A_M0}, v{Q+8*j+1}",
            f"v_and_b32 v{Q+8*j+6}, v{A_M1}, v{Q+8*j+6}", f"v_and_b32 v{Q+8*j+7}, v{A_M1}, v{Q+8*j+7}"]

def attention(a):
    w = sr(SRD_WS, 4)
    stamp(a, 5)
    if E("X_DELAY"): a("s_sleep 64")
    if E("AP1"):
        a(f"""
        s_mov_b64 exec, -1
        s_cmp_eq_u32 s{S_WAVE}, 0
        s_cbranch_scc1 L_pa0
L_paw:
        ds_read_b32 v15, v{A_LC} offset:24
        s_waitcnt lgkmcnt(0)
        v_readfirstlane_b32 s{T0}, v15
        s_cmp_eq_u32 s{T0}, 0
        s_cbranch_scc1 L_paw
        s_branch L_pa1
L_pa0:
        """)
        if E("GAPA"): poll2(a, "a", A_PA, f"v{A_PE}", 31, int(E("GAPA")))
        else: poll(a, "a", A_PA, f"v{A_PE}", 31)
        a(f"ds_write_b32 v{A_LC}, v239 offset:24\nL_pa1:")
    elif E("GAPA"): poll2(a, "a", A_PA, f"v{A_PE}", 3, int(E("GAPA")))
    else: poll(a, "a", A_PA, f"v{A_PE}", 3)
    stamp(a, 6)
    if PROF and E("PCNT"): a(f"s_mov_b32 s84, s{T0}")
    def ldq(j):
        a(f"buffer_load_dwordx4 {vr(Q+8*j,4)}, v{A_Q}, {w}, s{10+j} offen {LD}")
        a(f"buffer_load_dwordx4 {vr(Q+8*j+4,4)}, v{A_Q}, {w}, s{10+j} offen offset:1024 {LD}")
    l0 = kv_loads(0)
    a(l0[0]); a(l0[1])
    ldq(0); ldq(1); ldq(2)
    for x in l0[2:]: a(x)
    ldq(3)
    a("s_waitcnt vmcnt(8)")
    for x in qmask(0): a(x)
    a("s_nop 1")
    a(mfma(S, KV, Q, None))
    l1 = kv_loads(1)
    a(l1[0])
    a(mfma(S, KV + 4, Q + 4, S))
    a(l1[1])
    a("s_waitcnt vmcnt(8)")
    for x in qmask(1): a(x)
    a("s_setprio 0\ns_nop 3")
    stamp(a, 7)
    seq = [(t, q) for t in range(12) for q in range(4)]
    seq += [(12,0),(12,1),(12,2),(13,0),(13,1),(13,2),(14,0),(15,0),(14,1),(15,1),(14,2),(15,2),(12,3),(13,3),(14,3),(15,3)]
    rseq = [(j, i) for i in (0, 3, 1, 2) for j in range(3)]
    rd = [f"ds_read_b128 {vr(O+16*j+4*i,4)}, v{A_RR} offset:{4096*j + 1024*i}" for j, i in rseq]
    for n, (t, q) in enumerate(seq):
        qk = (seq[n+1][0] & 3, seq[n+1][1]) if n < 63 else None
        pv = (seq[n-1][0] & 3, seq[n-1][1]) if n > 0 else None
        post, mid = [None] * 4, None
        if n < 51:
            ld = kv_loads((t + 3) & 3)
            if q == 0: post[0] = ld[0]
            if q == 1: post[0], post[2] = ld[1], ld[2]
            if q == 2:
                post[0], post[1], post[2] = [ld[3]] + ld[4].split('\n')
                if t < 12: post[3] = f"s_waitcnt vmcnt({ {1: 10, 3: 9, 4: 9, 6: 9}.get(t, 8) })"
            if (t, q) == (12, 1): post[3] = "s_waitcnt vmcnt(7)"
        if (t, q) == (13, 1): post[3] = "s_waitcnt vmcnt(4)"
        if (t, q) == (13, 2): post[3] = "s_waitcnt vmcnt(0)"
        first = 1 <= n <= 4
        if t == 0:
            l2 = kv_loads(2)
            if q == 0:
                post = [l1[2], l1[3] + "\n" + l1[4], None, None]
                mid = ["s_waitcnt vmcnt(8)"] + qmask(2)
            if q == 1:
                post = [l2[0], l2[1], l2[2], l2[3] + "\n" + l2[4]]
                mid = ["s_waitcnt vmcnt(6)"] + qmask(3)
            if q == 2:
                post = [ld[0], ld[1], ld[2], ld[3] + "\n" + ld[4] + "\ns_waitcnt vmcnt(10)"]
            if q == 3:
                post[0], post[1] = [f"buffer_store_dwordx4 {vr(PK+4*h,4)}, v{6+h}, {sr(SRD_R,4)}, s95 offen {ST}" for h in range(2)]
                post[3] = "s_waitcnt vmcnt(10)"
        if t == int(E("TGO", "2")) and q == 3:
            post[0] = f"ds_write_b32 v{A_LC}, v239 offset:20"
        if (t, q) == (2, 3):
            post[1] = f"s_mov_b64 exec, s[48:49]\nglobal_atomic_add v238, v253, {sr(S_CNT,2)} sc1\ns_mov_b64 exec, -1"
        if (t, q) == (5, 3):
            post[0] = f"s_mov_b64 exec, 1\nglobal_atomic_add v14, v228, v15, {sr(S_CNT,2)} sc0 sc1\ns_mov_b64 exec, -1"
        if (t, q) == (6, 3):
            post[1] = f"s_waitcnt vmcnt(4)\nv_readfirstlane_b32 s{T1}, v14"
            post[2] = f"s_cmp_lg_u32 s{T1}, s9"
            post[3] = "s_cbranch_scc1 L_late\nL_late_ok:"
            st = Asm(); st("L_late:"); poll(st, "s", 228, "s9", 1); st("s_branch L_late_ok")
            STUBS.append(st.text())
        if (t, q) == (15, 1): post = [None] + red_writes(0)[:3]
        if (t, q) == (14, 2): post[0] = red_writes(0)[3]
        if (t, q) == (15, 2): post = [None] + red_writes(1)[:3]
        if (t, q) == (12, 3): post[0] = red_writes(1)[3]
        if (t, q) == (13, 3):
            r2 = red_writes(2)
            post = [None, r2[0] + "\n" + r2[1], r2[2], r2[3]]
        if (t, q) == (14, 3):
            post = ["s_waitcnt lgkmcnt(0)", "s_barrier", "\n".join(rd[0:3]), "\n".join(rd[3:6])]
        if (t, q) == (15, 3):
            post = ["\n".join(rd[6:9]), "\n".join(rd[9:12]), None, None]
        o = O + 48
        if E("ATS") and n == int(E("ATS")): stamp(a, 2)
        slot(a, n, qk, pv, post, first, mid, tight=t < int(E('TIGHT', '6')),
             tail=mfma(o, KV + 48 + 8, P + 8, o) if n == 63 else None)
    a("s_waitcnt lgkmcnt(0)")
    a(f"v_add_f32 v{O}, v{O}, v{O+16}")
    a(mfma(o, KV + 48 + 12, P + 12, o))
    for i in range(1, 16): a(f"v_add_f32 v{O+i}, v{O+i}, v{O+16+i}")
    if not E('PA'): stamp(a, 8)
    for i in (0, 12, 2, 14, 4, 6, 8, 10):
        a(f"v_pk_add_f32 {vr(O+i,2)}, {vr(O+i,2)}, {vr(O+32+i,2)}")
    for i in (0, 12):
        a(f"v_pk_add_f32 {vr(o+i,2)}, {vr(o+i,2)}, {vr(O+i,2)}")
    rest = [f"v_pk_add_f32 {vr(o+i,2)}, {vr(o+i,2)}, {vr(O+i,2)}" for i in (2, 14, 4, 6, 8, 10)]
    row_sum(a, rest)

def row_sum(a, fill):
    o = O + 48
    a(f"""
    v_cndmask_b32 v10, v{o+12}, v{o}, s[18:19]
    v_cndmask_b32 v13, v{o+12}, v{o}, s[18:19]
    {fill[0]}
    {fill[1]}
    v_permlane32_swap_b32 v10, v13
    {fill[2]}
    v_cndmask_b32 v13, v13, v10, s[18:19]
    {fill[3]}
    v_rcp_f32 v10, v13
    {fill[4]}
    {fill[5]}
    """)

def store_o(a):
    o = O + 48
    w = sr(SRD_WS, 4)
    for h in range(2):
        for i in range(4*h, 4*h + 4):
            a(f"v_pk_mul_f32 {vr(o+2*i,2)}, {vr(o+2*i,2)}, v[10:11] op_sel_hi:[1,0]")
        for i in range(4*h, 4*h + 4):
            a(f"v_cvt_pk_bf16_f32 v{16+i}, v{o+2*i}, v{o+2*i+1}")
        a(f"buffer_store_dwordx4 {vr(16+4*h,4)}, v{A_L16}, {w}, s3 offen offset:{1024*h} {ST}")
    if not E('PA'): stamp(a, 9)
    a(f"v_pk_mul_f32 v[8:9], {vr(o,2)}, 0 op_sel_hi:[1,0]")
    for i in range(2, 16, 2):
        a(f"v_pk_fma_f32 v[8:9], {vr(o+i,2)}, 0, v[8:9] op_sel_hi:[1,0,1]")
    a(f"""
    v_cmp_le_f32 vcc, s14, v13
    v_cmp_ge_f32 s[16:17], s15, v13
    s_and_b64 s[16:17], s[16:17], vcc
    v_cmp_o_f32 vcc, v8, v9
    s_and_b64 s[16:17], s[16:17], vcc
    s_or_b64 s[16:17], s[16:17], s[100:101]
    s_cmp_lg_u64 s[16:17], -1
    s_cbranch_scc1 L_slow
    """)
    a("s_mov_b64 exec, 1")
    a(f"""
    s_waitcnt vmcnt(0)
    global_atomic_add v{A_OC}, v239, {sr(S_CNT,2)} sc1
    """)

def fallback(a):
    M, q, o = 208, Q + 24, O + 48
    l0 = kv_loads(0)
    a(f"""
L_slow:
    s_mov_b64 s[100:101], -1
    s_waitcnt vmcnt(0)
    v_mov_b32 v{M}, 0xff800000
    s_mov_b64 {sr(S_KB,2)}, {sr(S_WS,2)}
    s_mov_b32 s16, 0
L_s1:
    """)
    for x in (l0[0], l0[1], l0[4]): a(x)
    a("s_waitcnt vmcnt(0)")
    a(mfma(S, KV, q, None))
    a(mfma(S, KV + 4, q + 4, S))
    a("s_nop 15")
    for i in range(8):
        a(f"v_max3_f32 v{M}, v{M}, v{S+2*i}, v{S+2*i+1}")
    a(f"""
    s_add_u32 s16, s16, 1
    s_cmp_lt_u32 s16, 64
    s_cbranch_scc1 L_s1
    v_mov_b32 v{M+1}, v{M}
    s_nop 1
    v_permlane32_swap_b32 v{M}, v{M+1}
    s_nop 1
    v_max_f32 v{M}, v{M}, v{M+1}
    """)
    for i in range(16):
        a(f"v_mov_b32 v{o+i}, 0")
    a(f"""
    s_mov_b64 {sr(S_KB,2)}, {sr(S_WS,2)}
    s_mov_b32 s16, 0
L_s2:
    """)
    for x in l0: a(x)
    a("s_waitcnt vmcnt(0)")
    a(mfma(S, KV, q, None))
    a(mfma(S, KV + 4, q + 4, S))
    a("s_nop 15")
    for i in range(16):
        a(f"v_sub_f32 v{S+i}, v{S+i}, v{M}")
    for i in range(16):
        a(f"v_exp_f32 v{S+i}, v{S+i}")
    a("s_nop 0")
    for i in range(8):
        a(f"v_cvt_pk_bf16_f32 v{P+i}, v{S+2*i}, v{S+2*i+1}")
    a("s_nop 1")
    a(mfma(o, KV + 8, P, o))
    a(mfma(o, KV + 12, P + 4, o))
    a(f"""
    s_add_u32 s16, s16, 1
    s_cmp_lt_u32 s16, 64
    s_cbranch_scc1 L_s2
    s_nop 15
    """)
    row_sum(a, ["s_nop 0"] * 6)
    a("s_branch L_fin")

CA, ZR = 192, 28
H_T, H_UB, H_US, H_UTV, H_UTC, H_PL, H_BPC, H_CNT, H_K4, H_K2 = 16, 17, 18, 19, 20, 21, 22, 23, 18, 254

def chunk_of(it):
    if it == 0: return [f"s_mov_b32 s59, s{S_CH}"]
    return [f"s_add_u32 s59, s{S_CH}, {it}", "s_sub_u32 s58, s59, 7", "s_min_u32 s59, s59, s58"]

def dma_chunk(it, vx=2, vw=3):
    slot = SLOT_AT[it]
    g = []
    for j in range(4):
        x = chunk_of(it) + [f"s_mul_i32 s58, s59, {64*2688}", "s_lshl_b32 s59, s59, 7"] if j == 0 else []
        g.append(x + [f"s_add_u32 m0, s{S_LW1K}, {slot + j*4096}",
                      f"s_add_u32 s{T0}, s58, {16*j*2688}",
                      f"buffer_load_dwordx4 v{vw}, {sr(SRD_W,4)}, s{T0} offen lds"])
        if j < (3 if it == 0 else 1):
            g.append([f"s_add_u32 m0, s{S_LW1K}, {slot + 16384 + j*4096}",
                      f"s_add_u32 s{T1}, s59, {j*32*896}",
                      f"buffer_load_dwordx4 v{vx}, {sr(SRD_X,4)}, s{T1} offen lds"])
    return g

def dma_x(i, vx=2):
    g = []
    for it in range(1, 7):
        g.append(chunk_of(it) + ["s_lshl_b32 s59, s59, 7",
                                 f"s_add_u32 m0, s{S_LW1K}, {L_X1 + (i-1)*24576 + (it-1)*4096}",
                                 f"s_add_u32 s{T1}, s59, {i*32*896}",
                                 f"buffer_load_dwordx4 v{vx}, {sr(SRD_X,4)}, s{T1} offen lds"])
    return g

PLAN_G = E("PG", "12,34,56a,").split(",")
PLAN_H = E("PH", ",,,b").split(",")
def items(st, vx, vw):
    g = []
    for c in st:
        g += dma_x(1 + "ab".index(c), vx) if c in "ab" else dma_chunk(int(c), vx, vw)
    return g
def nld(st): return sum(6 if c in "ab" else 5 for c in st)
def wait_for(plan, upto, need, extra=None):
    seq = "".join(plan[:upto + 1])
    pos = max([seq.index(c) for c in need if c in seq], default=-1)
    return None if pos < 0 else nld(seq[pos + 1:])

def helper_setup():
    t = f"""
    s_mov_b32 s{SRD_WS}, s{S_WS}
    s_mov_b32 s{SRD_WS+1}, s{S_WS+1}
    s_mov_b32 s{SRD_WS+2}, {WS_SIZE}
    s_mov_b32 s{SRD_WS+3}, 0x20000
    s_mul_i32 s18, s{S_LW}, {TAB_B}
    v_and_b32 v4, 31, v0
    v_lshrrev_b32 v5, 5, v0
    v_mul_u32_u24 v24, 272, v4
    v_lshl_add_u32 v24, v5, 4, v24
    v_add_u32 v24, s18, v24
    s_lshr_b32 s47, s{S_LW}, 1
    s_mul_i32 s{T0}, s{S_LW}, 3072
    s_add_u32 s{T0}, s{T0}, {L_XCH}
    v_lshl_add_u32 v25, v0, 4, s{T0}
    s_lshl_b32 s{T0}, s{S_LW}, 2
    s_add_u32 s{T0}, s{T0}, {L_CNT + 48}
    v_mov_b32 v255, s{T0}
    v_mov_b32 v{H_CNT}, {L_CNT}
    v_and_b32 v14, 15, v0
    v_lshrrev_b32 v15, 5, v0
    s_lshl_b32 s{T0}, s{S_LW}, 1
    v_add_u32 v15, s{T0}, v15
    v_lshrrev_b32 v78, 1, v14
    v_xor_b32 v15, v15, v78
    v_lshlrev_b32 v78, 7, v14
    v_lshl_add_u32 v78, v15, 4, v78
    v_bfe_u32 v15, v0, 4, 1
    v_lshl_add_u32 v78, v15, 3, v78
    v_add_u32 v78, {SLOT_AT[0] + 16384}, v78
    s_mul_i32 s{T0}, s{S_RB}, {3*TILE_B}
    s_lshl_b32 s{T1}, s{S_C0}, 12
    s_add_u32 s{T1}, s{T1}, s{S_LW1K}
    s_add_u32 s{T1}, s{T1}, s{T0}
    v_lshl_add_u32 v79, v0, 4, s{T1}
    s_add_u32 s92, s{S_WS}, {WS_UT}
    s_addc_u32 s93, s{S_WS+1}, 0
    s_sub_u32 s{T0}, s{S_CB}, {E('UCB', '2')}
    s_cmp_lt_u32 s{T0}, 7
    s_cselect_b32 s94, {0 if E('X_NOUT') else 64*TILE_B}, 0
    s_mov_b32 s95, 0x20000
    s_cselect_b32 s48, 1, 0
    s_cmp_ge_u32 s{S_RB}, 22
    s_cselect_b32 s48, 0, s48
    s_mov_b32 s54, {TILE_B}
    s_mov_b32 s55, {2*TILE_B}
    s_lshl_b32 s{T0}, s{S_C0}, 2
    s_add_u32 s{T0}, s{T0}, s{S_LW}
    s_lshl_b32 s{T0}, s{T0}, {CS}
    s_add_u32 s{T0}, s{T0}, {B_U}
    v_mov_b32 v92, s{T0}
    v_mov_b32 v93, s48
    s_lshr_b32 s{T0}, s{S_P}, 3
    s_lshl_b32 s{T0}, s{T0}, {CS}
    s_add_u32 s{T0}, s{T0}, {B_U}
    v_mov_b32 v{H_UTC}, s{T0}
    v_lshrrev_b32 v14, 2, v0
    v_mul_u32_u24 v14, {TILE_B}, v14
    v_and_b32 v15, 3, v0
    v_lshl_add_u32 v{H_UTV}, v15, 6, v14
    s_lshr_b32 s14, s{S_P}, 1
    s_lshl_b32 s14, s14, 8
    s_and_b32 s15, s{S_P}, 1
    s_lshl_b32 s15, s15, 1
    s_add_u32 s15, s15, s47
    s_lshl_b32 s15, s15, 4
    s_add_u32 s14, s14, s15
    s_and_b32 s16, s{S_LW}, 1
    s_mul_i32 s15, s16, {32*TILE_B}
    s_add_u32 s14, s14, s15
    s_add_u32 s14, s14, {WS_UT}
    s_add_u32 s15, s14, {16*TILE_B}
    s_mul_i32 s17, s47, {U_B}
    s_add_u32 s13, s17, {L_U}
    s_lshl_b32 s16, s16, 11
    s_add_u32 s17, s17, s16
    s_mul_i32 s19, s47, {KC_B}
    s_add_u32 s19, s19, {L_KC}
    s_add_u32 s{T0}, s19, 64
    v_lshl_add_u32 v{H_K4}, v0, 4, s{T0}
    v_lshl_add_u32 v{H_K2}, v4, 4, s{T0}
    v_lshl_add_u32 v{H_K2}, v5, 3, v{H_K2}
    v_bfe_u32 v14, v0, 4, 2
    v_lshlrev_b32 v{H_T}, 5, v14
    v_lshl_add_u32 v{H_T}, v15, 3, v{H_T}
    v_bfe_u32 v14, v0, 2, 2
    v_lshlrev_b32 v14, 3, v14
    v_sub_u32 v{H_T}, v{H_T}, v14
    s_add_u32 s{T0}, s19, {64 - 32}
    v_add_u32 v{H_T}, s{T0}, v{H_T}
    ; U address: L_U + 512 + 16*(l&31) - 64 hi + 128*beta
    v_lshlrev_b32 v14, 4, v4
    v_lshlrev_b32 v15, 6, v5
    v_sub_u32 v14, v14, v15
    s_add_u32 s{T0}, s13, {512 - 384}
    v_add_u32 v{H_UB}, s{T0}, v14
    s_lshl_b32 s{T0}, s{S_LW}, 11
    v_lshl_add_u32 v{H_PL}, v0, 4, s{T0}
    s_lshl_b32 s12, s{S_P}, 13
    s_add_u32 s12, s12, {WS_BP}
    s_lshr_b32 s{T1}, s{S_P}, 4
    s_mul_i32 s{T0}, s{S_LW}, 14
    s_add_u32 s{T0}, s{T0}, s{T1}
    s_lshl_b32 s{T0}, s{T0}, {CS}
    s_add_u32 s{T0}, s{T0}, {B_BP}
    v_mov_b32 v{H_BPC}, s{T0}
    """
    return [l.strip() for l in t.split("\n") if l.strip() and not l.strip().startswith(";")]

def conv(a):
    w = sr(SRD_WS, 4)
    stamp(a, 5)
    UFR, TR, NT = 64, 32, 8
    def variant(tiles, tag):
        top = min(4 * max(tiles) + 3, int(E('X_TOP', '99')))
        def rd_t(ph):
            t = TR + 4 * (ph % NT)
            return [f"ds_read_b64_tr_b16 {vr(t,2)}, v{H_T} offset:{128*ph + 32}",
                    f"ds_read_b64_tr_b16 {vr(t+2,2)}, v{H_T} offset:{128*ph}"]
        have = set()
        need = []
        for ph in range(top + 1):
            r = rd_t(ph)
            for tau in tiles:
                b = 4 * tau - ph
                if b >= -3 and b not in have:
                    have.add(b)
                    r.append(f"ds_read_b128 {vr(UFR + 4*(b+3), 4)}, v{H_UB} offset:{128*(b+3)}")
            need.append(r)
        queue = [(ph, x) for ph in range(top + 1) for x in need[ph]]
        issued = 0
        def issue(k, maxph):
            nonlocal issued
            while k > 0 and issued < len(queue) and queue[issued][0] <= maxph:
                a(queue[issued][1]); issued += 1; k -= 1
        issue(12, 1)
        a(f"s_setprio {E('PRC', '0')}")
        done = 0
        for ph in range(top + 1):
            done += len(need[ph])
            issue(max(0, done - issued), ph)
            a(f"s_waitcnt lgkmcnt({min(15, issued - done)})")
            act = [k for k, tau in enumerate(tiles) if 4 * tau - ph >= -3]
            for k in act:
                b = 4 * tiles[k] - ph
                a(mfma(CA + 16*k, UFR + 4*(b+3), TR + 4*(ph % NT), None if ph == 0 else CA + 16*k))
                issue(min(2, 12 - (issued - done)), ph + NT - 1)
        assert issued == len(queue)
        a(f"s_setprio {E('PRE_', '1')}")
        stamp(a, 6)
        a(f"""
L_tab_{tag}:
        ds_read_b32 v15, v{H_CNT} offset:4
        s_waitcnt lgkmcnt(0)
        v_readfirstlane_b32 s{T0}, v15
        s_cmp_lt_u32 s{T0}, 4
        s_cbranch_scc1 L_tab_{tag}
        """)
        if 0 in tiles:
            a(f"""
            v_and_b32 v14, 3, v0
            v_mul_u32_u24 v14, {2*PL_B}, v14
            v_add_u32 v14, m0, v14
            ds_write_b128 v14, {vr(ZR,4)}
            """)
        order = sorted(range(4), key=lambda k: tiles[k])
        for k in ([] if E("X_NOPL") else order):
            for r in range(16):
                a(f"ds_write_addtid_b32 v{CA+16*k+r} offset:{(r&3)*2*PL_B + 1024*tiles[k] + 256*(r>>2) + 4*(r&3)}")
    a(f"""
    s_mul_i32 m0, s47, {PL_B}
    s_bitcmp1_b32 s{S_LW}, 0
    s_cbranch_scc1 L_cB
    """)
    variant([7, 4, 3, 0], "A")
    a("s_branch L_cC\nL_cB:")
    variant([6, 5, 2, 1], "B")
    a("L_cC:")
    lds_sync(a, 2, "c", vm=False)
    for hf in range(2):
        for pl in range(8):
            a(f"ds_read_b128 {vr(CA+32*hf+4*pl,4)}, v{H_PL} offset:{pl*PL_B + 1024*hf}")
    for hf in range(2):
        b = CA + 32*hf
        a(f"s_waitcnt lgkmcnt({8 - 8*hf})")
        for i in range(0, 8 if E("PKA") else 0, 2):
            a(f"v_pk_add_f32 {vr(b+i,2)}, {vr(b+i,2)}, {vr(b+8+i,2)}")
            a(f"v_pk_add_f32 {vr(b+16+i,2)}, {vr(b+16+i,2)}, {vr(b+24+i,2)}")
        for i in range(0, 8 if E("PKA") else 0, 2):
            a(f"v_pk_add_f32 {vr(b+i,2)}, {vr(b+i,2)}, {vr(b+16+i,2)}")
        for i in range(0 if E("X_NOADD") else 8):
            a(f"v_add_f32 v{b+i}, v{b+i}, v{b+8+i}")
            a(f"v_add_f32 v{b+16+i}, v{b+16+i}, v{b+24+i}")
        for i in range(0 if E("X_NOADD") else 8):
            a(f"v_add_f32 v{b+i}, v{b+i}, v{b+16+i}")
        for i in range(4):
            a(f"v_cvt_pk_bf16_f32 v{b+i}, v{b+i}, v{b+4+i}")
        if E("NOBGATE"):
            a(f"buffer_store_dwordx4 {vr(b,4)}, v{H_PL}, {w}, s12 offen offset:{1024*hf} {ST}")
    if not E("NOBGATE"):
        a(f"""
L_wait_b:
        ds_read_b32 v15, v{H_CNT} offset:20
        s_waitcnt lgkmcnt(0)
        v_readfirstlane_b32 s{T0}, v15
        s_cmp_lg_u32 s{T0}, 0
        s_cbranch_scc1 L_go_b
        s_sleep 4
        s_branch L_wait_b
L_go_b:
        """)
        for hf in range(2):
            a(f"buffer_store_dwordx4 {vr(CA+32*hf,4)}, v{H_PL}, {w}, s12 offen offset:{1024*hf} {ST}")
    if E("WARM"):
        a(f"""
        s_lshr_b32 s{T0}, s2, 3
        s_lshl_b32 s{T0}, s{T0}, 2
        s_add_u32 s{T0}, s{T0}, s{S_LW}
        s_mul_i32 s{T0}, s{T0}, {28*128}
        v_min_u32 v14, 27, v0
        v_lshl_add_u32 v14, v14, 7, s{T0}
        global_load_dword v26, v14, {sr(S_WO,2)}
        """)
    lds_sync(a, 3, "d", vm=False)

def outproj_setup(a):
    a(f"""
    s_and_b32 s8, s2, 7
    s_lshl_b32 s8, s8, 3
    s_lshr_b32 s{T0}, s2, 5
    s_add_u32 s8, s8, s{T0}
    s_bfe_u32 s9, s2, 0x20003
    s_lshl_b32 s10, s9, 2
    s_add_u32 s10, s10, s{S_LW}
    v_lshrrev_b32 v36, 4, v0
    v_lshlrev_b32 v37, 2, v36
    v_xor_b32 v37, v37, v0
    v_and_b32 v37, 15, v37
    s_lshl_b32 s{T0}, s{S_LW}, 2
    v_add_u32 v36, s{T0}, v36
    v_mul_u32_u24 v3, 896, v36
    v_lshl_add_u32 v3, v37, 4, v3
    s_cmp_eq_u32 s9, 3
    s_cselect_b32 s{T0}, 8, 16
    v_cmp_le_u32 vcc, s{T0}, v37
    s_lshl_b32 s{T0}, s9, 8
    s_add_u32 s{SRD_X}, s{S_WO}, s{T0}
    s_addc_u32 s{SRD_X+1}, s{S_WO+1}, 0
    s_sub_u32 s{SRD_X+2}, {WO_BYTES}, s{T0}
    v_mov_b32 v37, 0x1000000
    v_cndmask_b32 v3, v3, v37, vcc
    v_bfe_u32 v37, v0, 2, 2
    v_lshl_add_u32 v8, v5, 3, v37
    v_lshlrev_b32 v8, 8, v8
    v_xor_b32 v37, s{S_LW}, v37
    v_lshl_add_u32 v8, v37, 6, v8
    v_bfe_u32 v37, v0, 4, 1
    v_lshl_add_u32 v8, v37, 5, v8
    v_and_b32 v37, 1, v0
    v_lshl_add_u32 v8, v37, 4, v8
    v_bfe_u32 v37, v0, 1, 1
    v_lshl_add_u32 v8, v37, 3, v8
    v_lshl_add_u32 v9, v5, 11, v8
    v_mul_u32_u24 v37, {48*256}, v5
    v_add_u32 v10, v37, v8
    s_cmp_lt_u32 s2, 224
    s_cselect_b32 s{T0}, 1, 0
    v_mov_b32 v1, s{T0}
    s_lshr_b32 s{T0}, s8, 4                ; quarter
    s_mul_i32 s{T1}, s{T0}, 14
    s_add_u32 s{T1}, s{T1}, s10
    s_lshl_b32 s{T1}, s{T1}, {CS}
    s_add_u32 s{T1}, s{T1}, {B_BP}
    v_mov_b32 v11, s{T1}
    v_lshlrev_b32 v12, 2, v4
    v_lshl_add_u32 v13, v5, 15, v12
    """)

def outproj(a):
    WOF, ACC3, BR, OF, BB = 32, 224, 208, 160, 192
    KS = []
    for pp in range(0, 8, 2):
        for p_ in (pp, pp + 1):
            KS += [(p_, 4096*p_, 56*p_, 0), (p_, 4096*p_ + 1024, 56*p_ + 16, 1), (p_, 4096*p_ + 3072, 56*p_ + 40, 0)]
        KS.append((pp + 1, 4096*pp, 56*pp + 24, 2))
    w = sr(SRD_WS, 4)
    a(f"""
    s_mov_b32 s12, 0
L_wait_at:
    ds_read_b32 v15, v{H_CNT} offset:20
    s_waitcnt lgkmcnt(0)
    v_readfirstlane_b32 s{T0}, v15
    s_cmp_lg_u32 s{T0}, 0
    s_cbranch_scc1 L_go_at
    s_sleep 8
    s_branch L_wait_at
L_go_at:
    """)
    for rnd in range(0 if E("X_NOWO") else 2):
        a(f"s_mov_b32 m0, s{S_LW1K}\ns_nop 0")
        for i in range(14):
            a(f"buffer_load_dwordx4 v3, {sr(SRD_X,4)}, s12 offen lds")
            a(f"s_add_u32 s12, s12, {16*896}")
            if i < 13:
                a(f"s_add_u32 m0, m0, 4096\ns_waitcnt vmcnt({E('PACE', '3')})")
            if rnd == 0 and i == int(E('PACE', '3')):
                a(f"""
                s_mov_b64 exec, 1
                global_atomic_add v{H_BPC}, v1, {sr(S_CNT,2)} sc1
                s_mov_b64 exec, -1
                """)
        lds_sync(a, 8 + 2*rnd, f"w{rnd}")
        for k in range(14):
            _, _, row, kind = KS[k]
            va = (8, 9, 10)[kind]
            a(f"ds_read_b64_tr_b16 {vr(WOF+56*rnd+4*k,2)}, v{va} offset:{256*row}")
            a(f"ds_read_b64_tr_b16 {vr(WOF+56*rnd+4*k+2,2)}, v{va} offset:{256*row+1024}")
        if rnd == 0: lds_sync(a, 9, "wx", vm=False)
    a(f"""
    s_cmp_ge_u32 s10, 14
    s_cbranch_scc1 L_nowo
    """)
    if not E('PSTART'): stamp(a, 8)
    poll(a, "b", 11, "22", 1, sleep=16, limit=2 if E("X_NOCONV") else SPIN_MAX)
    a(f"""
    s_lshl_b32 s{T0}, s10, 17
    s_lshl_b32 s{T1}, s8, 7
    s_add_u32 s{T0}, s{T0}, s{T1}
    s_add_u32 s{T0}, s{T0}, {WS_BP}
    s_add_u32 s{T1}, s{T1}, {WS_GT}
    buffer_load_dword v{BR+8}, v12, {w}, s{T1} offen {LD}
    """)
    for i in range(8):
        off = (8 * (i >> 2) + (i & 3)) * 8192
        a(f"s_add_u32 s{T2}, s{T0}, {off}")
        a(f"buffer_load_dword v{BR+i}, v13, {w}, s{T2} offen {LD}")
    a(f"""
    """)
    a("L_nowo:\ns_waitcnt vmcnt(0) lgkmcnt(0)")
    if not E('PSTART'): stamp(a, 9)
    a(f"""
    s_barrier
    s_setprio 0
    """)
    if (not E("NOHALF")):
        a(f"""
        s_lshl_b32 s{T3}, s{S_LW}, 11
        s_add_u32 s{T3}, s{T3}, 32768
        v_bfe_u32 v10, v0, 1, 2
        v_xor_b32 v9, v5, v10
        v_lshl_add_u32 v13, v4, 6, s{T3}
        v_lshl_add_u32 v9, v9, 4, v13
        v_xor_b32 v3, 32, v9
        v_lshrrev_b32 v13, 2, v0               ; row
        v_and_b32 v10, 3, v0
        v_mul_u32_u24 v12, 896, v13
        v_lshl_add_u32 v12, v10, 4, v12
        v_bfe_u32 v11, v0, 3, 2
        v_xor_b32 v10, v10, v11
        v_lshl_add_u32 v13, v13, 6, s{T3}
        v_lshl_add_u32 v10, v10, 4, v13
        v_add_u32 v13, {16*896}, v12
        s_mul_i32 s{T0}, s8, {32*896}
        s_lshl_b32 s{T1}, s10, 6
        """)
    elif not E("NOFULL"):
        a(f"""
        ; the two waves of a pair exchange through LDS so that every store covers whole 128-B lines
        s_and_b32 s{T2}, s{S_LW}, 1
        s_lshr_b32 s{T3}, s{S_LW}, 1
        s_lshl_b32 s{T3}, s{T3}, 12
        s_add_u32 s{T3}, s{T3}, 32768
        s_lshl_b32 s{T0}, s{T2}, 2
        v_add_u32 v9, s{T0}, v5
        v_and_b32 v10, 7, v0
        v_xor_b32 v9, v9, v10
        v_lshl_add_u32 v13, v4, 7, s{T3}
        v_lshl_add_u32 v9, v9, 4, v13
        v_xor_b32 v3, 32, v9
        v_lshrrev_b32 v13, 3, v0
        v_mul_u32_u24 v12, 896, v13
        v_lshl_add_u32 v12, v10, 4, v12
        v_xor_b32 v10, v10, v13
        v_lshlrev_b32 v13, 7, v13
        v_lshl_add_u32 v10, v10, 4, v13
        s_lshl_b32 s{T0}, s{T2}, 11
        s_add_u32 s{T3}, s{T3}, s{T0}
        v_add_u32 v10, s{T3}, v10
        v_add_u32 v13, {8*896}, v12
        s_mul_i32 s{T0}, s8, {32*896}
        s_lshr_b32 s{T1}, s10, 1
        s_lshl_b32 s{T1}, s{T1}, 7
        s_add_u32 s{T0}, s{T0}, s{T1}
        s_mul_i32 s{T1}, s{T2}, {16*896}
        """)
    else:
        a(f"""
        v_mul_u32_u24 v12, 896, v4
        v_lshl_add_u32 v12, v5, 4, v12
        s_mul_i32 s{T0}, s8, {32*896}
        s_lshl_b32 s{T1}, s10, 6
        """)
    a(f"""
    s_add_u32 s{T0}, s{T0}, s{T1}
    s_add_u32 s{S_OUT}, s{S_OUT}, s{T0}
    s_addc_u32 s{S_OUT+1}, s{S_OUT+1}, 0
    v_lshlrev_b32 v2, 4, v0
    v_lshl_add_u32 v16, v5, 10, v2
    v_mul_u32_u24 v17, 3584, v5
    v_add_u32 v17, v17, v2
    s_lshl_b32 s{T0}, s8, {CS}
    s_add_u32 s{T0}, s{T0}, {B_O}
    v_mov_b32 v8, s{T0}
    s_lshl_b32 s12, s8, 15
    s_add_u32 s12, s12, {WS_O}
    s_add_u32 s12, s12, s{S_LW1K}
    s_mov_b32 m0, s{S_LW1K}
    """)
    a(f"""
    v_sub_f32 v{BR+9}, 1.0, v{BR+8}
    v_cvt_pk_bf16_f32 v{BR+9}, v{BR+9}, v{BR+9}
    v_and_b32 v{BR+9}, 0xffff0000, v{BR+9}
    """)
    for i in range(8):
        a(f"v_lshlrev_b32 v{BB+2*i}, 16, v{BR+i}")
        a(f"v_and_b32 v{BB+2*i+1}, 0xffff0000, v{BR+i}")
    for i in range(16):
        a(f"v_mul_f32 v{BB+i}, v{BB+i}, v{BR+9}")
    a(f"""
    {"s_barrier" if E("WAITB") else ""}
    """)
    if not E("OP4"):
        a(f"s_cmp_lg_u32 s{S_LW}, 0\ns_cbranch_scc1 L_ok_o")
        if E("GAPO"): poll2(a, "o", 8, "16", 1, int(E("GAPO")))
        else: poll(a, "o", 8, "16", 1)
        a("s_barrier")
    else: poll(a, "o", 8, "16", 1)
    stamp(a, 10)
    for i in range(8):
        a(f"buffer_load_dwordx4 v2, {w}, s12 offen {LD} lds")
        if i < 7: a("s_add_u32 m0, m0, 4096\ns_add_u32 s12, s12, 4096")
    bars = {0: 6, 7: 4, 14: 0}
    cnt = [2 if x[3] == 2 else 1 for x in KS]
    def rd(k):
        if k in bars:
            a(f"s_waitcnt vmcnt({bars[k]})\ns_barrier")
            if k == 0: a("s_cmp_ge_u32 s10, 14\ns_cbranch_scc1 L_idle3")
        _, off, _, kind = KS[k]
        r = OF + 4*(k % 8)
        if kind == 2:
            a(f"ds_read_b64 {vr(r,2)}, v17 offset:{off + 1536}")
            a(f"ds_read_b64 {vr(r+2,2)}, v17 offset:{off + 2048 + 8}")
        else:
            a(f"ds_read_b128 {vr(r,4)}, v{(2, 16)[kind]} offset:{off}")
    issued = 0
    for k in range(28):
        want = min(28, k + 6)
        if k < 2: want = 5 + k
        while issued < want:
            rd(issued); issued += 1
        a(f"s_waitcnt lgkmcnt({sum(cnt[k+1:issued])})")
        a(mfma(ACC3, WOF + 4*k, OF + 4*(k%8), None if k == 0 else ACC3))
    a("s_nop 11")
    for h in range(2):
        for i in range(8*h, 8*h + 8, 2):
            a(f"v_pk_fma_f32 {vr(BB+i,2)}, {vr(ACC3+i,2)}, {vr(BR+8,2)}, {vr(BB+i,2)} op_sel_hi:[1,0,1]")
        for i in range(4*h, 4*h + 4):
            a(f"v_cvt_pk_bf16_f32 v{OF+i}, v{BB+2*i}, v{BB+2*i+1}")
        if not E("NOFULL"):
            a(f"ds_write_b128 v{(9, 3)[h]}, {vr(OF+4*h,4)}")
        else:
            a(f"global_store_dwordx4 v12, {vr(OF+4*h,4)}, {sr(S_OUT,2)} offset:{32*h} {E('STO', 'sc1')}")
    if not E("NOFULL"):
        a(f"""
        {"" if (not E("NOHALF")) else "s_waitcnt lgkmcnt(0)"}
        {"" if (not E("NOHALF")) else "s_barrier"}
        ds_read_b128 {vr(OF+8,4)}, v10
        ds_read_b128 {vr(OF+12,4)}, v10 offset:1024
        s_waitcnt lgkmcnt(1)
        global_store_dwordx4 v12, {vr(OF+8,4)}, {sr(S_OUT,2)} {E('STO', 'sc1')}
        s_waitcnt lgkmcnt(0)
        global_store_dwordx4 v13, {vr(OF+12,4)}, {sr(S_OUT,2)} {E('STO', 'sc1')}
        """)
    if PROF and E("PEND"): stamp(a, 9); a("s_waitcnt vmcnt(0)")
    a(endp("L_end"))
    a("L_idle3:\ns_waitcnt vmcnt(0)")
    a(endp("L_end"))


def expand2(a, store, A):
    a(f"""
    v_add_f32 v{A}, v{A}, v36
    v_cvt_pk_bf16_f32 v45, v{A+2}, v{A+3}
    v_cvt_pk_bf16_f32 v44, v{A}, v{A+1}
    v_mov_b32_dpp v40, v{A+8} wave_rol:1 row_mask:0xf bank_mask:0xf
    """)
    store(2, 44, 0)
    a(f"""
    v_mov_b32_dpp v41, v{A+10} wave_rol:1 row_mask:0xf bank_mask:0xf
    v_mov_b32_dpp v40, v{A+6} wave_shl:1 row_mask:0xc bank_mask:0xf
    v_cvt_pk_bf16_f32 v46, v{A+4}, v{A+4}
    v_mov_b32_dpp v41, v{A+8} wave_shl:1 row_mask:0xf bank_mask:0xf
    v_mov_b32_dpp v40, v{A+6} quad_perm:[0,1,2,3] row_mask:0x3 bank_mask:0xf
    v_cvt_pk_bf16_f32 v48, v{A+8}, v{A+8}
    v_cvt_pk_bf16_f32 v47, v{A+5}, v40
    v_cvt_pk_bf16_f32 v49, v{A+8}, v{A+9}
    """)
    store(2, 46, 512)
    a(f"""
    v_cvt_pk_bf16_f32 v50, v{A+9}, v{A+9}
    v_cvt_pk_bf16_f32 v51, v41, v41
    v_mov_b32_dpp v42, v{A+11} wave_rol:1 row_mask:0xf bank_mask:0xf
    """)
    store(4, 48, 1024)
    a(f"""
    v_mov_b32_dpp v43, v{A+7} wave_rol:1 row_mask:0xf bank_mask:0xf
    v_mov_b32_dpp v42, v{A+10} wave_shl:1 row_mask:0xf bank_mask:0xf
    v_cvt_pk_bf16_f32 v52, v{A+10}, v{A+10}
    v_mov_b32_dpp v43, v{A+11} wave_shl:1 row_mask:0xf bank_mask:0xf
    v_cndmask_b32 v38, v{A+10}, v42, vcc
    v_cvt_pk_bf16_f32 v55, v42, v42
    v_mov_b32 v53, v52
    v_cvt_pk_bf16_f32 v54, v38, v42
    v_cndmask_b32 v39, v{A+11}, v43, vcc
    """)
    store(4, 52, 2048)
    a(f"""
    v_cvt_pk_bf16_f32 v56, v{A+11}, v{A+11}
    v_cvt_pk_bf16_f32 v59, v43, v43
    v_cvt_pk_bf16_f32 v58, v39, v43
    v_mov_b32 v57, v56
    """)
    store(4, 56, 3072)

def helper_waves(a):
    w = sr(SRD_WS, 4)
    def emit(groups, fill=None, n=0, head=50):
        if fill is not None:
            h = n * head // 100
            for x in fill[:h]: a(x)
            del fill[:h]
            n -= h
        for k, g in enumerate(groups):
            for x in g: a(x)
            if fill is not None:
                m = n * (k + 1) // len(groups) - n * k // len(groups)
                for x in fill[:m]: a(x)
                del fill[:m]
    O0, O1, FV0, FU0, FV1, FU1, KA = 148, 201, 80, 112, 148, 36, 180
    k0, k1 = kgen_split(0, O0, bool(E("PL0"))), kgen_split(1, O1, not E("PK1"))
    if E("PB"): stamp(a, 8)
    if E("XT"):
        a(f"""
        s_cmp_lg_u32 s{S_LW}, 0
        s_cbranch_scc1 L_noxt
        s_add_u32 s{T0}, s{S_C0}, 2
        s_sub_u32 s{T1}, s{T0}, 7
        s_cmp_ge_u32 s{T0}, 7
        s_cselect_b32 s{T0}, s{T1}, s{T0}
        s_lshl_b32 s{T0}, s{T0}, 7
        s_add_u32 s{T0}, s{T0}, {32*896}
        v_mul_u32_u24 v14, 896, v0
        buffer_load_dword v6, v14, {sr(SRD_X,4)}, s{T0} offen
L_noxt:
        """)
    hs_all = helper_setup()
    cut = [i for i, x in enumerate(hs_all) if x.startswith("v_mov_b32 v93")][0] + 1
    LATE = hs_all[cut:] if E("HSL") else []
    for ins in (hs_all[:cut] if E("HSL") else hs_all): a(ins)
    a(f"""
    s_waitcnt lgkmcnt(0)
    s_lshl_b32 s{T1}, s51, 16
    s_and_b32 s51, s51, 0xffff0000
    s_lshl_b32 s{T2}, s52, 16
    s_and_b32 s52, s52, 0xffff0000
    s_cmp_ge_u32 s{S_LW}, 2
    s_cselect_b32 s51, s51, s{T1}
    s_cselect_b32 s{S_DSK}, s52, s{T2}
    v_mov_b32 v12, s51
    v_mul_f32 v12, {f32(LOG2E)}, v12
    v_exp_f32 v12, v12
    s_nop 0
    v_cvt_pk_bf16_f32 v12, v12, v12
    v_and_b32 v12, 0xffff0000, v12         ; dt
    v_add_f32 v13, v12, v12                ; 2 dt
    """)
    if E("PB"): stamp(a, 9)
    a("""
    """)
    fill = k0[0] + k1[0]
    if E("X_NOFILL"): fill = []
    a("s_waitcnt vmcnt(0)")
    if E("PB"): stamp(a, 8)
    emit([[]], fill, int(E("SLP", "231")))
    if E("X_BURN"):
        for i in range(8):
            a(f"v_mul_u32_u24 v{100+i}, {0x9e37 + 778*i}, v79\nv_and_b32 v{100+i}, 0x3fffbfff, v{100+i}\nv_or_b32 v{100+i}, 0x3c000000, v{100+i}")
        a("s_nop 1")
        for i in range(int(E("X_BURN"))):
            a(mfma(112, 100 + 4*(i & 1), 104 - 4*((i >> 1) & 1), None if i == 0 else 112))
    a("""
    s_setprio 3
    s_barrier                              ; B0
    """)
    for i in range(3):
        a(f"ds_read_b64_tr_b16 {vr(80+4*i,2)}, v78 offset:{i*4096}")
        a(f"ds_read_b64_tr_b16 {vr(82+4*i,2)}, v78 offset:{i*4096+2048}")
    USP = int(E("USP", "0"))
    for i in range(3):
        a(f"s_waitcnt lgkmcnt({4 - 2*i})")
        a(f"buffer_store_dwordx4 {vr(80+4*i,4)}, v79, s[92:95], {['0','s54','s55'][i]} offen {E('STU', ST)}")
        if USP and i < 2:
            a("s_setprio 0"); emit([[]], fill, USP); a("s_setprio 3")
    DBL = int(E("DBL", "60"))
    dbl = f"s_setprio 3\nglobal_load_dword v6, v7, {sr(S_DBG,2)} sc1\ns_setprio 0"
    a("s_setprio 0\ns_waitcnt vmcnt(3)" if DBL else dbl + "\ns_waitcnt vmcnt(4)")
    stamp(a, 1)
    HD = int(E("HD", "0"))
    SL = [int(x) for x in E("SL", "110,180,70").split(",")]
    assert not PLAN_H[0] and not set("12") & set("".join(PLAN_H))
    if DBL:
        emit([[]], fill, DBL); a(dbl); SL[0] -= DBL
    emit(items(PLAN_H[1], 2, 3) or [[]], fill, SL[0], HD)
    a("s_barrier")
    h = int(E("USIG", "20"))
    emit([[]], fill, h)
    a(f"""
    s_setprio 3
    s_waitcnt vmcnt({nld(PLAN_H[1])})
    v_cmp_eq_u32 vcc, 0, v6
    s_cbranch_vccnz L_hs
L_hs_ok:
    s_mov_b64 exec, 1
    global_atomic_add v92, v93, {sr(S_CNT,2)} sc1
    s_mov_b64 exec, -1
    s_setprio 0
    """)
    if E("PU"): stamp(a, 8)
    STUBS.append(f"""
L_hs:
    s_mov_b32 s{T2}, 0
L_hs1:
    s_sleep 8
    global_load_dword v6, v7, {sr(S_DBG,2)} sc1
    s_add_u32 s{T2}, s{T2}, 1
    s_waitcnt vmcnt(0)
    v_cmp_eq_u32 vcc, 0, v6
    s_cbranch_vccz L_hs_ok
    s_cmp_lt_u32 s{T2}, {SPIN_MAX}
    s_cbranch_scc1 L_hs1
    {giveup("h")}
    s_branch L_hs_ok
    """)
    emit(items(PLAN_H[2], 2, 3) or [[]], fill, SL[1] - h, HD)
    wv = wait_for(PLAN_H, 2, "34")
    if wv is not None: a(f"s_waitcnt vmcnt({wv})")
    for ins in LATE: a(ins)
    a("s_barrier")
    hx = items(PLAN_H[3], 2, 3)
    HC = 6
    upoll = f"""
    s_mov_b64 exec, 1
    global_atomic_add v14, v{H_UTC}, v7, {sr(S_CNT,2)} sc0 sc1
    s_mov_b64 exec, -1
    """
    udma = f"""
    s_add_u32 m0, s17, {L_U + 512}
    s_mov_b32 s11, 1
    buffer_load_dwordx4 v{H_UTV}, {w}, s14 offen {LD} lds
    s_add_u32 m0, m0, 1024
    s_nop 0
    buffer_load_dwordx4 v{H_UTV}, {w}, s15 offen {LD} lds
    """
    def ucheck(tag, restore):
        a(f"s_cmp_eq_u32 s11, 0\ns_cbranch_scc1 L_uc_{tag}\nL_ub_{tag}:")
        STUBS.append(f"""
L_uc_{tag}:
        s_waitcnt vmcnt(0)
        v_readfirstlane_b32 s{T0}, v14
        s_cmp_lg_u32 s{T0}, 22
        s_cbranch_scc1 L_ua_{tag}
        {udma}
        {"s_mov_b32 m0, s18" if restore else ""}
        s_branch L_ub_{tag}
L_ua_{tag}:
        {upoll}
        s_branch L_ub_{tag}
        """)
    UP = E("UP", "b")
    a(f"s_cmp_ge_u32 s2, {0 if E('X_NOCONV') else 224}\ns_cselect_b32 s11, 1, 0")
    emit(hx, fill, SL[2], 0)
    assert UP == "b"
    a(upoll)
    wv = wait_for(PLAN_H, 3, "56")
    if wv is not None: a(f"s_waitcnt vmcnt({wv + 1})")
    a("s_barrier")
    stamp(a, 2)
    if UP == "c": a(upoll)
    assert not fill
    outproj_setup(a)
    wv = wait_for(PLAN_H, 3, "a")
    if wv is not None: a(f"s_waitcnt vmcnt({wv + 1})")
    a(f"""
    s_barrier                              ; BX1
    s_setprio 1
    """)
    emit([[]], fill, int(E("SLU", "0")))
    a("s_waitcnt vmcnt(1)")
    ucheck("1", False)
    emit([[]], fill, int(E("SLX", "50")))
    def frags(base):
        return [f"ds_read_b128 {vr(base + 4*ks, 4)}, v24 offset:{32*ks}" for ks in range(8)]
    ds = k0[1] + frags(FV0) + k0[2] + frags(FU0) + k1[1] + frags(FV1) + k1[2] + frags(FU1)
    emit([[]], fill, max(0, len(fill) - len(k1[0])))
    early = int(E("DSE", "0"))
    assert early <= 71
    a("s_mov_b32 m0, s18\ns_nop 0")
    for x in ds[:early]: a(x)
    a(f"""
    s_barrier                              ; BX2
    s_cmp_ge_u32 s2, {0 if E("X_NOCONV") else 224}
    s_cbranch_scc1 L_p3
    """)
    fill += [f"v_mov_b32 v{ZR+i}, 0" for i in range(4)] + [x.strip() for x in f"""v_lshl_add_u32 v6, v0, 3, s13
    ds_write_b64 v6, {vr(ZR,2)}
    v_add_u32 v6, s19, v0
    ds_write_b8 v6, v{ZR}
    s_xor_b32 s{T1}, s{S_LW}, 1
    s_mul_i32 s{T1}, s{T1}, 3072
    s_add_u32 s{T1}, s{T1}, {L_XCH}
    v_lshl_add_u32 v27, v0, 4, s{T1}""".split("\n")]
    MIX = 0 if early else int(E("MIX", "71"))
    nf = len(fill)
    if not MIX:
        for x in fill: a(x)
    c1 = max(early, int(E("UCHK", "60")))
    m0_at = int(E("KM0", "111"))
    mm0 = [mfma(KA, FU0 + 4*ks, FV0 + 4*ks, None if ks == 0 else KA) for ks in range(8)]
    for k, x in enumerate(ds[early:], early):
        if k == c1: ucheck("2", True); a("s_nop 0")
        if k == m0_at: a("s_waitcnt lgkmcnt(15)")
        if k >= m0_at and (k - m0_at) % 4 == 0 and mm0: a(mm0.pop(0))
        a(x)
        if k < MIX:
            for y in fill[nf * k // MIX: nf * (k + 1) // MIX]: a(y)
    for m in mm0: a(m)
    stamp(a, 3)
    for ks in range(8):
        a(f"s_waitcnt lgkmcnt({7 - ks})")
        a(mfma(KA, FU1 + 4*ks, FV1 + 4*ks, KA))
    a(f"""
    s_cmp_eq_u32 s11, 0
    s_cbranch_scc1 L_u_late
L_u_done:
    v_mov_b32 v15, 1
    v_xor_b32 v6, {4}, v255
    v_mov_b32 v36, 0
    v_and_b32 v37, 1, v0
    v_writelane_b32 v36, s{S_DSK}, 0
    v_cmp_eq_u32 vcc, 1, v37
    s_nop 3
    ds_write_b128 v25, {vr(KA,4)}
    ds_write_b128 v25, {vr(KA+4,4)} offset:1024
    ds_write_b128 v25, {vr(KA+8,4)} offset:2048
    s_waitcnt vmcnt(0)
    ds_write_b32 v255, v15
    """)
    st = Asm()
    st(f"""
L_u_late:
    s_waitcnt vmcnt(0)
    v_readfirstlane_b32 s{T0}, v14
    s_cmp_eq_u32 s{T0}, 22
    s_cbranch_scc1 L_ok_u
    """)
    poll(st, "u", H_UTC, "22", 1)
    st(udma + "s_branch L_u_done")
    STUBS.append(st.text())
    stamp(a, 4)
    a(f"""
L_xch:
    ds_read_b32 v14, v6
    ds_read_b128 v[60:63], v27
    ds_read_b128 v[64:67], v27 offset:1024
    ds_read_b128 v[68:71], v27 offset:2048
    s_waitcnt lgkmcnt(3)
    v_readfirstlane_b32 s{T0}, v14
    s_cmp_eq_u32 s{T0}, 0
    s_cbranch_scc1 L_xch
    s_mov_b64 exec, 1
    ds_add_u32 v{H_CNT}, v15 offset:4      ; done with the tables and the exchange buffers
    s_mov_b64 exec, -1
    """)
    for k in range(3):
        a(f"s_waitcnt lgkmcnt({3-k})")
        for e in (0, 2):
            a(f"v_pk_add_f32 {vr(KA+4*k+e,2)}, {vr(KA+4*k+e,2)}, {vr(60+4*k+e,2)}")
    def store(nd, reg, off):
        if nd == 2:
            a(f"ds_write_b64 v{H_K2}, {vr(reg,2)} offset:{off}")
        else:
            a(f"ds_write_b128 v{H_K4}, {vr(reg,4)} offset:{off}")
    expand2(a, store, KA)
    conv(a)
    a.label("L_p3")
    stamp(a, 7)
    outproj(a)

def fused():
    a = Asm()
    a(f"""
    s_load_dwordx4 s[4:7], s[0:1], 0
    s_load_dwordx2 s[22:23], s[0:1], 104
    s_load_dwordx4 s[96:99], s[0:1], 88
    s_load_dwordx8 s[8:15], s[0:1], 32
    s_load_dwordx4 s[16:19], s[0:1], 64
    s_load_dwordx2 s[20:21], s[0:1], 80
    s_load_dwordx2 s[100:101], s[0:1], 16
    s_cmp_ge_u32 s2, 256
    s_cbranch_scc1 L_quit0
    """)
    prof_begin(a)
    a(f"""
    s_getpc_b64 s[48:49]
L_pc:
    s_lshr_b32 s{T1}, s2, 3
    v_lshrrev_b32 v1, 5, v0
    v_lshl_add_u32 v1, s{T1}, 4, v1
    v_lshlrev_b32 v1, 7, v1
    v_cmp_gt_u32 vcc, L_slow-L_pc, v1
    s_mov_b64 exec, vcc
    global_load_dword v251, v1, s[48:49]
    s_mov_b64 exec, -1
    v_lshrrev_b32 v1, 6, v0
    v_and_b32 v0, 63, v0
    s_nop 0
    v_readfirstlane_b32 s{S_WAVE}, v1
    s_and_b32 s{S_LW}, s{S_WAVE}, 3
    s_cmp_ge_u32 s{S_WAVE}, 4
    s_cbranch_scc0 L_g0
    s_setprio 3
    s_and_b32 s{T0}, s2, 7
    s_mul_i32 s{T0}, s{T0}, 28
    s_min_u32 s{T1}, s{T1}, 27
    s_add_u32 s{S_P}, s{T0}, s{T1}
    s_lshl_b32 s{T2}, s{S_P}, 2
    s_lshl_b32 s{T0}, s{S_P}, 10
    s_lshl_b32 s{T1}, s{S_LW}, 8
    s_add_u32 s{T0}, s{T0}, s{T1}
    v_lshl_add_u32 v1, v0, 2, s{T0}
    v_mov_b32 v7, 0
    s_cmp_eq_u32 s2, {ZWG}
    s_waitcnt lgkmcnt(0)
    s_cbranch_scc1 L_zero
L_nozero_h:
    {"global_load_dword v94, v7, s[4:5]" if E("TOUCH") else ""}
    {"global_load_dword v95, v7, s[6:7]" if E("TOUCH") else ""}
    global_load_dword v8, v1, s[8:9]
    global_load_dword v9, v1, s[10:11]
    global_load_dword v10, v1, s[12:13]
    global_load_dword v11, v1, s[14:15]
    s_load_dword s51, s[16:17], s{T2}
    s_load_dword s52, s[18:19], s{T2}
    s_setprio 0
    s_branch L_h1
L_g0:
    s_and_b32 s{T0}, s2, 7
    s_lshr_b32 s{T1}, s2, 3
    s_mul_i32 s{T0}, s{T0}, 31
    s_add_u32 s{T0}, s{T0}, s{T1}          ; t
    s_cmp_ge_u32 s{T1}, 31
    s_cselect_b32 s{T0}, 242, s{T0}
    s_min_u32 s{T0}, s{T0}, 242
    s_mov_b32 s{T2}, 205
    s_cmp_lt_u32 s{T0}, 110
    s_cselect_b32 s{T1}, 0, 110
    s_cselect_b32 s{T2}, s{T2}, 171
    s_cselect_b32 s{T3}, 5, 6
    s_cselect_b32 s{S_CB}, 0, 5
    s_sub_u32 s{T0}, s{T0}, s{T1}
    s_mul_i32 s{S_RB}, s{T0}, s{T2}
    s_lshr_b32 s{S_RB}, s{S_RB}, 10
    s_mul_i32 s{T1}, s{S_RB}, s{T3}
    s_sub_u32 s{T0}, s{T0}, s{T1}
    s_add_u32 s{S_CB}, s{S_CB}, s{T0}
    s_add_u32 s{S_C0}, s{S_RB}, s{S_CB}
    s_mul_i32 s{T0}, s{S_C0}, 37
    s_lshr_b32 s{T0}, s{T0}, 8
    s_mul_i32 s{T0}, s{T0}, 7
    s_sub_u32 s{S_C0}, s{S_C0}, s{T0}
    {"s_and_b32 s%d, s%d, %s" % (S_C0, S_C0, E("X_ROT")) if E("X_ROT") else ""}
    s_lshl_b32 s{S_LW1K}, s{S_LW}, 10
    v_lshrrev_b32 v4, 3, v0
    s_lshl_b32 s{T1}, s{S_LW}, 3
    v_add_u32 v4, s{T1}, v4
    v_lshrrev_b32 v5, 1, v4
    v_xor_b32 v5, v5, v0
    v_and_b32 v5, 7, v5
    v_mul_u32_u24 v2, 896, v4
    v_lshl_add_u32 v2, v5, 4, v2
    s_mov_b32 s{S_CH}, s{S_C0}
    s_mul_i32 s58, s{S_RB}, {96*896}
    s_sub_u32 s{SRD_X+2}, {X_BYTES}, s58
    s_cselect_b32 s{SRD_X+2}, 0, s{SRD_X+2}
    s_mov_b32 s{SRD_X+3}, 0x20000
    s_mov_b32 s{SRD_W+3}, 0x20000
    v_lshrrev_b32 v4, 4, v0
    v_lshlrev_b32 v5, 2, v4
    v_xor_b32 v5, v5, v0
    v_and_b32 v5, 15, v5
    s_lshl_b32 s{T1}, s{S_LW}, 2
    v_add_u32 v4, s{T1}, v4
    v_mul_u32_u24 v3, 2688, v4
    v_lshl_add_u32 v3, v5, 4, v3
    s_lshl_b32 s59, s{S_CB}, 8
    s_sub_u32 s{SRD_W+2}, {W_BYTES}, s59
    s_cmp_ge_u32 s{S_RB}, 22
    s_cselect_b32 s{SRD_W+2}, 0, s{SRD_W+2}
    s_cmp_eq_u32 s2, {ZWG}
    s_waitcnt lgkmcnt(0)
    s_cbranch_scc1 L_zb
L_nozero:
    s_add_u32 s{SRD_X}, s{S_X}, s58
    s_addc_u32 s{SRD_X+1}, s{S_X+1}, 0
    s_add_u32 s{SRD_W}, s{S_W}, s59
    s_addc_u32 s{SRD_W+1}, s{S_W+1}, 0
L_first:
    """)
    for g_ in dma_chunk(0):
        for x in g_: a(x)
    a(f"""
    s_mov_b32 s{SRD_WS}, s20
    s_mov_b32 s{SRD_WS+1}, s21
    s_mov_b32 s{SRD_WS+2}, 896
    s_mov_b32 s{SRD_WS+3}, 0x20000
    s_mov_b32 m0, {L_GATE}
    v_lshlrev_b32 v4, 4, v0
    buffer_load_dwordx4 v4, {sr(SRD_WS,4)}, 0 offen lds
    s_branch L_g1
L_zb:
    s_barrier
    s_branch L_nozero
L_zero:
    s_add_u32 s{S_CNT}, s{S_WS}, {WS_CNT}
    s_addc_u32 s{S_CNT+1}, s{S_WS+1}, 0
    """)
    stamp(a, 3)
    a(f"""
    s_mul_i32 s{T0}, s{S_LW}, {(NLINE // 4) << CS}
    v_lshrrev_b32 v4, 1, v0
    v_lshl_add_u32 v4, v4, {CS}, s{T0}
    v_and_b32 v5, 1, v0
    v_lshl_add_u32 v4, v5, 4, v4
    v_mov_b32 v20, 0
    v_mov_b32 v21, 0
    v_mov_b32 v22, 0
    v_mov_b32 v23, 0
    global_store_dwordx4 v4, v[20:23], {sr(S_CNT,2)} sc0 sc1
    s_lshl_b32 s{T0}, s{S_LW}, 4
    v_add_u32 v4, s{T0}, v0
    v_mul_u32_u24 v4, {TILE_B}, v4
    v_add_u32 v4, {WS_ONE}, v4
    v_mov_b32 v16, 0x3f803f80
    v_mov_b32 v17, v16
    v_mov_b32 v18, v16
    v_mov_b32 v19, v16
    s_mov_b64 exec, 0xffff
    global_store_dwordx4 v4, v[16:19], {sr(S_WS,2)} sc0 sc1
    s_mov_b64 exec, -1
    v_mov_b32 v21, 1
    s_waitcnt vmcnt(0)
    s_barrier
    s_cmp_lg_u32 s{S_WAVE}, 4
    s_cbranch_scc1 L_nozero_h
    s_mov_b64 exec, 1
    global_store_dword v20, v21, {sr(S_DBG,2)} sc0 sc1
    s_mov_b64 exec, -1
    """)
    stamp(a, 4)
    a("s_waitcnt vmcnt(0)")
    stamp(a, 5)
    a(f"""
    s_branch L_nozero_h
L_g1:
    """)
    if E("PB"): stamp(a, 10)
    a(f"""
    s_setprio 2
    s_add_u32 s{S_CNT}, s{S_WS}, {WS_CNT}
    s_addc_u32 s{S_CNT+1}, s{S_WS+1}, 0
    v_mov_b32 v252, v2
    v_mov_b32 v229, v3
    v_mov_b32 v4, 0
    v_mov_b32 v5, 0
    v_lshlrev_b32 v6, 3, v0
    v_and_b32 v6, 63, v6
    v_add_u32 v6, {L_CNT}, v6
    ds_write_b64 v6, v[4:5]
    v_lshlrev_b32 v{A_L16}, 4, v0
    """)
    gemm_setup(a)
    a(f"""
L_h1:
    s_and_b32 s{T0}, s2, 7
    s_lshr_b32 s{T1}, s2, 3
    s_mul_i32 s{T0}, s{T0}, 31
    s_add_u32 s{T0}, s{T0}, s{T1}          ; t
    s_cmp_ge_u32 s{T1}, 31
    s_cselect_b32 s{T0}, 242, s{T0}
    s_min_u32 s{T0}, s{T0}, 242
    s_mov_b32 s{T2}, 205
    s_cmp_lt_u32 s{T0}, 110
    s_cselect_b32 s{T1}, 0, 110
    s_cselect_b32 s{T2}, s{T2}, 171
    s_cselect_b32 s{T3}, 5, 6
    s_cselect_b32 s{S_CB}, 0, 5
    s_sub_u32 s{T0}, s{T0}, s{T1}
    s_mul_i32 s{S_RB}, s{T0}, s{T2}
    s_lshr_b32 s{S_RB}, s{S_RB}, 10
    s_mul_i32 s{T1}, s{S_RB}, s{T3}
    s_sub_u32 s{T0}, s{T0}, s{T1}
    s_add_u32 s{S_CB}, s{S_CB}, s{T0}
    s_add_u32 s{S_C0}, s{S_RB}, s{S_CB}
    s_mul_i32 s{T0}, s{S_C0}, 37
    s_lshr_b32 s{T0}, s{T0}, 8
    s_mul_i32 s{T0}, s{T0}, 7
    s_sub_u32 s{S_C0}, s{S_C0}, s{T0}
    {"s_and_b32 s%d, s%d, %s" % (S_C0, S_C0, E("X_ROT")) if E("X_ROT") else ""}
    s_lshl_b32 s{S_LW1K}, s{S_LW}, 10
    v_lshrrev_b32 v4, 3, v0
    s_lshl_b32 s{T1}, s{S_LW}, 3
    v_add_u32 v4, s{T1}, v4
    v_lshrrev_b32 v5, 1, v4
    v_xor_b32 v5, v5, v0
    v_and_b32 v5, 7, v5
    v_mul_u32_u24 v2, 896, v4
    v_lshl_add_u32 v2, v5, 4, v2
    s_mov_b32 s{S_CH}, s{S_C0}
    s_mul_i32 s58, s{S_RB}, {96*896}
    s_sub_u32 s{SRD_X+2}, {X_BYTES}, s58
    s_cselect_b32 s{SRD_X+2}, 0, s{SRD_X+2}
    s_mov_b32 s{SRD_X+3}, 0x20000
    s_mov_b32 s{SRD_W+3}, 0x20000
    s_add_u32 s{SRD_X}, s{S_X}, s58
    s_addc_u32 s{SRD_X+1}, s{S_X+1}, 0
    v_lshrrev_b32 v4, 4, v0
    v_lshlrev_b32 v5, 2, v4
    v_xor_b32 v5, v5, v0
    v_and_b32 v5, 15, v5
    s_lshl_b32 s{T1}, s{S_LW}, 2
    v_add_u32 v4, s{T1}, v4
    v_mul_u32_u24 v3, 2688, v4
    v_lshl_add_u32 v3, v5, 4, v3
    s_lshl_b32 s59, s{S_CB}, 8
    s_sub_u32 s{SRD_W+2}, {W_BYTES}, s59
    s_cmp_ge_u32 s{S_RB}, 22
    s_cselect_b32 s{SRD_W+2}, 0, s{SRD_W+2}
    s_add_u32 s{SRD_W}, s{S_W}, s59
    s_addc_u32 s{SRD_W+1}, s{S_W+1}, 0
    s_add_u32 s{S_CNT}, s{S_WS}, {WS_CNT}
    s_addc_u32 s{S_CNT+1}, s{S_WS+1}, 0
L_helper:
    """)
    helper_waves(a)
    a(f"""
L_quit0:
    s_endpgm
    """)
    gemm_waves(a)
    attention(a)
    a.label("L_fin")
    store_o(a)
    a.label("L_end")
    prof_end(a, 0, S_WS, S_WAVE)
    a.label("L_quit")
    a("s_endpgm")
    n0 = len(STUBS)
    for x in STUBS: a(x)
    fallback(a)
    for x in STUBS[n0:]: a(x)
    return a

DOC = """;
;   waves 0-3: x @ wqkv (96 x 128 tile, bf16 MFMA, gate logit as an extra column tile) -> workspace, then
;              attention of (head, 128 queries), each wave one quarter of the keys. exp2 runs without a shift;
;              [21 x 512] x [512 x 32] product, D_skip folded into tap 0), causal convolution as Toeplitz MFMA,
;              then o @ wo and the gated mix for 32 tokens x 128 channels.
"""

def build():
    ref = open("cdna_kernels/%s.s.ref" % NAME).read().split("\n")
    out = "\n".join(ref[:15]) + "\n"
    out += f"; @launch grid=(256,1,1) block=(512,1,1) lds={LDS_TOTAL}\n"
    out += DOC
    out += '.amdgcn_target "amdgcn-amd-amdhsa--gfx950"\n.text\n'
    out += kernel_head(NAME + "_kernel") + fused().text()
    out += '.section .rodata,"a"\n'
    out += kernel_desc(NAME + "_kernel", NV, 102)
    return out

if __name__ == "__main__":
    import sys
    dst = sys.argv[1] if len(sys.argv) > 1 else "cdna_kernels/%s.s" % NAME
    open(dst, "w").write(build())
```

```python
from common import *
from k1 import kgen_split, kgen_expand
E = os.environ.get

WS_CNT = 0x1100000
WS_ONE = WS_KC
WS_SIZE = 0x1200000
QL = int(E('QL', '6'))
CS = int(E('CS', '8'))
B_O, B_BP, B_U, B_Q = 4, 8, (12 if QL == 6 else 64 << CS), ((64 if QL == 6 else 96) << CS)
KVR = int(E('KVR', '1'))
REPM = sum(1 << (4 * i) for i in range(KVR))
B_R = B_Q + ((1 << QL) << CS) - (64 << CS)
assert KVR == 1
B_L = 16
NLINE = (B_Q >> CS) + (1 << QL)
assert NLINE == 128
SPIN_MAX = 65536
ZWG = 248

TAB_B = 32 * 272
L_XCH = 4 * TAB_B
PL_B = 8224
L_KC = 8 * PL_B
KC_B = 4160
L_U = L_KC + 2 * KC_B
U_B = 4608
L_RED = L_U + 2 * U_B
L_X2 = L_RED + 49152
L_X1 = L_X2 - 24576
L_GATE = L_X2 + 24576
L_CNT = L_GATE + 1024
LDS_TOTAL = L_CNT + 64
assert LDS_TOTAL <= 163840
SLOT_AT = [L_X2 - 28672, L_X2] + [L_X2 - 28672 - 20480 * i for i in range(1, 6)]
assert SLOT_AT[6] >= 0 and L_X1 >= SLOT_AT[0]

S_X, S_W = 4, 6
S_WS = 22
S_WAVE, S_RB, S_CB, S_P = 24, 25, 26, 27
SRD_X, SRD_W, SRD_WS = 28, 32, 36
T0, T1, T2, T3 = 40, 41, 42, 43
S_DSK = 44
S_LW1K = 45
S_C0 = 46
S_LW = 50
S_CT = 53
S_CH = 57
S_CNT = 60
S_H, S_QB = 62, 63
S_OUT, S_DBG, S_WO = 96, 98, 100
ST = E("ST", "sc1")
LD = "sc1"
NV = 256

STUBS = []
def giveup(tag):
    if not E("DIAG"): return ""
    k = 8 + 2 * "auobsh".index(tag)
    return f"""
    v_mov_b32 v15, {4*k}
    global_store_dword v15, v14, {sr(S_DBG,2)} offset:4 sc0 sc1
    v_mov_b32 v14, s2
    v_add_u32 v14, 1000, v14
    global_store_dword v15, v14, {sr(S_DBG,2)} sc0 sc1
    s_waitcnt vmcnt(0)
    """

def poll(a, tag, vaddr, vexp, lanes, sleep=0, limit=SPIN_MAX):
    first = f"s_branch L_poll1_{tag}" if sleep else ""
    a(f"""
    s_mov_b64 exec, {lanes}
    v_mov_b32 v15, 0
    s_mov_b32 s{T0}, 0
    {first}
L_poll_{tag}:
    {"s_sleep %d" % sleep if sleep else ""}
L_poll1_{tag}:
    global_atomic_add v14, v{vaddr}, v15, {sr(S_CNT,2)} sc0 sc1
    s_add_u32 s{T0}, s{T0}, 1
    s_cmp_ge_u32 s{T0}, {limit}
    s_cbranch_scc1 L_give_{tag}
    s_waitcnt vmcnt(0)
    v_cmp_ne_u32 vcc, {vexp}, v14
    s_cbranch_vccnz L_poll_{tag}
L_ok_{tag}:
    s_mov_b64 exec, -1
    """)
    STUBS.append(f"""
L_give_{tag}:
    s_waitcnt vmcnt(0)
    {giveup(tag)}
    s_branch L_ok_{tag}
    """)

def poll2(a, tag, vaddr, vexp, lanes, gap):
    at = lambda d: f"global_atomic_add v{d}, v{vaddr}, v15, {sr(S_CNT,2)} sc0 sc1"
    a(f"""
    s_mov_b64 exec, {lanes}
    v_mov_b32 v15, 0
    s_mov_b32 s{T0}, 0
    {at(14)}
L_poll_{tag}:
    s_sleep {gap}
    {at(13)}
    s_waitcnt vmcnt(1)
    v_cmp_ne_u32 vcc, {vexp}, v14
    s_cbranch_vccz L_ok_{tag}
    s_sleep {gap}
    {at(14)}
    s_add_u32 s{T0}, s{T0}, 1
    s_waitcnt vmcnt(1)
    v_cmp_ne_u32 vcc, {vexp}, v13
    s_cbranch_vccz L_ok_{tag}
    s_cmp_lt_u32 s{T0}, {SPIN_MAX}
    s_cbranch_scc1 L_poll_{tag}
L_ok_{tag}:
    s_mov_b64 exec, -1
    """)

def lds_sync(a, idx, tag, vm=True):
    a(f"""
    v_mov_b32 v15, 1
    s_waitcnt {"vmcnt(0) " if vm else ""}lgkmcnt(0)
    s_mov_b64 exec, 1
    ds_add_u32 v23, v15 offset:{4*idx}
    s_mov_b64 exec, -1
    s_branch L_spin1_{tag}
L_spin_{tag}:
    s_sleep {E("SPS", "0")}
L_spin1_{tag}:
    ds_read_b32 v15, v23 offset:{4*idx}
    s_waitcnt lgkmcnt(0)
    v_readfirstlane_b32 s{T0}, v15
    s_cmp_lt_u32 s{T0}, 4
    s_cbranch_scc1 L_spin_{tag}
    """ if E("SPS") else f"""
    v_mov_b32 v15, 1
    s_waitcnt {"vmcnt(0) " if vm else ""}lgkmcnt(0)
    s_mov_b64 exec, 1
    ds_add_u32 v23, v15 offset:{4*idx}
    s_mov_b64 exec, -1
L_spin_{tag}:
    ds_read_b32 v15, v23 offset:{4*idx}
    s_waitcnt lgkmcnt(0)
    v_readfirstlane_b32 s{T0}, v15
    s_cmp_lt_u32 s{T0}, 4
    s_cbranch_scc1 L_spin_{tag}
    """)

XA, XB, WA = 3, 10, 8
XAR = [3, 4, 5, 15]
WF, ACC, XF, PK = 16, 128, 176, 240
RING = 12
NX = 6
XE = not E('XLATE')
DEF = int(E('DEF', '3'))
NG = int(E('NG', '4'))
SRD_R, SRD_T = 4, 92
ONES = [160 + 16*b + 8 + i for b in (3, 2, 1, 0) for i in range(8)]

def gemm_body(a, kind, tag):
    nw = 1 if kind == "gate" else 2
    GROUPS = [[0], [1, 2], [3, 4], [5, 6]]
    def soff(it):
        grp = [g_ for g_ in GROUPS if it in g_][0]
        return SLOT_AT[it] - SLOT_AT[grp[-1]]
    def rd_w(g):
        it, ks = divmod(g, 4)
        if kind == "gate":
            return [f"ds_read_b128 {vr(WF+4*g,4)}, v8 offset:{32*ks}"]
        return [f"ds_read_b64_tr_b16 {vr(WF+4*g,2)}, v8 offset:{soff(it) + ks*4096}",
                f"ds_read_b64_tr_b16 {vr(WF+4*g+2,2)}, v8 offset:{soff(it) + ks*4096+1024}"]
    def mm(g, i, x):
        w, d = WF + 4*g, ACC + 16*i
        c = None if g == 0 else d
        return mfma(d, x, w, c) if kind == "v" else mfma(d, w, x, c)
    def epi(i):
        r = []
        base = ACC + 16*i
        if kind == "gate":
            return [f"v_cvt_pk_bf16_f32 v{base}, v{base}, v{base}",
                    f"v_and_b32 v{base}, 0xffff0000, v{base}",
                    f"v_mul_f32 v{base}, {f32(-LOG2E)}, v{base}",
                    f"v_exp_f32 v{base}, v{base}", "s_nop 0",
                    f"v_add_f32 v{base}, 1.0, v{base}",
                    f"v_rcp_f32 v{base}, v{base}", "s_nop 0",
                    f"v_cvt_pk_bf16_f32 v{base}, v{base}, v{base}",
                    f"v_and_b32 v{base}, 0xffff0000, v{base}",
                    f"buffer_store_dword v{base}, v6, {sr(SRD_R,4)}, 0 offen offset:{128*i} {ST}"]
        so = ["s92", "s93", "s94"][i]
        for h in range(2):
            if kind == "qk" and i < 2:
                r += [f"v_mul_f32 v{base+8*h+j}, s47, v{base+8*h+j}" for j in range(8)]
            r += [f"v_cvt_pk_bf16_f32 v{PK+4*h+j}, v{base+8*h+2*j}, v{base+8*h+2*j+1}" for j in range(4)]
            if not (kind == "v" and i == 2):
                r.append(f"buffer_store_dwordx4 {vr(PK+4*h,4)}, v{6+h}, {sr(SRD_R,4)}, {so} offen {ST}")
        return r
    VX, VW = 252, 229
    assert PLAN_G[0] == '12'
    loads = [items(PLAN_G[k], VX, VW) for k in (1, 2, 3)] + [[]]
    waits = [nld(PLAN_G[0]), wait_for(PLAN_G, 1, "12"), wait_for(PLAN_G, 2, "34"), wait_for(PLAN_G, 3, "56")]
    assert "b" not in "".join(PLAN_G)
    xslot = 0
    for gi, grp in enumerate(GROUPS):
        if waits[gi] is not None: a(f"s_waitcnt vmcnt({waits[gi]})" + (" lgkmcnt(0)" if gi == 0 else ""))
        a("s_barrier")
        if gi in (0, 3): stamp(a, 1 + gi // 3)
        if E('PA') and not E('PB') and gi in (1, 2): stamp(a, 7 + gi)
        ld = loads[gi]
        queue, steps = [], []
        nread = 0
        order = [grp[1], grp[2], grp[0]] if False else grp
        for it in order:
            nt = 3 if it == 0 else 1
            for ks in range(4):
                g = 4*it + ks
                for r in rd_w(g): queue.append((r, None)); nread += 1
                ms = []
                for i in range(nt):
                    reg = XF + 4 * (xslot % RING)
                    queue.append((f"ds_read_b128 {vr(reg,4)}, v{XAR[ks]} offset:{soff(it) + i*4096}", xslot)); nread += 1
                    ms.append((mm(g, i, reg), xslot))
                    xslot += 1
                steps.append((nread, ms))
            if kind == "gate" and it < 6:
                queue[-1] = (queue[-1][0] + f"""
                s_add_u32 s{S_C0}, s{S_C0}, 1
                s_cmp_eq_u32 s{S_C0}, 7
                s_cselect_b32 s{S_C0}, 0, s{S_C0}
                s_lshl_b32 s47, s{S_C0}, 7
                v_add_u32 v8, s47, v9""", queue[-1][1])
        if gi < 3:
            upd = "".join(f"\nv_subrev_u32 v{r}, {SLOT_AT[grp[-1]] - SLOT_AT[GROUPS[gi+1][-1]]}, v{r}" for r in XAR + ([] if kind == "gate" else [8]))
            queue[-1] = (queue[-1][0] + upd, queue[-1][1])
        issued, freed = 0, steps[0][1][0][1]
        def issue(upto):
            nonlocal issued
            while issued < min(upto, len(queue)) and (queue[issued][1] is None or queue[issued][1] < freed + RING):
                a(queue[issued][0]); issued += 1
        prev = 0
        for si, (need, ms) in enumerate(steps):
            issue(max(need, prev + 15))
            assert issued >= need
            if si == 0:
                for g_ in ld[:2]:
                    for x in g_: a(x)
                ld = ld[2:]
            a(f"s_waitcnt lgkmcnt({issued - need})")
            prev = need
            if gi == 3 and si == len(steps) - DEF:
                last = [st_[1][0][0] for st_ in steps[si:]]
                a("s_waitcnt lgkmcnt(0)")
                break
            for m, xs in ms:
                a(m)
                freed = xs + 1
                issue(min(issued + 3, need + 15))
                k = 1 if gi == 0 else 2
                for g_ in ld[:k]:
                    for x in g_: a(x)
                ld = ld[k:]
        for g_ in ld:
            for x in g_: a(x)
        assert issued == len(queue)
    X0 = xslot % RING
    def rd_x(n):
        i, g = 1 + n // 24, 4 + n % 24
        return f"ds_read_b128 {vr(XF+4*((n+X0)%RING),4)}, v{XB + g%4} offset:{(i-1)*24576 + (g//4-1)*4096}"
    a("s_waitcnt vmcnt(0)")
    a("s_barrier")
    stamp(a, 3)
    AHEAD = 8
    assert AHEAD + DEF <= RING
    per = AHEAD // DEF
    for k in range(DEF):
        if k: a(last[k - 1])
        for n in range(k * per, AHEAD if k == DEF - 1 else (k + 1) * per): a(rd_x(n))
    a(last[-1])
    issued = AHEAD
    fill = []
    BX2 = int(E("BX2", "18"))
    for n in range(48):
        if n == BX2:
            if NX == 12: a(f"s_waitcnt vmcnt({1 if kind == 'gate' else 2})")
            a(f"s_waitcnt lgkmcnt(0)\ns_barrier")
            if not E('PB'): stamp(a, 10)
            while issued < n + AHEAD + 3:
                a(rd_x(issued)); issued += 1
        a(f"s_waitcnt lgkmcnt({issued - n - 1})")
        a(mm(4 + n % 24, 1 + n // 24, XF + 4*((n+X0) % RING)))
        lim = 24 if n < BX2 else 48
        if issued < min(lim, n + 1 + (AHEAD if n < BX2 else AHEAD + 3)):
            a(rd_x(issued)); issued += 1
        if n == 3: fill = epi(0)
        if n == 27: fill = epi(1)
        for x in fill[:4]: a(x)
        fill = fill[4:]
    assert issued == 48
    if kind == "qk":
        a(f"s_cmp_ge_u32 s{S_CT}, 14\ns_nop 9\ns_cbranch_scc1 L_kscale\nL_kscaled:")
        STUBS.append("L_kscale:\n" + "\n".join(f"v_mul_f32 v{ACC+32+j}, s47, v{ACC+32+j}" for j in range(16)) + "\ns_branch L_kscaled")
    else:
        a("s_nop 11")
    for x in epi(2): a(x)

def gemm_setup(a):
    a(f"""
    s_lshl_b32 s{S_CT}, s{S_CB}, 2
    s_add_u32 s{S_CT}, s{S_CT}, s{S_WAVE}
    v_and_b32 v1, 31, v0
    v_lshrrev_b32 v2, 5, v0                ; hi
    v_lshrrev_b32 v3, 1, v0
    v_and_b32 v3, 7, v3
    v_xor_b32 v3, v3, v2
    v_lshlrev_b32 v10, 7, v1
    v_lshl_add_u32 v10, v3, 4, v10
    v_xor_b32 v11, 32, v10
    v_xor_b32 v12, 64, v10
    v_xor_b32 v13, 96, v10
    v_mov_b32 v239, 1
    s_mul_i32 s{T2}, s{S_CT}, 37
    s_lshr_b32 s{T2}, s{T2}, 9
    s_mul_i32 s{T1}, s{T2}, 14
    s_sub_u32 s52, s{S_CT}, s{T1}          ; ct'
    s_lshl_b32 s{T2}, s{T2}, 21
    s_add_u32 s{SRD_R}, s{S_WS}, s{T2}
    s_addc_u32 s{SRD_R+1}, s{S_WS+1}, 0
    s_mov_b32 s{SRD_R+2}, {64*TILE_B}
    s_mov_b32 s{SRD_R+3}, 0x20000
    v_bfe_u32 v16, v0, 4, 1                ; ih
    v_bfe_u32 v4, v0, 2, 2                 ; r
    v_lshl_add_u32 v17, v2, 3, v4          ; 8 hi + r
    v_lshlrev_b32 v8, 8, v17
    v_xor_b32 v17, s{S_WAVE}, v4
    v_lshl_add_u32 v8, v17, 6, v8
    v_lshl_add_u32 v8, v16, 5, v8
    v_add_u32 v8, {SLOT_AT[0]}, v8
    v_and_b32 v17, 3, v0                   ; c
    v_add_u32 v3, {SLOT_AT[0] + 16384}, v10
    v_add_u32 v4, {SLOT_AT[0] + 16384}, v11
    v_add_u32 v5, {SLOT_AT[0] + 16384}, v12
    v_add_u32 v15, {SLOT_AT[0] + 16384}, v13
    v_add_u32 v10, {L_X1}, v10
    v_add_u32 v11, {L_X1}, v11
    v_add_u32 v12, {L_X1}, v12
    v_add_u32 v13, {L_X1}, v13
    """)
    for g_ in dma_chunk(1, 252, 229):
        for x in g_: a(x)
    a(f"""
    s_mul_i32 s56, s{S_RB}, 205
    s_lshr_b32 s56, s56, 10
    s_mul_i32 s{T0}, s56, 5
    s_sub_u32 s{T0}, s{S_RB}, s{T0}
    s_lshl_b32 s{T1}, s56, 4
    s_add_u32 s{T1}, s{T1}, s{T0}
    s_add_u32 s92, s{T1}, s{T0}
    s_add_u32 s93, s92, 1
    s_add_u32 s95, s{T1}, 10
    s_cmp_eq_u32 s{S_RB}, 20
    s_cselect_b32 s92, 15, s92
    s_cselect_b32 s93, 31, s93
    s_cselect_b32 s95, 47, s95
    s_cmp_eq_u32 s{S_RB}, 21
    s_cselect_b32 s92, 63, s92
    s_mul_i32 s{T0}, s{S_RB}, 3
    s_add_u32 s{T1}, s{T0}, 1
    s_add_u32 s94, s{T0}, 2
    s_sub_u32 s{T2}, s{S_CT}, 14
    s_cmp_lt_u32 s{T2}, 28                 ; K or V
    s_cselect_b32 s92, s92, s{T0}
    s_cselect_b32 s93, s93, s{T1}
    s_cselect_b32 s94, 64, s94
    s_cselect_b32 s95, s95, 64
    s_mul_i32 s92, s92, {TILE_B}
    s_mul_i32 s93, s93, {TILE_B}
    s_mul_i32 s94, s94, {TILE_B}
    s_mul_i32 s95, s95, {TILE_B}
    s_mul_i32 s{T0}, s{S_RB}, 3
    s_add_u32 s{T1}, s{T0}, 2
    s_min_u32 s{T1}, s{T1}, 63
    s_cmp_lt_u32 s{S_CT}, 14
    s_cselect_b32 s{T2}, 2, 4
    s_lshr_b32 s{T0}, s{T0}, s{T2}
    s_lshr_b32 s{T1}, s{T1}, s{T2}
    s_cmp_eq_u32 s{T0}, s{T1}
    s_cselect_b32 s54, 3, 15
    s_mov_b32 s55, 0
    s_mov_b32 s49, 0
    s_mul_i32 s51, s{T0}, 14               ; gate wave: first counter
    s_mul_i32 s{T1}, s52, {8*147}
    s_lshr_b32 s{T1}, s{T1}, 10            ; (8 ct') / 7
    v_and_b32 v18, 1, v0
    v_add_u32 v18, s{T1}, v18                ; head
    v_bfe_u32 v19, v0, 1, 2
    s_cmp_eq_u32 s{S_RB}, 20
    s_cselect_b32 s48, 63, 3
    s_cselect_b32 s{T2}, 0, s56
    s_min_u32 s{T2}, s{T2}, 3
    v_lshl_add_u32 v20, v18, 2, s{T2}
    v_add_u32 v20, v20, v19
    v_lshlrev_b32 v20, {CS}, v20
    v_add_u32 v238, {B_L}, v20
    s_sub_u32 s{T2}, s{S_CT}, 14
    s_cmp_lt_u32 s{T2}, 28
    s_cselect_b32 s{T3}, 1, 0
    s_cmp_lt_u32 s{S_RB}, 22
    s_cselect_b32 s{T3}, s{T3}, 0
    s_cselect_b32 s54, s54, 0
    v_mov_b32 v253, s{T3}
    s_cmp_lt_u32 s{T2}, 28
    s_cbranch_scc0 L_cnt_q
    v_mov_b32 v254, v20
    s_cmp_lt_u32 s{S_RB}, 20
    s_cselect_b32 s54, 3, 0
    s_branch L_cnt_done
L_cnt_q:
    s_mov_b32 s48, 1
    v_lshlrev_b32 v18, 4, v18
    v_add3_u32 v18, v18, v19, s{T0}
    v_and_b32 v19, {(1 << QL) - 1}, v18
    v_lshrrev_b32 v18, {QL}, v18
    v_lshlrev_b32 v19, {CS}, v19
    v_add_u32 v19, {B_Q}, v19
    v_lshl_add_u32 v254, v18, 2, v19
    s_cmp_lt_u32 s{S_CT}, 42
    s_cbranch_scc1 L_cnt_done
    v_add_u32 v20, s51, v0
    v_lshl_add_u32 v254, v20, {CS}, {B_BP}
    s_mov_b32 s{T0}, 0x3fff
    s_cmp_eq_u32 s54, 3
    s_cselect_b32 s54, s{T0}, 0xfffffff
    s_cmp_eq_u32 s{S_CT}, 42
    s_cselect_b32 s54, s54, 0
L_cnt_done:
    """)
    if E("PRE"):
        a(f"""
        v_min_u32 v18, 8, v0
        v_lshlrev_b32 v18, 21, v18
        v_add_u32 v18, 0x1f8000, v18
        v_mov_b32 v19, 0
        s_cmp_eq_u32 s{S_LW}, 3
        s_cselect_b64 exec, -1, 0
        global_load_dword v250, v18, {sr(S_WS,2)}
        {"global_load_dword v249, v19, %s" % sr(S_OUT,2) if E("PRE") == "2" else ""}
        {"global_load_dword v248, v19, %s" % sr(S_WO,2) if E("PRE") == "2" else ""}
        s_mov_b64 exec, -1
        """)
    if not E("NOMALL"):
        a("s_cmp_ge_u32 s2, 248\ns_cbranch_scc1 L_womall\nL_womall_back:")
        STUBS.append(f"""
L_womall:
        s_and_b32 s{T0}, s2, 7
        s_lshl_b32 s{T0}, s{T0}, 2
        s_add_u32 s{T0}, s{T0}, s{S_LW}
        s_mul_i32 s{T0}, s{T0}, {98*128}
        v_min_u32 v18, 48, v0
        v_lshl_add_u32 v18, v18, 7, s{T0}
        v_add_u32 v19, {49*128}, v18
        global_load_dword v20, v18, {sr(S_WO,2)}
        global_load_dword v21, v19, {sr(S_WO,2)}
        s_waitcnt vmcnt(0)
        s_branch L_womall_back
        """)
    if E("ASET") == "p": attn_setup(a)
    if E("PB"): stamp(a, 8)
    for g_ in dma_chunk(2, 252, 229):
        for x in g_: a(x)
    if E("PB"): stamp(a, 9)
    a(f"""
    s_cmp_ge_u32 s{S_CT}, 42
    s_cbranch_scc1 L_gate
    s_cmp_ge_u32 s{S_CT}, 28
    s_cbranch_scc1 L_v
    s_branch L_qk
    """)

def gemm_waves(a):
    a(f"""
L_qk:
    v_and_b32 v16, 1, v17
    v_lshrrev_b32 v17, 1, v17
    v_lshl_add_u32 v17, v16, 1, v17
    """)
    assert WS_Q == 0 and WS_K == 1 << 21 and WS_V == 2 << 21
    wa = "v_lshl_add_u32 v8, v17, 3, v8"
    a(wa)
    a(f"""
    s_cmp_ge_u32 s{S_CT}, 14
    s_cselect_b32 s47, {f32(QSCALE)}, 1.0
    s_lshl_b32 s{T0}, s52, 11
    v_add_u32 v6, s{T0}, v{A_L16}
    v_add_u32 v7, 1024, v6
    """)
    gemm_body(a, "qk", "qk")
    a("s_branch L_signal")
    a.label("L_gate")
    a(f"""
    v_lshlrev_b32 v9, 4, v2
    v_add_u32 v9, {L_GATE}, v9
    s_lshl_b32 s47, s{S_C0}, 7
    v_add_u32 v8, s47, v9
    s_add_u32 s{SRD_R}, s{S_WS}, {WS_GT}
    s_addc_u32 s{SRD_R+1}, s{S_WS+1}, 0
    s_cmp_eq_u32 s{S_CT}, 42
    s_cselect_b32 s{SRD_R+2}, 8192, 0
    s_mul_i32 s{T0}, s{S_RB}, {96*4}
    v_lshl_add_u32 v6, v1, 2, s{T0}
    v_mov_b32 v7, v6
    """)
    gemm_body(a, "gate", "g")
    a("s_branch L_signal")
    a.label("L_v")
    a(wa)
    a(f"""
    s_lshl_b32 s{T0}, s52, 9
    v_mul_u32_u24 v6, 7168, v2
    v_lshl_add_u32 v6, v1, 4, v6
    v_add_u32 v6, s{T0}, v6
    v_add_u32 v7, 14336, v6
    """)
    gemm_body(a, "v", "v")
    a.label("L_signal")
    stamp(a, 4)
    a(f"""
    """)
    if E("ASET", "a") == "b": attn_setup(a)
    a(f"""
    s_setprio {E("PRP", "3")}
    s_waitcnt vmcnt(0)
    s_mov_b64 exec, s[54:55]
    s_cbranch_execz L_nosig
    global_atomic_add v254, v239, {sr(S_CNT,2)} sc1
L_nosig:
    s_mov_b64 exec, -1
    """)
    if E("ASET", "a") == "a": attn_setup(a)

Q, O, S, P, KV = 16, 48, 112, 144, 160
A_K, A_V0, A_V1, A_RED_, A_Q, A_L16, A_M0, A_M1, A_PA, A_PE, A_RR, A_OC, A_LC = 224, 225, 226, 227, 230, 231, 232, 233, 234, 235, 236, 237, 255
S_OFF = 9
S_KB = 96
A_RED = 248
S_EXV = 20

def kv_loads(b):
    r = KV + 16 * b
    w = sr(SRD_WS, 4)
    kb = sr(S_KB, 2)
    return [f"global_load_dwordx4 {vr(r,4)}, v{A_K}, {kb} {LD}",
            f"global_load_dwordx4 {vr(r+4,4)}, v{A_K}, {kb} offset:1024 {LD}",
            f"global_load_dwordx4 {vr(r+8,4)}, v{A_V0}, {kb} {LD}",
            f"global_load_dwordx4 {vr(r+12,4)}, v{A_V1}, {kb} {LD}",
            f"s_add_u32 s{S_KB}, s{S_KB}, {TILE_B}\ns_addc_u32 s{S_KB+1}, s{S_KB+1}, 0"]

def slot(a, n, qk, pv, post=None, first=False, mid=None, tight=False, tail=None):
    sc, sn = S + 16 * (n & 1), S + 16 * ((n + 1) & 1)
    pc, pp = P + 8 * (n & 1), P + 8 * ((n + 1) & 1)
    ms = [None] * 4
    if qk is not None:
        k, q = KV + 16 * qk[0], Q + 8 * qk[1]
        ms[0] = mfma(sn, k, q, None)
        ms[1] = mfma(sn, k + 4, q + 4, sn)
    if pv is not None:
        v, o = KV + 16 * pv[0] + 8, O + 16 * pv[1]
        ms[2] = mfma(o, v, pp, None if first else o)
        ms[3] = mfma(o, v + 4, pp + 4, o)
    if tail:
        ms = [ms[2], ms[3], None, tail]
    valu = []
    for g in range(4):
        for j in range(4):
            valu.append(f"v_exp_f32 v{sc+4*g+j}, v{sc+4*g+j}")
            if g > 0 and j == 0:
                valu.append(f"v_cvt_pk_bf16_f32 v{pc+2*g-2}, v{sc+4*g-4}, v{sc+4*g-3}")
                valu.append(f"v_cvt_pk_bf16_f32 v{pc+2*g-1}, v{sc+4*g-2}, v{sc+4*g-1}")
    valu.append(f"v_cvt_pk_bf16_f32 v{pc+6}, v{sc+12}, v{sc+13}")
    valu.append(f"v_cvt_pk_bf16_f32 v{pc+7}, v{sc+14}, v{sc+15}")
    cuts = eval(E("CUTS", "[0, 3, 7, 10, 24]")) if tight else [0, 4, 10, 16, 24]
    for g in range(4):
        if g == 2 and mid:
            for e in mid: a(e)
        if ms[g]: a(ms[g])
        if post and post[g]: a(post[g])
        for x in valu[cuts[g]:cuts[g+1]]: a(x)

def red_writes(j):
    return [f"ds_write_b128 v{A_RED+j}, {vr(O+16*j+4*i,4)} offset:{1024*i}" for i in range(4)]

def attn_setup(a):
    a(f"""
    s_and_b32 s{S_H}, s2, 7
    s_lshl_b32 s{S_H}, s{S_H}, 1
    s_bfe_u32 s{T0}, s2, 0x10003
    s_add_u32 s{S_H}, s{S_H}, s{T0}
    s_lshr_b32 s{S_QB}, s2, 4
    s_mov_b32 s{SRD_WS}, s{S_WS}
    s_mov_b32 s{SRD_WS+1}, s{S_WS+1}
    s_mov_b32 s{SRD_WS+2}, {WS_SIZE}
    s_mov_b32 s{SRD_WS+3}, 0x20000
    s_mul_i32 s{T0}, s{S_H}, 7
    s_lshr_b32 s8, s{T0}, 1                ; u0
    s_mul_i32 s{S_OFF}, s{S_WAVE}, {16*TILE_B}
    s_add_u32 s{S_KB}, s{S_WS}, s{S_OFF}
    s_addc_u32 s{S_KB+1}, s{S_WS+1}, 0
    s_lshl_b32 s{T2}, s8, 9
    v_add_u32 v{A_Q}, s{T2}, v{A_L16}
    v_add_u32 v{A_K}, {WS_K}, v{A_Q}
    v_bfe_u32 v20, v0, 2, 1
    v_bfe_u32 v21, v0, 3, 1
    v_and_b32 v22, 19, v0
    v_lshl_add_u32 v22, v20, 3, v22
    v_lshl_add_u32 v22, v21, 2, v22
    v_lshrrev_b32 v18, 5, v0                ; hi
    v_mul_u32_u24 v19, 7168, v18
    v_lshl_add_u32 v19, v22, 4, v19
    s_lshl_b32 s{T3}, s8, 7
    s_add_u32 s{T3}, s{T3}, {WS_V}
    v_add_u32 v{A_V0}, s{T3}, v19
    v_add_u32 v{A_V1}, 14336, v{A_V0}
    s_bitcmp1_b32 s{S_H}, 0
    s_mov_b32 s{S_EXV}, 0x0fffffff
    s_cselect_b32 s{S_EXV}, 0xfffffff0, s{S_EXV}
    s_cselect_b64 s[18:19], -1, 0
    s_mov_b32 s{S_EXV+1}, s{S_EXV}
    v_mov_b32 v20, {WS_ONE}
    v_cndmask_b32 v{A_V0}, v20, v{A_V0}, {sr(S_EXV,2)}
    v_cndmask_b32 v{A_V1}, v20, v{A_V1}, {sr(S_EXV,2)}
    """)
    for j in range(4):
        a(f"""
        s_add_u32 s{T3}, s{S_WAVE}, {j+1}
        s_and_b32 s{T3}, s{T3}, 3
        s_lshl_b32 s{T0}, s{S_QB}, 2
        s_add_u32 s{T0}, s{T0}, s{T3}
        s_mul_i32 s{10+j}, s{T0}, {TILE_B}
        s_mul_i32 s{T3}, s{T3}, 12288
        s_add_u32 s{T3}, s{T3}, {L_RED + (4096*j if j < 3 else 0)}
        v_add_u32 v{A_RED+j if j < 3 else A_RR}, s{T3}, v{A_L16}
        """)
    a(f"""
    s_lshl_b32 s3, s{T0}, 4
    s_add_u32 s3, s3, s{S_H}
    s_lshl_b32 s3, s3, 11
    s_add_u32 s3, s3, {WS_O}
    s_lshl_b32 s{T0}, s{T0}, {CS}
    s_add_u32 s{T0}, s{T0}, {B_O}
    v_mov_b32 v{A_OC}, s{T0}
    v_mov_b32 v{A_LC}, {L_CNT}
    s_mov_b32 s14, {f32(2.0**60 if E("SLOW") else 2.0**-60)}
    s_mov_b32 s15, {f32(2.0**60)}
    """)
    a(f"""
    s_and_b32 s{T0}, s{S_H}, 1
    v_cmp_lt_u32 vcc, v18, s{T0}
    v_cmp_gt_u32 s[100:101], v18, s{T0}
    s_add_u32 s{T0}, s{S_H}, 1
    s_and_b32 s{T0}, s{T0}, 6
    v_cndmask_b32 v{A_M0}, -1, 0, vcc
    v_cndmask_b32 v{A_M1}, -1, 0, s[100:101]
    s_mov_b64 s[100:101], 0
    s_cmp_eq_u32 s{T0}, 0
    s_cselect_b32 s{T0}, 10, 20
    s_cselect_b32 s{T1}, 2, 4
    s_cselect_b32 s9, 12, 24
    v_mov_b32 v{A_PE}, s{T0}
    v_writelane_b32 v{A_PE}, s{T1}, {4 if E("AP1") else 1}
    s_lshl_b32 s{T0}, s{S_H}, 2
    s_add_u32 s{T0}, s{T0}, s{S_WAVE}
    s_lshl_b32 s{T0}, s{T0}, {CS}
    s_add_u32 s{T1}, s{T0}, {B_L}
    v_mov_b32 v228, s{T1}
    s_and_b32 s{T1}, s{S_H}, {(1 << (QL - 4)) - 1}
    s_lshl_b32 s{T1}, s{T1}, 4
    s_add_u32 s{T1}, s{T1}, s{S_QB}
    s_lshl_b32 s{T1}, s{T1}, {CS}
    s_lshr_b32 s{T2}, s{S_H}, {QL - 4}
    s_lshl_b32 s{T2}, s{T2}, 2
    s_add_u32 s{T1}, s{T1}, s{T2}
    s_add_u32 s{T1}, s{T1}, {B_Q}
    {"v_lshl_add_u32 v%d, v0, %d, s%d" % (A_PA, CS, T0) if E("AP1") else "v_mov_b32 v%d, s%d" % (A_PA, T0)}
    v_writelane_b32 v{A_PA}, s{T1}, {4 if E("AP1") else 1}
    """)

def qmask(j):
    return [f"v_and_b32 v{Q+8*j}, v{A_M0}, v{Q+8*j}", f"v_and_b32 v{Q+8*j+1}, v{A_M0}, v{Q+8*j+1}",
            f"v_and_b32 v{Q+8*j+6}, v{A_M1}, v{Q+8*j+6}", f"v_and_b32 v{Q+8*j+7}, v{A_M1}, v{Q+8*j+7}"]

def attention(a):
    w = sr(SRD_WS, 4)
    stamp(a, 5)
    if E("X_DELAY"): a("s_sleep 64")
    if E("AP1"):
        a(f"""
        s_mov_b64 exec, -1
        s_cmp_eq_u32 s{S_WAVE}, 0
        s_cbranch_scc1 L_pa0
L_paw:
        ds_read_b32 v15, v{A_LC} offset:24
        s_waitcnt lgkmcnt(0)
        v_readfirstlane_b32 s{T0}, v15
        s_cmp_eq_u32 s{T0}, 0
        s_cbranch_scc1 L_paw
        s_branch L_pa1
L_pa0:
        """)
        if E("GAPA"): poll2(a, "a", A_PA, f"v{A_PE}", 31, int(E("GAPA")))
        else: poll(a, "a", A_PA, f"v{A_PE}", 31)
        a(f"ds_write_b32 v{A_LC}, v239 offset:24\nL_pa1:")
    elif E("GAPA"): poll2(a, "a", A_PA, f"v{A_PE}", 3, int(E("GAPA")))
    else: poll(a, "a", A_PA, f"v{A_PE}", 3)
    stamp(a, 6)
    if PROF and E("PCNT"): a(f"s_mov_b32 s84, s{T0}")
    def ldq(j):
        a(f"buffer_load_dwordx4 {vr(Q+8*j,4)}, v{A_Q}, {w}, s{10+j} offen {LD}")
        a(f"buffer_load_dwordx4 {vr(Q+8*j+4,4)}, v{A_Q}, {w}, s{10+j} offen offset:1024 {LD}")
    l0 = kv_loads(0)
    a(l0[0]); a(l0[1])
    ldq(0); ldq(1); ldq(2)
    for x in l0[2:]: a(x)
    ldq(3)
    a("s_waitcnt vmcnt(8)")
    for x in qmask(0): a(x)
    a("s_nop 1")
    a(mfma(S, KV, Q, None))
    l1 = kv_loads(1)
    a(l1[0])
    a(mfma(S, KV + 4, Q + 4, S))
    a(l1[1])
    a("s_waitcnt vmcnt(8)")
    for x in qmask(1): a(x)
    a(f"s_setprio {1 if E('SWAP') else 0}\ns_nop 3")
    stamp(a, 7)
    seq = [(t, q) for t in range(12) for q in range(4)]
    seq += [(12,0),(12,1),(12,2),(13,0),(13,1),(13,2),(14,0),(15,0),(14,1),(15,1),(14,2),(15,2),(12,3),(13,3),(14,3),(15,3)]
    rseq = [(j, i) for i in (0, 3, 1, 2) for j in range(3)]
    rd = [f"ds_read_b128 {vr(O+16*j+4*i,4)}, v{A_RR} offset:{4096*j + 1024*i}" for j, i in rseq]
    for n, (t, q) in enumerate(seq):
        qk = (seq[n+1][0] & 3, seq[n+1][1]) if n < 63 else None
        pv = (seq[n-1][0] & 3, seq[n-1][1]) if n > 0 else None
        post, mid = [None] * 4, None
        if n < 51:
            ld = kv_loads((t + 3) & 3)
            if q == 0: post[0] = ld[0]
            if q == 1: post[0], post[2] = ld[1], ld[2]
            if q == 2:
                post[0], post[1], post[2] = [ld[3]] + ld[4].split('\n')
                if t < 12: post[3] = f"s_waitcnt vmcnt({ {1: 10, 3: 9, 4: 9, 6: 9}.get(t, 8) })"
            if (t, q) == (12, 1): post[3] = "s_waitcnt vmcnt(7)"
        if (t, q) == (13, 1): post[3] = "s_waitcnt vmcnt(4)"
        if (t, q) == (13, 2): post[3] = "s_waitcnt vmcnt(0)"
        first = 1 <= n <= 4
        if t == 0:
            l2 = kv_loads(2)
            if q == 0:
                post = [l1[2], l1[3] + "\n" + l1[4], None, None]
                mid = ["s_waitcnt vmcnt(8)"] + qmask(2)
            if q == 1:
                post = [l2[0], l2[1], l2[2], l2[3] + "\n" + l2[4]]
                mid = ["s_waitcnt vmcnt(6)"] + qmask(3)
            if q == 2:
                post = [ld[0], ld[1], ld[2], ld[3] + "\n" + ld[4] + "\ns_waitcnt vmcnt(10)"]
            if q == 3:
                post[0], post[1] = [f"buffer_store_dwordx4 {vr(PK+4*h,4)}, v{6+h}, {sr(SRD_R,4)}, s95 offen {ST}" for h in range(2)]
                post[3] = "s_waitcnt vmcnt(10)"
        if t == int(E("TGO", "2")) and q == 3:
            post[0] = f"ds_write_b32 v{A_LC}, v239 offset:20"
        if (t, q) == (2, 3):
            post[1] = f"s_mov_b64 exec, s[48:49]\nglobal_atomic_add v238, v253, {sr(S_CNT,2)} sc1\ns_mov_b64 exec, -1"
        if (t, q) == (5, 3):
            post[0] = f"s_mov_b64 exec, 1\nglobal_atomic_add v14, v228, v15, {sr(S_CNT,2)} sc0 sc1\ns_mov_b64 exec, -1"
        if (t, q) == (6, 3):
            post[1] = f"s_waitcnt vmcnt(4)\nv_readfirstlane_b32 s{T1}, v14"
            post[2] = f"s_cmp_lg_u32 s{T1}, s9"
            post[3] = "s_cbranch_scc1 L_late\nL_late_ok:"
            st = Asm(); st("L_late:"); poll(st, "s", 228, "s9", 1); st("s_branch L_late_ok")
            STUBS.append(st.text())
        if (t, q) == (15, 1): post = [None] + red_writes(0)[:3]
        if (t, q) == (14, 2): post[0] = red_writes(0)[3]
        if (t, q) == (15, 2): post = [None] + red_writes(1)[:3]
        if (t, q) == (12, 3): post[0] = red_writes(1)[3]
        if (t, q) == (13, 3):
            r2 = red_writes(2)
            post = [None, r2[0] + "\n" + r2[1], r2[2], r2[3]]
        if (t, q) == (14, 3):
            post = ["s_waitcnt lgkmcnt(0)", "s_barrier", "\n".join(rd[0:3]), "\n".join(rd[3:6])]
        if (t, q) == (15, 3):
            post = ["\n".join(rd[6:9]), "\n".join(rd[9:12]), None, None]
        o = O + 48
        if E("ATS") and n == int(E("ATS")): stamp(a, 2)
        slot(a, n, qk, pv, post, first, mid, tight=t < int(E('TIGHT', '6')),
             tail=mfma(o, KV + 48 + 8, P + 8, o) if n == 63 else None)
    a("s_waitcnt lgkmcnt(0)")
    a(f"v_add_f32 v{O}, v{O}, v{O+16}")
    a(mfma(o, KV + 48 + 12, P + 12, o))
    for i in range(1, 16): a(f"v_add_f32 v{O+i}, v{O+i}, v{O+16+i}")
    if not E('PA'): stamp(a, 8)
    for i in (0, 12, 2, 14, 4, 6, 8, 10):
        a(f"v_pk_add_f32 {vr(O+i,2)}, {vr(O+i,2)}, {vr(O+32+i,2)}")
    for i in (0, 12):
        a(f"v_pk_add_f32 {vr(o+i,2)}, {vr(o+i,2)}, {vr(O+i,2)}")
    rest = [f"v_pk_add_f32 {vr(o+i,2)}, {vr(o+i,2)}, {vr(O+i,2)}" for i in (2, 14, 4, 6, 8, 10)]
    row_sum(a, rest)

def row_sum(a, fill):
    o = O + 48
    a(f"""
    v_cndmask_b32 v10, v{o+12}, v{o}, s[18:19]
    v_cndmask_b32 v13, v{o+12}, v{o}, s[18:19]
    {fill[0]}
    {fill[1]}
    v_permlane32_swap_b32 v10, v13
    {fill[2]}
    v_cndmask_b32 v13, v13, v10, s[18:19]
    {fill[3]}
    v_rcp_f32 v10, v13
    {fill[4]}
    {fill[5]}
    """)

def store_o(a):
    o = O + 48
    w = sr(SRD_WS, 4)
    for h in range(2):
        for i in range(4*h, 4*h + 4):
            a(f"v_pk_mul_f32 {vr(o+2*i,2)}, {vr(o+2*i,2)}, v[10:11] op_sel_hi:[1,0]")
        for i in range(4*h, 4*h + 4):
            a(f"v_cvt_pk_bf16_f32 v{16+i}, v{o+2*i}, v{o+2*i+1}")
        a(f"buffer_store_dwordx4 {vr(16+4*h,4)}, v{A_L16}, {w}, s3 offen offset:{1024*h} {ST}")
    if not E('PA'): stamp(a, 9)
    a(f"v_pk_mul_f32 v[8:9], {vr(o,2)}, 0 op_sel_hi:[1,0]")
    for i in range(2, 16, 2):
        a(f"v_pk_fma_f32 v[8:9], {vr(o+i,2)}, 0, v[8:9] op_sel_hi:[1,0,1]")
    a(f"""
    v_cmp_le_f32 vcc, s14, v13
    v_cmp_ge_f32 s[16:17], s15, v13
    s_and_b64 s[16:17], s[16:17], vcc
    v_cmp_o_f32 vcc, v8, v9
    s_and_b64 s[16:17], s[16:17], vcc
    s_or_b64 s[16:17], s[16:17], s[100:101]
    s_cmp_lg_u64 s[16:17], -1
    s_cbranch_scc1 L_slow
    """)
    a("s_mov_b64 exec, 1")
    a(f"""
    s_waitcnt vmcnt(0)
    global_atomic_add v{A_OC}, v239, {sr(S_CNT,2)} sc1
    """)

def fallback(a):
    M, q, o = 208, Q + 24, O + 48
    l0 = kv_loads(0)
    a(f"""
L_slow:
    s_mov_b64 s[100:101], -1
    s_waitcnt vmcnt(0)
    v_mov_b32 v{M}, 0xff800000
    s_mov_b64 {sr(S_KB,2)}, {sr(S_WS,2)}
    s_mov_b32 s16, 0
L_s1:
    """)
    for x in (l0[0], l0[1], l0[4]): a(x)
    a("s_waitcnt vmcnt(0)")
    a(mfma(S, KV, q, None))
    a(mfma(S, KV + 4, q + 4, S))
    a("s_nop 15")
    for i in range(8):
        a(f"v_max3_f32 v{M}, v{M}, v{S+2*i}, v{S+2*i+1}")
    a(f"""
    s_add_u32 s16, s16, 1
    s_cmp_lt_u32 s16, 64
    s_cbranch_scc1 L_s1
    v_mov_b32 v{M+1}, v{M}
    s_nop 1
    v_permlane32_swap_b32 v{M}, v{M+1}
    s_nop 1
    v_max_f32 v{M}, v{M}, v{M+1}
    """)
    for i in range(16):
        a(f"v_mov_b32 v{o+i}, 0")
    a(f"""
    s_mov_b64 {sr(S_KB,2)}, {sr(S_WS,2)}
    s_mov_b32 s16, 0
L_s2:
    """)
    for x in l0: a(x)
    a("s_waitcnt vmcnt(0)")
    a(mfma(S, KV, q, None))
    a(mfma(S, KV + 4, q + 4, S))
    a("s_nop 15")
    for i in range(16):
        a(f"v_sub_f32 v{S+i}, v{S+i}, v{M}")
    for i in range(16):
        a(f"v_exp_f32 v{S+i}, v{S+i}")
    a("s_nop 0")
    for i in range(8):
        a(f"v_cvt_pk_bf16_f32 v{P+i}, v{S+2*i}, v{S+2*i+1}")
    a("s_nop 1")
    a(mfma(o, KV + 8, P, o))
    a(mfma(o, KV + 12, P + 4, o))
    a(f"""
    s_add_u32 s16, s16, 1
    s_cmp_lt_u32 s16, 64
    s_cbranch_scc1 L_s2
    s_nop 15
    """)
    row_sum(a, ["s_nop 0"] * 6)
    a("s_branch L_fin")

CA, ZR = 192, 28
H_T, H_UB, H_US, H_UTV, H_UTC, H_PL, H_BPC, H_CNT, H_K4, H_K2 = 16, 17, 18, 19, 20, 21, 22, 23, 18, 254

def chunk_of(it):
    if it == 0: return [f"s_mov_b32 s59, s{S_CH}"]
    return [f"s_add_u32 s59, s{S_CH}, {it}", "s_sub_u32 s58, s59, 7", "s_min_u32 s59, s59, s58"]

def dma_chunk(it, vx=2, vw=3):
    slot = SLOT_AT[it]
    g = []
    for j in range(4):
        x = chunk_of(it) + [f"s_mul_i32 s58, s59, {64*2688}", "s_lshl_b32 s59, s59, 7"] if j == 0 else []
        g.append(x + [f"s_add_u32 m0, s{S_LW1K}, {slot + j*4096}",
                      f"s_add_u32 s{T0}, s58, {16*j*2688}",
                      f"buffer_load_dwordx4 v{vw}, {sr(SRD_W,4)}, s{T0} offen lds"])
        if j < (3 if it == 0 else 1):
            g.append([f"s_add_u32 m0, s{S_LW1K}, {slot + 16384 + j*4096}",
                      f"s_add_u32 s{T1}, s59, {j*32*896}",
                      f"buffer_load_dwordx4 v{vx}, {sr(SRD_X,4)}, s{T1} offen lds"])
    return g

def dma_x(i, vx=2):
    g = []
    for it in range(1, 7):
        g.append(chunk_of(it) + ["s_lshl_b32 s59, s59, 7",
                                 f"s_add_u32 m0, s{S_LW1K}, {L_X1 + (i-1)*24576 + (it-1)*4096}",
                                 f"s_add_u32 s{T1}, s59, {i*32*896}",
                                 f"buffer_load_dwordx4 v{vx}, {sr(SRD_X,4)}, s{T1} offen lds"])
    return g

PLAN_G = E("PG", "12,34,56a,").split(",")
PLAN_H = E("PH", ",,,b").split(",")
def items(st, vx, vw):
    g = []
    for c in st:
        g += dma_x(1 + "ab".index(c), vx) if c in "ab" else dma_chunk(int(c), vx, vw)
    return g
def nld(st): return sum(6 if c in "ab" else 5 for c in st)
def wait_for(plan, upto, need, extra=None):
    seq = "".join(plan[:upto + 1])
    pos = max([seq.index(c) for c in need if c in seq], default=-1)
    return None if pos < 0 else nld(seq[pos + 1:])

def helper_setup():
    t = f"""
    s_mov_b32 s{SRD_WS}, s{S_WS}
    s_mov_b32 s{SRD_WS+1}, s{S_WS+1}
    s_mov_b32 s{SRD_WS+2}, {WS_SIZE}
    s_mov_b32 s{SRD_WS+3}, 0x20000
    s_mul_i32 s18, s{S_LW}, {TAB_B}
    v_and_b32 v4, 31, v0
    v_lshrrev_b32 v5, 5, v0
    v_mul_u32_u24 v24, 272, v4
    v_lshl_add_u32 v24, v5, 4, v24
    v_add_u32 v24, s18, v24
    s_lshr_b32 s47, s{S_LW}, 1
    s_mul_i32 s{T0}, s{S_LW}, 3072
    s_add_u32 s{T0}, s{T0}, {L_XCH}
    v_lshl_add_u32 v25, v0, 4, s{T0}
    s_lshl_b32 s{T0}, s{S_LW}, 2
    s_add_u32 s{T0}, s{T0}, {L_CNT + 48}
    v_mov_b32 v255, s{T0}
    v_mov_b32 v{H_CNT}, {L_CNT}
    v_and_b32 v14, 15, v0
    v_lshrrev_b32 v15, 5, v0
    s_lshl_b32 s{T0}, s{S_LW}, 1
    v_add_u32 v15, s{T0}, v15
    v_lshrrev_b32 v78, 1, v14
    v_xor_b32 v15, v15, v78
    v_lshlrev_b32 v78, 7, v14
    v_lshl_add_u32 v78, v15, 4, v78
    v_bfe_u32 v15, v0, 4, 1
    v_lshl_add_u32 v78, v15, 3, v78
    v_add_u32 v78, {SLOT_AT[0] + 16384}, v78
    s_mul_i32 s{T0}, s{S_RB}, {3*TILE_B}
    s_lshl_b32 s{T1}, s{S_C0}, 12
    s_add_u32 s{T1}, s{T1}, s{S_LW1K}
    s_add_u32 s{T1}, s{T1}, s{T0}
    v_lshl_add_u32 v79, v0, 4, s{T1}
    s_add_u32 s92, s{S_WS}, {WS_UT}
    s_addc_u32 s93, s{S_WS+1}, 0
    s_sub_u32 s{T0}, s{S_CB}, {E('UCB', '2')}
    s_cmp_lt_u32 s{T0}, 7
    s_cselect_b32 s94, {0 if E('X_NOUT') else 64*TILE_B}, 0
    s_mov_b32 s95, 0x20000
    s_cselect_b32 s48, 1, 0
    s_cmp_ge_u32 s{S_RB}, 22
    s_cselect_b32 s48, 0, s48
    s_mov_b32 s54, {TILE_B}
    s_mov_b32 s55, {2*TILE_B}
    s_lshl_b32 s{T0}, s{S_C0}, 2
    s_add_u32 s{T0}, s{T0}, s{S_LW}
    s_lshl_b32 s{T0}, s{T0}, {CS}
    s_add_u32 s{T0}, s{T0}, {B_U}
    v_mov_b32 v92, s{T0}
    v_mov_b32 v93, s48
    s_lshr_b32 s{T0}, s{S_P}, 3
    s_lshl_b32 s{T0}, s{T0}, {CS}
    s_add_u32 s{T0}, s{T0}, {B_U}
    v_mov_b32 v{H_UTC}, s{T0}
    v_lshrrev_b32 v14, 2, v0
    v_mul_u32_u24 v14, {TILE_B}, v14
    v_and_b32 v15, 3, v0
    v_lshl_add_u32 v{H_UTV}, v15, 6, v14
    s_lshr_b32 s14, s{S_P}, 1
    s_lshl_b32 s14, s14, 8
    s_and_b32 s15, s{S_P}, 1
    s_lshl_b32 s15, s15, 1
    s_add_u32 s15, s15, s47
    s_lshl_b32 s15, s15, 4
    s_add_u32 s14, s14, s15
    s_and_b32 s16, s{S_LW}, 1
    s_mul_i32 s15, s16, {32*TILE_B}
    s_add_u32 s14, s14, s15
    s_add_u32 s14, s14, {WS_UT}
    s_add_u32 s15, s14, {16*TILE_B}
    s_mul_i32 s17, s47, {U_B}
    s_add_u32 s13, s17, {L_U}
    s_lshl_b32 s16, s16, 11
    s_add_u32 s17, s17, s16
    s_mul_i32 s19, s47, {KC_B}
    s_add_u32 s19, s19, {L_KC}
    s_add_u32 s{T0}, s19, 64
    v_lshl_add_u32 v{H_K4}, v0, 4, s{T0}
    v_lshl_add_u32 v{H_K2}, v4, 4, s{T0}
    v_lshl_add_u32 v{H_K2}, v5, 3, v{H_K2}
    v_bfe_u32 v14, v0, 4, 2
    v_lshlrev_b32 v{H_T}, 5, v14
    v_lshl_add_u32 v{H_T}, v15, 3, v{H_T}
    v_bfe_u32 v14, v0, 2, 2
    v_lshlrev_b32 v14, 3, v14
    v_sub_u32 v{H_T}, v{H_T}, v14
    s_add_u32 s{T0}, s19, {64 - 32}
    v_add_u32 v{H_T}, s{T0}, v{H_T}
    ; U address: L_U + 512 + 16*(l&31) - 64 hi + 128*beta
    v_lshlrev_b32 v14, 4, v4
    v_lshlrev_b32 v15, 6, v5
    v_sub_u32 v14, v14, v15
    s_add_u32 s{T0}, s13, {512 - 384}
    v_add_u32 v{H_UB}, s{T0}, v14
    s_lshl_b32 s{T0}, s{S_LW}, 11
    v_lshl_add_u32 v{H_PL}, v0, 4, s{T0}
    s_lshl_b32 s12, s{S_P}, 13
    s_add_u32 s12, s12, {WS_BP}
    s_lshr_b32 s{T1}, s{S_P}, 4
    s_mul_i32 s{T0}, s{S_LW}, 14
    s_add_u32 s{T0}, s{T0}, s{T1}
    s_lshl_b32 s{T0}, s{T0}, {CS}
    s_add_u32 s{T0}, s{T0}, {B_BP}
    v_mov_b32 v{H_BPC}, s{T0}
    """
    return [l.strip() for l in t.split("\n") if l.strip() and not l.strip().startswith(";")]

def conv(a):
    w = sr(SRD_WS, 4)
    stamp(a, 5)
    UFR, TR, NT = 64, 32, 8
    def variant(tiles, tag):
        top = min(4 * max(tiles) + 3, int(E('X_TOP', '99')))
        def rd_t(ph):
            t = TR + 4 * (ph % NT)
            return [f"ds_read_b64_tr_b16 {vr(t,2)}, v{H_T} offset:{128*ph + 32}",
                    f"ds_read_b64_tr_b16 {vr(t+2,2)}, v{H_T} offset:{128*ph}"]
        have = set()
        need = []
        for ph in range(top + 1):
            r = rd_t(ph)
            for tau in tiles:
                b = 4 * tau - ph
                if b >= -3 and b not in have:
                    have.add(b)
                    r.append(f"ds_read_b128 {vr(UFR + 4*(b+3), 4)}, v{H_UB} offset:{128*(b+3)}")
            need.append(r)
        queue = [(ph, x) for ph in range(top + 1) for x in need[ph]]
        issued = 0
        def issue(k, maxph):
            nonlocal issued
            while k > 0 and issued < len(queue) and queue[issued][0] <= maxph:
                a(queue[issued][1]); issued += 1; k -= 1
        issue(12, 1)
        a(f"s_setprio {E('PRC', '0')}")
        done = 0
        for ph in range(top + 1):
            done += len(need[ph])
            issue(max(0, done - issued), ph)
            a(f"s_waitcnt lgkmcnt({min(15, issued - done)})")
            act = [k for k, tau in enumerate(tiles) if 4 * tau - ph >= -3]
            for k in act:
                b = 4 * tiles[k] - ph
                a(mfma(CA + 16*k, UFR + 4*(b+3), TR + 4*(ph % NT), None if ph == 0 else CA + 16*k))
                issue(min(2, 12 - (issued - done)), ph + NT - 1)
        assert issued == len(queue)
        a(f"s_setprio {E('PRE_', '1')}")
        stamp(a, 6)
        a(f"""
L_tab_{tag}:
        ds_read_b32 v15, v{H_CNT} offset:4
        s_waitcnt lgkmcnt(0)
        v_readfirstlane_b32 s{T0}, v15
        s_cmp_lt_u32 s{T0}, 4
        s_cbranch_scc1 L_tab_{tag}
        """)
        if 0 in tiles:
            a(f"""
            v_and_b32 v14, 3, v0
            v_mul_u32_u24 v14, {2*PL_B}, v14
            v_add_u32 v14, m0, v14
            ds_write_b128 v14, {vr(ZR,4)}
            """)
        order = sorted(range(4), key=lambda k: tiles[k])
        for k in ([] if E("X_NOPL") else order):
            for r in range(16):
                a(f"ds_write_addtid_b32 v{CA+16*k+r} offset:{(r&3)*2*PL_B + 1024*tiles[k] + 256*(r>>2) + 4*(r&3)}")
    a(f"""
    s_mul_i32 m0, s47, {PL_B}
    s_bitcmp1_b32 s{S_LW}, 0
    s_cbranch_scc1 L_cB
    """)
    variant([7, 4, 3, 0], "A")
    a("s_branch L_cC\nL_cB:")
    variant([6, 5, 2, 1], "B")
    a("L_cC:")
    lds_sync(a, 2, "c", vm=False)
    for hf in range(2):
        for pl in range(8):
            a(f"ds_read_b128 {vr(CA+32*hf+4*pl,4)}, v{H_PL} offset:{pl*PL_B + 1024*hf}")
    for hf in range(2):
        b = CA + 32*hf
        a(f"s_waitcnt lgkmcnt({8 - 8*hf})")
        for i in range(0, 8 if E("PKA") else 0, 2):
            a(f"v_pk_add_f32 {vr(b+i,2)}, {vr(b+i,2)}, {vr(b+8+i,2)}")
            a(f"v_pk_add_f32 {vr(b+16+i,2)}, {vr(b+16+i,2)}, {vr(b+24+i,2)}")
        for i in range(0, 8 if E("PKA") else 0, 2):
            a(f"v_pk_add_f32 {vr(b+i,2)}, {vr(b+i,2)}, {vr(b+16+i,2)}")
        for i in range(0 if E("X_NOADD") else 8):
            a(f"v_add_f32 v{b+i}, v{b+i}, v{b+8+i}")
            a(f"v_add_f32 v{b+16+i}, v{b+16+i}, v{b+24+i}")
        for i in range(0 if E("X_NOADD") else 8):
            a(f"v_add_f32 v{b+i}, v{b+i}, v{b+16+i}")
        for i in range(4):
            a(f"v_cvt_pk_bf16_f32 v{b+i}, v{b+i}, v{b+4+i}")
        if E("NOBGATE"):
            a(f"buffer_store_dwordx4 {vr(b,4)}, v{H_PL}, {w}, s12 offen offset:{1024*hf} {ST}")
    if not E("NOBGATE"):
        a(f"""
L_wait_b:
        ds_read_b32 v15, v{H_CNT} offset:20
        s_waitcnt lgkmcnt(0)
        v_readfirstlane_b32 s{T0}, v15
        s_cmp_lg_u32 s{T0}, 0
        s_cbranch_scc1 L_go_b
        s_sleep 4
        s_branch L_wait_b
L_go_b:
        """)
        for hf in range(2):
            a(f"buffer_store_dwordx4 {vr(CA+32*hf,4)}, v{H_PL}, {w}, s12 offen offset:{1024*hf} {ST}")
    if E("WARM"):
        a(f"""
        s_lshr_b32 s{T0}, s2, 3
        s_lshl_b32 s{T0}, s{T0}, 2
        s_add_u32 s{T0}, s{T0}, s{S_LW}
        s_mul_i32 s{T0}, s{T0}, {28*128}
        v_min_u32 v14, 27, v0
        v_lshl_add_u32 v14, v14, 7, s{T0}
        global_load_dword v26, v14, {sr(S_WO,2)}
        """)
    lds_sync(a, 3, "d", vm=False)

def outproj_setup(a):
    a(f"""
    s_and_b32 s8, s2, 7
    s_lshl_b32 s8, s8, 3
    s_lshr_b32 s{T0}, s2, 5
    s_add_u32 s8, s8, s{T0}
    s_bfe_u32 s9, s2, 0x20003
    s_lshl_b32 s10, s9, 2
    s_add_u32 s10, s10, s{S_LW}
    v_lshrrev_b32 v36, 4, v0
    v_lshlrev_b32 v37, 2, v36
    v_xor_b32 v37, v37, v0
    v_and_b32 v37, 15, v37
    s_lshl_b32 s{T0}, s{S_LW}, 2
    v_add_u32 v36, s{T0}, v36
    v_mul_u32_u24 v3, 896, v36
    v_lshl_add_u32 v3, v37, 4, v3
    s_cmp_eq_u32 s9, 3
    s_cselect_b32 s{T0}, 8, 16
    v_cmp_le_u32 vcc, s{T0}, v37
    s_lshl_b32 s{T0}, s9, 8
    s_add_u32 s{SRD_X}, s{S_WO}, s{T0}
    s_addc_u32 s{SRD_X+1}, s{S_WO+1}, 0
    s_sub_u32 s{SRD_X+2}, {WO_BYTES}, s{T0}
    v_mov_b32 v37, 0x1000000
    v_cndmask_b32 v3, v3, v37, vcc
    v_bfe_u32 v37, v0, 2, 2
    v_lshl_add_u32 v8, v5, 3, v37
    v_lshlrev_b32 v8, 8, v8
    v_xor_b32 v37, s{S_LW}, v37
    v_lshl_add_u32 v8, v37, 6, v8
    v_bfe_u32 v37, v0, 4, 1
    v_lshl_add_u32 v8, v37, 5, v8
    v_and_b32 v37, 1, v0
    v_lshl_add_u32 v8, v37, 4, v8
    v_bfe_u32 v37, v0, 1, 1
    v_lshl_add_u32 v8, v37, 3, v8
    v_lshl_add_u32 v9, v5, 11, v8
    v_mul_u32_u24 v37, {48*256}, v5
    v_add_u32 v10, v37, v8
    s_cmp_lt_u32 s2, 224
    s_cselect_b32 s{T0}, 1, 0
    v_mov_b32 v1, s{T0}
    s_lshr_b32 s{T0}, s8, 4                ; quarter
    s_mul_i32 s{T1}, s{T0}, 14
    s_add_u32 s{T1}, s{T1}, s10
    s_lshl_b32 s{T1}, s{T1}, {CS}
    s_add_u32 s{T1}, s{T1}, {B_BP}
    v_mov_b32 v11, s{T1}
    v_lshlrev_b32 v12, 2, v4
    v_lshl_add_u32 v13, v5, 15, v12
    """)

def outproj(a):
    WOF, ACC3, BR, OF, BB = 32, 224, 208, 160, 192
    KS = []
    for pp in range(0, 8, 2):
        for p_ in (pp, pp + 1):
            KS += [(p_, 4096*p_, 56*p_, 0), (p_, 4096*p_ + 1024, 56*p_ + 16, 1), (p_, 4096*p_ + 3072, 56*p_ + 40, 0)]
        KS.append((pp + 1, 4096*pp, 56*pp + 24, 2))
    w = sr(SRD_WS, 4)
    a(f"""
    s_mov_b32 s12, 0
L_wait_at:
    ds_read_b32 v15, v{H_CNT} offset:20
    s_waitcnt lgkmcnt(0)
    v_readfirstlane_b32 s{T0}, v15
    s_cmp_lg_u32 s{T0}, 0
    s_cbranch_scc1 L_go_at
    s_sleep 8
    s_branch L_wait_at
L_go_at:
    """)
    for rnd in range(0 if E("X_NOWO") else 2):
        a(f"s_mov_b32 m0, s{S_LW1K}\ns_nop 0")
        for i in range(14):
            a(f"buffer_load_dwordx4 v3, {sr(SRD_X,4)}, s12 offen lds")
            a(f"s_add_u32 s12, s12, {16*896}")
            if i < 13:
                a(f"s_add_u32 m0, m0, 4096\ns_waitcnt vmcnt({E('PACE', '3')})")
            if rnd == 0 and i == int(E('PACE', '3')):
                a(f"""
                s_mov_b64 exec, 1
                global_atomic_add v{H_BPC}, v1, {sr(S_CNT,2)} sc1
                s_mov_b64 exec, -1
                """)
        lds_sync(a, 8 + 2*rnd, f"w{rnd}")
        for k in range(14):
            _, _, row, kind = KS[k]
            va = (8, 9, 10)[kind]
            a(f"ds_read_b64_tr_b16 {vr(WOF+56*rnd+4*k,2)}, v{va} offset:{256*row}")
            a(f"ds_read_b64_tr_b16 {vr(WOF+56*rnd+4*k+2,2)}, v{va} offset:{256*row+1024}")
        if rnd == 0: lds_sync(a, 9, "wx", vm=False)
    a(f"""
    s_cmp_ge_u32 s10, 14
    s_cbranch_scc1 L_nowo
    """)
    if not E('PSTART'): stamp(a, 8)
    poll(a, "b", 11, "22", 1, sleep=16, limit=2 if E("X_NOCONV") else SPIN_MAX)
    a(f"""
    s_lshl_b32 s{T0}, s10, 17
    s_lshl_b32 s{T1}, s8, 7
    s_add_u32 s{T0}, s{T0}, s{T1}
    s_add_u32 s{T0}, s{T0}, {WS_BP}
    s_add_u32 s{T1}, s{T1}, {WS_GT}
    buffer_load_dword v{BR+8}, v12, {w}, s{T1} offen {LD}
    """)
    for i in range(8):
        off = (8 * (i >> 2) + (i & 3)) * 8192
        a(f"s_add_u32 s{T2}, s{T0}, {off}")
        a(f"buffer_load_dword v{BR+i}, v13, {w}, s{T2} offen {LD}")
    a(f"""
    """)
    a("L_nowo:\ns_waitcnt vmcnt(0) lgkmcnt(0)")
    if not E('PSTART'): stamp(a, 9)
    a(f"""
    s_barrier
    s_setprio 0
    """)
    if (not E("NOHALF")):
        a(f"""
        s_lshl_b32 s{T3}, s{S_LW}, 11
        s_add_u32 s{T3}, s{T3}, 32768
        v_bfe_u32 v10, v0, 1, 2
        v_xor_b32 v9, v5, v10
        v_lshl_add_u32 v13, v4, 6, s{T3}
        v_lshl_add_u32 v9, v9, 4, v13
        v_xor_b32 v3, 32, v9
        v_lshrrev_b32 v13, 2, v0               ; row
        v_and_b32 v10, 3, v0
        v_mul_u32_u24 v12, 896, v13
        v_lshl_add_u32 v12, v10, 4, v12
        v_bfe_u32 v11, v0, 3, 2
        v_xor_b32 v10, v10, v11
        v_lshl_add_u32 v13, v13, 6, s{T3}
        v_lshl_add_u32 v10, v10, 4, v13
        v_add_u32 v13, {16*896}, v12
        s_mul_i32 s{T0}, s8, {32*896}
        s_lshl_b32 s{T1}, s10, 6
        """)
    elif not E("NOFULL"):
        a(f"""
        ; the two waves of a pair exchange through LDS so that every store covers whole 128-B lines
        s_and_b32 s{T2}, s{S_LW}, 1
        s_lshr_b32 s{T3}, s{S_LW}, 1
        s_lshl_b32 s{T3}, s{T3}, 12
        s_add_u32 s{T3}, s{T3}, 32768
        s_lshl_b32 s{T0}, s{T2}, 2
        v_add_u32 v9, s{T0}, v5
        v_and_b32 v10, 7, v0
        v_xor_b32 v9, v9, v10
        v_lshl_add_u32 v13, v4, 7, s{T3}
        v_lshl_add_u32 v9, v9, 4, v13
        v_xor_b32 v3, 32, v9
        v_lshrrev_b32 v13, 3, v0
        v_mul_u32_u24 v12, 896, v13
        v_lshl_add_u32 v12, v10, 4, v12
        v_xor_b32 v10, v10, v13
        v_lshlrev_b32 v13, 7, v13
        v_lshl_add_u32 v10, v10, 4, v13
        s_lshl_b32 s{T0}, s{T2}, 11
        s_add_u32 s{T3}, s{T3}, s{T0}
        v_add_u32 v10, s{T3}, v10
        v_add_u32 v13, {8*896}, v12
        s_mul_i32 s{T0}, s8, {32*896}
        s_lshr_b32 s{T1}, s10, 1
        s_lshl_b32 s{T1}, s{T1}, 7
        s_add_u32 s{T0}, s{T0}, s{T1}
        s_mul_i32 s{T1}, s{T2}, {16*896}
        """)
    else:
        a(f"""
        v_mul_u32_u24 v12, 896, v4
        v_lshl_add_u32 v12, v5, 4, v12
        s_mul_i32 s{T0}, s8, {32*896}
        s_lshl_b32 s{T1}, s10, 6
        """)
    a(f"""
    s_add_u32 s{T0}, s{T0}, s{T1}
    s_add_u32 s{S_OUT}, s{S_OUT}, s{T0}
    s_addc_u32 s{S_OUT+1}, s{S_OUT+1}, 0
    v_lshlrev_b32 v2, 4, v0
    v_lshl_add_u32 v16, v5, 10, v2
    v_mul_u32_u24 v17, 3584, v5
    v_add_u32 v17, v17, v2
    s_lshl_b32 s{T0}, s8, {CS}
    s_add_u32 s{T0}, s{T0}, {B_O}
    v_mov_b32 v8, s{T0}
    s_lshl_b32 s12, s8, 15
    s_add_u32 s12, s12, {WS_O}
    s_add_u32 s12, s12, s{S_LW1K}
    s_mov_b32 m0, s{S_LW1K}
    """)
    a(f"""
    v_sub_f32 v{BR+9}, 1.0, v{BR+8}
    v_cvt_pk_bf16_f32 v{BR+9}, v{BR+9}, v{BR+9}
    v_and_b32 v{BR+9}, 0xffff0000, v{BR+9}
    """)
    for i in range(8):
        a(f"v_lshlrev_b32 v{BB+2*i}, 16, v{BR+i}")
        a(f"v_and_b32 v{BB+2*i+1}, 0xffff0000, v{BR+i}")
    for i in range(16):
        a(f"v_mul_f32 v{BB+i}, v{BB+i}, v{BR+9}")
    a(f"""
    {"s_barrier" if E("WAITB") else ""}
    """)
    if not E("OP4"):
        a(f"s_cmp_lg_u32 s{S_LW}, 0\ns_cbranch_scc1 L_ok_o")
        if E("GAPO"): poll2(a, "o", 8, "16", 1, int(E("GAPO")))
        else: poll(a, "o", 8, "16", 1)
        a("s_barrier")
    else: poll(a, "o", 8, "16", 1)
    stamp(a, 10)
    for i in range(8):
        a(f"buffer_load_dwordx4 v2, {w}, s12 offen {LD} lds")
        if i < 7: a("s_add_u32 m0, m0, 4096\ns_add_u32 s12, s12, 4096")
    bars = {0: 6, 7: 4, 14: 0}
    cnt = [2 if x[3] == 2 else 1 for x in KS]
    def rd(k):
        if k in bars:
            a(f"s_waitcnt vmcnt({bars[k]})\ns_barrier")
            if k == 0: a("s_cmp_ge_u32 s10, 14\ns_cbranch_scc1 L_idle3")
        _, off, _, kind = KS[k]
        r = OF + 4*(k % 8)
        if kind == 2:
            a(f"ds_read_b64 {vr(r,2)}, v17 offset:{off + 1536}")
            a(f"ds_read_b64 {vr(r+2,2)}, v17 offset:{off + 2048 + 8}")
        else:
            a(f"ds_read_b128 {vr(r,4)}, v{(2, 16)[kind]} offset:{off}")
    issued = 0
    for k in range(28):
        want = min(28, k + 6)
        if k < 2: want = 5 + k
        while issued < want:
            rd(issued); issued += 1
        a(f"s_waitcnt lgkmcnt({sum(cnt[k+1:issued])})")
        a(mfma(ACC3, WOF + 4*k, OF + 4*(k%8), None if k == 0 else ACC3))
    a("s_nop 11")
    for h in range(2):
        for i in range(8*h, 8*h + 8, 2):
            a(f"v_pk_fma_f32 {vr(BB+i,2)}, {vr(ACC3+i,2)}, {vr(BR+8,2)}, {vr(BB+i,2)} op_sel_hi:[1,0,1]")
        for i in range(4*h, 4*h + 4):
            a(f"v_cvt_pk_bf16_f32 v{OF+i}, v{BB+2*i}, v{BB+2*i+1}")
        if not E("NOFULL"):
            a(f"ds_write_b128 v{(9, 3)[h]}, {vr(OF+4*h,4)}")
        else:
            a(f"global_store_dwordx4 v12, {vr(OF+4*h,4)}, {sr(S_OUT,2)} offset:{32*h} {E('STO', 'sc1')}")
    if not E("NOFULL"):
        a(f"""
        {"" if (not E("NOHALF")) else "s_waitcnt lgkmcnt(0)"}
        {"" if (not E("NOHALF")) else "s_barrier"}
        ds_read_b128 {vr(OF+8,4)}, v10
        ds_read_b128 {vr(OF+12,4)}, v10 offset:1024
        s_waitcnt lgkmcnt(1)
        global_store_dwordx4 v12, {vr(OF+8,4)}, {sr(S_OUT,2)} {E('STO', 'sc1')}
        s_waitcnt lgkmcnt(0)
        global_store_dwordx4 v13, {vr(OF+12,4)}, {sr(S_OUT,2)} {E('STO', 'sc1')}
        """)
    if PROF and E("PEND"): stamp(a, 9); a("s_waitcnt vmcnt(0)")
    a(endp("L_end"))
    a("L_idle3:\ns_waitcnt vmcnt(0)")
    a(endp("L_end"))


def expand2(a, store, A):
    a(f"""
    v_add_f32 v{A}, v{A}, v36
    v_cvt_pk_bf16_f32 v45, v{A+2}, v{A+3}
    v_cvt_pk_bf16_f32 v44, v{A}, v{A+1}
    v_mov_b32_dpp v40, v{A+8} wave_rol:1 row_mask:0xf bank_mask:0xf
    """)
    store(2, 44, 0)
    a(f"""
    v_mov_b32_dpp v41, v{A+10} wave_rol:1 row_mask:0xf bank_mask:0xf
    v_mov_b32_dpp v40, v{A+6} wave_shl:1 row_mask:0xc bank_mask:0xf
    v_cvt_pk_bf16_f32 v46, v{A+4}, v{A+4}
    v_mov_b32_dpp v41, v{A+8} wave_shl:1 row_mask:0xf bank_mask:0xf
    v_mov_b32_dpp v40, v{A+6} quad_perm:[0,1,2,3] row_mask:0x3 bank_mask:0xf
    v_cvt_pk_bf16_f32 v48, v{A+8}, v{A+8}
    v_cvt_pk_bf16_f32 v47, v{A+5}, v40
    v_cvt_pk_bf16_f32 v49, v{A+8}, v{A+9}
    """)
    store(2, 46, 512)
    a(f"""
    v_cvt_pk_bf16_f32 v50, v{A+9}, v{A+9}
    v_cvt_pk_bf16_f32 v51, v41, v41
    v_mov_b32_dpp v42, v{A+11} wave_rol:1 row_mask:0xf bank_mask:0xf
    """)
    store(4, 48, 1024)
    a(f"""
    v_mov_b32_dpp v43, v{A+7} wave_rol:1 row_mask:0xf bank_mask:0xf
    v_mov_b32_dpp v42, v{A+10} wave_shl:1 row_mask:0xf bank_mask:0xf
    v_cvt_pk_bf16_f32 v52, v{A+10}, v{A+10}
    v_mov_b32_dpp v43, v{A+11} wave_shl:1 row_mask:0xf bank_mask:0xf
    v_cndmask_b32 v38, v{A+10}, v42, vcc
    v_cvt_pk_bf16_f32 v55, v42, v42
    v_mov_b32 v53, v52
    v_cvt_pk_bf16_f32 v54, v38, v42
    v_cndmask_b32 v39, v{A+11}, v43, vcc
    """)
    store(4, 52, 2048)
    a(f"""
    v_cvt_pk_bf16_f32 v56, v{A+11}, v{A+11}
    v_cvt_pk_bf16_f32 v59, v43, v43
    v_cvt_pk_bf16_f32 v58, v39, v43
    v_mov_b32 v57, v56
    """)
    store(4, 56, 3072)

def helper_waves(a):
    w = sr(SRD_WS, 4)
    def emit(groups, fill=None, n=0, head=50):
        if fill is not None:
            h = n * head // 100
            for x in fill[:h]: a(x)
            del fill[:h]
            n -= h
        for k, g in enumerate(groups):
            for x in g: a(x)
            if fill is not None:
                m = n * (k + 1) // len(groups) - n * k // len(groups)
                for x in fill[:m]: a(x)
                del fill[:m]
    O0, O1, FV0, FU0, FV1, FU1, KA = 148, 201, 80, 112, 148, 36, 180
    k0, k1 = kgen_split(0, O0, bool(E("PL0"))), kgen_split(1, O1, not E("PK1"))
    if E("PB"): stamp(a, 8)
    if E("XT"):
        a(f"""
        s_cmp_lg_u32 s{S_LW}, 0
        s_cbranch_scc1 L_noxt
        s_add_u32 s{T0}, s{S_C0}, 2
        s_sub_u32 s{T1}, s{T0}, 7
        s_cmp_ge_u32 s{T0}, 7
        s_cselect_b32 s{T0}, s{T1}, s{T0}
        s_lshl_b32 s{T0}, s{T0}, 7
        s_add_u32 s{T0}, s{T0}, {32*896}
        v_mul_u32_u24 v14, 896, v0
        buffer_load_dword v6, v14, {sr(SRD_X,4)}, s{T0} offen
L_noxt:
        """)
    hs_all = helper_setup()
    cut = [i for i, x in enumerate(hs_all) if x.startswith("v_mov_b32 v93")][0] + 1
    LATE = hs_all[cut:] if E("HSL") else []
    for ins in (hs_all[:cut] if E("HSL") else hs_all): a(ins)
    a(f"""
    s_waitcnt lgkmcnt(0)
    s_lshl_b32 s{T1}, s51, 16
    s_and_b32 s51, s51, 0xffff0000
    s_lshl_b32 s{T2}, s52, 16
    s_and_b32 s52, s52, 0xffff0000
    s_cmp_ge_u32 s{S_LW}, 2
    s_cselect_b32 s51, s51, s{T1}
    s_cselect_b32 s{S_DSK}, s52, s{T2}
    v_mov_b32 v12, s51
    v_mul_f32 v12, {f32(LOG2E)}, v12
    v_exp_f32 v12, v12
    s_nop 0
    v_cvt_pk_bf16_f32 v12, v12, v12
    v_and_b32 v12, 0xffff0000, v12         ; dt
    v_add_f32 v13, v12, v12                ; 2 dt
    """)
    if E("PB"): stamp(a, 9)
    a("""
    """)
    fill = k0[0] + k1[0]
    if E("X_NOFILL"): fill = []
    a("s_waitcnt vmcnt(0)")
    if E("PB"): stamp(a, 8)
    emit([[]], fill, int(E("SLP", "231")))
    if E("X_BURN"):
        for i in range(8):
            a(f"v_mul_u32_u24 v{100+i}, {0x9e37 + 778*i}, v79\nv_and_b32 v{100+i}, 0x3fffbfff, v{100+i}\nv_or_b32 v{100+i}, 0x3c000000, v{100+i}")
        a("s_nop 1")
        for i in range(int(E("X_BURN"))):
            a(mfma(112, 100 + 4*(i & 1), 104 - 4*((i >> 1) & 1), None if i == 0 else 112))
    a("""
    s_setprio 3
    s_barrier                              ; B0
    """)
    for i in range(3):
        a(f"ds_read_b64_tr_b16 {vr(80+4*i,2)}, v78 offset:{i*4096}")
        a(f"ds_read_b64_tr_b16 {vr(82+4*i,2)}, v78 offset:{i*4096+2048}")
    USP = int(E("USP", "0"))
    for i in range(3):
        a(f"s_waitcnt lgkmcnt({4 - 2*i})")
        a(f"buffer_store_dwordx4 {vr(80+4*i,4)}, v79, s[92:95], {['0','s54','s55'][i]} offen {E('STU', ST)}")
        if USP and i < 2:
            a("s_setprio 0"); emit([[]], fill, USP); a("s_setprio 3")
    DBL = int(E("DBL", "60"))
    dbl = f"s_setprio 3\nglobal_load_dword v6, v7, {sr(S_DBG,2)} sc1\ns_setprio 0"
    a("s_setprio 0\ns_waitcnt vmcnt(3)" if DBL else dbl + "\ns_waitcnt vmcnt(4)")
    stamp(a, 1)
    HD = int(E("HD", "0"))
    SL = [int(x) for x in E("SL", "110,180,70").split(",")]
    assert not PLAN_H[0] and not set("12") & set("".join(PLAN_H))
    if DBL:
        emit([[]], fill, DBL); a(dbl); SL[0] -= DBL
    emit(items(PLAN_H[1], 2, 3) or [[]], fill, SL[0], HD)
    a("s_barrier")
    h = int(E("USIG", "20"))
    emit([[]], fill, h)
    a(f"""
    s_setprio 3
    s_waitcnt vmcnt({nld(PLAN_H[1])})
    v_cmp_eq_u32 vcc, 0, v6
    s_cbranch_vccnz L_hs
L_hs_ok:
    s_mov_b64 exec, 1
    global_atomic_add v92, v93, {sr(S_CNT,2)} sc1
    s_mov_b64 exec, -1
    s_setprio 0
    """)
    if E("PU"): stamp(a, 8)
    STUBS.append(f"""
L_hs:
    s_mov_b32 s{T2}, 0
L_hs1:
    s_sleep 8
    global_load_dword v6, v7, {sr(S_DBG,2)} sc1
    s_add_u32 s{T2}, s{T2}, 1
    s_waitcnt vmcnt(0)
    v_cmp_eq_u32 vcc, 0, v6
    s_cbranch_vccz L_hs_ok
    s_cmp_lt_u32 s{T2}, {SPIN_MAX}
    s_cbranch_scc1 L_hs1
    {giveup("h")}
    s_branch L_hs_ok
    """)
    emit(items(PLAN_H[2], 2, 3) or [[]], fill, SL[1] - h, HD)
    wv = wait_for(PLAN_H, 2, "34")
    if wv is not None: a(f"s_waitcnt vmcnt({wv})")
    for ins in LATE: a(ins)
    a("s_barrier")
    hx = items(PLAN_H[3], 2, 3)
    HC = 6
    upoll = f"""
    s_mov_b64 exec, 1
    global_atomic_add v14, v{H_UTC}, v7, {sr(S_CNT,2)} sc0 sc1
    s_mov_b64 exec, -1
    """
    udma = f"""
    s_add_u32 m0, s17, {L_U + 512}
    s_mov_b32 s11, 1
    buffer_load_dwordx4 v{H_UTV}, {w}, s14 offen {LD} lds
    s_add_u32 m0, m0, 1024
    s_nop 0
    buffer_load_dwordx4 v{H_UTV}, {w}, s15 offen {LD} lds
    """
    def ucheck(tag, restore):
        a(f"s_cmp_eq_u32 s11, 0\ns_cbranch_scc1 L_uc_{tag}\nL_ub_{tag}:")
        STUBS.append(f"""
L_uc_{tag}:
        s_waitcnt vmcnt(0)
        v_readfirstlane_b32 s{T0}, v14
        s_cmp_lg_u32 s{T0}, 22
        s_cbranch_scc1 L_ua_{tag}
        {udma}
        {"s_mov_b32 m0, s18" if restore else ""}
        s_branch L_ub_{tag}
L_ua_{tag}:
        {upoll}
        s_branch L_ub_{tag}
        """)
    UP = E("UP", "b")
    a(f"s_cmp_ge_u32 s2, {0 if E('X_NOCONV') else 224}\ns_cselect_b32 s11, 1, 0")
    emit(hx, fill, SL[2], 0)
    assert UP == "b"
    a(upoll)
    wv = wait_for(PLAN_H, 3, "56")
    if wv is not None: a(f"s_waitcnt vmcnt({wv + 1})")
    a("s_barrier")
    stamp(a, 2)
    if UP == "c": a(upoll)
    assert not fill
    outproj_setup(a)
    wv = wait_for(PLAN_H, 3, "a")
    if wv is not None: a(f"s_waitcnt vmcnt({wv + 1})")
    a(f"""
    s_barrier                              ; BX1
    s_setprio 1
    """)
    emit([[]], fill, int(E("SLU", "0")))
    a("s_waitcnt vmcnt(1)")
    ucheck("1", False)
    emit([[]], fill, int(E("SLX", "50")))
    def frags(base):
        return [f"ds_read_b128 {vr(base + 4*ks, 4)}, v24 offset:{32*ks}" for ks in range(8)]
    ds = k0[1] + frags(FV0) + k0[2] + frags(FU0) + k1[1] + frags(FV1) + k1[2] + frags(FU1)
    emit([[]], fill, max(0, len(fill) - len(k1[0])))
    early = int(E("DSE", "0"))
    assert early <= 71
    a("s_mov_b32 m0, s18\ns_nop 0")
    for x in ds[:early]: a(x)
    a(f"""
    s_barrier                              ; BX2
    s_cmp_ge_u32 s2, {0 if E("X_NOCONV") else 224}
    s_cbranch_scc1 L_p3
    """)
    fill += [f"v_mov_b32 v{ZR+i}, 0" for i in range(4)] + [x.strip() for x in f"""v_lshl_add_u32 v6, v0, 3, s13
    ds_write_b64 v6, {vr(ZR,2)}
    v_add_u32 v6, s19, v0
    ds_write_b8 v6, v{ZR}
    s_xor_b32 s{T1}, s{S_LW}, 1
    s_mul_i32 s{T1}, s{T1}, 3072
    s_add_u32 s{T1}, s{T1}, {L_XCH}
    v_lshl_add_u32 v27, v0, 4, s{T1}""".split("\n")]
    MIX = 0 if early else int(E("MIX", "71"))
    nf = len(fill)
    if not MIX:
        for x in fill: a(x)
    c1 = max(early, int(E("UCHK", "60")))
    m0_at = int(E("KM0", "111"))
    mm0 = [mfma(KA, FU0 + 4*ks, FV0 + 4*ks, None if ks == 0 else KA) for ks in range(8)]
    for k, x in enumerate(ds[early:], early):
        if k == c1: ucheck("2", True); a("s_nop 0")
        if k == m0_at: a("s_waitcnt lgkmcnt(15)")
        if k >= m0_at and (k - m0_at) % 4 == 0 and mm0: a(mm0.pop(0))
        a(x)
        if k < MIX:
            for y in fill[nf * k // MIX: nf * (k + 1) // MIX]: a(y)
    for m in mm0: a(m)
    stamp(a, 3)
    for ks in range(8):
        a(f"s_waitcnt lgkmcnt({7 - ks})")
        a(mfma(KA, FU1 + 4*ks, FV1 + 4*ks, KA))
    a(f"""
    s_cmp_eq_u32 s11, 0
    s_cbranch_scc1 L_u_late
L_u_done:
    v_mov_b32 v15, 1
    v_xor_b32 v6, {4}, v255
    v_mov_b32 v36, 0
    v_and_b32 v37, 1, v0
    v_writelane_b32 v36, s{S_DSK}, 0
    v_cmp_eq_u32 vcc, 1, v37
    s_nop 3
    ds_write_b128 v25, {vr(KA,4)}
    ds_write_b128 v25, {vr(KA+4,4)} offset:1024
    ds_write_b128 v25, {vr(KA+8,4)} offset:2048
    s_waitcnt vmcnt(0)
    ds_write_b32 v255, v15
    """)
    st = Asm()
    st(f"""
L_u_late:
    s_waitcnt vmcnt(0)
    v_readfirstlane_b32 s{T0}, v14
    s_cmp_eq_u32 s{T0}, 22
    s_cbranch_scc1 L_ok_u
    """)
    poll(st, "u", H_UTC, "22", 1)
    st(udma + "s_branch L_u_done")
    STUBS.append(st.text())
    stamp(a, 4)
    a(f"""
L_xch:
    ds_read_b32 v14, v6
    ds_read_b128 v[60:63], v27
    ds_read_b128 v[64:67], v27 offset:1024
    ds_read_b128 v[68:71], v27 offset:2048
    s_waitcnt lgkmcnt(3)
    v_readfirstlane_b32 s{T0}, v14
    s_cmp_eq_u32 s{T0}, 0
    s_cbranch_scc1 L_xch
    s_mov_b64 exec, 1
    ds_add_u32 v{H_CNT}, v15 offset:4      ; done with the tables and the exchange buffers
    s_mov_b64 exec, -1
    """)
    for k in range(3):
        a(f"s_waitcnt lgkmcnt({3-k})")
        for e in (0, 2):
            a(f"v_pk_add_f32 {vr(KA+4*k+e,2)}, {vr(KA+4*k+e,2)}, {vr(60+4*k+e,2)}")
    def store(nd, reg, off):
        if nd == 2:
            a(f"ds_write_b64 v{H_K2}, {vr(reg,2)} offset:{off}")
        else:
            a(f"ds_write_b128 v{H_K4}, {vr(reg,4)} offset:{off}")
    expand2(a, store, KA)
    conv(a)
    a.label("L_p3")
    stamp(a, 7)
    outproj(a)

def fused():
    a = Asm()
    a(f"""
    s_getpc_b64 s[48:49]
L_pc:
    s_lshr_b32 s{T1}, s2, 3
    v_lshrrev_b32 v1, 5, v0
    v_lshl_add_u32 v1, s{T1}, 4, v1
    v_lshlrev_b32 v1, 7, v1
    v_cmp_gt_u32 vcc, L_slow-L_pc, v1
    s_load_dwordx8 s[8:15], s[0:1], 32
    s_load_dwordx4 s[4:7], s[0:1], 0
    s_mov_b64 exec, vcc
    global_load_dword v251, v1, s[48:49]
    s_mov_b64 exec, -1
    {"v_xor_b32 v0, 256, v0" if E("SWAP") else ""}
    {"s_nop 0" if E("SWAP") else ""}
    v_readfirstlane_b32 s{S_WAVE}, v0
    s_cmp_ge_u32 s2, 256
    s_cbranch_scc1 L_quit0
    """)
    prof_begin(a)
    a(f"""
    s_cmp_ge_u32 s{S_WAVE}, 256
    s_cbranch_scc0 L_g0
    s_load_dwordx4 s[16:19], s[0:1], 64
    s_load_dwordx2 s[22:23], s[0:1], 104
    s_load_dwordx4 s[96:99], s[0:1], 88
    s_load_dwordx2 s[100:101], s[0:1], 16
    s_setprio 3
    s_and_b32 s{T0}, s2, 7
    s_mul_i32 s{T0}, s{T0}, 28
    s_min_u32 s{T1}, s{T1}, 27
    s_add_u32 s{S_P}, s{T0}, s{T1}
    s_lshl_b32 s{T2}, s{S_P}, 2
    s_lshl_b32 s{T0}, s{S_P}, 10
    s_sub_u32 s{T0}, s{T0}, 1024
    v_lshl_add_u32 v1, v0, 2, s{T0}
    v_and_b32 v0, 63, v0
    s_lshr_b32 s{S_WAVE}, s{S_WAVE}, 6
    s_and_b32 s{S_LW}, s{S_WAVE}, 3
    v_mov_b32 v7, 0
    s_cmp_eq_u32 s2, {ZWG}
    s_waitcnt lgkmcnt(0)
    s_cbranch_scc1 L_zero
L_nozero_h:
    global_load_dword v8, v1, s[8:9]
    global_load_dword v9, v1, s[10:11]
    global_load_dword v10, v1, s[12:13]
    global_load_dword v11, v1, s[14:15]
    s_load_dword s51, s[16:17], s{T2}
    s_load_dword s52, s[18:19], s{T2}
    s_setprio 0
    s_branch L_h1
L_g0:
    s_and_b32 s{T0}, s2, 7
    s_lshr_b32 s{T1}, s2, 3
    s_mul_i32 s{T0}, s{T0}, 31
    s_add_u32 s{T0}, s{T0}, s{T1}          ; t
    s_cmp_ge_u32 s{T1}, 31
    s_cselect_b32 s{T0}, 242, s{T0}
    s_min_u32 s{T0}, s{T0}, 242
    s_mov_b32 s{T2}, 205
    s_cmp_lt_u32 s{T0}, 110
    s_cselect_b32 s{T1}, 0, 110
    s_cselect_b32 s{T2}, s{T2}, 171
    s_cselect_b32 s{T3}, 5, 6
    s_cselect_b32 s{S_CB}, 0, 5
    s_sub_u32 s{T0}, s{T0}, s{T1}
    s_mul_i32 s{S_RB}, s{T0}, s{T2}
    s_lshr_b32 s{S_RB}, s{S_RB}, 10
    s_mul_i32 s{T1}, s{S_RB}, s{T3}
    s_sub_u32 s{T0}, s{T0}, s{T1}
    s_add_u32 s{S_CB}, s{S_CB}, s{T0}
    {"s_sub_u32 s%d, 21, s%d" % (T0, S_RB) if E("REV") else ""}
    {"s_cmp_eq_u32 s%d, 5" % T3 if E("REV") else ""}
    {"s_cselect_b32 s%d, s%d, s%d" % (S_RB, T0, S_RB) if E("REV") else ""}
    s_add_u32 s{S_C0}, s{S_RB}, s{S_CB}
    s_mul_i32 s{T0}, s{S_C0}, 37
    s_lshr_b32 s{T0}, s{T0}, 8
    s_mul_i32 s{T0}, s{T0}, 7
    s_sub_u32 s{S_C0}, s{S_C0}, s{T0}
    {"s_and_b32 s%d, s%d, %s" % (S_C0, S_C0, E("X_ROT")) if E("X_ROT") else ""}
    s_lshl_b32 s{S_LW1K}, s{S_WAVE}, 4
    v_lshrrev_b32 v4, 4, v0
    v_lshlrev_b32 v5, 2, v4
    v_xor_b32 v5, v5, v0
    v_and_b32 v5, 15, v5
    v_mul_u32_u24 v229, 2688, v4
    v_lshl_add_u32 v229, v5, 4, v229
    s_lshl_b32 s{T2}, s{S_CB}, 8
    s_sub_u32 s{SRD_W+2}, {W_BYTES}, s{T2}
    s_mul_i32 s{T3}, s{S_RB}, {96*896}
    s_sub_u32 s{SRD_X+2}, {X_BYTES}, s{T3}
    s_cselect_b32 s{SRD_X+2}, 0, s{SRD_X+2}
    s_cselect_b32 s{SRD_W+2}, 0, s{SRD_W+2}
    s_mov_b32 s{SRD_W+3}, 0x20000
    s_mul_i32 s58, s{S_C0}, {64*2688}
    s_add_u32 m0, s{S_LW1K}, {SLOT_AT[0]}
    s_waitcnt lgkmcnt(0)
    s_add_u32 s{SRD_W}, s{S_W}, s{T2}
    s_addc_u32 s{SRD_W+1}, s{S_W+1}, 0
    buffer_load_dwordx4 v229, {sr(SRD_W,4)}, s58 offen lds
    """)
    if E("PK"): stamp(a, 10)
    a(f"""
    v_xor_b32 v5, v4, v0
    v_and_b32 v5, 7, v5
    v_lshrrev_b32 v4, 3, v0
    v_mul_u32_u24 v252, 896, v4
    v_lshl_add_u32 v252, v5, 4, v252
    s_add_u32 s{SRD_X}, s{S_X}, s{T3}
    s_addc_u32 s{SRD_X+1}, s{S_X+1}, 0
    s_mov_b32 s{SRD_X+3}, 0x20000
    s_lshl_b32 s59, s{S_C0}, 7
    s_load_dwordx2 s[20:21], s[0:1], 80
    s_load_dwordx2 s[22:23], s[0:1], 104
    s_load_dwordx4 s[96:99], s[0:1], 88
    s_load_dwordx2 s[100:101], s[0:1], 16
    """)
    for g_ in dma_chunk(0, 252, 229)[1:]:
        for x in g_: a(x)
    a(f"""
    v_and_b32 v0, 63, v0
    s_lshr_b32 s{S_WAVE}, s{S_WAVE}, 6
    s_mov_b32 s{S_LW}, s{S_WAVE}
    s_mov_b32 s{S_CH}, s{S_C0}
    s_mov_b32 s{SRD_WS+2}, 896
    s_mov_b32 s{SRD_WS+3}, 0x20000
    s_mov_b32 m0, {L_GATE}
    v_lshlrev_b32 v4, 4, v0
    s_cmp_eq_u32 s2, {ZWG}
    s_waitcnt lgkmcnt(0)
    s_mov_b32 s{SRD_WS}, s20
    s_mov_b32 s{SRD_WS+1}, s21
    buffer_load_dwordx4 v4, {sr(SRD_WS,4)}, 0 offen lds
    s_cbranch_scc0 L_g1
    s_barrier
    s_branch L_g1
L_zero:
    s_add_u32 s{S_CNT}, s{S_WS}, {WS_CNT}
    s_addc_u32 s{S_CNT+1}, s{S_WS+1}, 0
    """)
    stamp(a, 3)
    a(f"""
    s_mul_i32 s{T0}, s{S_LW}, {(NLINE // 4) << CS}
    v_lshrrev_b32 v4, 1, v0
    v_lshl_add_u32 v4, v4, {CS}, s{T0}
    v_and_b32 v5, 1, v0
    v_lshl_add_u32 v4, v5, 4, v4
    v_mov_b32 v20, 0
    v_mov_b32 v21, 0
    v_mov_b32 v22, 0
    v_mov_b32 v23, 0
    global_store_dwordx4 v4, v[20:23], {sr(S_CNT,2)} sc0 sc1
    s_lshl_b32 s{T0}, s{S_LW}, 4
    v_add_u32 v4, s{T0}, v0
    v_mul_u32_u24 v4, {TILE_B}, v4
    v_add_u32 v4, {WS_ONE}, v4
    v_mov_b32 v16, 0x3f803f80
    v_mov_b32 v17, v16
    v_mov_b32 v18, v16
    v_mov_b32 v19, v16
    s_mov_b64 exec, 0xffff
    global_store_dwordx4 v4, v[16:19], {sr(S_WS,2)} sc0 sc1
    s_mov_b64 exec, -1
    v_mov_b32 v21, 1
    s_waitcnt vmcnt(0)
    s_barrier
    s_cmp_lg_u32 s{S_WAVE}, 4
    s_cbranch_scc1 L_nozero_h
    s_mov_b64 exec, 1
    global_store_dword v20, v21, {sr(S_DBG,2)} sc0 sc1
    s_mov_b64 exec, -1
    """)
    stamp(a, 4)
    a("s_waitcnt vmcnt(0)")
    stamp(a, 5)
    a(f"""
    s_branch L_nozero_h
L_g1:
    """)
    if E("PB") and not E("PK"): stamp(a, 10)
    a(f"""
    s_setprio 2
    s_add_u32 s{S_CNT}, s{S_WS}, {WS_CNT}
    s_addc_u32 s{S_CNT+1}, s{S_WS+1}, 0
    v_mov_b32 v4, 0
    v_mov_b32 v5, 0
    v_lshlrev_b32 v6, 3, v0
    v_and_b32 v6, 63, v6
    v_add_u32 v6, {L_CNT}, v6
    ds_write_b64 v6, v[4:5]
    v_lshlrev_b32 v{A_L16}, 4, v0
    """)
    gemm_setup(a)
    a(f"""
L_h1:
    s_and_b32 s{T0}, s2, 7
    s_lshr_b32 s{T1}, s2, 3
    s_mul_i32 s{T0}, s{T0}, 31
    s_add_u32 s{T0}, s{T0}, s{T1}          ; t
    s_cmp_ge_u32 s{T1}, 31
    s_cselect_b32 s{T0}, 242, s{T0}
    s_min_u32 s{T0}, s{T0}, 242
    s_mov_b32 s{T2}, 205
    s_cmp_lt_u32 s{T0}, 110
    s_cselect_b32 s{T1}, 0, 110
    s_cselect_b32 s{T2}, s{T2}, 171
    s_cselect_b32 s{T3}, 5, 6
    s_cselect_b32 s{S_CB}, 0, 5
    s_sub_u32 s{T0}, s{T0}, s{T1}
    s_mul_i32 s{S_RB}, s{T0}, s{T2}
    s_lshr_b32 s{S_RB}, s{S_RB}, 10
    s_mul_i32 s{T1}, s{S_RB}, s{T3}
    s_sub_u32 s{T0}, s{T0}, s{T1}
    s_add_u32 s{S_CB}, s{S_CB}, s{T0}
    {"s_sub_u32 s%d, 21, s%d" % (T0, S_RB) if E("REV") else ""}
    {"s_cmp_eq_u32 s%d, 5" % T3 if E("REV") else ""}
    {"s_cselect_b32 s%d, s%d, s%d" % (S_RB, T0, S_RB) if E("REV") else ""}
    s_add_u32 s{S_C0}, s{S_RB}, s{S_CB}
    s_mul_i32 s{T0}, s{S_C0}, 37
    s_lshr_b32 s{T0}, s{T0}, 8
    s_mul_i32 s{T0}, s{T0}, 7
    s_sub_u32 s{S_C0}, s{S_C0}, s{T0}
    {"s_and_b32 s%d, s%d, %s" % (S_C0, S_C0, E("X_ROT")) if E("X_ROT") else ""}
    s_lshl_b32 s{S_LW1K}, s{S_LW}, 10
    v_lshrrev_b32 v4, 3, v0
    s_lshl_b32 s{T1}, s{S_LW}, 3
    v_add_u32 v4, s{T1}, v4
    v_lshrrev_b32 v5, 1, v4
    v_xor_b32 v5, v5, v0
    v_and_b32 v5, 7, v5
    v_mul_u32_u24 v2, 896, v4
    v_lshl_add_u32 v2, v5, 4, v2
    s_mov_b32 s{S_CH}, s{S_C0}
    s_mul_i32 s58, s{S_RB}, {96*896}
    s_sub_u32 s{SRD_X+2}, {X_BYTES}, s58
    s_cselect_b32 s{SRD_X+2}, 0, s{SRD_X+2}
    s_mov_b32 s{SRD_X+3}, 0x20000
    s_mov_b32 s{SRD_W+3}, 0x20000
    s_add_u32 s{SRD_X}, s{S_X}, s58
    s_addc_u32 s{SRD_X+1}, s{S_X+1}, 0
    v_lshrrev_b32 v4, 4, v0
    v_lshlrev_b32 v5, 2, v4
    v_xor_b32 v5, v5, v0
    v_and_b32 v5, 15, v5
    s_lshl_b32 s{T1}, s{S_LW}, 2
    v_add_u32 v4, s{T1}, v4
    v_mul_u32_u24 v3, 2688, v4
    v_lshl_add_u32 v3, v5, 4, v3
    s_lshl_b32 s59, s{S_CB}, 8
    s_sub_u32 s{SRD_W+2}, {W_BYTES}, s59
    s_cmp_ge_u32 s{S_RB}, 22
    s_cselect_b32 s{SRD_W+2}, 0, s{SRD_W+2}
    s_add_u32 s{SRD_W}, s{S_W}, s59
    s_addc_u32 s{SRD_W+1}, s{S_W+1}, 0
    s_add_u32 s{S_CNT}, s{S_WS}, {WS_CNT}
    s_addc_u32 s{S_CNT+1}, s{S_WS+1}, 0
L_helper:
    """)
    helper_waves(a)
    a(f"""
L_quit0:
    s_endpgm
    """)
    gemm_waves(a)
    attention(a)
    a.label("L_fin")
    store_o(a)
    a.label("L_end")
    prof_end(a, 0, S_WS, S_WAVE)
    a.label("L_quit")
    a("s_endpgm")
    n0 = len(STUBS)
    for x in STUBS: a(x)
    fallback(a)
    for x in STUBS[n0:]: a(x)
    return a

DOC = """;
;   waves 0-3: x @ wqkv (96 x 128 tile, bf16 MFMA, gate logit as an extra column tile) -> workspace, then
;              attention of (head, 128 queries), each wave one quarter of the keys. exp2 runs without a shift;
;              [21 x 512] x [512 x 32] product, D_skip folded into tap 0), causal convolution as Toeplitz MFMA,
;              then o @ wo and the gated mix for 32 tokens x 128 channels.
"""

def build():
    ref = open("cdna_kernels/%s.s.ref" % NAME).read().split("\n")
    out = "\n".join(ref[:15]) + "\n"
    out += f"; @launch grid=(256,1,1) block=(512,1,1) lds={LDS_TOTAL}\n"
    out += DOC
    out += '.amdgcn_target "amdgcn-amd-amdhsa--gfx950"\n.text\n'
    out += kernel_head(NAME + "_kernel") + fused().text()
    out += '.section .rodata,"a"\n'
    out += kernel_desc(NAME + "_kernel", NV, 102)
    return out

if __name__ == "__main__":
    import sys
    dst = sys.argv[1] if len(sys.argv) > 1 else "cdna_kernels/%s.s" % NAME
    open(dst, "w").write(build())
```

```python
from common import *
from k1 import kgen_split, kgen_expand
E = os.environ.get

WS_CNT = 0x1100000
WS_ONE = WS_KC
WS_SIZE = 0x1200000
QL = int(E('QL', '6'))
CS = int(E('CS', '8'))
B_O, B_BP, B_U, B_Q = 4, 8, (12 if QL == 6 else 64 << CS), ((64 if QL == 6 else 96) << CS)
KVR = int(E('KVR', '1'))
REPM = sum(1 << (4 * i) for i in range(KVR))
B_R = B_Q + ((1 << QL) << CS) - (64 << CS)
assert KVR == 1
B_L = 16
NLINE = (B_Q >> CS) + (1 << QL)
assert NLINE == 128
SPIN_MAX = 65536
ZWG = 248

TAB_B = 32 * 272
L_XCH = 4 * TAB_B
PL_B = 8224
L_KC = 8 * PL_B
KC_B = 4160
L_U = L_KC + 2 * KC_B
U_B = 4608
L_RED = L_U + 2 * U_B
L_X2 = L_RED + 49152
L_X1 = L_X2 - 24576
L_GATE = L_X2 + 24576
L_CNT = L_GATE + 1024
LDS_TOTAL = L_CNT + 64
assert LDS_TOTAL <= 163840
SLOT_AT = [L_X2 - 28672, L_X2] + [L_X2 - 28672 - 20480 * i for i in range(1, 6)]
assert SLOT_AT[6] >= 0 and L_X1 >= SLOT_AT[0]

S_X, S_W = 4, 6
S_WS = 22
S_WAVE, S_RB, S_CB, S_P = 24, 25, 26, 27
SRD_X, SRD_W, SRD_WS = 28, 32, 36
T0, T1, T2, T3 = 40, 41, 42, 43
S_DSK = 44
S_LW1K = 45
S_C0 = 46
S_LW = 50
S_CT = 53
S_CH = 57
S_CNT = 60
S_H, S_QB = 62, 63
S_OUT, S_DBG, S_WO = 96, 98, 100
ST = E("ST", "sc1")
LD = "sc1"
NV = 256

STUBS = []
def giveup(tag):
    if not E("DIAG"): return ""
    k = 8 + 2 * "auobsh".index(tag)
    return f"""
    v_mov_b32 v15, {4*k}
    global_store_dword v15, v14, {sr(S_DBG,2)} offset:4 sc0 sc1
    v_mov_b32 v14, s2
    v_add_u32 v14, 1000, v14
    global_store_dword v15, v14, {sr(S_DBG,2)} sc0 sc1
    s_waitcnt vmcnt(0)
    """

def poll(a, tag, vaddr, vexp, lanes, sleep=0, limit=SPIN_MAX):
    first = f"s_branch L_poll1_{tag}" if sleep else ""
    a(f"""
    s_mov_b64 exec, {lanes}
    v_mov_b32 v15, 0
    s_mov_b32 s{T0}, 0
    {first}
L_poll_{tag}:
    {"s_sleep %d" % sleep if sleep else ""}
L_poll1_{tag}:
    global_atomic_add v14, v{vaddr}, v15, {sr(S_CNT,2)} sc0 sc1
    s_add_u32 s{T0}, s{T0}, 1
    s_cmp_ge_u32 s{T0}, {limit}
    s_cbranch_scc1 L_give_{tag}
    s_waitcnt vmcnt(0)
    v_cmp_ne_u32 vcc, {vexp}, v14
    s_cbranch_vccnz L_poll_{tag}
L_ok_{tag}:
    s_mov_b64 exec, -1
    """)
    STUBS.append(f"""
L_give_{tag}:
    s_waitcnt vmcnt(0)
    {giveup(tag)}
    s_branch L_ok_{tag}
    """)

def poll2(a, tag, vaddr, vexp, lanes, gap):
    at = lambda d: f"global_atomic_add v{d}, v{vaddr}, v15, {sr(S_CNT,2)} sc0 sc1"
    a(f"""
    s_mov_b64 exec, {lanes}
    v_mov_b32 v15, 0
    s_mov_b32 s{T0}, 0
    {at(14)}
L_poll_{tag}:
    s_sleep {gap}
    {at(13)}
    s_waitcnt vmcnt(1)
    v_cmp_ne_u32 vcc, {vexp}, v14
    s_cbranch_vccz L_ok_{tag}
    s_sleep {gap}
    {at(14)}
    s_add_u32 s{T0}, s{T0}, 1
    s_waitcnt vmcnt(1)
    v_cmp_ne_u32 vcc, {vexp}, v13
    s_cbranch_vccz L_ok_{tag}
    s_cmp_lt_u32 s{T0}, {SPIN_MAX}
    s_cbranch_scc1 L_poll_{tag}
L_ok_{tag}:
    s_mov_b64 exec, -1
    """)

def lds_sync(a, idx, tag, vm=True):
    a(f"""
    v_mov_b32 v15, 1
    s_waitcnt {"vmcnt(0) " if vm else ""}lgkmcnt(0)
    s_mov_b64 exec, 1
    ds_add_u32 v23, v15 offset:{4*idx}
    s_mov_b64 exec, -1
    s_branch L_spin1_{tag}
L_spin_{tag}:
    s_sleep {E("SPS", "0")}
L_spin1_{tag}:
    ds_read_b32 v15, v23 offset:{4*idx}
    s_waitcnt lgkmcnt(0)
    v_readfirstlane_b32 s{T0}, v15
    s_cmp_lt_u32 s{T0}, 4
    s_cbranch_scc1 L_spin_{tag}
    """ if E("SPS") else f"""
    v_mov_b32 v15, 1
    s_waitcnt {"vmcnt(0) " if vm else ""}lgkmcnt(0)
    s_mov_b64 exec, 1
    ds_add_u32 v23, v15 offset:{4*idx}
    s_mov_b64 exec, -1
L_spin_{tag}:
    ds_read_b32 v15, v23 offset:{4*idx}
    s_waitcnt lgkmcnt(0)
    v_readfirstlane_b32 s{T0}, v15
    s_cmp_lt_u32 s{T0}, 4
    s_cbranch_scc1 L_spin_{tag}
    """)

XA, XB, WA = 3, 10, 8
XAR = [3, 4, 5, 15]
WF, ACC, XF, PK = 16, 128, 176, 240
RING = 12
NX = 6
XE = not E('XLATE')
DEF = int(E('DEF', '4'))
NG = int(E('NG', '4'))
SRD_R, SRD_T = 4, 92
ONES = [160 + 16*b + 8 + i for b in (3, 2, 1, 0) for i in range(8)]

def gemm_body(a, kind, tag):
    nw = 1 if kind == "gate" else 2
    GROUPS = [[0], [1, 2], [3, 4], [5, 6]]
    def soff(it):
        grp = [g_ for g_ in GROUPS if it in g_][0]
        return SLOT_AT[it] - SLOT_AT[grp[-1]]
    def rd_w(g):
        it, ks = divmod(g, 4)
        if kind == "gate":
            return [f"ds_read_b128 {vr(WF+4*g,4)}, v8 offset:{32*ks}"]
        return [f"ds_read_b64_tr_b16 {vr(WF+4*g,2)}, v8 offset:{soff(it) + ks*4096}",
                f"ds_read_b64_tr_b16 {vr(WF+4*g+2,2)}, v8 offset:{soff(it) + ks*4096+1024}"]
    def mm(g, i, x):
        w, d = WF + 4*g, ACC + 16*i
        c = None if g == 0 else d
        return mfma(d, x, w, c) if kind == "v" else mfma(d, w, x, c)
    def epi(i):
        r = []
        base = ACC + 16*i
        if kind == "gate":
            return [f"v_cvt_pk_bf16_f32 v{base}, v{base}, v{base}",
                    f"v_and_b32 v{base}, 0xffff0000, v{base}",
                    f"v_mul_f32 v{base}, {f32(-LOG2E)}, v{base}",
                    f"v_exp_f32 v{base}, v{base}", "s_nop 0",
                    f"v_add_f32 v{base}, 1.0, v{base}",
                    f"v_rcp_f32 v{base}, v{base}", "s_nop 0",
                    f"v_cvt_pk_bf16_f32 v{base}, v{base}, v{base}",
                    f"v_and_b32 v{base}, 0xffff0000, v{base}",
                    f"buffer_store_dword v{base}, v6, {sr(SRD_R,4)}, 0 offen offset:{128*i} {ST}"]
        so = ["s92", "s93", "s94"][i]
        for h in range(2):
            if kind == "qk" and i < 2:
                r += [f"v_mul_f32 v{base+8*h+j}, s47, v{base+8*h+j}" for j in range(8)]
            r += [f"v_cvt_pk_bf16_f32 v{PK+4*h+j}, v{base+8*h+2*j}, v{base+8*h+2*j+1}" for j in range(4)]
            if not (kind == "v" and i == 2):
                r.append(f"buffer_store_dwordx4 {vr(PK+4*h,4)}, v{6+h}, {sr(SRD_R,4)}, {so} offen {ST}")
        return r
    VX, VW = 252, 229
    assert PLAN_G[0] == '12'
    loads = [items(PLAN_G[k], VX, VW) for k in (1, 2, 3)] + [[]]
    waits = [nld(PLAN_G[0]), wait_for(PLAN_G, 1, "12"), wait_for(PLAN_G, 2, "34"), wait_for(PLAN_G, 3, "56")]
    assert "b" not in "".join(PLAN_G)
    xslot = 0
    for gi, grp in enumerate(GROUPS):
        if waits[gi] is not None: a(f"s_waitcnt vmcnt({waits[gi]})" + (" lgkmcnt(0)" if gi == 0 else ""))
        a("s_barrier")
        if gi in (0, 3): stamp(a, 1 + gi // 3)
        if E('PA') and not E('PB') and gi in (1, 2): stamp(a, 7 + gi)
        ld = loads[gi]
        queue, steps = [], []
        nread = 0
        order = [grp[1], grp[2], grp[0]] if False else grp
        for it in order:
            nt = 3 if it == 0 else 1
            for ks in range(4):
                g = 4*it + ks
                for r in rd_w(g): queue.append((r, None)); nread += 1
                ms = []
                for i in range(nt):
                    reg = XF + 4 * (xslot % RING)
                    queue.append((f"ds_read_b128 {vr(reg,4)}, v{XAR[ks]} offset:{soff(it) + i*4096}", xslot)); nread += 1
                    ms.append((mm(g, i, reg), xslot))
                    xslot += 1
                steps.append((nread, ms))
            if kind == "gate" and it < 6:
                queue[-1] = (queue[-1][0] + f"""
                s_add_u32 s{S_C0}, s{S_C0}, 1
                s_cmp_eq_u32 s{S_C0}, 7
                s_cselect_b32 s{S_C0}, 0, s{S_C0}
                s_lshl_b32 s47, s{S_C0}, 7
                v_add_u32 v8, s47, v9""", queue[-1][1])
        if gi < 3:
            upd = "".join(f"\nv_subrev_u32 v{r}, {SLOT_AT[grp[-1]] - SLOT_AT[GROUPS[gi+1][-1]]}, v{r}" for r in XAR + ([] if kind == "gate" else [8]))
            queue[-1] = (queue[-1][0] + upd, queue[-1][1])
        issued, freed = 0, steps[0][1][0][1]
        def issue(upto):
            nonlocal issued
            while issued < min(upto, len(queue)) and (queue[issued][1] is None or queue[issued][1] < freed + RING):
                a(queue[issued][0]); issued += 1
        prev = 0
        for si, (need, ms) in enumerate(steps):
            issue(max(need, prev + 15))
            assert issued >= need
            if si == 0:
                for g_ in ld[:2]:
                    for x in g_: a(x)
                ld = ld[2:]
            a(f"s_waitcnt lgkmcnt({issued - need})")
            prev = need
            if gi == 3 and si == len(steps) - DEF:
                last = [st_[1][0][0] for st_ in steps[si:]]
                a("s_waitcnt lgkmcnt(0)")
                break
            for m, xs in ms:
                a(m)
                freed = xs + 1
                issue(min(issued + 3, need + 15))
                k = 1 if gi == 0 else 2
                for g_ in ld[:k]:
                    for x in g_: a(x)
                ld = ld[k:]
        for g_ in ld:
            for x in g_: a(x)
        assert issued == len(queue)
    X0 = xslot % RING
    def rd_x(n):
        i, g = 1 + n // 24, 4 + n % 24
        return f"ds_read_b128 {vr(XF+4*((n+X0)%RING),4)}, v{XB + g%4} offset:{(i-1)*24576 + (g//4-1)*4096}"
    a("s_waitcnt vmcnt(0)")
    a("s_barrier")
    stamp(a, 3)
    AHEAD = 8
    assert AHEAD + DEF <= RING
    per = AHEAD // DEF
    for k in range(DEF):
        if k: a(last[k - 1])
        for n in range(k * per, AHEAD if k == DEF - 1 else (k + 1) * per): a(rd_x(n))
    a(last[-1])
    issued = AHEAD
    fill = []
    BX2 = int(E("BX2", "18"))
    for n in range(48):
        if n == BX2:
            if NX == 12: a(f"s_waitcnt vmcnt({1 if kind == 'gate' else 2})")
            a(f"s_waitcnt lgkmcnt(0)\ns_barrier")
            if not E('PB'): stamp(a, 10)
            while issued < n + AHEAD + 3:
                a(rd_x(issued)); issued += 1
        a(f"s_waitcnt lgkmcnt({issued - n - 1})")
        a(mm(4 + n % 24, 1 + n // 24, XF + 4*((n+X0) % RING)))
        lim = 24 if n < BX2 else 48
        if issued < min(lim, n + 1 + (AHEAD if n < BX2 else AHEAD + 3)):
            a(rd_x(issued)); issued += 1
        if n == 3: fill = epi(0)
        if n == 27: fill = epi(1)
        for x in fill[:4]: a(x)
        fill = fill[4:]
    assert issued == 48
    if kind == "qk":
        a(f"s_cmp_ge_u32 s{S_CT}, 14\ns_nop 9\ns_cbranch_scc1 L_kscale\nL_kscaled:")
        STUBS.append("L_kscale:\n" + "\n".join(f"v_mul_f32 v{ACC+32+j}, s47, v{ACC+32+j}" for j in range(16)) + "\ns_branch L_kscaled")
    else:
        a("s_nop 11")
    for x in epi(2): a(x)

def gemm_setup(a):
    a(f"""
    s_lshl_b32 s{S_CT}, s{S_CB}, 2
    s_add_u32 s{S_CT}, s{S_CT}, s{S_WAVE}
    v_and_b32 v1, 31, v0
    v_lshrrev_b32 v2, 5, v0                ; hi
    v_lshrrev_b32 v3, 1, v0
    v_and_b32 v3, 7, v3
    v_xor_b32 v3, v3, v2
    v_lshlrev_b32 v10, 7, v1
    v_lshl_add_u32 v10, v3, 4, v10
    v_xor_b32 v11, 32, v10
    v_xor_b32 v12, 64, v10
    v_xor_b32 v13, 96, v10
    v_mov_b32 v239, 1
    s_mul_i32 s{T2}, s{S_CT}, 37
    s_lshr_b32 s{T2}, s{T2}, 9
    s_mul_i32 s{T1}, s{T2}, 14
    s_sub_u32 s52, s{S_CT}, s{T1}          ; ct'
    s_lshl_b32 s{T2}, s{T2}, 21
    s_add_u32 s{SRD_R}, s{S_WS}, s{T2}
    s_addc_u32 s{SRD_R+1}, s{S_WS+1}, 0
    s_mov_b32 s{SRD_R+2}, {64*TILE_B}
    s_mov_b32 s{SRD_R+3}, 0x20000
    v_bfe_u32 v16, v0, 4, 1                ; ih
    v_bfe_u32 v4, v0, 2, 2                 ; r
    v_lshl_add_u32 v17, v2, 3, v4          ; 8 hi + r
    v_lshlrev_b32 v8, 8, v17
    v_xor_b32 v17, s{S_WAVE}, v4
    v_lshl_add_u32 v8, v17, 6, v8
    v_lshl_add_u32 v8, v16, 5, v8
    v_add_u32 v8, {SLOT_AT[0]}, v8
    v_and_b32 v17, 3, v0                   ; c
    v_add_u32 v3, {SLOT_AT[0] + 16384}, v10
    v_add_u32 v4, {SLOT_AT[0] + 16384}, v11
    v_add_u32 v5, {SLOT_AT[0] + 16384}, v12
    v_add_u32 v15, {SLOT_AT[0] + 16384}, v13
    v_add_u32 v10, {L_X1}, v10
    v_add_u32 v11, {L_X1}, v11
    v_add_u32 v12, {L_X1}, v12
    v_add_u32 v13, {L_X1}, v13
    """)
    for g_ in dma_chunk(1, 252, 229):
        for x in g_: a(x)
    a(f"""
    s_mul_i32 s56, s{S_RB}, 205
    s_lshr_b32 s56, s56, 10
    s_mul_i32 s{T0}, s56, 5
    s_sub_u32 s{T0}, s{S_RB}, s{T0}
    s_lshl_b32 s{T1}, s56, 4
    s_add_u32 s{T1}, s{T1}, s{T0}
    s_add_u32 s92, s{T1}, s{T0}
    s_add_u32 s93, s92, 1
    s_add_u32 s95, s{T1}, 10
    s_cmp_eq_u32 s{S_RB}, 20
    s_cselect_b32 s92, 15, s92
    s_cselect_b32 s93, 31, s93
    s_cselect_b32 s95, 47, s95
    s_cmp_eq_u32 s{S_RB}, 21
    s_cselect_b32 s92, 63, s92
    s_mul_i32 s{T0}, s{S_RB}, 3
    s_add_u32 s{T1}, s{T0}, 1
    s_add_u32 s94, s{T0}, 2
    s_sub_u32 s{T2}, s{S_CT}, 14
    s_cmp_lt_u32 s{T2}, 28                 ; K or V
    s_cselect_b32 s92, s92, s{T0}
    s_cselect_b32 s93, s93, s{T1}
    s_cselect_b32 s94, 64, s94
    s_cselect_b32 s95, s95, 64
    s_mul_i32 s92, s92, {TILE_B}
    s_mul_i32 s93, s93, {TILE_B}
    s_mul_i32 s94, s94, {TILE_B}
    s_mul_i32 s95, s95, {TILE_B}
    s_mul_i32 s{T0}, s{S_RB}, 3
    s_add_u32 s{T1}, s{T0}, 2
    s_min_u32 s{T1}, s{T1}, 63
    s_cmp_lt_u32 s{S_CT}, 14
    s_cselect_b32 s{T2}, 2, 4
    s_lshr_b32 s{T0}, s{T0}, s{T2}
    s_lshr_b32 s{T1}, s{T1}, s{T2}
    s_cmp_eq_u32 s{T0}, s{T1}
    s_cselect_b32 s54, 3, 15
    s_mov_b32 s55, 0
    s_mov_b32 s49, 0
    s_mul_i32 s51, s{T0}, 14               ; gate wave: first counter
    s_mul_i32 s{T1}, s52, {8*147}
    s_lshr_b32 s{T1}, s{T1}, 10            ; (8 ct') / 7
    v_and_b32 v18, 1, v0
    v_add_u32 v18, s{T1}, v18                ; head
    v_bfe_u32 v19, v0, 1, 2
    s_cmp_eq_u32 s{S_RB}, 20
    s_cselect_b32 s48, 63, 3
    s_cselect_b32 s{T2}, 0, s56
    s_min_u32 s{T2}, s{T2}, 3
    v_lshl_add_u32 v20, v18, 2, s{T2}
    v_add_u32 v20, v20, v19
    v_lshlrev_b32 v20, {CS}, v20
    v_add_u32 v238, {B_L}, v20
    s_sub_u32 s{T2}, s{S_CT}, 14
    s_cmp_lt_u32 s{T2}, 28
    s_cselect_b32 s{T3}, 1, 0
    s_cmp_lt_u32 s{S_RB}, 22
    s_cselect_b32 s{T3}, s{T3}, 0
    s_cselect_b32 s54, s54, 0
    v_mov_b32 v253, s{T3}
    s_cmp_lt_u32 s{T2}, 28
    s_cbranch_scc0 L_cnt_q
    v_mov_b32 v254, v20
    s_cmp_lt_u32 s{S_RB}, 20
    s_cselect_b32 s54, 3, 0
    s_branch L_cnt_done
L_cnt_q:
    s_mov_b32 s48, 1
    v_lshlrev_b32 v18, 4, v18
    v_add3_u32 v18, v18, v19, s{T0}
    v_and_b32 v19, {(1 << QL) - 1}, v18
    v_lshrrev_b32 v18, {QL}, v18
    v_lshlrev_b32 v19, {CS}, v19
    v_add_u32 v19, {B_Q}, v19
    v_lshl_add_u32 v254, v18, 2, v19
    s_cmp_lt_u32 s{S_CT}, 42
    s_cbranch_scc1 L_cnt_done
    v_add_u32 v20, s51, v0
    v_lshl_add_u32 v254, v20, {CS}, {B_BP}
    s_mov_b32 s{T0}, 0x3fff
    s_cmp_eq_u32 s54, 3
    s_cselect_b32 s54, s{T0}, 0xfffffff
    s_cmp_eq_u32 s{S_CT}, 42
    s_cselect_b32 s54, s54, 0
L_cnt_done:
    """)
    if E("PRE"):
        a(f"""
        v_min_u32 v18, 8, v0
        v_lshlrev_b32 v18, 21, v18
        v_add_u32 v18, 0x1f8000, v18
        v_mov_b32 v19, 0
        s_cmp_eq_u32 s{S_LW}, 3
        s_cselect_b64 exec, -1, 0
        global_load_dword v250, v18, {sr(S_WS,2)}
        {"global_load_dword v249, v19, %s" % sr(S_OUT,2) if E("PRE") == "2" else ""}
        {"global_load_dword v248, v19, %s" % sr(S_WO,2) if E("PRE") == "2" else ""}
        s_mov_b64 exec, -1
        """)
    if not E("NOMALL"):
        a("s_cmp_ge_u32 s2, 248\ns_cbranch_scc1 L_womall\nL_womall_back:")
        STUBS.append(f"""
L_womall:
        s_and_b32 s{T0}, s2, 7
        s_lshl_b32 s{T0}, s{T0}, 2
        s_add_u32 s{T0}, s{T0}, s{S_LW}
        s_mul_i32 s{T0}, s{T0}, {98*128}
        v_min_u32 v18, 48, v0
        v_lshl_add_u32 v18, v18, 7, s{T0}
        v_add_u32 v19, {49*128}, v18
        global_load_dword v20, v18, {sr(S_WO,2)}
        global_load_dword v21, v19, {sr(S_WO,2)}
        s_waitcnt vmcnt(0)
        s_branch L_womall_back
        """)
    if E("ASET") == "p": attn_setup(a)
    if E("PB"): stamp(a, 8)
    for g_ in dma_chunk(2, 252, 229):
        for x in g_: a(x)
    if E("PB"): stamp(a, 9)
    a(f"""
    s_cmp_ge_u32 s{S_CT}, 42
    s_cbranch_scc1 L_gate
    s_cmp_ge_u32 s{S_CT}, 28
    s_cbranch_scc1 L_v
    s_branch L_qk
    """)

def gemm_waves(a):
    a(f"""
L_qk:
    v_and_b32 v16, 1, v17
    v_lshrrev_b32 v17, 1, v17
    v_lshl_add_u32 v17, v16, 1, v17
    """)
    assert WS_Q == 0 and WS_K == 1 << 21 and WS_V == 2 << 21
    wa = "v_lshl_add_u32 v8, v17, 3, v8"
    a(wa)
    a(f"""
    s_cmp_ge_u32 s{S_CT}, 14
    s_cselect_b32 s47, {f32(QSCALE)}, 1.0
    s_lshl_b32 s{T0}, s52, 11
    v_add_u32 v6, s{T0}, v{A_L16}
    v_add_u32 v7, 1024, v6
    """)
    gemm_body(a, "qk", "qk")
    a("s_branch L_signal")
    a.label("L_gate")
    a(f"""
    v_lshlrev_b32 v9, 4, v2
    v_add_u32 v9, {L_GATE}, v9
    s_lshl_b32 s47, s{S_C0}, 7
    v_add_u32 v8, s47, v9
    s_add_u32 s{SRD_R}, s{S_WS}, {WS_GT}
    s_addc_u32 s{SRD_R+1}, s{S_WS+1}, 0
    s_cmp_eq_u32 s{S_CT}, 42
    s_cselect_b32 s{SRD_R+2}, 8192, 0
    s_mul_i32 s{T0}, s{S_RB}, {96*4}
    v_lshl_add_u32 v6, v1, 2, s{T0}
    v_mov_b32 v7, v6
    """)
    gemm_body(a, "gate", "g")
    a("s_branch L_signal")
    a.label("L_v")
    a(wa)
    a(f"""
    s_lshl_b32 s{T0}, s52, 9
    v_mul_u32_u24 v6, 7168, v2
    v_lshl_add_u32 v6, v1, 4, v6
    v_add_u32 v6, s{T0}, v6
    v_add_u32 v7, 14336, v6
    """)
    gemm_body(a, "v", "v")
    a.label("L_signal")
    stamp(a, 4)
    a(f"""
    """)
    if E("ASET", "a") == "b": attn_setup(a)
    a(f"""
    s_setprio {E("PRP", "3")}
    s_waitcnt vmcnt(0)
    s_mov_b64 exec, s[54:55]
    s_cbranch_execz L_nosig
    global_atomic_add v254, v239, {sr(S_CNT,2)} sc1
L_nosig:
    s_mov_b64 exec, -1
    """)
    if E("ASET", "a") == "a": attn_setup(a)

Q, O, S, P, KV = 16, 48, 112, 144, 160
A_K, A_V0, A_V1, A_RED_, A_Q, A_L16, A_M0, A_M1, A_PA, A_PE, A_RR, A_OC, A_LC = 224, 225, 226, 227, 230, 231, 232, 233, 234, 235, 236, 237, 255
S_OFF = 9
S_KB = 96
A_RED = 248
S_EXV = 20

def kv_loads(b):
    r = KV + 16 * b
    w = sr(SRD_WS, 4)
    kb = sr(S_KB, 2)
    return [f"global_load_dwordx4 {vr(r,4)}, v{A_K}, {kb} {LD}",
            f"global_load_dwordx4 {vr(r+4,4)}, v{A_K}, {kb} offset:1024 {LD}",
            f"global_load_dwordx4 {vr(r+8,4)}, v{A_V0}, {kb} {LD}",
            f"global_load_dwordx4 {vr(r+12,4)}, v{A_V1}, {kb} {LD}",
            f"s_add_u32 s{S_KB}, s{S_KB}, {TILE_B}\ns_addc_u32 s{S_KB+1}, s{S_KB+1}, 0"]

def slot(a, n, qk, pv, post=None, first=False, mid=None, tight=False, tail=None):
    sc, sn = S + 16 * (n & 1), S + 16 * ((n + 1) & 1)
    pc, pp = P + 8 * (n & 1), P + 8 * ((n + 1) & 1)
    ms = [None] * 4
    if qk is not None:
        k, q = KV + 16 * qk[0], Q + 8 * qk[1]
        ms[0] = mfma(sn, k, q, None)
        ms[1] = mfma(sn, k + 4, q + 4, sn)
    if pv is not None:
        v, o = KV + 16 * pv[0] + 8, O + 16 * pv[1]
        ms[2] = mfma(o, v, pp, None if first else o)
        ms[3] = mfma(o, v + 4, pp + 4, o)
    if tail:
        ms = [ms[2], ms[3], None, tail]
    valu = []
    for g in range(4):
        for j in range(4):
            valu.append(f"v_exp_f32 v{sc+4*g+j}, v{sc+4*g+j}")
            if g > 0 and j == 0:
                valu.append(f"v_cvt_pk_bf16_f32 v{pc+2*g-2}, v{sc+4*g-4}, v{sc+4*g-3}")
                valu.append(f"v_cvt_pk_bf16_f32 v{pc+2*g-1}, v{sc+4*g-2}, v{sc+4*g-1}")
    valu.append(f"v_cvt_pk_bf16_f32 v{pc+6}, v{sc+12}, v{sc+13}")
    valu.append(f"v_cvt_pk_bf16_f32 v{pc+7}, v{sc+14}, v{sc+15}")
    cuts = eval(E("CUTS", "[0, 3, 7, 10, 24]")) if tight else [0, 4, 10, 16, 24]
    for g in range(4):
        if g == 2 and mid:
            for e in mid: a(e)
        if ms[g]: a(ms[g])
        if post and post[g]: a(post[g])
        for x in valu[cuts[g]:cuts[g+1]]: a(x)

def red_writes(j):
    return [f"ds_write_b128 v{A_RED+j}, {vr(O+16*j+4*i,4)} offset:{1024*i}" for i in range(4)]

def attn_setup(a):
    a(f"""
    s_and_b32 s{S_H}, s2, 7
    s_lshl_b32 s{S_H}, s{S_H}, 1
    s_bfe_u32 s{T0}, s2, 0x10003
    s_add_u32 s{S_H}, s{S_H}, s{T0}
    s_lshr_b32 s{S_QB}, s2, 4
    s_mov_b32 s{SRD_WS}, s{S_WS}
    s_mov_b32 s{SRD_WS+1}, s{S_WS+1}
    s_mov_b32 s{SRD_WS+2}, {WS_SIZE}
    s_mov_b32 s{SRD_WS+3}, 0x20000
    s_mul_i32 s{T0}, s{S_H}, 7
    s_lshr_b32 s8, s{T0}, 1                ; u0
    s_mul_i32 s{S_OFF}, s{S_WAVE}, {16*TILE_B}
    s_add_u32 s{S_KB}, s{S_WS}, s{S_OFF}
    s_addc_u32 s{S_KB+1}, s{S_WS+1}, 0
    s_lshl_b32 s{T2}, s8, 9
    v_add_u32 v{A_Q}, s{T2}, v{A_L16}
    v_add_u32 v{A_K}, {WS_K}, v{A_Q}
    v_bfe_u32 v20, v0, 2, 1
    v_bfe_u32 v21, v0, 3, 1
    v_and_b32 v22, 19, v0
    v_lshl_add_u32 v22, v20, 3, v22
    v_lshl_add_u32 v22, v21, 2, v22
    v_lshrrev_b32 v18, 5, v0                ; hi
    v_mul_u32_u24 v19, 7168, v18
    v_lshl_add_u32 v19, v22, 4, v19
    s_lshl_b32 s{T3}, s8, 7
    s_add_u32 s{T3}, s{T3}, {WS_V}
    v_add_u32 v{A_V0}, s{T3}, v19
    v_add_u32 v{A_V1}, 14336, v{A_V0}
    s_bitcmp1_b32 s{S_H}, 0
    s_mov_b32 s{S_EXV}, 0x0fffffff
    s_cselect_b32 s{S_EXV}, 0xfffffff0, s{S_EXV}
    s_cselect_b64 s[18:19], -1, 0
    s_mov_b32 s{S_EXV+1}, s{S_EXV}
    v_mov_b32 v20, {WS_ONE}
    v_cndmask_b32 v{A_V0}, v20, v{A_V0}, {sr(S_EXV,2)}
    v_cndmask_b32 v{A_V1}, v20, v{A_V1}, {sr(S_EXV,2)}
    """)
    for j in range(4):
        a(f"""
        s_add_u32 s{T3}, s{S_WAVE}, {j+1}
        s_and_b32 s{T3}, s{T3}, 3
        s_lshl_b32 s{T0}, s{S_QB}, 2
        s_add_u32 s{T0}, s{T0}, s{T3}
        s_mul_i32 s{10+j}, s{T0}, {TILE_B}
        s_mul_i32 s{T3}, s{T3}, 12288
        s_add_u32 s{T3}, s{T3}, {L_RED + (4096*j if j < 3 else 0)}
        v_add_u32 v{A_RED+j if j < 3 else A_RR}, s{T3}, v{A_L16}
        """)
    a(f"""
    s_lshl_b32 s3, s{T0}, 4
    s_add_u32 s3, s3, s{S_H}
    s_lshl_b32 s3, s3, 11
    s_add_u32 s3, s3, {WS_O}
    s_lshl_b32 s{T0}, s{T0}, {CS}
    s_add_u32 s{T0}, s{T0}, {B_O}
    v_mov_b32 v{A_OC}, s{T0}
    v_mov_b32 v{A_LC}, {L_CNT}
    s_mov_b32 s14, {f32(2.0**60 if E("SLOW") else 2.0**-60)}
    s_mov_b32 s15, {f32(2.0**60)}
    """)
    a(f"""
    s_and_b32 s{T0}, s{S_H}, 1
    v_cmp_lt_u32 vcc, v18, s{T0}
    v_cmp_gt_u32 s[100:101], v18, s{T0}
    s_add_u32 s{T0}, s{S_H}, 1
    s_and_b32 s{T0}, s{T0}, 6
    v_cndmask_b32 v{A_M0}, -1, 0, vcc
    v_cndmask_b32 v{A_M1}, -1, 0, s[100:101]
    s_mov_b64 s[100:101], 0
    s_cmp_eq_u32 s{T0}, 0
    s_cselect_b32 s{T0}, 10, 20
    s_cselect_b32 s{T1}, 2, 4
    s_cselect_b32 s9, 12, 24
    v_mov_b32 v{A_PE}, s{T0}
    v_writelane_b32 v{A_PE}, s{T1}, {4 if E("AP1") else 1}
    s_lshl_b32 s{T0}, s{S_H}, 2
    s_add_u32 s{T0}, s{T0}, s{S_WAVE}
    s_lshl_b32 s{T0}, s{T0}, {CS}
    s_add_u32 s{T1}, s{T0}, {B_L}
    v_mov_b32 v228, s{T1}
    s_and_b32 s{T1}, s{S_H}, {(1 << (QL - 4)) - 1}
    s_lshl_b32 s{T1}, s{T1}, 4
    s_add_u32 s{T1}, s{T1}, s{S_QB}
    s_lshl_b32 s{T1}, s{T1}, {CS}
    s_lshr_b32 s{T2}, s{S_H}, {QL - 4}
    s_lshl_b32 s{T2}, s{T2}, 2
    s_add_u32 s{T1}, s{T1}, s{T2}
    s_add_u32 s{T1}, s{T1}, {B_Q}
    {"v_lshl_add_u32 v%d, v0, %d, s%d" % (A_PA, CS, T0) if E("AP1") else "v_mov_b32 v%d, s%d" % (A_PA, T0)}
    v_writelane_b32 v{A_PA}, s{T1}, {4 if E("AP1") else 1}
    """)

def qmask(j):
    return [f"v_and_b32 v{Q+8*j}, v{A_M0}, v{Q+8*j}", f"v_and_b32 v{Q+8*j+1}, v{A_M0}, v{Q+8*j+1}",
            f"v_and_b32 v{Q+8*j+6}, v{A_M1}, v{Q+8*j+6}", f"v_and_b32 v{Q+8*j+7}, v{A_M1}, v{Q+8*j+7}"]

def attention(a):
    w = sr(SRD_WS, 4)
    stamp(a, 5)
    if E("X_DELAY"): a("s_sleep 64")
    if E("AP1"):
        a(f"""
        s_mov_b64 exec, -1
        s_cmp_eq_u32 s{S_WAVE}, 0
        s_cbranch_scc1 L_pa0
L_paw:
        ds_read_b32 v15, v{A_LC} offset:24
        s_waitcnt lgkmcnt(0)
        v_readfirstlane_b32 s{T0}, v15
        s_cmp_eq_u32 s{T0}, 0
        s_cbranch_scc1 L_paw
        s_branch L_pa1
L_pa0:
        """)
        if E("GAPA"): poll2(a, "a", A_PA, f"v{A_PE}", 31, int(E("GAPA")))
        else: poll(a, "a", A_PA, f"v{A_PE}", 31)
        a(f"ds_write_b32 v{A_LC}, v239 offset:24\nL_pa1:")
    elif E("GAPA"): poll2(a, "a", A_PA, f"v{A_PE}", 3, int(E("GAPA")))
    else: poll(a, "a", A_PA, f"v{A_PE}", 3)
    stamp(a, 6)
    if PROF and E("PCNT"): a(f"s_mov_b32 s84, s{T0}")
    def ldq(j):
        a(f"buffer_load_dwordx4 {vr(Q+8*j,4)}, v{A_Q}, {w}, s{10+j} offen {LD}")
        a(f"buffer_load_dwordx4 {vr(Q+8*j+4,4)}, v{A_Q}, {w}, s{10+j} offen offset:1024 {LD}")
    l0 = kv_loads(0)
    a(l0[0]); a(l0[1])
    ldq(0); ldq(1); ldq(2)
    for x in l0[2:]: a(x)
    ldq(3)
    a("s_waitcnt vmcnt(8)")
    for x in qmask(0): a(x)
    a("s_nop 1")
    a(mfma(S, KV, Q, None))
    l1 = kv_loads(1)
    a(l1[0])
    a(mfma(S, KV + 4, Q + 4, S))
    a(l1[1])
    a("s_waitcnt vmcnt(8)")
    for x in qmask(1): a(x)
    a(f"s_setprio {1 if E('SWAP') else 0}\ns_nop 3")
    stamp(a, 7)
    seq = [(t, q) for t in range(12) for q in range(4)]
    seq += [(12,0),(12,1),(12,2),(13,0),(13,1),(13,2),(14,0),(15,0),(14,1),(15,1),(14,2),(15,2),(12,3),(13,3),(14,3),(15,3)]
    rseq = [(j, i) for i in (0, 3, 1, 2) for j in range(3)]
    rd = [f"ds_read_b128 {vr(O+16*j+4*i,4)}, v{A_RR} offset:{4096*j + 1024*i}" for j, i in rseq]
    for n, (t, q) in enumerate(seq):
        qk = (seq[n+1][0] & 3, seq[n+1][1]) if n < 63 else None
        pv = (seq[n-1][0] & 3, seq[n-1][1]) if n > 0 else None
        post, mid = [None] * 4, None
        if n < 51:
            ld = kv_loads((t + 3) & 3)
            wv = f"s_waitcnt vmcnt({ {1: 10, 3: 9, 4: 9, 6: 9}.get(t, 8) })"
            if q == 0: post[1], post[3] = ld[0], ld[1]
            if q == 1: post[1], post[3] = ld[2], ld[3]
            if q == 2:
                post[0], post[1] = ld[4].split("\n")
                if t < 12: post[3] = wv
            if (t, q) == (12, 1): post[2] = "s_waitcnt vmcnt(7)"
        if (t, q) == (13, 1): post[3] = "s_waitcnt vmcnt(4)"
        if (t, q) == (13, 2): post[3] = "s_waitcnt vmcnt(0)"
        first = 1 <= n <= 4
        if t == 0:
            l2 = kv_loads(2)
            if q == 0:
                post = [l1[2], l1[3] + "\n" + l1[4], None, None]
                mid = ["s_waitcnt vmcnt(8)"] + qmask(2)
            if q == 1:
                post = [l2[0], l2[1], l2[2], l2[3] + "\n" + l2[4]]
                mid = ["s_waitcnt vmcnt(6)"] + qmask(3)
            if q == 2:
                post = [ld[0], ld[1], ld[2], ld[3] + "\n" + ld[4] + "\ns_waitcnt vmcnt(10)"]
            if q == 3:
                post[0], post[1] = [f"buffer_store_dwordx4 {vr(PK+4*h,4)}, v{6+h}, {sr(SRD_R,4)}, s95 offen {ST}" for h in range(2)]
                post[3] = "s_waitcnt vmcnt(10)"
        if t == int(E("TGO", "3")) and q == 3:
            post[3] = f"ds_write_b32 v{A_LC}, v239 offset:20"
        if (t, q) == (2, 3):
            post[1] = f"s_mov_b64 exec, s[48:49]\nglobal_atomic_add v238, v253, {sr(S_CNT,2)} sc1\ns_mov_b64 exec, -1"
        if (t, q) == (5, 3):
            post[1] = f"s_mov_b64 exec, 1\nglobal_atomic_add v14, v228, v15, {sr(S_CNT,2)} sc0 sc1\ns_mov_b64 exec, -1"
        if (t, q) == (6, 3):
            post[1] = f"s_waitcnt vmcnt(4)\nv_readfirstlane_b32 s{T1}, v14"
            post[2] = f"s_cmp_lg_u32 s{T1}, s9"
            post[3] = "s_cbranch_scc1 L_late\nL_late_ok:"
            st = Asm(); st("L_late:")
            if E("CNTL"): st(f"s_mov_b64 exec, 1\nv_mov_b32 v14, 128\nglobal_atomic_add v14, v239, {sr(S_DBG,2)} sc1\ns_waitcnt vmcnt(0)")
            poll(st, "s", 228, "s9", 1); st("s_branch L_late_ok")
            STUBS.append(st.text())
        if (t, q) == (15, 1): post = [None] + red_writes(0)[:3]
        if (t, q) == (14, 2): post[0] = red_writes(0)[3]
        if (t, q) == (15, 2): post = [None] + red_writes(1)[:3]
        if (t, q) == (12, 3): post[0] = red_writes(1)[3]
        if (t, q) == (13, 3):
            r2 = red_writes(2)
            post = [None, r2[0] + "\n" + r2[1], r2[2], r2[3]]
        if (t, q) == (14, 3):
            post = ["s_waitcnt lgkmcnt(0)", "s_barrier", "\n".join(rd[0:3]), "\n".join(rd[3:6])]
        if (t, q) == (15, 3):
            post = ["\n".join(rd[6:9]), "\n".join(rd[9:12]), None, None]
        o = O + 48
        if E("ATS") and n == int(E("ATS")): stamp(a, 2)
        slot(a, n, qk, pv, post, first, mid, tight=n < int(E('TIGHT', '63')),
             tail=mfma(o, KV + 48 + 8, P + 8, o) if n == 63 else None)
    a("s_waitcnt lgkmcnt(0)")
    a(f"v_add_f32 v{O}, v{O}, v{O+16}")
    a(mfma(o, KV + 48 + 12, P + 12, o))
    for i in range(1, 16): a(f"v_add_f32 v{O+i}, v{O+i}, v{O+16+i}")
    if not E('PA'): stamp(a, 8)
    for i in (0, 12, 2, 14, 4, 6, 8, 10):
        a(f"v_pk_add_f32 {vr(O+i,2)}, {vr(O+i,2)}, {vr(O+32+i,2)}")
    for i in (0, 12):
        a(f"v_pk_add_f32 {vr(o+i,2)}, {vr(o+i,2)}, {vr(O+i,2)}")
    rest = [f"v_pk_add_f32 {vr(o+i,2)}, {vr(o+i,2)}, {vr(O+i,2)}" for i in (2, 14, 4, 6, 8, 10)]
    row_sum(a, rest)

def row_sum(a, fill):
    o = O + 48
    a(f"""
    v_cndmask_b32 v10, v{o+12}, v{o}, s[18:19]
    v_cndmask_b32 v13, v{o+12}, v{o}, s[18:19]
    {fill[0]}
    {fill[1]}
    v_permlane32_swap_b32 v10, v13
    {fill[2]}
    v_cndmask_b32 v13, v13, v10, s[18:19]
    {fill[3]}
    v_rcp_f32 v10, v13
    {fill[4]}
    {fill[5]}
    """)

def store_o(a):
    o = O + 48
    w = sr(SRD_WS, 4)
    for h in range(2):
        for i in range(4*h, 4*h + 4):
            a(f"v_pk_mul_f32 {vr(o+2*i,2)}, {vr(o+2*i,2)}, v[10:11] op_sel_hi:[1,0]")
        for i in range(4*h, 4*h + 4):
            a(f"v_cvt_pk_bf16_f32 v{16+i}, v{o+2*i}, v{o+2*i+1}")
        a(f"buffer_store_dwordx4 {vr(16+4*h,4)}, v{A_L16}, {w}, s3 offen offset:{1024*h} {ST}")
    if not E('PA'): stamp(a, 9)
    a(f"v_pk_mul_f32 v[8:9], {vr(o,2)}, 0 op_sel_hi:[1,0]")
    for i in range(2, 16, 2):
        a(f"v_pk_fma_f32 v[8:9], {vr(o+i,2)}, 0, v[8:9] op_sel_hi:[1,0,1]")
    a(f"""
    v_cmp_le_f32 vcc, s14, v13
    v_cmp_ge_f32 s[16:17], s15, v13
    s_and_b64 s[16:17], s[16:17], vcc
    v_cmp_o_f32 vcc, v8, v9
    s_and_b64 s[16:17], s[16:17], vcc
    s_or_b64 s[16:17], s[16:17], s[100:101]
    s_cmp_lg_u64 s[16:17], -1
    s_cbranch_scc1 L_slow
    """)
    a("s_mov_b64 exec, 1")
    a(f"""
    s_waitcnt vmcnt(0)
    global_atomic_add v{A_OC}, v239, {sr(S_CNT,2)} sc1
    """)

def fallback(a):
    M, q, o = 208, Q + 24, O + 48
    l0 = kv_loads(0)
    a(f"""
L_slow:
    s_mov_b64 s[100:101], -1
    s_waitcnt vmcnt(0)
    v_mov_b32 v{M}, 0xff800000
    s_mov_b64 {sr(S_KB,2)}, {sr(S_WS,2)}
    s_mov_b32 s16, 0
L_s1:
    """)
    for x in (l0[0], l0[1], l0[4]): a(x)
    a("s_waitcnt vmcnt(0)")
    a(mfma(S, KV, q, None))
    a(mfma(S, KV + 4, q + 4, S))
    a("s_nop 15")
    for i in range(8):
        a(f"v_max3_f32 v{M}, v{M}, v{S+2*i}, v{S+2*i+1}")
    a(f"""
    s_add_u32 s16, s16, 1
    s_cmp_lt_u32 s16, 64
    s_cbranch_scc1 L_s1
    v_mov_b32 v{M+1}, v{M}
    s_nop 1
    v_permlane32_swap_b32 v{M}, v{M+1}
    s_nop 1
    v_max_f32 v{M}, v{M}, v{M+1}
    """)
    for i in range(16):
        a(f"v_mov_b32 v{o+i}, 0")
    a(f"""
    s_mov_b64 {sr(S_KB,2)}, {sr(S_WS,2)}
    s_mov_b32 s16, 0
L_s2:
    """)
    for x in l0: a(x)
    a("s_waitcnt vmcnt(0)")
    a(mfma(S, KV, q, None))
    a(mfma(S, KV + 4, q + 4, S))
    a("s_nop 15")
    for i in range(16):
        a(f"v_sub_f32 v{S+i}, v{S+i}, v{M}")
    for i in range(16):
        a(f"v_exp_f32 v{S+i}, v{S+i}")
    a("s_nop 0")
    for i in range(8):
        a(f"v_cvt_pk_bf16_f32 v{P+i}, v{S+2*i}, v{S+2*i+1}")
    a("s_nop 1")
    a(mfma(o, KV + 8, P, o))
    a(mfma(o, KV + 12, P + 4, o))
    a(f"""
    s_add_u32 s16, s16, 1
    s_cmp_lt_u32 s16, 64
    s_cbranch_scc1 L_s2
    s_nop 15
    """)
    row_sum(a, ["s_nop 0"] * 6)
    a("s_branch L_fin")

CA, ZR = 192, 28
H_T, H_UB, H_US, H_UTV, H_UTC, H_PL, H_BPC, H_CNT, H_K4, H_K2 = 16, 17, 18, 19, 20, 21, 22, 23, 18, 254

def chunk_of(it):
    if it == 0: return [f"s_mov_b32 s59, s{S_CH}"]
    return [f"s_add_u32 s59, s{S_CH}, {it}", "s_sub_u32 s58, s59, 7", "s_min_u32 s59, s59, s58"]

def dma_chunk(it, vx=2, vw=3):
    slot = SLOT_AT[it]
    g = []
    for j in range(4):
        x = chunk_of(it) + [f"s_mul_i32 s58, s59, {64*2688}", "s_lshl_b32 s59, s59, 7"] if j == 0 else []
        g.append(x + [f"s_add_u32 m0, s{S_LW1K}, {slot + j*4096}",
                      f"s_add_u32 s{T0}, s58, {16*j*2688}",
                      f"buffer_load_dwordx4 v{vw}, {sr(SRD_W,4)}, s{T0} offen lds"])
        if j < (3 if it == 0 else 1):
            g.append([f"s_add_u32 m0, s{S_LW1K}, {slot + 16384 + j*4096}",
                      f"s_add_u32 s{T1}, s59, {j*32*896}",
                      f"buffer_load_dwordx4 v{vx}, {sr(SRD_X,4)}, s{T1} offen lds"])
    return g

def dma_x(i, vx=2):
    g = []
    for it in range(1, 7):
        g.append(chunk_of(it) + ["s_lshl_b32 s59, s59, 7",
                                 f"s_add_u32 m0, s{S_LW1K}, {L_X1 + (i-1)*24576 + (it-1)*4096}",
                                 f"s_add_u32 s{T1}, s59, {i*32*896}",
                                 f"buffer_load_dwordx4 v{vx}, {sr(SRD_X,4)}, s{T1} offen lds"])
    return g

PLAN_G = E("PG", "12,34,56a,").split(",")
PLAN_H = E("PH", ",,,b").split(",")
def items(st, vx, vw):
    g = []
    for c in st:
        g += dma_x(1 + "ab".index(c), vx) if c in "ab" else dma_chunk(int(c), vx, vw)
    return g
def nld(st): return sum(6 if c in "ab" else 5 for c in st)
def wait_for(plan, upto, need, extra=None):
    seq = "".join(plan[:upto + 1])
    pos = max([seq.index(c) for c in need if c in seq], default=-1)
    return None if pos < 0 else nld(seq[pos + 1:])

def helper_setup():
    t = f"""
    s_mov_b32 s{SRD_WS}, s{S_WS}
    s_mov_b32 s{SRD_WS+1}, s{S_WS+1}
    s_mov_b32 s{SRD_WS+2}, {WS_SIZE}
    s_mov_b32 s{SRD_WS+3}, 0x20000
    s_mul_i32 s18, s{S_LW}, {TAB_B}
    v_and_b32 v4, 31, v0
    v_lshrrev_b32 v5, 5, v0
    v_mul_u32_u24 v24, 272, v4
    v_lshl_add_u32 v24, v5, 4, v24
    v_add_u32 v24, s18, v24
    s_lshr_b32 s47, s{S_LW}, 1
    s_mul_i32 s{T0}, s{S_LW}, 3072
    s_add_u32 s{T0}, s{T0}, {L_XCH}
    v_lshl_add_u32 v25, v0, 4, s{T0}
    s_lshl_b32 s{T0}, s{S_LW}, 2
    s_add_u32 s{T0}, s{T0}, {L_CNT + 48}
    v_mov_b32 v255, s{T0}
    v_mov_b32 v{H_CNT}, {L_CNT}
    v_and_b32 v14, 15, v0
    v_lshrrev_b32 v15, 5, v0
    s_lshl_b32 s{T0}, s{S_LW}, 1
    v_add_u32 v15, s{T0}, v15
    v_lshrrev_b32 v78, 1, v14
    v_xor_b32 v15, v15, v78
    v_lshlrev_b32 v78, 7, v14
    v_lshl_add_u32 v78, v15, 4, v78
    v_bfe_u32 v15, v0, 4, 1
    v_lshl_add_u32 v78, v15, 3, v78
    v_add_u32 v78, {SLOT_AT[0] + 16384}, v78
    s_mul_i32 s{T0}, s{S_RB}, {3*TILE_B}
    s_lshl_b32 s{T1}, s{S_C0}, 12
    s_add_u32 s{T1}, s{T1}, s{S_LW1K}
    s_add_u32 s{T1}, s{T1}, s{T0}
    v_lshl_add_u32 v79, v0, 4, s{T1}
    s_add_u32 s92, s{S_WS}, {WS_UT}
    s_addc_u32 s93, s{S_WS+1}, 0
    s_sub_u32 s{T0}, s{S_CB}, {E('UCB', '2')}
    s_cmp_lt_u32 s{T0}, 7
    s_cselect_b32 s94, {0 if E('X_NOUT') else 64*TILE_B}, 0
    s_mov_b32 s95, 0x20000
    s_cselect_b32 s48, 1, 0
    s_cmp_ge_u32 s{S_RB}, 22
    s_cselect_b32 s48, 0, s48
    s_mov_b32 s54, {TILE_B}
    s_mov_b32 s55, {2*TILE_B}
    s_lshl_b32 s{T0}, s{S_C0}, 2
    s_add_u32 s{T0}, s{T0}, s{S_LW}
    s_lshl_b32 s{T0}, s{T0}, {CS}
    s_add_u32 s{T0}, s{T0}, {B_U}
    v_mov_b32 v92, s{T0}
    v_mov_b32 v93, s48
    s_lshr_b32 s{T0}, s{S_P}, 3
    s_lshl_b32 s{T0}, s{T0}, {CS}
    s_add_u32 s{T0}, s{T0}, {B_U}
    v_mov_b32 v{H_UTC}, s{T0}
    v_lshrrev_b32 v14, 2, v0
    v_mul_u32_u24 v14, {TILE_B}, v14
    v_and_b32 v15, 3, v0
    v_lshl_add_u32 v{H_UTV}, v15, 6, v14
    s_lshr_b32 s14, s{S_P}, 1
    s_lshl_b32 s14, s14, 8
    s_and_b32 s15, s{S_P}, 1
    s_lshl_b32 s15, s15, 1
    s_add_u32 s15, s15, s47
    s_lshl_b32 s15, s15, 4
    s_add_u32 s14, s14, s15
    s_and_b32 s16, s{S_LW}, 1
    s_mul_i32 s15, s16, {32*TILE_B}
    s_add_u32 s14, s14, s15
    s_add_u32 s14, s14, {WS_UT}
    s_add_u32 s15, s14, {16*TILE_B}
    s_mul_i32 s17, s47, {U_B}
    s_add_u32 s13, s17, {L_U}
    s_lshl_b32 s16, s16, 11
    s_add_u32 s17, s17, s16
    s_mul_i32 s19, s47, {KC_B}
    s_add_u32 s19, s19, {L_KC}
    s_add_u32 s{T0}, s19, 64
    v_lshl_add_u32 v{H_K4}, v0, 4, s{T0}
    v_lshl_add_u32 v{H_K2}, v4, 4, s{T0}
    v_lshl_add_u32 v{H_K2}, v5, 3, v{H_K2}
    v_bfe_u32 v14, v0, 4, 2
    v_lshlrev_b32 v{H_T}, 5, v14
    v_lshl_add_u32 v{H_T}, v15, 3, v{H_T}
    v_bfe_u32 v14, v0, 2, 2
    v_lshlrev_b32 v14, 3, v14
    v_sub_u32 v{H_T}, v{H_T}, v14
    s_add_u32 s{T0}, s19, {64 - 32}
    v_add_u32 v{H_T}, s{T0}, v{H_T}
    ; U address: L_U + 512 + 16*(l&31) - 64 hi + 128*beta
    v_lshlrev_b32 v14, 4, v4
    v_lshlrev_b32 v15, 6, v5
    v_sub_u32 v14, v14, v15
    s_add_u32 s{T0}, s13, {512 - 384}
    v_add_u32 v{H_UB}, s{T0}, v14
    s_lshl_b32 s{T0}, s{S_LW}, 11
    v_lshl_add_u32 v{H_PL}, v0, 4, s{T0}
    s_lshl_b32 s12, s{S_P}, 13
    s_add_u32 s12, s12, {WS_BP}
    s_lshr_b32 s{T1}, s{S_P}, 4
    s_mul_i32 s{T0}, s{S_LW}, 14
    s_add_u32 s{T0}, s{T0}, s{T1}
    s_lshl_b32 s{T0}, s{T0}, {CS}
    s_add_u32 s{T0}, s{T0}, {B_BP}
    v_mov_b32 v{H_BPC}, s{T0}
    """
    return [l.strip() for l in t.split("\n") if l.strip() and not l.strip().startswith(";")]

def conv(a):
    w = sr(SRD_WS, 4)
    stamp(a, 5)
    UFR, TR, NT = 64, 32, 8
    def variant(tiles, tag):
        top = min(4 * max(tiles) + 3, int(E('X_TOP', '99')))
        def rd_t(ph):
            t = TR + 4 * (ph % NT)
            return [f"ds_read_b64_tr_b16 {vr(t,2)}, v{H_T} offset:{128*ph + 32}",
                    f"ds_read_b64_tr_b16 {vr(t+2,2)}, v{H_T} offset:{128*ph}"]
        have = set()
        need = []
        for ph in range(top + 1):
            r = rd_t(ph)
            for tau in tiles:
                b = 4 * tau - ph
                if b >= -3 and b not in have:
                    have.add(b)
                    r.append(f"ds_read_b128 {vr(UFR + 4*(b+3), 4)}, v{H_UB} offset:{128*(b+3)}")
            need.append(r)
        queue = [(ph, x) for ph in range(top + 1) for x in need[ph]]
        issued = 0
        def issue(k, maxph):
            nonlocal issued
            while k > 0 and issued < len(queue) and queue[issued][0] <= maxph:
                a(queue[issued][1]); issued += 1; k -= 1
        issue(12, 1)
        a(f"s_setprio {E('PRC', '0')}")
        done = 0
        for ph in range(top + 1):
            done += len(need[ph])
            issue(max(0, done - issued), ph)
            a(f"s_waitcnt lgkmcnt({min(15, issued - done)})")
            act = [k for k, tau in enumerate(tiles) if 4 * tau - ph >= -3]
            for k in act:
                b = 4 * tiles[k] - ph
                a(mfma(CA + 16*k, UFR + 4*(b+3), TR + 4*(ph % NT), None if ph == 0 else CA + 16*k))
                issue(min(2, 12 - (issued - done)), ph + NT - 1)
        assert issued == len(queue)
        a(f"s_setprio {E('PRE_', '1')}")
        stamp(a, 6)
        a(f"""
L_tab_{tag}:
        ds_read_b32 v15, v{H_CNT} offset:4
        s_waitcnt lgkmcnt(0)
        v_readfirstlane_b32 s{T0}, v15
        s_cmp_lt_u32 s{T0}, 4
        s_cbranch_scc1 L_tab_{tag}
        """)
        if 0 in tiles:
            a(f"""
            v_and_b32 v14, 3, v0
            v_mul_u32_u24 v14, {2*PL_B}, v14
            v_add_u32 v14, m0, v14
            ds_write_b128 v14, {vr(ZR,4)}
            """)
        order = sorted(range(4), key=lambda k: tiles[k])
        for k in ([] if E("X_NOPL") else order):
            for r in range(16):
                a(f"ds_write_addtid_b32 v{CA+16*k+r} offset:{(r&3)*2*PL_B + 1024*tiles[k] + 256*(r>>2) + 4*(r&3)}")
    a(f"""
    s_mul_i32 m0, s47, {PL_B}
    s_bitcmp1_b32 s{S_LW}, 0
    s_cbranch_scc1 L_cB
    """)
    variant([7, 4, 3, 0], "A")
    a("s_branch L_cC\nL_cB:")
    variant([6, 5, 2, 1], "B")
    a("L_cC:")
    lds_sync(a, 2, "c", vm=False)
    for hf in range(2):
        for pl in range(8):
            a(f"ds_read_b128 {vr(CA+32*hf+4*pl,4)}, v{H_PL} offset:{pl*PL_B + 1024*hf}")
    for hf in range(2):
        b = CA + 32*hf
        a(f"s_waitcnt lgkmcnt({8 - 8*hf})")
        for i in range(0, 0 if E("NOPKA") else 8, 2):
            a(f"v_pk_add_f32 {vr(b+i,2)}, {vr(b+i,2)}, {vr(b+8+i,2)}")
            a(f"v_pk_add_f32 {vr(b+16+i,2)}, {vr(b+16+i,2)}, {vr(b+24+i,2)}")
        for i in range(0, 0 if E("NOPKA") else 8, 2):
            a(f"v_pk_add_f32 {vr(b+i,2)}, {vr(b+i,2)}, {vr(b+16+i,2)}")
        for i in range(8 if E("NOPKA") else 0):
            a(f"v_add_f32 v{b+i}, v{b+i}, v{b+8+i}")
            a(f"v_add_f32 v{b+16+i}, v{b+16+i}, v{b+24+i}")
        for i in range(8 if E("NOPKA") else 0):
            a(f"v_add_f32 v{b+i}, v{b+i}, v{b+16+i}")
        for i in range(4):
            a(f"v_cvt_pk_bf16_f32 v{b+i}, v{b+i}, v{b+4+i}")
        if E("NOBGATE"):
            a(f"buffer_store_dwordx4 {vr(b,4)}, v{H_PL}, {w}, s12 offen offset:{1024*hf} {ST}")
    if not E("NOBGATE"):
        a(f"""
L_wait_b:
        ds_read_b32 v15, v{H_CNT} offset:20
        s_waitcnt lgkmcnt(0)
        v_readfirstlane_b32 s{T0}, v15
        s_cmp_lg_u32 s{T0}, 0
        s_cbranch_scc1 L_go_b
        s_sleep 4
        s_branch L_wait_b
L_go_b:
        """)
        for hf in range(2):
            a(f"buffer_store_dwordx4 {vr(CA+32*hf,4)}, v{H_PL}, {w}, s12 offen offset:{1024*hf} {ST}")
    if E("WARM"):
        a(f"""
        s_lshr_b32 s{T0}, s2, 3
        s_lshl_b32 s{T0}, s{T0}, 2
        s_add_u32 s{T0}, s{T0}, s{S_LW}
        s_mul_i32 s{T0}, s{T0}, {28*128}
        v_min_u32 v14, 27, v0
        v_lshl_add_u32 v14, v14, 7, s{T0}
        global_load_dword v26, v14, {sr(S_WO,2)}
        """)
    lds_sync(a, 3, "d", vm=False)

def outproj_setup(a):
    a(f"""
    s_and_b32 s8, s2, 7
    s_lshl_b32 s8, s8, 3
    s_lshr_b32 s{T0}, s2, 5
    s_add_u32 s8, s8, s{T0}
    s_bfe_u32 s9, s2, 0x20003
    s_lshl_b32 s10, s9, 2
    s_add_u32 s10, s10, s{S_LW}
    v_lshrrev_b32 v36, 4, v0
    v_lshlrev_b32 v37, 2, v36
    v_xor_b32 v37, v37, v0
    v_and_b32 v37, 15, v37
    s_lshl_b32 s{T0}, s{S_LW}, 2
    v_add_u32 v36, s{T0}, v36
    v_mul_u32_u24 v3, 896, v36
    v_lshl_add_u32 v3, v37, 4, v3
    s_cmp_eq_u32 s9, 3
    s_cselect_b32 s{T0}, 8, 16
    v_cmp_le_u32 vcc, s{T0}, v37
    s_lshl_b32 s{T0}, s9, 8
    s_add_u32 s{SRD_X}, s{S_WO}, s{T0}
    s_addc_u32 s{SRD_X+1}, s{S_WO+1}, 0
    s_sub_u32 s{SRD_X+2}, {WO_BYTES}, s{T0}
    v_mov_b32 v37, 0x1000000
    v_cndmask_b32 v3, v3, v37, vcc
    v_bfe_u32 v37, v0, 2, 2
    v_lshl_add_u32 v8, v5, 3, v37
    v_lshlrev_b32 v8, 8, v8
    v_xor_b32 v37, s{S_LW}, v37
    v_lshl_add_u32 v8, v37, 6, v8
    v_bfe_u32 v37, v0, 4, 1
    v_lshl_add_u32 v8, v37, 5, v8
    v_and_b32 v37, 1, v0
    v_lshl_add_u32 v8, v37, 4, v8
    v_bfe_u32 v37, v0, 1, 1
    v_lshl_add_u32 v8, v37, 3, v8
    v_lshl_add_u32 v9, v5, 11, v8
    v_mul_u32_u24 v37, {48*256}, v5
    v_add_u32 v10, v37, v8
    s_cmp_lt_u32 s2, 224
    s_cselect_b32 s{T0}, 1, 0
    v_mov_b32 v1, s{T0}
    s_lshr_b32 s{T0}, s8, 4                ; quarter
    s_mul_i32 s{T1}, s{T0}, 14
    s_add_u32 s{T1}, s{T1}, s10
    s_lshl_b32 s{T1}, s{T1}, {CS}
    s_add_u32 s{T1}, s{T1}, {B_BP}
    v_mov_b32 v11, s{T1}
    v_lshlrev_b32 v12, 2, v4
    v_lshl_add_u32 v13, v5, 15, v12
    """)

def outproj(a):
    WOF, ACC3, BR, OF, BB = 32, 224, 208, 160, 192
    KS = []
    for pp in range(0, 8, 2):
        for p_ in (pp, pp + 1):
            KS += [(p_, 4096*p_, 56*p_, 0), (p_, 4096*p_ + 1024, 56*p_ + 16, 1), (p_, 4096*p_ + 3072, 56*p_ + 40, 0)]
        KS.append((pp + 1, 4096*pp, 56*pp + 24, 2))
    w = sr(SRD_WS, 4)
    a(f"""
    s_mov_b32 s12, 0
L_wait_at:
    ds_read_b32 v15, v{H_CNT} offset:20
    s_waitcnt lgkmcnt(0)
    v_readfirstlane_b32 s{T0}, v15
    s_cmp_lg_u32 s{T0}, 0
    s_cbranch_scc1 L_go_at
    s_sleep 8
    s_branch L_wait_at
L_go_at:
    """)
    for rnd in range(0 if E("X_NOWO") else 2):
        a(f"s_mov_b32 m0, s{S_LW1K}\ns_nop 0")
        for i in range(14):
            a(f"buffer_load_dwordx4 v3, {sr(SRD_X,4)}, s12 offen lds")
            a(f"s_add_u32 s12, s12, {16*896}")
            if i < 13:
                a(f"s_add_u32 m0, m0, 4096\ns_waitcnt vmcnt({E('PACE', '3')})")
            if rnd == 0 and i == int(E('PACE', '3')):
                a(f"""
                s_mov_b64 exec, 1
                global_atomic_add v{H_BPC}, v1, {sr(S_CNT,2)} sc1
                s_mov_b64 exec, -1
                """)
        lds_sync(a, 8 + 2*rnd, f"w{rnd}")
        for k in range(14):
            _, _, row, kind = KS[k]
            va = (8, 9, 10)[kind]
            a(f"ds_read_b64_tr_b16 {vr(WOF+56*rnd+4*k,2)}, v{va} offset:{256*row}")
            a(f"ds_read_b64_tr_b16 {vr(WOF+56*rnd+4*k+2,2)}, v{va} offset:{256*row+1024}")
        if rnd == 0: lds_sync(a, 9, "wx", vm=False)
    a(f"""
    s_cmp_ge_u32 s10, 14
    s_cbranch_scc1 L_nowo
    """)
    if not E('PSTART'): stamp(a, 8)
    poll(a, "b", 11, "22", 1, sleep=16, limit=2 if E("X_NOCONV") else SPIN_MAX)
    a(f"""
    s_lshl_b32 s{T0}, s10, 17
    s_lshl_b32 s{T1}, s8, 7
    s_add_u32 s{T0}, s{T0}, s{T1}
    s_add_u32 s{T0}, s{T0}, {WS_BP}
    s_add_u32 s{T1}, s{T1}, {WS_GT}
    buffer_load_dword v{BR+8}, v12, {w}, s{T1} offen {LD}
    """)
    for i in range(8):
        off = (8 * (i >> 2) + (i & 3)) * 8192
        a(f"s_add_u32 s{T2}, s{T0}, {off}")
        a(f"buffer_load_dword v{BR+i}, v13, {w}, s{T2} offen {LD}")
    a(f"""
    """)
    a("L_nowo:\ns_waitcnt vmcnt(0) lgkmcnt(0)")
    if not E('PSTART'): stamp(a, 9)
    a(f"""
    s_barrier
    s_setprio 0
    """)
    if (not E("NOHALF")):
        a(f"""
        s_lshl_b32 s{T3}, s{S_LW}, 11
        s_add_u32 s{T3}, s{T3}, 32768
        v_bfe_u32 v10, v0, 1, 2
        v_xor_b32 v9, v5, v10
        v_lshl_add_u32 v13, v4, 6, s{T3}
        v_lshl_add_u32 v9, v9, 4, v13
        v_xor_b32 v3, 32, v9
        v_lshrrev_b32 v13, 2, v0               ; row
        v_and_b32 v10, 3, v0
        v_mul_u32_u24 v12, 896, v13
        v_lshl_add_u32 v12, v10, 4, v12
        v_bfe_u32 v11, v0, 3, 2
        v_xor_b32 v10, v10, v11
        v_lshl_add_u32 v13, v13, 6, s{T3}
        v_lshl_add_u32 v10, v10, 4, v13
        v_add_u32 v13, {16*896}, v12
        s_mul_i32 s{T0}, s8, {32*896}
        s_lshl_b32 s{T1}, s10, 6
        """)
    elif not E("NOFULL"):
        a(f"""
        ; the two waves of a pair exchange through LDS so that every store covers whole 128-B lines
        s_and_b32 s{T2}, s{S_LW}, 1
        s_lshr_b32 s{T3}, s{S_LW}, 1
        s_lshl_b32 s{T3}, s{T3}, 12
        s_add_u32 s{T3}, s{T3}, 32768
        s_lshl_b32 s{T0}, s{T2}, 2
        v_add_u32 v9, s{T0}, v5
        v_and_b32 v10, 7, v0
        v_xor_b32 v9, v9, v10
        v_lshl_add_u32 v13, v4, 7, s{T3}
        v_lshl_add_u32 v9, v9, 4, v13
        v_xor_b32 v3, 32, v9
        v_lshrrev_b32 v13, 3, v0
        v_mul_u32_u24 v12, 896, v13
        v_lshl_add_u32 v12, v10, 4, v12
        v_xor_b32 v10, v10, v13
        v_lshlrev_b32 v13, 7, v13
        v_lshl_add_u32 v10, v10, 4, v13
        s_lshl_b32 s{T0}, s{T2}, 11
        s_add_u32 s{T3}, s{T3}, s{T0}
        v_add_u32 v10, s{T3}, v10
        v_add_u32 v13, {8*896}, v12
        s_mul_i32 s{T0}, s8, {32*896}
        s_lshr_b32 s{T1}, s10, 1
        s_lshl_b32 s{T1}, s{T1}, 7
        s_add_u32 s{T0}, s{T0}, s{T1}
        s_mul_i32 s{T1}, s{T2}, {16*896}
        """)
    else:
        a(f"""
        v_mul_u32_u24 v12, 896, v4
        v_lshl_add_u32 v12, v5, 4, v12
        s_mul_i32 s{T0}, s8, {32*896}
        s_lshl_b32 s{T1}, s10, 6
        """)
    a(f"""
    s_add_u32 s{T0}, s{T0}, s{T1}
    s_add_u32 s{S_OUT}, s{S_OUT}, s{T0}
    s_addc_u32 s{S_OUT+1}, s{S_OUT+1}, 0
    v_lshlrev_b32 v2, 4, v0
    v_lshl_add_u32 v16, v5, 10, v2
    v_mul_u32_u24 v17, 3584, v5
    v_add_u32 v17, v17, v2
    s_lshl_b32 s{T0}, s8, {CS}
    s_add_u32 s{T0}, s{T0}, {B_O}
    v_mov_b32 v8, s{T0}
    s_lshl_b32 s12, s8, 15
    s_add_u32 s12, s12, {WS_O}
    s_add_u32 s12, s12, s{S_LW1K}
    s_mov_b32 m0, s{S_LW1K}
    """)
    a(f"""
    v_sub_f32 v{BR+9}, 1.0, v{BR+8}
    v_cvt_pk_bf16_f32 v{BR+9}, v{BR+9}, v{BR+9}
    v_and_b32 v{BR+9}, 0xffff0000, v{BR+9}
    """)
    for i in range(8):
        a(f"v_lshlrev_b32 v{BB+2*i}, 16, v{BR+i}")
        a(f"v_and_b32 v{BB+2*i+1}, 0xffff0000, v{BR+i}")
    for i in range(16):
        a(f"v_mul_f32 v{BB+i}, v{BB+i}, v{BR+9}")
    a(f"""
    {"s_barrier" if E("WAITB") else ""}
    """)
    if not E("OP4"):
        a(f"s_cmp_lg_u32 s{S_LW}, 0\ns_cbranch_scc1 L_ok_o")
        if E("GAPO"): poll2(a, "o", 8, "16", 1, int(E("GAPO")))
        else: poll(a, "o", 8, "16", 1)
        a("s_barrier")
    else: poll(a, "o", 8, "16", 1)
    stamp(a, 10)
    for i in range(8):
        a(f"buffer_load_dwordx4 v2, {w}, s12 offen {LD} lds")
        if i < 7: a("s_add_u32 m0, m0, 4096\ns_add_u32 s12, s12, 4096")
    bars = {0: 6, 7: 4, 14: 0}
    cnt = [2 if x[3] == 2 else 1 for x in KS]
    def rd(k):
        if k in bars:
            a(f"s_waitcnt vmcnt({bars[k]})\ns_barrier")
            if k == 0: a("s_cmp_ge_u32 s10, 14\ns_cbranch_scc1 L_idle3")
        _, off, _, kind = KS[k]
        r = OF + 4*(k % 8)
        if kind == 2:
            a(f"ds_read_b64 {vr(r,2)}, v17 offset:{off + 1536}")
            a(f"ds_read_b64 {vr(r+2,2)}, v17 offset:{off + 2048 + 8}")
        else:
            a(f"ds_read_b128 {vr(r,4)}, v{(2, 16)[kind]} offset:{off}")
    issued = 0
    for k in range(28):
        want = min(28, k + 6)
        if k < 2: want = 5 + k
        while issued < want:
            rd(issued); issued += 1
        a(f"s_waitcnt lgkmcnt({sum(cnt[k+1:issued])})")
        a(mfma(ACC3, WOF + 4*k, OF + 4*(k%8), None if k == 0 else ACC3))
    a("s_nop 11")
    for h in range(2):
        for i in range(8*h, 8*h + 8, 2):
            a(f"v_pk_fma_f32 {vr(BB+i,2)}, {vr(ACC3+i,2)}, {vr(BR+8,2)}, {vr(BB+i,2)} op_sel_hi:[1,0,1]")
        for i in range(4*h, 4*h + 4):
            a(f"v_cvt_pk_bf16_f32 v{OF+i}, v{BB+2*i}, v{BB+2*i+1}")
        if not E("NOFULL"):
            a(f"ds_write_b128 v{(9, 3)[h]}, {vr(OF+4*h,4)}")
        else:
            a(f"global_store_dwordx4 v12, {vr(OF+4*h,4)}, {sr(S_OUT,2)} offset:{32*h} {E('STO', 'sc1')}")
    if not E("NOFULL"):
        a(f"""
        {"" if (not E("NOHALF")) else "s_waitcnt lgkmcnt(0)"}
        {"" if (not E("NOHALF")) else "s_barrier"}
        ds_read_b128 {vr(OF+8,4)}, v10
        ds_read_b128 {vr(OF+12,4)}, v10 offset:1024
        s_waitcnt lgkmcnt(1)
        global_store_dwordx4 v12, {vr(OF+8,4)}, {sr(S_OUT,2)} {E('STO', 'sc1')}
        s_waitcnt lgkmcnt(0)
        global_store_dwordx4 v13, {vr(OF+12,4)}, {sr(S_OUT,2)} {E('STO', 'sc1')}
        """)
    if PROF and E("PEND"): stamp(a, 9); a("s_waitcnt vmcnt(0)")
    a(endp("L_end"))
    a("L_idle3:\ns_waitcnt vmcnt(0)")
    a(endp("L_end"))


def expand2(a, store, A):
    a(f"""
    v_add_f32 v{A}, v{A}, v36
    v_cvt_pk_bf16_f32 v45, v{A+2}, v{A+3}
    v_cvt_pk_bf16_f32 v44, v{A}, v{A+1}
    v_mov_b32_dpp v40, v{A+8} wave_rol:1 row_mask:0xf bank_mask:0xf
    """)
    store(2, 44, 0)
    a(f"""
    v_mov_b32_dpp v41, v{A+10} wave_rol:1 row_mask:0xf bank_mask:0xf
    v_mov_b32_dpp v40, v{A+6} wave_shl:1 row_mask:0xc bank_mask:0xf
    v_cvt_pk_bf16_f32 v46, v{A+4}, v{A+4}
    v_mov_b32_dpp v41, v{A+8} wave_shl:1 row_mask:0xf bank_mask:0xf
    v_mov_b32_dpp v40, v{A+6} quad_perm:[0,1,2,3] row_mask:0x3 bank_mask:0xf
    v_cvt_pk_bf16_f32 v48, v{A+8}, v{A+8}
    v_cvt_pk_bf16_f32 v47, v{A+5}, v40
    v_cvt_pk_bf16_f32 v49, v{A+8}, v{A+9}
    """)
    store(2, 46, 512)
    a(f"""
    v_cvt_pk_bf16_f32 v50, v{A+9}, v{A+9}
    v_cvt_pk_bf16_f32 v51, v41, v41
    v_mov_b32_dpp v42, v{A+11} wave_rol:1 row_mask:0xf bank_mask:0xf
    """)
    store(4, 48, 1024)
    a(f"""
    v_mov_b32_dpp v43, v{A+7} wave_rol:1 row_mask:0xf bank_mask:0xf
    v_mov_b32_dpp v42, v{A+10} wave_shl:1 row_mask:0xf bank_mask:0xf
    v_cvt_pk_bf16_f32 v52, v{A+10}, v{A+10}
    v_mov_b32_dpp v43, v{A+11} wave_shl:1 row_mask:0xf bank_mask:0xf
    v_cndmask_b32 v38, v{A+10}, v42, vcc
    v_cvt_pk_bf16_f32 v55, v42, v42
    v_mov_b32 v53, v52
    v_cvt_pk_bf16_f32 v54, v38, v42
    v_cndmask_b32 v39, v{A+11}, v43, vcc
    """)
    store(4, 52, 2048)
    a(f"""
    v_cvt_pk_bf16_f32 v56, v{A+11}, v{A+11}
    v_cvt_pk_bf16_f32 v59, v43, v43
    v_cvt_pk_bf16_f32 v58, v39, v43
    v_mov_b32 v57, v56
    """)
    store(4, 56, 3072)

def helper_waves(a):
    w = sr(SRD_WS, 4)
    def emit(groups, fill=None, n=0, head=50):
        if fill is not None:
            h = n * head // 100
            for x in fill[:h]: a(x)
            del fill[:h]
            n -= h
        for k, g in enumerate(groups):
            for x in g: a(x)
            if fill is not None:
                m = n * (k + 1) // len(groups) - n * k // len(groups)
                for x in fill[:m]: a(x)
                del fill[:m]
    O0, O1, FV0, FU0, FV1, FU1, KA = 148, 201, 80, 112, 148, 36, 180
    k0, k1 = kgen_split(0, O0, bool(E("PL0"))), kgen_split(1, O1, not E("PK1"))
    if E("PB"): stamp(a, 8)
    if E("XT"):
        a(f"""
        s_cmp_lg_u32 s{S_LW}, 0
        s_cbranch_scc1 L_noxt
        s_add_u32 s{T0}, s{S_C0}, 2
        s_sub_u32 s{T1}, s{T0}, 7
        s_cmp_ge_u32 s{T0}, 7
        s_cselect_b32 s{T0}, s{T1}, s{T0}
        s_lshl_b32 s{T0}, s{T0}, 7
        s_add_u32 s{T0}, s{T0}, {32*896}
        v_mul_u32_u24 v14, 896, v0
        buffer_load_dword v6, v14, {sr(SRD_X,4)}, s{T0} offen
L_noxt:
        """)
    hs_all = helper_setup()
    cut = [i for i, x in enumerate(hs_all) if x.startswith("v_mov_b32 v93")][0] + 1
    LATE = hs_all[cut:] if E("HSL") else []
    for ins in (hs_all[:cut] if E("HSL") else hs_all): a(ins)
    a(f"""
    s_waitcnt lgkmcnt(0)
    s_lshl_b32 s{T1}, s51, 16
    s_and_b32 s51, s51, 0xffff0000
    s_lshl_b32 s{T2}, s52, 16
    s_and_b32 s52, s52, 0xffff0000
    s_cmp_ge_u32 s{S_LW}, 2
    s_cselect_b32 s51, s51, s{T1}
    s_cselect_b32 s{S_DSK}, s52, s{T2}
    v_mov_b32 v12, s51
    v_mul_f32 v12, {f32(LOG2E)}, v12
    v_exp_f32 v12, v12
    s_nop 0
    v_cvt_pk_bf16_f32 v12, v12, v12
    v_and_b32 v12, 0xffff0000, v12         ; dt
    v_add_f32 v13, v12, v12                ; 2 dt
    """)
    if E("PB"): stamp(a, 9)
    a("""
    """)
    fill = k0[0] + k1[0]
    if E("X_NOFILL"): fill = []
    a("s_waitcnt vmcnt(0)")
    if E("PB"): stamp(a, 8)
    emit([[]], fill, int(E("SLP", "231")))
    if E("X_BURN"):
        for i in range(8):
            a(f"v_mul_u32_u24 v{100+i}, {0x9e37 + 778*i}, v79\nv_and_b32 v{100+i}, 0x3fffbfff, v{100+i}\nv_or_b32 v{100+i}, 0x3c000000, v{100+i}")
        a("s_nop 1")
        for i in range(int(E("X_BURN"))):
            a(mfma(112, 100 + 4*(i & 1), 104 - 4*((i >> 1) & 1), None if i == 0 else 112))
    a("""
    s_setprio 3
    s_barrier                              ; B0
    """)
    for i in range(3):
        a(f"ds_read_b64_tr_b16 {vr(80+4*i,2)}, v78 offset:{i*4096}")
        a(f"ds_read_b64_tr_b16 {vr(82+4*i,2)}, v78 offset:{i*4096+2048}")
    USP = int(E("USP", "0"))
    for i in range(3):
        a(f"s_waitcnt lgkmcnt({4 - 2*i})")
        a(f"buffer_store_dwordx4 {vr(80+4*i,4)}, v79, s[92:95], {['0','s54','s55'][i]} offen {E('STU', ST)}")
        if USP and i < 2:
            a("s_setprio 0"); emit([[]], fill, USP); a("s_setprio 3")
    DBL = int(E("DBL", "30"))
    dbl = f"s_setprio 3\nglobal_load_dword v6, v7, {sr(S_DBG,2)} sc1\ns_setprio 0"
    a("s_setprio 0\ns_waitcnt vmcnt(3)" if DBL else dbl + "\ns_waitcnt vmcnt(4)")
    stamp(a, 1)
    HD = int(E("HD", "0"))
    SL = [int(x) for x in E("SL", "110,180,70").split(",")]
    assert not PLAN_H[0] and not set("12") & set("".join(PLAN_H))
    if DBL:
        emit([[]], fill, DBL); a(dbl); SL[0] -= DBL
    emit(items(PLAN_H[1], 2, 3) or [[]], fill, SL[0], HD)
    a("s_barrier")
    h = int(E("USIG", "0"))
    emit([[]], fill, h)
    a(f"""
    s_setprio 3
    s_waitcnt vmcnt({nld(PLAN_H[1])})
    v_cmp_eq_u32 vcc, 0, v6
    s_cbranch_vccnz L_hs
L_hs_ok:
    s_mov_b64 exec, 1
    global_atomic_add v92, v93, {sr(S_CNT,2)} sc1
    s_mov_b64 exec, -1
    s_setprio 0
    """)
    if E("PU"): stamp(a, 8)
    STUBS.append(f"""
L_hs:
    s_mov_b32 s{T2}, 0
L_hs1:
    s_sleep 8
    global_load_dword v6, v7, {sr(S_DBG,2)} sc1
    s_add_u32 s{T2}, s{T2}, 1
    s_waitcnt vmcnt(0)
    v_cmp_eq_u32 vcc, 0, v6
    s_cbranch_vccz L_hs_ok
    s_cmp_lt_u32 s{T2}, {SPIN_MAX}
    s_cbranch_scc1 L_hs1
    {giveup("h")}
    s_branch L_hs_ok
    """)
    emit(items(PLAN_H[2], 2, 3) or [[]], fill, SL[1] - h, HD)
    wv = wait_for(PLAN_H, 2, "34")
    if wv is not None: a(f"s_waitcnt vmcnt({wv})")
    for ins in LATE: a(ins)
    a("s_barrier")
    hx = items(PLAN_H[3], 2, 3)
    HC = 6
    upoll = f"""
    s_mov_b64 exec, 1
    global_atomic_add v14, v{H_UTC}, v7, {sr(S_CNT,2)} sc0 sc1
    s_mov_b64 exec, -1
    """
    udma = f"""
    s_add_u32 m0, s17, {L_U + 512}
    s_mov_b32 s11, 1
    buffer_load_dwordx4 v{H_UTV}, {w}, s14 offen {LD} lds
    s_add_u32 m0, m0, 1024
    s_nop 0
    buffer_load_dwordx4 v{H_UTV}, {w}, s15 offen {LD} lds
    """
    def ucheck(tag, restore):
        a(f"s_cmp_eq_u32 s11, 0\ns_cbranch_scc1 L_uc_{tag}\nL_ub_{tag}:")
        STUBS.append(f"""
L_uc_{tag}:
        s_waitcnt vmcnt(0)
        v_readfirstlane_b32 s{T0}, v14
        s_cmp_lg_u32 s{T0}, 22
        s_cbranch_scc1 L_ua_{tag}
        {udma}
        {"s_mov_b32 m0, s18" if restore else ""}
        s_branch L_ub_{tag}
L_ua_{tag}:
        {upoll}
        s_branch L_ub_{tag}
        """)
    UP = E("UP", "b")
    a(f"s_cmp_ge_u32 s2, {0 if E('X_NOCONV') else 224}\ns_cselect_b32 s11, 1, 0")
    emit(hx, fill, SL[2], 0)
    assert UP == "b"
    a(upoll)
    wv = wait_for(PLAN_H, 3, "56")
    if wv is not None: a(f"s_waitcnt vmcnt({wv + 1})")
    a("s_barrier")
    stamp(a, 2)
    if UP == "c": a(upoll)
    assert not fill
    outproj_setup(a)
    wv = wait_for(PLAN_H, 3, "a")
    if wv is not None: a(f"s_waitcnt vmcnt({wv + 1})")
    a(f"""
    s_barrier                              ; BX1
    s_setprio 1
    """)
    emit([[]], fill, int(E("SLU", "0")))
    a("s_waitcnt vmcnt(1)")
    ucheck("1", False)
    emit([[]], fill, int(E("SLX", "50")))
    def frags(base):
        return [f"ds_read_b128 {vr(base + 4*ks, 4)}, v24 offset:{32*ks}" for ks in range(8)]
    ds = k0[1] + frags(FV0) + k0[2] + frags(FU0) + k1[1] + frags(FV1) + k1[2] + frags(FU1)
    emit([[]], fill, max(0, len(fill) - len(k1[0])))
    early = int(E("DSE", "0"))
    assert early <= 71
    a("s_mov_b32 m0, s18\ns_nop 0")
    for x in ds[:early]: a(x)
    a(f"""
    s_barrier                              ; BX2
    s_cmp_ge_u32 s2, {0 if E("X_NOCONV") else 224}
    s_cbranch_scc1 L_p3
    """)
    fill += [f"v_mov_b32 v{ZR+i}, 0" for i in range(4)] + [x.strip() for x in f"""v_lshl_add_u32 v6, v0, 3, s13
    ds_write_b64 v6, {vr(ZR,2)}
    v_add_u32 v6, s19, v0
    ds_write_b8 v6, v{ZR}
    s_xor_b32 s{T1}, s{S_LW}, 1
    s_mul_i32 s{T1}, s{T1}, 3072
    s_add_u32 s{T1}, s{T1}, {L_XCH}
    v_lshl_add_u32 v27, v0, 4, s{T1}""".split("\n")]
    MIX = 0 if early else int(E("MIX", "71"))
    nf = len(fill)
    if not MIX:
        for x in fill: a(x)
    c1 = max(early, int(E("UCHK", "60")))
    m0_at = int(E("KM0", "111"))
    mm0 = [mfma(KA, FU0 + 4*ks, FV0 + 4*ks, None if ks == 0 else KA) for ks in range(8)]
    for k, x in enumerate(ds[early:], early):
        if k == c1: ucheck("2", True); a("s_nop 0")
        if k == m0_at: a("s_waitcnt lgkmcnt(15)")
        if k >= m0_at and (k - m0_at) % 4 == 0 and mm0: a(mm0.pop(0))
        a(x)
        if k < MIX:
            for y in fill[nf * k // MIX: nf * (k + 1) // MIX]: a(y)
    for m in mm0: a(m)
    stamp(a, 3)
    for ks in range(8):
        a(f"s_waitcnt lgkmcnt({7 - ks})")
        a(mfma(KA, FU1 + 4*ks, FV1 + 4*ks, KA))
    a(f"""
    s_cmp_eq_u32 s11, 0
    s_cbranch_scc1 L_u_late
L_u_done:
    v_mov_b32 v15, 1
    v_xor_b32 v6, {4}, v255
    v_mov_b32 v36, 0
    v_and_b32 v37, 1, v0
    v_writelane_b32 v36, s{S_DSK}, 0
    v_cmp_eq_u32 vcc, 1, v37
    s_nop 3
    ds_write_b128 v25, {vr(KA,4)}
    ds_write_b128 v25, {vr(KA+4,4)} offset:1024
    ds_write_b128 v25, {vr(KA+8,4)} offset:2048
    s_waitcnt vmcnt(0)
    ds_write_b32 v255, v15
    """)
    st = Asm()
    st(f"""
L_u_late:
    s_waitcnt vmcnt(0)
    v_readfirstlane_b32 s{T0}, v14
    s_cmp_eq_u32 s{T0}, 22
    s_cbranch_scc1 L_ok_u
    """)
    poll(st, "u", H_UTC, "22", 1)
    st(udma + "s_branch L_u_done")
    STUBS.append(st.text())
    stamp(a, 4)
    a(f"""
L_xch:
    ds_read_b32 v14, v6
    ds_read_b128 v[60:63], v27
    ds_read_b128 v[64:67], v27 offset:1024
    ds_read_b128 v[68:71], v27 offset:2048
    s_waitcnt lgkmcnt(3)
    v_readfirstlane_b32 s{T0}, v14
    s_cmp_eq_u32 s{T0}, 0
    s_cbranch_scc1 L_xch
    s_mov_b64 exec, 1
    ds_add_u32 v{H_CNT}, v15 offset:4      ; done with the tables and the exchange buffers
    s_mov_b64 exec, -1
    """)
    for k in range(3):
        a(f"s_waitcnt lgkmcnt({3-k})")
        for e in (0, 2):
            a(f"v_pk_add_f32 {vr(KA+4*k+e,2)}, {vr(KA+4*k+e,2)}, {vr(60+4*k+e,2)}")
    def store(nd, reg, off):
        if nd == 2:
            a(f"ds_write_b64 v{H_K2}, {vr(reg,2)} offset:{off}")
        else:
            a(f"ds_write_b128 v{H_K4}, {vr(reg,4)} offset:{off}")
    expand2(a, store, KA)
    conv(a)
    a.label("L_p3")
    stamp(a, 7)
    outproj(a)

def fused():
    a = Asm()
    a(f"""
    s_getpc_b64 s[48:49]
L_pc:
    s_lshr_b32 s{T1}, s2, 3
    v_lshrrev_b32 v1, 5, v0
    v_lshl_add_u32 v1, s{T1}, 4, v1
    v_lshlrev_b32 v1, 7, v1
    v_cmp_gt_u32 vcc, L_slow-L_pc, v1
    s_load_dwordx8 s[8:15], s[0:1], 32
    s_load_dwordx4 s[4:7], s[0:1], 0
    s_mov_b64 exec, vcc
    global_load_dword v251, v1, s[48:49]
    s_mov_b64 exec, -1
    {"v_xor_b32 v0, 256, v0" if E("SWAP") else ""}
    {"s_nop 0" if E("SWAP") else ""}
    v_readfirstlane_b32 s{S_WAVE}, v0
    s_cmp_ge_u32 s2, 256
    s_cbranch_scc1 L_quit0
    """)
    prof_begin(a)
    a(f"""
    s_cmp_ge_u32 s{S_WAVE}, 256
    s_cbranch_scc0 L_g0
    s_load_dwordx4 s[16:19], s[0:1], 64
    s_load_dwordx2 s[22:23], s[0:1], 104
    s_load_dwordx4 s[96:99], s[0:1], 88
    s_load_dwordx2 s[100:101], s[0:1], 16
    s_setprio 3
    s_and_b32 s{T0}, s2, 7
    s_mul_i32 s{T0}, s{T0}, 28
    s_min_u32 s{T1}, s{T1}, 27
    s_add_u32 s{S_P}, s{T0}, s{T1}
    s_lshl_b32 s{T2}, s{S_P}, 2
    s_lshl_b32 s{T0}, s{S_P}, 10
    s_sub_u32 s{T0}, s{T0}, 1024
    v_lshl_add_u32 v1, v0, 2, s{T0}
    v_and_b32 v0, 63, v0
    s_lshr_b32 s{S_WAVE}, s{S_WAVE}, 6
    s_and_b32 s{S_LW}, s{S_WAVE}, 3
    v_mov_b32 v7, 0
    s_cmp_eq_u32 s2, {ZWG}
    s_waitcnt lgkmcnt(0)
    s_cbranch_scc1 L_zero
L_nozero_h:
    global_load_dword v8, v1, s[8:9]
    global_load_dword v9, v1, s[10:11]
    global_load_dword v10, v1, s[12:13]
    global_load_dword v11, v1, s[14:15]
    s_load_dword s51, s[16:17], s{T2}
    s_load_dword s52, s[18:19], s{T2}
    s_setprio 0
    s_branch L_h1
L_g0:
    s_and_b32 s{T0}, s2, 7
    s_lshr_b32 s{T1}, s2, 3
    s_mul_i32 s{T0}, s{T0}, 31
    s_add_u32 s{T0}, s{T0}, s{T1}          ; t
    s_cmp_ge_u32 s{T1}, 31
    s_cselect_b32 s{T0}, 242, s{T0}
    s_min_u32 s{T0}, s{T0}, 242
    s_mov_b32 s{T2}, 205
    s_cmp_lt_u32 s{T0}, 110
    s_cselect_b32 s{T1}, 0, 110
    s_cselect_b32 s{T2}, s{T2}, 171
    s_cselect_b32 s{T3}, 5, 6
    s_cselect_b32 s{S_CB}, 0, 5
    s_sub_u32 s{T0}, s{T0}, s{T1}
    s_mul_i32 s{S_RB}, s{T0}, s{T2}
    s_lshr_b32 s{S_RB}, s{S_RB}, 10
    s_mul_i32 s{T1}, s{S_RB}, s{T3}
    s_sub_u32 s{T0}, s{T0}, s{T1}
    s_add_u32 s{S_CB}, s{S_CB}, s{T0}
    {"s_sub_u32 s%d, 21, s%d" % (T0, S_RB) if E("REV") else ""}
    {"s_cmp_eq_u32 s%d, 5" % T3 if E("REV") else ""}
    {"s_cselect_b32 s%d, s%d, s%d" % (S_RB, T0, S_RB) if E("REV") else ""}
    s_add_u32 s{S_C0}, s{S_RB}, s{S_CB}
    s_mul_i32 s{T0}, s{S_C0}, 37
    s_lshr_b32 s{T0}, s{T0}, 8
    s_mul_i32 s{T0}, s{T0}, 7
    s_sub_u32 s{S_C0}, s{S_C0}, s{T0}
    {"s_and_b32 s%d, s%d, %s" % (S_C0, S_C0, E("X_ROT")) if E("X_ROT") else ""}
    s_lshl_b32 s{S_LW1K}, s{S_WAVE}, 4
    v_lshrrev_b32 v4, 4, v0
    v_lshlrev_b32 v5, 2, v4
    v_xor_b32 v5, v5, v0
    v_and_b32 v5, 15, v5
    v_mul_u32_u24 v229, 2688, v4
    v_lshl_add_u32 v229, v5, 4, v229
    s_lshl_b32 s{T2}, s{S_CB}, 8
    s_sub_u32 s{SRD_W+2}, {W_BYTES}, s{T2}
    s_mul_i32 s{T3}, s{S_RB}, {96*896}
    s_sub_u32 s{SRD_X+2}, {X_BYTES}, s{T3}
    s_cselect_b32 s{SRD_X+2}, 0, s{SRD_X+2}
    s_cselect_b32 s{SRD_W+2}, 0, s{SRD_W+2}
    s_mov_b32 s{SRD_W+3}, 0x20000
    s_mul_i32 s58, s{S_C0}, {64*2688}
    s_add_u32 m0, s{S_LW1K}, {SLOT_AT[0]}
    s_waitcnt lgkmcnt(0)
    s_add_u32 s{SRD_W}, s{S_W}, s{T2}
    s_addc_u32 s{SRD_W+1}, s{S_W+1}, 0
    buffer_load_dwordx4 v229, {sr(SRD_W,4)}, s58 offen lds
    """)
    if E("PK"): stamp(a, 10)
    a(f"""
    v_xor_b32 v5, v4, v0
    v_and_b32 v5, 7, v5
    v_lshrrev_b32 v4, 3, v0
    v_mul_u32_u24 v252, 896, v4
    v_lshl_add_u32 v252, v5, 4, v252
    s_add_u32 s{SRD_X}, s{S_X}, s{T3}
    s_addc_u32 s{SRD_X+1}, s{S_X+1}, 0
    s_mov_b32 s{SRD_X+3}, 0x20000
    s_lshl_b32 s59, s{S_C0}, 7
    s_load_dwordx2 s[20:21], s[0:1], 80
    s_load_dwordx2 s[22:23], s[0:1], 104
    s_load_dwordx4 s[96:99], s[0:1], 88
    s_load_dwordx2 s[100:101], s[0:1], 16
    """)
    for g_ in dma_chunk(0, 252, 229)[1:]:
        for x in g_: a(x)
    a(f"""
    v_and_b32 v0, 63, v0
    s_lshr_b32 s{S_WAVE}, s{S_WAVE}, 6
    s_mov_b32 s{S_LW}, s{S_WAVE}
    s_mov_b32 s{S_CH}, s{S_C0}
    s_mov_b32 s{SRD_WS+2}, 896
    s_mov_b32 s{SRD_WS+3}, 0x20000
    s_mov_b32 m0, {L_GATE}
    v_lshlrev_b32 v4, 4, v0
    s_cmp_eq_u32 s2, {ZWG}
    s_waitcnt lgkmcnt(0)
    s_mov_b32 s{SRD_WS}, s20
    s_mov_b32 s{SRD_WS+1}, s21
    buffer_load_dwordx4 v4, {sr(SRD_WS,4)}, 0 offen lds
    s_cbranch_scc0 L_g1
    s_barrier
    s_branch L_g1
L_zero:
    s_add_u32 s{S_CNT}, s{S_WS}, {WS_CNT}
    s_addc_u32 s{S_CNT+1}, s{S_WS+1}, 0
    """)
    stamp(a, 3)
    a(f"""
    s_mul_i32 s{T0}, s{S_LW}, {(NLINE // 4) << CS}
    v_lshrrev_b32 v4, 1, v0
    v_lshl_add_u32 v4, v4, {CS}, s{T0}
    v_and_b32 v5, 1, v0
    v_lshl_add_u32 v4, v5, 4, v4
    v_mov_b32 v20, 0
    v_mov_b32 v21, 0
    v_mov_b32 v22, 0
    v_mov_b32 v23, 0
    global_store_dwordx4 v4, v[20:23], {sr(S_CNT,2)} sc0 sc1
    s_lshl_b32 s{T0}, s{S_LW}, 4
    v_add_u32 v4, s{T0}, v0
    v_mul_u32_u24 v4, {TILE_B}, v4
    v_add_u32 v4, {WS_ONE}, v4
    v_mov_b32 v16, 0x3f803f80
    v_mov_b32 v17, v16
    v_mov_b32 v18, v16
    v_mov_b32 v19, v16
    s_mov_b64 exec, 0xffff
    global_store_dwordx4 v4, v[16:19], {sr(S_WS,2)} sc0 sc1
    s_mov_b64 exec, -1
    v_mov_b32 v21, 1
    s_waitcnt vmcnt(0)
    s_barrier
    s_cmp_lg_u32 s{S_WAVE}, 4
    s_cbranch_scc1 L_nozero_h
    s_mov_b64 exec, 1
    global_store_dword v20, v21, {sr(S_DBG,2)} sc0 sc1
    s_mov_b64 exec, -1
    """)
    stamp(a, 4)
    a("s_waitcnt vmcnt(0)")
    stamp(a, 5)
    a(f"""
    s_branch L_nozero_h
L_g1:
    """)
    if E("PB") and not E("PK"): stamp(a, 10)
    a(f"""
    s_setprio 2
    s_add_u32 s{S_CNT}, s{S_WS}, {WS_CNT}
    s_addc_u32 s{S_CNT+1}, s{S_WS+1}, 0
    v_mov_b32 v4, 0
    v_mov_b32 v5, 0
    v_lshlrev_b32 v6, 3, v0
    v_and_b32 v6, 63, v6
    v_add_u32 v6, {L_CNT}, v6
    ds_write_b64 v6, v[4:5]
    v_lshlrev_b32 v{A_L16}, 4, v0
    """)
    gemm_setup(a)
    a(f"""
L_h1:
    s_and_b32 s{T0}, s2, 7
    s_lshr_b32 s{T1}, s2, 3
    s_mul_i32 s{T0}, s{T0}, 31
    s_add_u32 s{T0}, s{T0}, s{T1}          ; t
    s_cmp_ge_u32 s{T1}, 31
    s_cselect_b32 s{T0}, 242, s{T0}
    s_min_u32 s{T0}, s{T0}, 242
    s_mov_b32 s{T2}, 205
    s_cmp_lt_u32 s{T0}, 110
    s_cselect_b32 s{T1}, 0, 110
    s_cselect_b32 s{T2}, s{T2}, 171
    s_cselect_b32 s{T3}, 5, 6
    s_cselect_b32 s{S_CB}, 0, 5
    s_sub_u32 s{T0}, s{T0}, s{T1}
    s_mul_i32 s{S_RB}, s{T0}, s{T2}
    s_lshr_b32 s{S_RB}, s{S_RB}, 10
    s_mul_i32 s{T1}, s{S_RB}, s{T3}
    s_sub_u32 s{T0}, s{T0}, s{T1}
    s_add_u32 s{S_CB}, s{S_CB}, s{T0}
    {"s_sub_u32 s%d, 21, s%d" % (T0, S_RB) if E("REV") else ""}
    {"s_cmp_eq_u32 s%d, 5" % T3 if E("REV") else ""}
    {"s_cselect_b32 s%d, s%d, s%d" % (S_RB, T0, S_RB) if E("REV") else ""}
    s_add_u32 s{S_C0}, s{S_RB}, s{S_CB}
    s_mul_i32 s{T0}, s{S_C0}, 37
    s_lshr_b32 s{T0}, s{T0}, 8
    s_mul_i32 s{T0}, s{T0}, 7
    s_sub_u32 s{S_C0}, s{S_C0}, s{T0}
    {"s_and_b32 s%d, s%d, %s" % (S_C0, S_C0, E("X_ROT")) if E("X_ROT") else ""}
    s_lshl_b32 s{S_LW1K}, s{S_LW}, 10
    v_lshrrev_b32 v4, 3, v0
    s_lshl_b32 s{T1}, s{S_LW}, 3
    v_add_u32 v4, s{T1}, v4
    v_lshrrev_b32 v5, 1, v4
    v_xor_b32 v5, v5, v0
    v_and_b32 v5, 7, v5
    v_mul_u32_u24 v2, 896, v4
    v_lshl_add_u32 v2, v5, 4, v2
    s_mov_b32 s{S_CH}, s{S_C0}
    s_mul_i32 s58, s{S_RB}, {96*896}
    s_sub_u32 s{SRD_X+2}, {X_BYTES}, s58
    s_cselect_b32 s{SRD_X+2}, 0, s{SRD_X+2}
    s_mov_b32 s{SRD_X+3}, 0x20000
    s_mov_b32 s{SRD_W+3}, 0x20000
    s_add_u32 s{SRD_X}, s{S_X}, s58
    s_addc_u32 s{SRD_X+1}, s{S_X+1}, 0
    v_lshrrev_b32 v4, 4, v0
    v_lshlrev_b32 v5, 2, v4
    v_xor_b32 v5, v5, v0
    v_and_b32 v5, 15, v5
    s_lshl_b32 s{T1}, s{S_LW}, 2
    v_add_u32 v4, s{T1}, v4
    v_mul_u32_u24 v3, 2688, v4
    v_lshl_add_u32 v3, v5, 4, v3
    s_lshl_b32 s59, s{S_CB}, 8
    s_sub_u32 s{SRD_W+2}, {W_BYTES}, s59
    s_cmp_ge_u32 s{S_RB}, 22
    s_cselect_b32 s{SRD_W+2}, 0, s{SRD_W+2}
    s_add_u32 s{SRD_W}, s{S_W}, s59
    s_addc_u32 s{SRD_W+1}, s{S_W+1}, 0
    s_add_u32 s{S_CNT}, s{S_WS}, {WS_CNT}
    s_addc_u32 s{S_CNT+1}, s{S_WS+1}, 0
L_helper:
    """)
    helper_waves(a)
    a(f"""
L_quit0:
    s_endpgm
    """)
    gemm_waves(a)
    attention(a)
    a.label("L_fin")
    store_o(a)
    a.label("L_end")
    prof_end(a, 0, S_WS, S_WAVE)
    a.label("L_quit")
    a("s_endpgm")
    n0 = len(STUBS)
    for x in STUBS: a(x)
    fallback(a)
    for x in STUBS[n0:]: a(x)
    return a

DOC = """;
;   waves 0-3: x @ wqkv (96 x 128 tile, bf16 MFMA, gate logit as an extra column tile) -> workspace, then
;              attention of (head, 128 queries), each wave one quarter of the keys. exp2 runs without a shift;
;              [21 x 512] x [512 x 32] product, D_skip folded into tap 0), causal convolution as Toeplitz MFMA,
;              then o @ wo and the gated mix for 32 tokens x 128 channels.
"""

def build():
    ref = open("cdna_kernels/%s.s.ref" % NAME).read().split("\n")
    out = "\n".join(ref[:15]) + "\n"
    out += f"; @launch grid=(256,1,1) block=(512,1,1) lds={LDS_TOTAL}\n"
    out += DOC
    out += '.amdgcn_target "amdgcn-amd-amdhsa--gfx950"\n.text\n'
    out += kernel_head(NAME + "_kernel") + fused().text()
    out += '.section .rodata,"a"\n'
    out += kernel_desc(NAME + "_kernel", NV, 102)
    return out

if __name__ == "__main__":
    import sys
    dst = sys.argv[1] if len(sys.argv) > 1 else "cdna_kernels/%s.s" % NAME
    open(dst, "w").write(build())
```

```python
import gen1, gen11, re
from gen1 import HEAD
files = []
def body2(cuts, order, nq=4, pad=0):
    out = []
    for t in range(16):
        Sc, Sn, Pc, Pp = ((16, 32, 48, 56), (32, 16, 56, 48))[t & 1]
        K = 80 + 16 * ((t >> 2) & 1); V = K + 8; Q = 112 + 8 * (t & 1)
        O = 128 + 16 * (t % nq)
        m = [f"v_mfma_f32_32x32x16_bf16 v[{Sn}:{Sn+15}], v[{K}:{K+3}], v[{Q}:{Q+3}], 0",
             f"v_mfma_f32_32x32x16_bf16 v[{Sn}:{Sn+15}], v[{K+4}:{K+7}], v[{Q+4}:{Q+7}], v[{Sn}:{Sn+15}]",
             f"v_mfma_f32_32x32x16_bf16 v[{O}:{O+15}], v[{V}:{V+3}], v[{Pp}:{Pp+3}], v[{O}:{O+15}]",
             f"v_mfma_f32_32x32x16_bf16 v[{O}:{O+15}], v[{V+4}:{V+7}], v[{Pp+4}:{Pp+7}], v[{O}:{O+15}]"]
        valu = []
        for g in range(4):
            for j in range(4):
                valu.append(f"v_exp_f32 v{Sc+4*g+j}, v{Sc+4*g+j}")
                if g > 0 and j == 0:
                    valu.append(f"v_cvt_pk_bf16_f32 v{Pc+2*g-2}, v{Sc+4*g-4}, v{Sc+4*g-3}")
                    valu.append(f"v_cvt_pk_bf16_f32 v{Pc+2*g-1}, v{Sc+4*g-2}, v{Sc+4*g-1}")
        valu += [f"v_cvt_pk_bf16_f32 v{Pc+6}, v{Sc+12}, v{Sc+13}", f"v_cvt_pk_bf16_f32 v{Pc+7}, v{Sc+14}, v{Sc+15}"]
        for g in range(4):
            out.append(m[order[g]])
            out += valu[cuts[g]:cuts[g+1]]
        out += ["s_nop 0"] * pad
    return "\n".join("    " + x for x in out)

def make(fname, perm=False, oacc=False, kvacc=False, qacc=False, rows="rand", bd=None):
    s = HEAD.format(grid=256, block=256, lds=100000, wpb=4)
    s += "    v_lshlrev_b32 v2, 4, v0\n    v_and_b32 v3, 31, v0\n    s_mov_b32 s40, 0x07060302\n"
    for r in range(16, 128):
        s += f"    v_mov_b32 v{r}, 0\n"
    for i, r in enumerate(range(80, 128, 4)):
        s += f"    global_load_dwordx4 v[8:11], v2, s[4:5]\n    v_add_u32 v2, 4096, v2\n    global_load_dwordx4 v[12:15], v2, s[4:5]\n    v_add_u32 v2, 4096, v2\n    s_waitcnt vmcnt(0)\n"
        for j in range(4):
            s += f"    v_cvt_pk_bf16_f32 v{r+j}, v{8+j}, v{12+j}\n"
    if rows != "rand":
        s += "    v_mov_b32 v4, 0x3f803f80\n    v_cmp_le_u32 vcc, 28, v3\n    v_cmp_le_u32 s[42:43], 29, v3\n    s_nop 1\n"
        for r in list(range(88, 96)) + list(range(104, 112)):
            s += f"    v_cndmask_b32 v{r}, v{r}, v4, vcc\n"
            if rows == "one": s += f"    v_cndmask_b32 v{r}, v{r}, 0, s[42:43]\n"
    for r in range(128, 192):
        s += f"    v_mov_b32 v{r}, 0\n"
    body = bd
    if perm:
        body = re.sub(r"v_cvt_pk_bf16_f32 (v\d+), (v\d+), (v\d+)", r"v_perm_b32 \1, \3, \2, s40", body)
    def toa(m):
        lo, hi = int(m.group(1)), int(m.group(2))
        if (oacc and lo == 64) or (kvacc and 80 <= lo < 112) or (qacc and lo >= 112):
            return f"a[{lo-64}:{hi-64}]"
        return m.group(0)
    body = re.sub(r"v\[(\d+):(\d+)\]", toa, body)
    s += """    s_memrealtime s[32:33]
    s_waitcnt lgkmcnt(0)
    s_add_u32 s34, s32, 300
    s_or_b32 s34, s34, 1023
L_al:
    s_memrealtime s[32:33]
    s_waitcnt lgkmcnt(0)
    s_sub_u32 s35, s32, s34
    s_cmp_lt_i32 s35, 0
    s_cbranch_scc1 L_al
"""
    s += f"""    s_mov_b32 s10, 4
    s_memrealtime s[24:25]
    s_memtime s[20:21]
    s_waitcnt lgkmcnt(0)
.p2align 6
L_loop:
{body}
    s_sub_u32 s10, s10, 1
    s_cmp_lg_u32 s10, 0
    s_cbranch_scc1 L_loop
    s_nop 15
    s_memtime s[22:23]
    s_memrealtime s[26:27]
    s_waitcnt lgkmcnt(0)
""" + gen11.TAIL.replace("vgpr 128", "vgpr 192").replace("offset 128", "offset 192")
    open(fname, "w").write(s); files.append(fname)

make("e2_base.s", rows="four", bd=body2([0,4,10,16,24], [0,1,2,3]))
make("e2_tight.s", rows="four", bd=body2([0,3,7,10,24], [0,1,2,3]))
make("e2_pairs.s", rows="four", bd=body2([0,3,11,15,24], [0,1,2,3]))
make("e2_alt.s", rows="four", bd=body2([0,4,10,16,24], [0,2,1,3]))
make("e2_even.s", rows="four", bd=body2([0,5,11,17,24], [0,1,2,3]))
make("e2_pad2.s", rows="four", bd=body2([0,4,10,16,24], [0,1,2,3], pad=2))
make("e2_pad4.s", rows="four", bd=body2([0,4,10,16,24], [0,1,2,3], pad=4))
print(" ".join(files))
```
